```python
import torch

def _softmax(x, axis=-1):
    return torch.softmax(x, dim=axis)
def _gelu(x):
    return torch.nn.functional.gelu(x, approximate="tanh")
def _silu(x):
    return torch.nn.functional.silu(x)
def _sigmoid(x):
    return torch.sigmoid(x)
def _layernorm(x, axis=-1, eps=1e-5):
    m = x.mean(dim=axis, keepdim=True)
    v = x.var(dim=axis, keepdim=True, unbiased=False)
    return (x - m) / torch.sqrt(v + eps)
def _scatter_add(tgt, idx, src, axis=0):
    return tgt.clone().index_add_(axis, idx, src)
def _segment_sum(src, seg, n):
    out = torch.zeros((n,) + src.shape[1:], dtype=src.dtype)
    return out.index_add_(0, seg, src)
def _pad(x, pw):
    flat = tuple(v for pair in reversed(pw) for v in pair)
    return torch.nn.functional.pad(x, flat)

kernel_name = 'concat_heads__ssm_conv_s4d__spectral_gfnet__prompt'

def setup_inputs():

    _w = (lambda a: (lambda t: t.to(torch.bfloat16) if t.is_floating_point() else t)(torch.as_tensor(a)))
    def _A_setup():
        Bsz, L, D, N = 1, 2048, 1024, 128
        return {
            "u": _w((lambda *s: torch.randn(*s, dtype=torch.bfloat16) * 0.05)(Bsz, L, D)),
            "log_A_real": _w((lambda *s: torch.randn(*s, dtype=torch.bfloat16) * 6.4)(D, N) * 0.5),
            "A_imag": _w((lambda *s: torch.randn(*s, dtype=torch.bfloat16) * 0.05)(D, N) * 3.14),
            "C_real": _w((lambda *s: torch.randn(*s, dtype=torch.bfloat16) * 0.05)(D, N) / N ** 0.5),
            "C_imag": _w((lambda *s: torch.randn(*s, dtype=torch.bfloat16) * 0.05)(D, N) / N ** 0.5),
            "log_dt": _w((lambda *s: torch.randn(*s, dtype=torch.bfloat16) * 0.05)(D) * 0.5 - 4.0),
            "D_skip": _w((lambda *s: torch.randn(*s, dtype=torch.bfloat16) * 0.05)(D)),
        }
    _A_in = _A_setup()

    def _B_setup():
        B, S, D = 1, 2048, 1024
        Df = D // 2 + 1
        return {
            "x": _w((lambda *s: torch.randn(*s, dtype=torch.bfloat16) * 0.05)(B, S, D)),
            "w_r": _w((lambda *s: torch.randn(*s, dtype=torch.bfloat16) * 0.8)(S, Df) * 0.02),
            "w_i": _w((lambda *s: torch.randn(*s, dtype=torch.bfloat16) * 0.8)(S, Df) * 0.02),
        }
    _B_in = _B_setup()

    return {
        "A_u": _A_in["u"],
        "A_log_A_real": _A_in["log_A_real"],
        "A_A_imag": _A_in["A_imag"],
        "A_C_real": _A_in["C_real"],
        "A_C_imag": _A_in["C_imag"],
        "A_log_dt": _A_in["log_dt"],
        "A_D_skip": _A_in["D_skip"],
        "B_x": _B_in["x"],
        "B_w_r": _B_in["w_r"],
        "B_w_i": _B_in["w_i"],
    }

def reference(A_u, A_log_A_real, A_A_imag, A_C_real, A_C_imag, A_log_dt, A_D_skip, B_x, B_w_r, B_w_i):
    def _A_ref(u, log_A_real, A_imag, C_real, C_imag, log_dt, D_skip):
        L = u.shape[1]
        dt = torch.exp(log_dt)
        A = -torch.exp(log_A_real) + 1j * A_imag
        C = (C_real + 1j * C_imag) * dt[:, None]
        pos = (lambda x, dt: x.to(dt))(torch.arange(L), log_dt.dtype)
        P = torch.exp((A * dt[:, None])[:, :, None] * pos[None, None, :])
        K = 2.0 * torch.einsum("dn,dnl->dl", C, P).real
        L2 = 2 * L
        u_t = (lambda x, *d: x.permute(*d))(u, 0, 2, 1)
        Kf = (lambda x, *a, **k: torch.fft.rfft(x.float(), *a, **k))(K, L2)
        Uf = (lambda x, *a, **k: torch.fft.rfft(x.float(), *a, **k))(u_t, L2)
        y = (lambda x, *a, **k: torch.fft.irfft(x, *a, **k).to(torch.bfloat16))(Uf * Kf[None, :, :], L2)[:, :, :L]
        y = (lambda x, *d: x.permute(*d))(y, 0, 2, 1)
        return y + u * D_skip[None, None, :]

    def _B_ref(x, w_r, w_i):
        B, S, D = x.shape
        X = (lambda x, axes=(-2,-1): torch.fft.rfft2(x.float(), dim=axes))(x, axes=(-2, -1))
        W = w_r + 1j * w_i
        X = X * W
        y = (lambda x, s, axes=(-2,-1): torch.fft.irfft2(x, s=s, dim=axes).to(torch.bfloat16))(X, (S, D), axes=(-2, -1))
        return y

    a = _A_ref(A_u, A_log_A_real, A_A_imag, A_C_real, A_C_imag, A_log_dt, A_D_skip)
    b = _B_ref(B_x, B_w_r, B_w_i)
    return torch.concatenate([a, b], axis=-1)
```

```python
import re

TRANS = ('v_exp_f32', 'v_log_f32', 'v_rcp_f32', 'v_rsq_f32', 'v_sqrt_f32', 'v_sin_f32', 'v_cos_f32')

def regs_of(tok):
    tok = tok.strip()
    tok = tok.lstrip('-')
    m = re.match(r'^abs\((.*)\)$', tok)
    if m: tok = m.group(1)
    m = re.match(r'^\|(.*)\|$', tok)
    if m: tok = m.group(1)
    m = re.match(r'^([vsa])(\d+)$', tok)
    if m: return {(m.group(1), int(m.group(2)))}
    m = re.match(r'^([vsa])\[(\d+):(\d+)\]$', tok)
    if m: return {(m.group(1), i) for i in range(int(m.group(2)), int(m.group(3)) + 1)}
    if tok in ('vcc', 'vcc_lo', 'vcc_hi'): return {('x', 'vcc')}
    if tok in ('exec', 'exec_lo', 'exec_hi'): return {('x', 'exec')}
    if tok == 'm0': return {('x', 'm0')}
    return set()

class Ins:
    def __init__(self, text):
        self.text = text
        body = text.split(';')[0].strip()
        self.op = body.split()[0] if body else ''
        rest = body[len(self.op):].strip()
        ops, depth, cur = [], 0, ''
        for ch in rest:
            if ch == '[': depth += 1
            if ch == ']': depth -= 1
            if ch == ',' and depth == 0:
                ops.append(cur.strip()); cur = ''
            else:
                cur += ch
        if cur.strip(): ops.append(cur.strip())
        self.mods = ''
        if ops:
            parts = ops[-1].split()
            ops[-1] = parts[0]
            self.mods = ' '.join(parts[1:])
        self.ops = ops
        op = self.op
        self.is_mfma = op.startswith('v_mfma')
        self.is_valu = op.startswith('v_') and not self.is_mfma
        self.is_trans = any(op.startswith(t) for t in TRANS)
        self.is_ds = op.startswith('ds_')
        self.is_vmem = op.startswith(('buffer_', 'global_', 'flat_'))
        self.is_salu = op.startswith('s_')
        self.passes = 0
        self.w, self.r = set(), set()
        self.srcC = set(); self.srcAB = set()
        R = [regs_of(o) for o in ops]
        if self.is_mfma:
            self.passes = 8 if '32x32x16' in op else 4 if '16x16x32' in op else None
            assert self.passes, op
            self.w = R[0]; self.srcAB = R[1] | R[2]; self.srcC = R[3]
            self.r = self.srcAB | self.srcC
        elif self.is_valu:
            if op.startswith(('v_swap', 'v_permlane')):
                self.w = R[0] | R[1]; self.r = R[0] | R[1]
            elif op.startswith(('v_add_co', 'v_sub_co', 'v_addc_co', 'v_subb_co', 'v_subrev_co', 'v_subbrev_co')):
                self.w = R[0] | R[1]; self.r = set().union(*R[2:])
            elif op == 'v_nop':
                pass
            else:
                self.w = set(R[0]); self.r = set().union(*R[1:]) if len(R) > 1 else set()
                if op.startswith(('v_fmac', 'v_pk_fmac', 'v_writelane', 'v_dot2c')): self.r |= R[0]
                if op.startswith('v_cmpx'): self.w |= {('x', 'exec')}
        elif self.is_ds:
            if op.startswith(('ds_read', 'ds_bpermute', 'ds_permute', 'ds_swizzle')) or '_rtn' in op:
                self.w = R[0]; self.r = set().union(*R[1:])
                if 'd16' in op: self.r |= R[0]
            else:
                self.r = set().union(*R)
            if 'addtid' in op: self.r |= {('x', 'm0')}
        elif self.is_vmem:
            if 'load' in op and ' lds' not in (' ' + self.mods + ' ') and '_lds_' not in op:
                self.w = R[0]; self.r = set().union(*R[1:])
                if 'd16' in op: self.r |= R[0]
            else:
                self.r = set().union(*R)
                if 'load' in op: self.r |= {('x', 'm0')}
        elif self.is_salu:
            if op.startswith(('s_cmp', 's_cbranch', 's_branch', 's_waitcnt', 's_nop', 's_barrier', 's_sleep', 's_setprio', 's_endpgm', 's_bitcmp')):
                self.r = set().union(*R) if R else set()
            else:
                self.w = set(R[0]) if R else set(); self.r = set().union(*R[1:]) if len(R) > 1 else set()
                if 'saveexec' in op: self.w |= {('x', 'exec')}
        self.states = 1
        if op == 's_nop': self.states = int(ops[0], 0) + 1

def need(p, c):
    n = 0
    vw = {x for x in p.w if x[0] in 'va'}
    sw = {x for x in p.w if x[0] == 's' or x == ('x', 'vcc')}
    if p.is_valu:
        if c.is_mfma and (vw & c.r): n = max(n, 2)
        if p.is_trans and c.is_valu and not c.is_trans and (vw & c.r): n = max(n, 1)
        if p.is_trans and (c.is_ds or c.is_vmem) and (vw & c.r): n = max(n, 1)
        if c.is_valu and (sw & c.r): n = max(n, 2)
        if c.is_valu and c.op.startswith(('v_readlane', 'v_writelane')) and (sw & c.r): n = max(n, 4)
        if c.is_vmem and (sw & c.r): n = max(n, 5)
        if c.is_salu and (sw & c.r): n = max(n, 2)
        if c.op.startswith(('v_readfirstlane', 'v_readlane')) and (vw & c.r): n = max(n, 1)
        if c.is_valu and ('dpp' in c.op or 'quad_perm' in c.mods or 'row_' in c.mods or 'wave_' in c.mods) and (vw & c.r): n = max(n, 2)
        if c.op.startswith('v_permlane') and (vw & c.r): n = max(n, 2)
        if ('x', 'exec') in p.w:
            if c.is_mfma or c.op.startswith(('v_readfirstlane', 'v_readlane', 'v_writelane', 'v_permlane')): n = max(n, 4)
            if c.is_valu and ('dpp' in c.op): n = max(n, 5)
        if ('sdwa' in p.op or 'op_sel' in p.mods) and not p.op.startswith('v_pk') and c.is_valu and (vw & (c.r | c.w)): n = max(n, 1)
    if p.is_mfma:
        big = {4: 8, 8: 12}[p.passes]
        if c.is_mfma:
            if p.w & c.srcAB: n = max(n, big)
            if p.w & c.srcC:
                if not (p.w == c.srcC and p.passes == c.passes): n = max(n, big - 2)
            if (p.w & c.w) and not (p.w & c.srcC): n = max(n, big)
        else:
            if p.w & (c.r | c.w): n = max(n, big)
            if c.is_valu and (p.srcC & c.w): n = max(n, {4: 3, 8: 7}[p.passes])
    if p.is_salu and ('x', 'm0') in p.w and ('x', 'm0') in c.r: n = max(n, 1)
    if p.is_vmem and 'store' in p.op and ('x3' in p.op or 'x4' in p.op):
        data = regs_of(p.ops[0]) if p.op.startswith('buffer') else regs_of(p.ops[1])
        if data & c.w: n = max(n, 2 if c.is_valu else 1)
    return n

class Asm:
    def __init__(self):
        self.items = []
        self.nlabel = 0
    def __call__(self, s):
        for line in s.strip().split('\n'):
            line = line.strip()
            if not line: continue
            if line.startswith(';') or line.startswith('.') and not line.endswith(':'):
                self.items.append(('l', line))
            elif line.endswith(':'):
                self.items.append(('l', line))
            else:
                self.items.append(('i', Ins(line)))
    def label(self, base='L'):
        self.nlabel += 1
        return f'.{base}_{self.nlabel}'
    def raw(self, text):
        self.items.append(('l', text))
    def render(self):
        snaps = {}
        for _ in range(3):
            out, snaps = self._render(snaps)
        return out
    def _render(self, prev):
        out = []
        hists = [[]]
        snaps = {}
        for kind, it in self.items:
            if kind == 'l':
                out.append(it)
                if it.endswith(':'):
                    name = it[:-1]
                    for h in snaps.get(name, []) + prev.get(name, []):
                        hists.append(list(h))
                continue
            req = 0
            for hist in hists:
                dist = 0
                for p in reversed(hist):
                    n = need(p, it)
                    if n > dist: req = max(req, n - dist)
                    dist += p.states
                    if dist >= 24: break
            while req > 0:
                k = min(req, 16)
                nop = Ins(f's_nop {k-1}')
                out.append('    ' + nop.text)
                for hist in hists: hist.append(nop)
                req -= k
            out.append('    ' + it.text)
            for hist in hists: hist.append(it)
            hists = [h[-26:] for h in hists]
            uniq = []
            for h in hists:
                if not any(len(u) == len(h) and all(a is b for a, b in zip(u, h)) for u in uniq): uniq.append(h)
            hists = uniq
            if it.op.startswith(('s_cbranch', 's_branch')):
                snaps.setdefault(it.ops[0], []).extend([list(h) for h in hists])
            if it.op in ('s_endpgm', 's_branch'):
                hists = [[]]
        return '\n'.join(out) + '\n', snaps
```

```python
import sys
sys.path.insert(0, 'dev')
from gen import *

CS = 4640
CV_K = 4 * CS
CV_WAVE = CV_K + 4224
K2_ZB = 4 * CV_WAVE
K2_WB = K2_ZB + 16384
K2_CNT = K2_WB + 16384
K2_LDS = K2_CNT + 64

def swap4x4(a, base):
    for i in range(4):
        for j in range(i + 1, 4):
            a(f'v_swap_b32 v{base+4*i+j}, v{base+4*j+i}')

def cmul_pk(a, dr, di, xr, xi, cr, ci, conj):
    a(f'v_pk_mul_f32 {vr(dr,2)}, {vr(xi,2)}, {vr(ci,2)}')
    a(f'v_pk_mul_f32 {vr(di,2)}, {vr(xr,2)}, {vr(ci,2)}')
    neg = ' neg_lo:[0,0,1] neg_hi:[0,0,1]'
    a(f'v_pk_fma_f32 {vr(dr,2)}, {vr(xr,2)}, {vr(cr,2)}, {vr(dr,2)}' + ('' if conj else neg))
    a(f'v_pk_fma_f32 {vr(di,2)}, {vr(xi,2)}, {vr(cr,2)}, {vr(di,2)}' + (neg if conj else ''))

def gen_k2(a):
    a.raw('.p2align 8')
    a.raw('k2_kernel:')
    EXIT = '.k2_exit'
    prologue(a, 256, EXIT)
    lane = 2
    a('s_cmp_ge_u32 s3, 4')
    a('s_cbranch_scc1 .k2_fft')
    srd(a, 44, P_WS, 1024 * UP, WS_UT)
    srd(a, 48, P_WS, 1024 * 2048, WS_KC)
    srd(a, 52, P_WS, 4 << 20, WS_YT)
    KC = 8
    a(f'''
    s_setprio 2
    s_lshl_b32 s9, s2, 2
    s_add_u32 s9, s9, s3            ; channel
    s_mul_i32 s10, s3, {CV_WAVE}
    v_lshlrev_b32 v3, 4, v{lane}
    s_lshl_b32 s4, s9, 11
    buffer_load_dwordx4 {vr(KC,4)}, v3, s[48:51], s4 offen
    buffer_load_dwordx4 {vr(KC+4,4)}, v3, s[48:51], s4 offen offset:1024
    s_mul_i32 s4, s9, {UP}
    s_add_u32 s4, s4, {64-6}
    s_add_u32 s5, s10, 384
    ''')
    for c in range(4):
        a('s_mov_b32 m0, s5')
        for p in range(4):
            a(f'buffer_load_dwordx4 v3, s[44:47], s4 offen offset:{p*1024} lds')
        if c < 3:
            a('s_add_u32 s4, s4, 2')
            a(f's_add_u32 s5, s5, {CS}')
    a('s_barrier')
    a(f'''
    v_mov_b32 v16, 0
    v_mov_b32 v17, 0
    v_mov_b32 v18, 0
    v_mov_b32 v19, 0
    v_add_u32 v4, s10, v3
    s_mov_b64 exec, 0xffffff
    ''')
    for c in range(4):
        a(f'ds_write_b128 v4, v[16:19] offset:{c*CS}')
    a(f'''
    s_mov_b64 exec, 0xff
    ds_write_b128 v4, v[16:19] offset:{CV_K+4096}
    s_mov_b64 exec, -1
    ''')
    a(f'''
    v_and_b32 v4, 31, v{lane}             ; b
    v_lshrrev_b32 v5, 5, v{lane}          ; h
    v_lshlrev_b32 v6, 4, v4               ; 16 b
    s_add_u32 s11, s10, {CV_K}
    v_sub_u32 v6, s11, v6                 ; Kr - 16 b
    v_lshlrev_b32 v7, 3, v5
    v_sub_u32 v20, v6, v7                 ; - 8h   (+2*1788)
    v_lshlrev_b32 v7, 9, v5
    v_sub_u32 v21, v6, v7                 ; - 512h (+2*1528)
    v_sub_u32 v22, v21, v7                ; - 1024h (+2*760)
    v_add_u32 v22, {2*760}, v22
    v_add_u32 v21, {2*1528}, v21
    v_add_u32 v20, {2*1788}, v20
    v_and_b32 v7, 1, v4
    v_mul_u32_u24 v7, 0x20200, v7
    v_lshlrev_b32 v7, 8, v7
    v_add_u32 v7, 0x01000302, v7
    s_mov_b32 s4, 0x01000100
    s_mov_b32 s5, 0x03020302
    ''')
    vF, vG = 24, 25
    a(f'''
    v_and_b32 v26, 15, v{lane}            ; n / m
    v_lshrrev_b32 v27, 4, v{lane}         ; g
    v_lshlrev_b32 v28, 4, v27             ; 16 g
    v_lshlrev_b32 v29, 3, v26             ; 8 n
    v_sub_u32 v{vF}, v28, v29
    s_add_u32 s6, s11, {2*2044-3968}
    v_add_u32 v{vF}, s6, v{vF}
    v_and_b32 v30, 3, v26
    v_mul_u32_u24 v30, {CS}, v30
    v_lshrrev_b32 v31, 2, v26
    v_lshl_add_u32 v30, v31, 7, v30
    v_add3_u32 v{vG}, v30, v28, s10
    v_lshl_add_u32 v26, v27, 7, v29
    ''')
    a('s_waitcnt vmcnt(16)')
    a(f'ds_write_b64 v20, {vr(KC,2)} offset:512')
    a(f'ds_write_b64 v20, {vr(KC+2,2)}')
    a(f'''
    v_mov_b32 v32, v{KC+4}
    v_perm_b32 v33, v{KC+5}, v{KC+5}, s4
    v_mov_b32 v34, v{KC+5}
    v_perm_b32 v35, v{KC+5}, v{KC+5}, s5
    ds_write_b128 v21, v[32:35]
    ''')
    for j in range(2):
        k, q = KC + 6 + j, 36 + 4 * j
        a(f'''
        v_perm_b32 v{q}, v{k}, v{k}, s5
        v_perm_b32 v{q+1}, v{k}, v{k}, v7
        v_perm_b32 v{q+2}, v{k}, v{k}, s4
        v_perm_b32 v{q+3}, v{k}, v{k}, s4
        ds_write_b128 v22, {vr(q,4)} offset:{512*(1-j)}
        ''')
    ACC = 32
    SET = [64, 128]
    def reads(st):
        lst = []
        for i in range(8):
            lst.append(f'ds_read_b128 {vr(st+4*i,4)}, v{vG} offset:{512*i}')
            lst.append(f'ds_read_b64 {vr(st+32+4*i,2)}, v{vF} offset:{512*(7-i)}')
            lst.append(f'ds_read_b64 {vr(st+32+4*i+2,2)}, v{vF} offset:{512*(7-i)+8}')
        return lst
    a('s_waitcnt vmcnt(0) lgkmcnt(0)')
    for r in reads(SET[0]): a(r)
    for k in range(32): a(f'v_mov_b32 v{ACC+k}, 0')
    a('s_mov_b32 s12, 0')
    a('.k2_cv_loop:')
    for half in range(2):
        cur, nxt = SET[half], SET[1 - half]
        a(f'v_add_u32 v{vG}, 64, v{vG}')
        a(f'v_add_u32 v{vF}, 64, v{vF}')
        a('s_waitcnt lgkmcnt(0)')
        rl = reads(nxt)
        pairs = [(i, c) for i in range(8) for c in range(8 - i)]
        for n_, (i, c) in enumerate(pairs):
            A = i + c
            a(f'v_mfma_f32_16x16x32_bf16 {vr(ACC+4*A,4)}, {vr(cur+4*i,4)}, {vr(cur+32+4*c,4)}, {vr(ACC+4*A,4)}')
            if n_ < 24: a(rl[n_])
    a('''
    s_add_u32 s12, s12, 1
    s_cmp_lt_u32 s12, 4
    s_cbranch_scc1 .k2_cv_loop
    ''')
    a('s_lshl_b32 s4, s9, 12')
    for A in range(8):
        a(f'v_cvt_pk_bf16_f32 v{8+2*A}, v{ACC+4*A}, v{ACC+4*A+1}')
        a(f'v_cvt_pk_bf16_f32 v{9+2*A}, v{ACC+4*A+2}, v{ACC+4*A+3}')
        a(f'buffer_store_dwordx2 {vr(8+2*A,2)}, v26, s[52:55], s4 offen offset:{512*A}')
    a('s_endpgm')

    a('.k2_fft:')
    srd(a, 44, P_WS, 4 << 20, WS_Z1)
    srd(a, 48, P_WS, 4 << 20, WS_Z2)
    srd(a, 52, P_WR, 2048 * 1026)
    srd(a, 56, P_WI, 2048 * 1026)
    a(f'''
    s_and_b32 s8, s2, 7
    s_lshr_b32 s9, s2, 3
    s_sub_u32 s10, s3, 4
    s_lshl_b32 s11, s8, 5
    s_add_u32 s11, s11, s9
    s_lshl_b32 s11, s11, 14
    v_and_b32 v3, 15, v{lane}          ; n
    v_lshrrev_b32 v4, 4, v{lane}       ; g
    s_mov_b32 s13, 0
    s_cmp_ge_u32 s8, 5
    s_cbranch_scc1 .k2_sp_hi
    s_or_b32 s4, s9, s10
    s_cmp_lg_u32 s4, 0
    s_cbranch_scc1 .k2_sp_done
    s_and_b32 s4, s8, 3
    s_cmp_eq_u32 s4, 0
    s_cselect_b32 s13, 3, 1
    s_branch .k2_sp_load
    .k2_sp_hi:
    s_cmp_lg_u32 s9, 31
    s_cbranch_scc1 .k2_sp_done
    s_cmp_lg_u32 s10, 3
    s_cbranch_scc1 .k2_sp_done
    s_mov_b32 s13, 2
    .k2_sp_load:
    ''')
    WM = 160
    a(f'''
    v_lshl_add_u32 v5, v4, 6, v3
    v_lshlrev_b32 v5, 3, v5
    v_add_u32 v5, s8, v5
    s_cmp_eq_u32 s13, 1
    s_cselect_b32 s4, 0, 1024
    s_cmp_eq_u32 s13, 3
    s_movk_i32 s5, -1026
    s_cselect_b32 s5, 1026, s5
    s_cselect_b32 s6, 0, {2048*1026}
    s_add_u32 s4, s4, s6
    ''')
    for i in range(4):
        a(f'''
        v_add_u32 v6, {128*i}, v5
        v_mul_i32_i24 v6, s5, v6
        v_add_u32 v6, s4, v6
        buffer_load_ushort v{WM+i}, v6, s[52:55], 0 offen
        buffer_load_ushort v{WM+4+i}, v6, s[56:59], 0 offen
        ''')
    a('.k2_sp_done:')
    a(f'''
    v_lshlrev_b32 v5, 4, v{lane}
    s_lshl_b32 s4, s10, 12
    s_add_u32 s5, s4, {K2_ZB}
    s_add_u32 s12, s11, s4
    s_mov_b32 m0, s5
    ''')
    for p in range(4):
        a(f'buffer_load_dwordx4 v5, s[44:47], s12 offen offset:{p*1024} lds')
    WL = 144
    a(f'''
    v_and_b32 v6, 255, v0              ; t
    v_lshrrev_b32 v7, 1, v6
    v_lshlrev_b32 v8, 3, v7
    v_add_u32 v8, s8, v8
    v_mul_u32_u24 v8, 1026, v8
    v_and_b32 v9, 1, v6
    v_lshl_add_u32 v8, v9, 4, v8
    s_lshl_b32 s4, s9, 5
    s_cmp_ge_u32 s8, 5
    s_cselect_b32 s5, 2, 0
    s_add_u32 s4, s4, s5
    s_add_u32 s5, s4, {128*8*1026}
    buffer_load_dwordx4 {vr(WL,4)}, v8, s[52:55], s4 offen
    buffer_load_dwordx4 {vr(WL+4,4)}, v8, s[56:59], s4 offen
    buffer_load_dwordx4 {vr(WL+8,4)}, v8, s[52:55], s5 offen
    buffer_load_dwordx4 {vr(WL+12,4)}, v8, s[56:59], s5 offen
    ''')
    vC0, vC1, vC2, vOne, vT = 10, 11, 12, 13, 14
    a(f'''
    v_mov_b32 v{vC0}, {K2_CNT}
    v_mov_b32 v{vC1}, {K2_CNT+4}
    v_mov_b32 v{vC2}, {K2_CNT+8}
    v_mov_b32 v{vOne}, 1
    v_mov_b32 v16, 0
    v_mov_b32 v17, 0
    v_mov_b32 v18, 0
    v_mov_b32 v19, 0
    ds_write_b128 v{vC0}, v[16:19]
    s_waitcnt lgkmcnt(0)
    s_barrier
    ''')
    vW0, vW1, vZ, vL = 168, 169, 170, 171
    a(f'''
    v_bfe_u32 v15, v6, 3, 2
    v_lshl_add_u32 v15, v9, 1, v15
    v_and_b32 v16, 3, v15
    v_add_u32 v15, 1, v15
    v_and_b32 v15, 3, v15
    v_lshlrev_b32 v7, 6, v7
    v_add_u32 v7, {K2_WB}, v7
    v_lshl_add_u32 v{vW0}, v16, 4, v7
    v_lshl_add_u32 v{vW1}, v15, 4, v7
    v_bfe_u32 v15, v3, 2, 2
    v_add_u32 v15, s10, v15
    v_and_b32 v15, 3, v15
    v_lshlrev_b32 v15, 4, v15
    v_lshl_add_u32 v15, v3, 6, v15
    v_lshl_add_u32 v15, v4, 12, v15
    v_add_u32 v{vZ}, {K2_ZB}, v15
    s_lshl_b32 s4, s10, 12
    s_add_u32 s4, s4, {K2_ZB}
    v_add_u32 v{vL}, s4, v5
    ''')
    B1R, B1I, A2R, A2I, B3R, B3I, A4R, A4I = 16, 20, 24, 28, 32, 36, 40, 44
    T1C, T1S, T3C, T3S = 48, 52, 56, 60
    nf, idx, q1, p_, c_, s_ = 64, 65, 66, 67, 68, 69
    scale = 2.0 / (2048 * 1024)
    a(f'''
    v_cvt_f32_u32 v{nf}, v3
    v_lshlrev_b32 v{idx}, 2, v4
    v_cvt_f32_u32 v{idx}, v{idx}
    v_cvt_f32_u32 v70, s8
    v_fma_f32 v{q1}, v{nf}, 4.0, 0
    v_fma_f32 v{q1}, v{q1}, 2.0, v70       ; 8n + cls
    ''')
    for e in range(4):
        a(f'''
        v_mul_f32 v{p_}, v{idx}, v{q1}
        v_mul_f32 v{p_}, {fhex(1/128)}, v{p_}
        v_cos_f32 v{c_}, v{p_}
        v_sin_f32 v{s_}, v{p_}
        v_mul_f32 v{p_}, {fhex(1/16)}, v{p_}
        v_cvt_pk_bf16_f32 v{B1R+e}, v{c_}, v{s_}
        v_cvt_pk_bf16_f32 v{B1I+e}, -v{s_}, v{c_}
        v_cos_f32 v{c_}, v{p_}
        v_sin_f32 v{s_}, v{p_}
        v_mul_f32 v{p_}, v{idx}, v{nf}
        v_mul_f32 v{T1C+e}, {fhex(scale)}, v{c_}
        v_mul_f32 v{T1S+e}, {fhex(scale)}, v{s_}
        v_mul_f32 v{p_}, {fhex(1/16)}, v{p_}
        v_cos_f32 v{c_}, v{p_}
        v_sin_f32 v{s_}, v{p_}
        v_fma_f32 v{p_}, v{idx}, 4.0, 0
        v_fma_f32 v{p_}, v{p_}, 2.0, v70
        v_cvt_pk_bf16_f32 v{A2R+e}, v{c_}, v{s_}
        v_cvt_pk_bf16_f32 v{A2I+e}, -v{s_}, v{c_}
        v_cvt_pk_bf16_f32 v{B3R+e}, v{c_}, -v{s_}
        v_cvt_pk_bf16_f32 v{B3I+e}, v{s_}, v{c_}
        v_mul_f32 v{p_}, v{p_}, v{nf}
        v_mul_f32 v{p_}, {fhex(1/128)}, v{p_}
        v_cos_f32 v{c_}, v{p_}
        v_sin_f32 v{s_}, v{p_}
        v_mul_f32 v{p_}, {fhex(1/16)}, v{p_}
        v_cvt_pk_bf16_f32 v{A4R+e}, v{c_}, -v{s_}
        v_cvt_pk_bf16_f32 v{A4I+e}, v{s_}, v{c_}
        v_cos_f32 v{T3C+e}, v{p_}
        v_sin_f32 v{T3S+e}, v{p_}
        v_add_f32 v{idx}, 1.0, v{idx}
        ''')
    a('s_waitcnt vmcnt(4)')
    sync_arrive(a, vC0, vOne)
    sync_wait(a, vC0, vT, 4)
    X = 64
    D = 80
    WF = 112
    TM = 172
    SV = 180
    a('s_mov_b32 s14, 0')
    a('s_mov_b32 s7, 0xffff0000')
    a('.k2_pass:')
    for e in range(4):
        a(f'ds_read_b128 {vr(X+4*e,4)}, v{vZ} offset:{1024*e}')
    a('s_waitcnt lgkmcnt(0)')
    swap4x4(a, X)
    a('s_cmp_lg_u32 s13, 3')
    a('s_cbranch_scc1 .k2_nomask')
    a('s_lshl_b32 s4, s14, 4')
    for e in range(4):
        a(f'v_bfe_u32 v{X+e}, v{X+e}, s4, 16')
    a('.k2_nomask:')
    def stage(Mr, Mi, data_is_A):
        for c in range(4):
            for M, off in ((Mr, 0), (Mi, 4)):
                if data_is_A:
                    a(f'v_mfma_f32_16x16x32_bf16 {vr(D+8*c+off,4)}, {vr(X+4*c,4)}, {vr(M,4)}, 0')
                else:
                    a(f'v_mfma_f32_16x16x32_bf16 {vr(D+8*c+off,4)}, {vr(M,4)}, {vr(X+4*c,4)}, 0')
    def mulpack(cr_of, ci_of, conj):
        k = 0
        for c in range(4):
            for hp in range(2):
                t = TM + 4 * (k & 1); k += 1
                cmul_pk(a, t, t + 2, D + 8 * c + 2 * hp, D + 8 * c + 4 + 2 * hp, cr_of(c) + 2 * hp, ci_of(c) + 2 * hp, conj)
                a(f'v_cvt_pk_bf16_f32 v{X+4*c+2*hp}, v{t}, v{t+2}')
                a(f'v_cvt_pk_bf16_f32 v{X+4*c+2*hp+1}, v{t+1}, v{t+3}')
    stage(B1R, B1I, True)
    mulpack(lambda c: T1C, lambda c: T1S, True)
    stage(A2R, A2I, False)
    a('s_cmp_lg_u32 s14, 0')
    a('s_cbranch_scc1 .k2_wready')
    a('s_waitcnt vmcnt(0)')
    for rr in range(2):
        for ar in range(2):
            r = WL + 8 * rr + 4 * ar
            a(f'ds_write_b64 v{vW0}, {vr(r,2)} offset:{rr*8192+ar*8}')
            a(f'ds_write_b64 v{vW1}, {vr(r+2,2)} offset:{rr*8192+ar*8}')
    sync_arrive(a, vC1, vOne)
    sync_wait(a, vC1, vT, 4)
    a('.k2_wready:')
    for i in range(4):
        a(f'ds_read_b128 {vr(WL+4*i,4)}, v{vZ} offset:{16384+1024*i}')
    for i in range(4):
        a(f's_waitcnt lgkmcnt({3-i})')
        for part in range(2):
            for cp in range(2):
                src = WL + 4 * i + 2 * part + cp
                a(f'v_lshlrev_b32 v{WF+8*(2*cp)+4*part+i}, 16, v{src}')
                a(f'v_and_b32 v{WF+8*(2*cp+1)+4*part+i}, s7, v{src}')
    a('s_cmp_eq_u32 s13, 0')
    a('s_cbranch_scc1 .k2_nopatch')
    h_, nh = fhex(0.5), fhex(-0.5)
    a(f'''
    s_mov_b32 s4, {h_}
    s_mov_b32 s5, {h_}
    s_mov_b32 s6, {nh}
    s_cmp_lg_u32 s13, 3
    s_cbranch_scc1 .k2_pcoef
    s_cmp_eq_u32 s14, 0
    s_cselect_b32 s4, {h_}, 0
    s_cselect_b32 s5, 0, {h_}
    s_mov_b32 s6, s5
    .k2_pcoef:
    s_cmp_eq_u32 s13, 2
    s_cbranch_scc1 .k2_patch_hi
    ''')
    def patch(c):
        for part, sc in ((0, 5), (1, 6)):
            for i in range(4):
                w = WF + 8 * c + 4 * part + i
                a(f'v_lshlrev_b32 v{TM}, 16, v{WM+4*part+i}')
                a(f'v_mul_f32 v{w}, s4, v{w}')
                a(f'v_fmac_f32 v{w}, s{sc}, v{TM}')
    patch(0)
    a('s_branch .k2_nopatch')
    a('.k2_patch_hi:')
    patch(3)
    a('.k2_nopatch:')
    mulpack(lambda c: WF + 8 * c, lambda c: WF + 8 * c + 4, False)
    stage(B3R, B3I, True)
    mulpack(lambda c: T3C, lambda c: T3S, False)
    stage(A4R, A4I, False)
    a('s_cmp_lg_u32 s13, 3')
    a('s_cbranch_scc1 .k2_out')
    a('s_cmp_lg_u32 s14, 0')
    a('s_cbranch_scc1 .k2_pass2done')
    for i in range(4): a(f'v_mov_b32 v{SV+i}, v{D+i}')
    a('s_mov_b32 s14, 1')
    a('s_branch .k2_pass')
    a('.k2_pass2done:')
    for i in range(4):
        a(f'v_mov_b32 v{D+4+i}, v{D+i}')
        a(f'v_mov_b32 v{D+i}, v{SV+i}')
    a('.k2_out:')
    for i in range(4):
        for c in range(4):
            a(f'v_cvt_pk_bf16_f32 v{X+4*i+c}, v{D+8*c+i}, v{D+8*c+4+i}')
        a(f'ds_write_b128 v{vZ}, {vr(X+4*i,4)} offset:{1024*i}')
    sync_arrive(a, vC2, vOne)
    sync_wait(a, vC2, vT, 4)
    for p in range(4):
        a(f'ds_read_b128 {vr(X+4*p,4)}, v{vL} offset:{1024*p}')
    for p in range(4):
        a(f's_waitcnt lgkmcnt({3-p})')
        a(f'buffer_store_dwordx4 {vr(X+4*p,4)}, v5, s[48:51], s12 offen offset:{1024*p}')
    a(f'{EXIT}:')
    a('s_endpgm')

K3_CT = 0
K3_TR = 16384
K3_LDS = K3_TR + 2 * 64 * 144

def gen_k3(a):
    a.raw('.p2align 8')
    a.raw('k3_kernel:')
    EXIT = '.k3_exit'
    prologue(a, 256, EXIT)
    lane = 2
    a('s_cmp_ge_u32 s3, 5')
    a('s_cbranch_scc1 .k3_tr')
    srd(a, 44, P_WS, 4 << 20, WS_Z2)
    srd(a, 48, P_OUT, 8 << 20)
    a(f'''
    s_sub_u32 s8, s3, 1
    s_cmp_eq_u32 s3, 0
    s_cselect_b32 s8, 0, s8
    s_cmp_eq_u32 s3, 1
    s_cselect_b32 s8, 4, s8
    s_sub_u32 s9, 8, s8
    ''')
    vlo, vhi = 4, 5
    gen_z_addr(a, lane, vlo, vhi, 64, 2, 8, 9)
    X = 16
    for i in range(8):
        a(f's_mov_b32 s5, {z_soff(i)}')
        a(f'buffer_load_dword v{X+i}, v{vlo}, s[44:47], s5 offen')
    a('s_cmp_lt_u32 s3, 2')
    a('s_cbranch_scc1 .k3_real_noload')
    for i in range(8, 16):
        a(f's_mov_b32 s5, {z_soff(i)}')
        a(f'buffer_load_dword v{X+i}, v{vhi}, s[44:47], s5 offen')
    a('.k3_real_noload:')
    G8 = 8
    gen_dft8_frags(a, lane, G8, 64, False)
    MR, MI, NR, NI, tc, ts = 80, 96, 112 - 8, 120 - 8, 128, 144
    kf, arg, a2, c0, s0, k5 = range(64, 70)
    a(f'''
    v_and_b32 v{kf}, 31, v{lane}
    v_cvt_f32_u32 v{kf}, v{kf}
    v_mul_f32 v{kf}, {fhex(1/32)}, v{kf}
    v_lshrrev_b32 v{arg}, 5, v{lane}
    v_cvt_f32_u32 v{arg}, v{arg}
    v_mul_f32 v{arg}, 4.0, v{arg}
    v_mul_f32 v{arg}, v{arg}, v{kf}
    v_mul_f32 v{k5}, {fhex(5.0)}, v{kf}
    ''')
    for i in range(16):
        a(f'v_cos_f32 v{c0}, v{arg}')
        a(f'v_sin_f32 v{s0}, v{arg}')
        a(f'v_mul_f32 v{a2}, {fhex(1/32)}, v{arg}')
        a(f'v_cos_f32 v{tc+i}, v{a2}')
        a(f'v_sin_f32 v{ts+i}, v{a2}')
        if i != 15:
            a(f'v_add_f32 v{arg}, v{arg}, v{k5 if (i & 3) == 3 else kf}')
        a(f'v_cvt_pk_bf16_f32 v{MR+i}, v{c0}, -v{s0}')
        a(f'v_cvt_pk_bf16_f32 v{MI+i}, v{s0}, v{c0}')
        if i >= 8:
            a(f'v_cvt_pk_bf16_f32 v{NR+i}, v{c0}, v{s0}')
            a(f'v_cvt_pk_bf16_f32 v{NI+i}, v{s0}, -v{c0}')
    a(f'''
    v_and_b32 v6, 31, v{lane}
    v_lshlrev_b32 v6, 2, v6
    v_lshrrev_b32 v7, 5, v{lane}
    v_lshl_add_u32 v6, v7, 9, v6
    s_lshl_b32 s4, s8, 12
    s_lshl_b32 s5, s3, 1
    s_cmp_lt_u32 s3, 2
    s_cselect_b32 s4, s5, s4
    v_add_u32 v6, s4, v6
    ''')
    DR, DI, T0 = 32, 48, 64
    a('s_waitcnt vmcnt(0)')
    a('s_cmp_lt_u32 s3, 2')
    a('s_cbranch_scc0 .k3_cplx1')
    for i in range(8, 16): a(f'v_mov_b32 v{X+i}, 0')
    a(f'''
    s_mov_b64 exec, 1
    v_lshrrev_b32 v{X+8}, 16, v{X}
    s_mov_b64 exec, -1
    ''')
    a('.k3_cplx1:')
    for c in range(4):
        br, bi = (MR + 4 * c, MI + 4 * c) if c < 2 else (NR + 4 * c, NI + 4 * c)
        a(f'v_mfma_f32_32x32x16_bf16 {vr(DR,16)}, {vr(X+4*c,4)}, {vr(br,4)}, ' + ('0' if c == 0 else vr(DR, 16)))
        a(f'v_mfma_f32_32x32x16_bf16 {vr(DI,16)}, {vr(X+4*c,4)}, {vr(bi,4)}, ' + ('0' if c == 0 else vr(DI, 16)))
    for ip in range(8):
        t = T0 + 4 * (ip & 1)
        cmul_pk(a, t, t + 2, DR + 2 * ip, DI + 2 * ip, tc + 2 * ip, ts + 2 * ip, False)
        a(f'v_cvt_pk_bf16_f32 v{X+2*ip}, v{t}, v{t+2}')
        a(f'v_cvt_pk_bf16_f32 v{X+2*ip+1}, v{t+1}, v{t+3}')
    for c in range(4):
        a(f'v_mfma_f32_32x32x16_bf16 {vr(DR,16)}, {vr(MR+4*c,4)}, {vr(X+4*c,4)}, ' + ('0' if c == 0 else vr(DR, 16)))
    a('s_cmp_lt_u32 s3, 2')
    a('s_cbranch_scc1 .k3_real2')
    for c in range(4):
        a(f'v_mfma_f32_32x32x16_bf16 {vr(DI,16)}, {vr(MI+4*c,4)}, {vr(X+4*c,4)}, ' + ('0' if c == 0 else vr(DI, 16)))
    for i in range(16):
        a(f'v_cvt_pk_bf16_f32 v{T0+i}, v{DR+i}, v{DI+i}')
        a(f'ds_write_b32 v6, v{T0+i} offset:{(8*(i>>2)+(i&3))*128}')
    a('s_branch .k3_join')
    a('.k3_real2:')
    for ip in range(8):
        i = 2 * ip
        a(f'v_cvt_pk_bf16_f32 v{T0+ip}, v{DR+i}, v{DR+i+1}')
        a(f'ds_write_b16 v6, v{T0+ip} offset:{(8*(i>>2)+(i&3))*128}')
        a(f'ds_write_b16_d16_hi v6, v{T0+ip} offset:{(8*(i>>2)+(i&3)+1)*128}')
    a('.k3_join:')
    a('s_waitcnt lgkmcnt(0)')
    a('s_barrier')
    a('s_cmp_eq_u32 s3, 4')
    a(f's_cbranch_scc1 {EXIT}')
    a('v_lshlrev_b32 v6, 4, v0')
    for p in range(4):
        a(f'ds_read_b128 {vr(X+4*p,4)}, v6 offset:{4096*p}')
    a(f'''
    s_lshl_b32 s4, s2, 12
    s_add_u32 s4, s4, 2048
    v_lshlrev_b32 v7, 3, v0
    v_add_u32 v7, s4, v7
    s_waitcnt lgkmcnt(0)
    ''')
    swap4x4(a, X)
    DD = 32
    for e in range(4):
        for hf in range(2):
            a(f'v_mfma_f32_16x16x32_bf16 {vr(DD+8*e+4*hf,4)}, {vr(G8+4*hf,4)}, {vr(X+4*e,4)}, 0')
    for s1 in range(8):
        a(f'v_cvt_pk_bf16_f32 v{64+2*s1}, v{DD+s1}, v{DD+8+s1}')
        a(f'v_cvt_pk_bf16_f32 v{65+2*s1}, v{DD+16+s1}, v{DD+24+s1}')
        a(f's_mov_b32 s5, {s1*256*4096}')
        a(f'buffer_store_dwordx2 {vr(64+2*s1,2)}, v7, s[48:51], s5 offen')
    a('s_endpgm')
    a('.k3_tr:')
    srd(a, 44, P_WS, 4 << 20, WS_YT)
    srd(a, 48, P_OUT, 8 << 20)
    a(f'''
    s_sub_u32 s8, s3, 5
    s_lshl_b32 s9, s2, 1
    s_add_u32 s9, s9, s8
    s_mul_i32 s10, s8, {64*144}
    s_add_u32 s10, s10, {K3_TR}
    ''')
    TP = gen_transposer(a, lane, 9, 44, 48, 10, 4096, 4096, 'y')
    gen_transposer_tail(a, lane, 48, 10, 4096, 0, TP)
    a(f'{EXIT}:')
    a('s_endpgm')

KERNELS23 = [('k2_kernel', gen_k2, 256, 512, K2_LDS, 192), ('k3_kernel', gen_k3, 256, 448, K3_LDS, 160)]
```

```python
import numpy as np

def bf16r(x):
    x = np.ascontiguousarray(x, dtype=np.float32)
    u = x.view(np.uint32)
    r = ((u + 0x7FFF + ((u >> 16) & 1)) & 0xFFFF0000).astype(np.uint32)
    return r.view(np.float32)

def cb(z):
    return bf16r(z.real) + 1j * bf16r(z.imag)

def make_inputs(seed=0):
    rng = np.random.default_rng(seed)
    def rn(scale, *s):
        return bf16r(bf16r(rng.standard_normal(s)) * np.float32(scale))
    L, D, N = 2048, 1024, 128
    inp = dict(
        u=rn(0.05, L, D),
        logA=bf16r(rn(6.4, D, N) * 0.5),
        Aim=bf16r(rn(0.05, D, N) * 3.14),
        Cre=bf16r(rn(0.05, D, N) / N ** 0.5),
        Cim=bf16r(rn(0.05, D, N) / N ** 0.5),
        logdt=bf16r(bf16r(rn(0.05, D) * 0.5) - 4.0),
        Dskip=rn(0.05, D),
        x=rn(0.05, L, D),
        wr=bf16r(rn(0.8, L, 513) * 0.02),
        wi=bf16r(rn(0.8, L, 513) * 0.02),
    )
    return inp

def refB(inp):
    X = np.fft.rfft2(inp['x'].astype(np.float64))
    X = X * (inp['wr'].astype(np.float64) + 1j * inp['wi'].astype(np.float64))
    return np.fft.irfft2(X, s=(2048, 1024))

def modelB(inp, rnd=True):
    q = cb if rnd else (lambda z: z)
    x = inp['x'].astype(np.float64).reshape(8, 256, 1024)
    s1 = np.arange(8)
    F8 = np.exp(-2j * np.pi * np.outer(np.arange(5), s1) / 8)
    F8 = q(F8)
    c = np.einsum('ks,std->ktd', F8, x)
    c = q(c)
    i32 = np.arange(32)
    F32 = q(np.exp(-2j * np.pi * np.outer(i32, i32) / 32))
    c = c.reshape(5, 256, 32, 32)
    o = np.einsum('ktab,ac->ktbc', c, F32)
    o = q(o * np.exp(-2j * np.pi * np.outer(i32, i32) / 1024))
    R = np.einsum('ktbc,be->ktec', o, F32).reshape(5, 256, 1024)
    Z1 = np.zeros((8, 512, 256), complex)
    for kap in (1, 2, 3):
        Z1[kap] = R[kap][:, :512].T
        Z1[8 - kap] = np.conj(R[kap][:, 1023:511:-1]).T
    for kap in (0, 4):
        Z1[kap] = R[kap][:, :512].T
        Z1[kap][0] = R[kap][:, 0].real + 1j * R[kap][:, 512].real
    Z1 = q(Z1)
    W = inp['wr'].astype(np.float64) + 1j * inp['wi'].astype(np.float64)
    i16 = np.arange(16)
    F16 = q(np.exp(-2j * np.pi * np.outer(i16, i16) / 16))
    Z2 = np.zeros_like(Z1)
    scale = 2.0 / (2048 * 1024)
    def colpipe(z, Wc, kap):
        B1 = q(np.exp(-2j * np.pi * np.outer(i16, 8 * i16 + kap) / 128))
        T1 = np.exp(-2j * np.pi * np.outer(i16, 8 * i16 + kap) / 2048)
        z = z.reshape(-1, 16, 16)
        o = np.einsum('cab,ak->cbk', z, B1)
        o = q(o * T1 * scale)
        X = np.einsum('cbk,be->cek', o, F16)
        X = q(X * Wc.reshape(-1, 16, 16))
        o = np.einsum('cek,ea->cka', X, np.conj(F16))
        o = q(o * np.conj(T1).T)
        y = np.einsum('cka,bk->cba', o, np.conj(B1))
        return y.reshape(-1, 256)
    for kap in range(8):
        ks = kap + 8 * np.arange(256)
        j0 = 1 if kap >= 5 else 0
        Wc = W[ks][:, j0:j0 + 512].T.copy()
        if kap in (1, 2, 3):
            Wc[0] = q((W[ks, 0] + np.conj(W[(2048 - ks) % 2048, 0])) / 2)
        if kap in (5, 6, 7):
            Wc[511] = q((W[ks, 512] + np.conj(W[(2048 - ks) % 2048, 512])) / 2)
        Z2[kap] = colpipe(Z1[kap], Wc, kap)
        if kap in (0, 4):
            a = colpipe(Z1[kap][0:1].real.astype(complex), W[ks, 0][None] / 2, kap)
            b = colpipe(Z1[kap][0:1].imag.astype(complex), W[ks, 512][None] / 2, kap)
            Z2[kap][0] = a[0].real + 1j * b[0].real
    Z2 = q(Z2)
    Y = np.zeros((5, 256, 1024), complex)
    for kap in (1, 2, 3):
        Y[kap][:, :512] = Z2[kap].T
        Y[kap][:, 1023:511:-1] = np.conj(Z2[8 - kap]).T
    for kap in (0, 4):
        Y[kap][:, :512] = Z2[kap].T
        Y[kap][:, 512] = Z2[kap][0].imag
    Y = Y.reshape(5, 256, 32, 32)
    o = np.einsum('ktec,ea->ktca', Y, np.conj(F32))
    o = q(o * np.exp(2j * np.pi * np.outer(i32, i32) / 1024))
    ct = np.einsum('ktca,cb->ktba', o, np.conj(F32)).reshape(5, 256, 1024)
    ct[0] = ct[0].real
    ct[4] = ct[4].real
    ct = q(ct)
    y = np.einsum('ks,ktd->std', np.conj(F8), ct).real
    return dict(Z1=Z1, Z2=Z2, y=y.reshape(2048, 1024))

def posb():
    return bf16r(np.arange(2048, dtype=np.float32)).astype(np.float64)

def kparams(inp):
    dt = bf16r(np.exp(inp['logdt'].astype(np.float64)).astype(np.float32)).astype(np.float64)
    Ar = -bf16r(np.exp(inp['logA'].astype(np.float64)).astype(np.float32)).astype(np.float64)
    z = (Ar + 1j * inp['Aim']) * dt[:, None]
    C = (inp['Cre'].astype(np.float64) + 1j * inp['Cim']) * dt[:, None]
    return z, C

def refK(inp, chans):
    z, C = kparams(inp)
    pos = posb()
    up, inv = np.unique(pos, return_inverse=True)
    out = []
    for d in chans:
        P = np.exp(z[d][:, None] * up[None, :])
        Kf = 2 * (C[d] @ P).real
        out.append(Kf[inv])
    return np.array(out)

def refA(inp, chans):
    K = refK(inp, chans)
    u = inp['u'][:, chans].astype(np.float64).T
    y = np.fft.irfft(np.fft.rfft(u, 4096) * np.fft.rfft(K, 4096), 4096)[:, :2048]
    y = bf16r(y)
    return bf16r(y + bf16r(u * inp['Dskip'][chans][:, None])).T

def coarse_a(i, h):
    if i < 4: return 4 * h + i
    if i < 7: return 256 + 4 * h + 2 * (i - 4)
    if i == 7: return None
    if i < 11: return 512 + 256 * h + 4 * (i - 8)
    if i == 11: return None
    return 1024 + 512 * h + [0, 8, 256, 264][i - 12]

def modelKc(inp, chans):
    z, C = kparams(inp)
    out = np.zeros((len(chans), 64, 16))
    for ci, d in enumerate(chans):
        f = cb(np.exp(z[d][None, :] * (8 * np.arange(32))[:, None]))
        for h in range(2):
            for i in range(16):
                a = coarse_a(i, h)
                if a is None: continue
                c = cb(2 * C[d] * np.exp(z[d] * a))
                out[ci, 32 * h:32 * h + 32, i] = (f.real @ c.real - f.imag @ c.imag)
        out[ci, 0, 0] += inp['Dskip'][d]
    return out

def expandK(Dv):
    K = np.zeros(2048)
    for h in range(2):
        for b in range(32):
            D = Dv[32 * h + b]
            K[8 * b + 4 * h: 8 * b + 4 * h + 4] = D[0:4]
            K[256 + 8 * b + 4 * h: 256 + 8 * b + 4 * h + 4] = [D[4], D[4], D[5], D[6]]
            base = 512 + 256 * h + 8 * b
            K[base:base + 8] = [D[8]] * 3 + [D[9]] * 3 + [D[10]] * 2
            for j in range(2):
                base = 1024 + 512 * h + 256 * j + 8 * b
                xx, zz = D[12 + 2 * j], D[13 + 2 * j]
                K[base:base + 8] = [xx] * 4 + [xx if b % 2 == 0 else zz] + [zz] * 3
    return K

if __name__ == '__main__':
    inp = make_inputs(0)
    r = refB(inp)
    m0 = modelB(inp, rnd=False)
    print('B exact model maxerr', np.abs(m0['y'] - r).max(), 'ref absmax', np.abs(r).max())
    m = modelB(inp, rnd=True)
    e = bf16r(m['y']) - bf16r(r)
    print('B bf16 model maxerr', np.abs(e).max(), 'rms', e.std(), 'thr', np.abs(r).max() / 32, 'ref rms', r.std())
    ch = list(range(0, 1024, 64))
    K = refK(inp, ch)
    Dv = modelKc(inp, ch)
    Km = np.array([expandK(bf16r(Dv[i])) for i in range(len(ch))])
    Kr = K.copy(); Kr[:, 0] += inp['Dskip'][ch]
    print('K maxerr', np.abs(Km - Kr)[:, 1:].max(), 'K absmax', np.abs(K).max())
    u = inp['u'][:, ch].astype(np.float64).T
    y = np.fft.irfft(np.fft.rfft(u, 4096) * np.fft.rfft(Km, 4096), 4096)[:, :2048]
    ra = refA(inp, ch)
    e = bf16r(y).T - ra
    print('A maxerr', np.abs(e).max(), 'rms', e.std(), 'absmax/32', np.abs(ra).max() / 32)
```

```python
import sys, struct
sys.path.insert(0, 'dev')
from asmlib import Asm

NAME = 'concat_heads__ssm_conv_s4d__spectral_gfnet__prompt'

def f2u(x):
    return struct.unpack('<I', struct.pack('<f', x))[0]
def fhex(x):
    return '0x%08x' % f2u(x)

WS_Z1 = 0
WS_Z2 = 4 << 20
WS_UT = 8 << 20
UP = 4160
WS_YT = 16 << 20
WS_KC = 24 << 20
WS_SIZE = 1 << 28

def vr(a, n):
    return f'v[{a}:{a+n-1}]'

def prologue(a, nwg, exit_label):
    a(f'''
    s_cmp_ge_u32 s2, {nwg}
    s_cbranch_scc1 {exit_label}
    s_load_dwordx16 s[16:31], s[0:1], 0
    s_load_dwordx8 s[32:39], s[0:1], 64
    s_load_dwordx2 s[40:41], s[0:1], 96
    v_lshrrev_b32 v1, 6, v0
    v_and_b32 v2, 63, v0
    v_readfirstlane_b32 s3, v1
    s_waitcnt lgkmcnt(0)
    ''')

def srd(a, d, base, nbytes, off=0):
    if off:
        a(f's_add_u32 s{d}, s{base}, {off:#x}')
        a(f's_addc_u32 s{d+1}, s{base+1}, 0')
        a(f's_and_b32 s{d+1}, s{d+1}, 0xffff')
    else:
        a(f's_mov_b32 s{d}, s{base}')
        a(f's_and_b32 s{d+1}, s{base+1}, 0xffff')
    a(f's_mov_b32 s{d+2}, {nbytes:#x}')
    a(f's_mov_b32 s{d+3}, 0x00020000')

P_U, P_LOGA, P_AIM, P_CRE, P_CIM, P_LOGDT, P_DSKIP, P_X = 16, 18, 20, 22, 24, 26, 28, 30
P_WR, P_WI, P_OUT, P_DBG, P_WS = 32, 34, 36, 38, 40

def sync_arrive(a, vaddr, vone):
    a(f'''
    s_waitcnt lgkmcnt(0)
    s_mov_b64 exec, 1
    ds_add_u32 v{vaddr}, v{vone}
    s_mov_b64 exec, -1
    ''')

def sync_wait(a, vaddr, vtmp, n, stmp=4):
    L = a.label('spin')
    a(f'''
    {L}:
    ds_read_b32 v{vtmp}, v{vaddr}
    s_waitcnt lgkmcnt(0)
    v_readfirstlane_b32 s{stmp}, v{vtmp}
    s_cmp_ge_u32 s{stmp}, {n}
    s_cbranch_scc0 {L}
    ''')

def gen_dft8_frags(a, lane, dst, t, fwd):
    m, g, i_, msk, kap, ph, arg, c0, c1, q = range(t, t + 10)
    a(f'''
    v_and_b32 v{m}, 15, v{lane}
    v_lshrrev_b32 v{g}, 4, v{lane}
    v_and_b32 v{i_}, 3, v{lane}
    v_lshrrev_b32 v{m}, 2, v{m}
    v_cmp_eq_u32 vcc, v{m}, v{g}
    v_cndmask_b32 v{msk}, 0, -1, vcc
    ''')
    KAP = [0, 4, 1, 1, 2, 2, 3, 3]
    PH = [0, 0, 0, 1, 0, 1, 0, 1]
    for hf in range(2):
        if fwd:
            a(f'''
            s_mov_b32 s4, 0x33221140
            s_mov_b32 s5, 0xa8
            v_add_u32 v{q}, {4*hf}, v{i_}
            v_bfe_u32 v{ph}, s5, v{q}, 1
            v_lshlrev_b32 v{q}, 2, v{q}
            v_bfe_u32 v{kap}, s4, v{q}, 4
            v_cvt_f32_u32 v{kap}, v{kap}
            v_cvt_f32_u32 v{ph}, v{ph}
            v_mul_f32 v{kap}, {fhex(0.125)}, v{kap}
            v_mul_f32 v{arg}, {fhex(0.25)}, v{ph}
            ''')
            for jp in range(4):
                a(f'v_cos_f32 v{c0}, v{arg}')
                a(f'v_add_f32 v{arg}, v{arg}, v{kap}')
                a(f'v_cos_f32 v{c1}, v{arg}')
                a(f'v_add_f32 v{arg}, v{arg}, v{kap}')
                a(f'v_cvt_pk_bf16_f32 v{dst+4*hf+jp}, v{c0}, v{c1}')
                a(f'v_and_b32 v{dst+4*hf+jp}, v{msk}, v{dst+4*hf+jp}')
        else:
            a(f'''
            v_add_u32 v{q}, {4*hf}, v{i_}
            v_cvt_f32_u32 v{q}, v{q}
            v_mul_f32 v{q}, {fhex(0.125)}, v{q}
            ''')
            for jp in range(4):
                for e, cr in ((0, c0), (1, c1)):
                    qq = 2 * jp + e
                    a(f'v_mul_f32 v{arg}, {fhex(float(KAP[qq]))}, v{q}')
                    if PH[qq]:
                        a(f'v_add_f32 v{arg}, {fhex(0.25)}, v{arg}')
                    a(f'v_cos_f32 v{cr}, v{arg}')
                a(f'v_cvt_pk_bf16_f32 v{dst+4*hf+jp}, v{c0}, v{c1}')
                a(f'v_and_b32 v{dst+4*hf+jp}, v{msk}, v{dst+4*hf+jp}')

def gen_z_addr(a, lane, vlo, vhi, t, s_s2, s_cls, s_cls2):
    k1, h, x, y = t, t + 1, t + 2, t + 3
    a(f'''
    v_and_b32 v{k1}, 31, v{lane}
    v_lshrrev_b32 v{h}, 5, v{lane}
    s_lshr_b32 s4, s{s_s2}, 2
    s_lshl_b32 s5, s{s_s2}, 6
    ''')
    for which, dst, cls in ((0, vlo, s_cls), (1, vhi, s_cls2)):
        if which == 1:
            a(f'v_sub_u32 v{k1}, 31, v{k1}')
            a(f'v_sub_u32 v{h}, 1, v{h}')
        a(f'''
        v_bfe_u32 v{x}, v{k1}, 2, 2
        v_add_u32 v{x}, s4, v{x}
        v_and_b32 v{x}, 3, v{x}
        v_lshlrev_b32 v{x}, 4, v{x}
        v_and_b32 v{y}, 3, v{k1}
        v_lshl_add_u32 v{x}, v{y}, 2, v{x}
        v_lshrrev_b32 v{y}, 4, v{k1}
        v_lshl_add_u32 v{x}, v{y}, 14, v{x}
        v_lshl_add_u32 v{x}, v{h}, 17, v{x}
        s_lshl_b32 s6, s{cls}, 19
        s_add_u32 s6, s6, s5
        v_add_u32 v{dst}, s6, v{x}
        ''')

def z_soff(i):
    e = 8 * (i >> 2) + (i & 3)
    return (e if i < 8 else 27 - e) * 32768

def gen_transposer(a, lane, s_tile, src_srd, dst_srd, lds_base, src_pitch, dst_pitch, mode):
    TP = 144
    if mode == 'u':
        a(f's_and_b32 s4, s{s_tile}, 15')
        a(f's_lshr_b32 s5, s{s_tile}, 4')
    else:
        a(f's_lshr_b32 s4, s{s_tile}, 4')
        a(f's_and_b32 s5, s{s_tile}, 15')
    a(f'''
    s_mul_i32 s6, s5, {64*src_pitch}
    s_lshl_b32 s7, s4, 7
    s_add_u32 s6, s6, s7
    v_lshrrev_b32 v3, 3, v{lane}
    v_and_b32 v4, 7, v{lane}
    v_lshlrev_b32 v4, 4, v4
    v_mul_u32_u24 v5, {src_pitch}, v3
    v_add3_u32 v5, v5, v4, s6
    v_mul_u32_u24 v6, {TP}, v3
    v_add3_u32 v6, v6, v4, s{lds_base}
    ''')
    for it in range(8):
        a(f's_mov_b32 s7, {8*it*src_pitch}')
        a(f'buffer_load_dwordx4 {vr(16+4*it,4)}, v5, s[{src_srd}:{src_srd+3}], s7 offen')
    return TP

def gen_transposer_tail(a, lane, dst_srd, lds_base, dst_pitch, dst_off, TP):
    a(f'''
    v_lshrrev_b32 v7, 4, v{lane}
    v_bfe_u32 v8, v{lane}, 2, 2
    v_lshl_add_u32 v8, v7, 3, v8
    v_mul_u32_u24 v8, {TP}, v8
    v_and_b32 v9, 3, v{lane}
    v_lshl_add_u32 v8, v9, 3, v8
    v_add_u32 v8, s{lds_base}, v8
    ''')
    a(f'''
    s_mul_i32 s6, s4, {64*dst_pitch}
    s_lshl_b32 s7, s5, 7
    s_add_u32 s6, s6, s7
    s_add_u32 s6, s6, {dst_off}
    v_and_b32 v9, 15, v{lane}
    v_mul_u32_u24 v9, {dst_pitch}, v9
    v_lshl_add_u32 v9, v7, 4, v9
    v_add_u32 v9, s6, v9
    ''')
    for it in range(8):
        a(f's_waitcnt vmcnt({7-it})')
        a(f'ds_write_b128 v6, {vr(16+4*it,4)} offset:{8*it*TP}')
    a('s_waitcnt lgkmcnt(0)')
    k = 0
    for cb in range(4):
        for th in range(2):
            for jj in range(2):
                a(f'ds_read_b64_tr_b16 {vr(48+4*k+2*jj,2)}, v8 offset:{(32*th+4*jj)*TP+cb*32}')
            k += 1
    k = 0
    for cb in range(4):
        for th in range(2):
            a(f's_waitcnt lgkmcnt({14-2*k})')
            a(f's_mov_b32 s7, {16*cb*dst_pitch}')
            a(f'buffer_store_dwordx4 {vr(48+4*k,4)}, v9, s[{dst_srd}:{dst_srd+3}], s7 offen offset:{64*th}')
            k += 1

K1_SIG = 0
K1_CNT = 16384
K1_TR = 16448
K1_KG = K1_TR + 2 * 64 * 144
KG_PITCH = 528
KG_WAVE = 60 * KG_PITCH
K1_LDS = K1_KG + 4 * KG_WAVE

def gen_rowfft_tables(a, lane, t, vC, vS, tc, ts, extra):
    pass

def gen_k1(a):
    a.raw('.p2align 8')
    a.raw('k1_kernel:')
    EXIT = '.k1_exit'
    prologue(a, 256, EXIT)
    a(f'''
    s_cmp_ge_u32 s3, 9
    s_cbranch_scc1 .k1_tr
    s_cmp_ge_u32 s3, 5
    s_cbranch_scc1 .k1_kgen
    ''')
    lane = 2
    srd(a, 44, P_X, 4 << 20)
    srd(a, 48, P_WS, 4 << 20, WS_Z1)
    XL = 16
    a('s_cmp_eq_u32 s3, 4')
    a('s_cbranch_scc1 .k1_f_noload')
    a(f'''
    s_lshl_b32 s4, s2, 11
    v_lshlrev_b32 v3, 3, v0
    v_add_u32 v3, s4, v3
    ''')
    for s1 in range(8):
        a(f's_mov_b32 s5, {s1*256*2048}')
        a(f'buffer_load_dwordx2 {vr(XL+2*s1,2)}, v3, s[44:47], s5 offen')
    a('.k1_f_noload:')
    a(f'''
    v_mov_b32 v4, {K1_CNT}
    v_mov_b32 v5, 0
    v_mov_b32 v6, 1
    ds_write_b32 v4, v5
    s_waitcnt lgkmcnt(0)
    s_barrier
    ''')
    F8 = 8
    gen_dft8_frags(a, lane, F8, 64, True)
    vC, vS, vnS, vCt, vnSt, tc, ts = 80, 88, 96, 104, 112, 120, 136
    kf, arg, a2, c0, c1, s0, s1_, k5, sg = range(64, 73)
    a(f'''
    v_and_b32 v{kf}, 31, v{lane}
    v_cvt_f32_u32 v{kf}, v{kf}
    v_mul_f32 v{kf}, {fhex(1/32)}, v{kf}
    v_lshrrev_b32 v{arg}, 5, v{lane}
    v_cvt_f32_u32 v{arg}, v{arg}
    v_mul_f32 v{arg}, 4.0, v{arg}
    v_mul_f32 v{arg}, v{arg}, v{kf}
    v_mul_f32 v{k5}, {fhex(5.0)}, v{kf}
    ''')
    a(f'''
    v_and_b32 v{sg}, 16, v{lane}
    v_lshlrev_b32 v{sg}, 11, v{sg}
    v_lshl_or_b32 v{sg}, v{sg}, 16, v{sg}
    ''')
    for ip in range(8):
        for e, (cr, sr) in enumerate(((c0, s0), (c1, s1_))):
            i = 2 * ip + e
            a(f'v_cos_f32 v{cr}, v{arg}')
            a(f'v_sin_f32 v{sr}, v{arg}')
            a(f'v_mul_f32 v{a2}, {fhex(1/32)}, v{arg}')
            a(f'v_cos_f32 v{tc+i}, v{a2}')
            a(f'v_sin_f32 v{ts+i}, v{a2}')
            if i != 15:
                a(f'v_add_f32 v{arg}, v{arg}, v{k5 if (i & 3) == 3 else kf}')
        a(f'v_cvt_pk_bf16_f32 v{vC+ip}, v{c0}, v{c1}')
        a(f'v_cvt_pk_bf16_f32 v{vS+ip}, v{s0}, v{s1_}')
        a(f'v_cvt_pk_bf16_f32 v{vnS+ip}, -v{s0}, -v{s1_}')
        a(f'v_xor_b32 v{vCt+ip}, v{sg}, v{vC+ip}')
        a(f'v_xor_b32 v{vnSt+ip}, v{sg}, v{vnS+ip}')
    a(f'''
    s_sub_u32 s8, s3, 1
    s_cmp_eq_u32 s3, 0
    s_cselect_b32 s8, 0, s8
    s_cmp_eq_u32 s3, 1
    s_cselect_b32 s8, 4, s8
    s_sub_u32 s9, 8, s8
    ''')
    vlo, vhi, vtr = 152, 153, 154
    gen_z_addr(a, lane, vlo, vhi, 64, 2, 8, 9)
    a(f'''
    v_lshrrev_b32 v64, 5, v{lane}
    v_bfe_u32 v65, v{lane}, 2, 2
    v_lshl_add_u32 v64, v64, 2, v65
    v_lshlrev_b32 v64, 6, v64
    v_bfe_u32 v65, v{lane}, 4, 1
    v_lshl_add_u32 v64, v65, 5, v64
    v_and_b32 v65, 3, v{lane}
    v_lshl_add_u32 v64, v65, 3, v64
    s_lshl_b32 s4, s8, 1
    s_cmp_lt_u32 s3, 2
    s_cselect_b32 s4, s3, s4
    s_lshl_b32 s4, s4, 11
    v_add_u32 v{vtr}, s4, v64
    ''')
    a('s_cmp_eq_u32 s3, 4')
    a('s_cbranch_scc1 .k1_f_phaseB')
    BO, DD = 32, 48
    a('s_mov_b32 s4, 0x05040100')
    a('s_mov_b32 s5, 0x07060302')
    a('v_lshlrev_b32 v3, 3, v0')
    a('s_waitcnt vmcnt(0)')
    for e in range(4):
        for p in range(4):
            lo, hi = XL + 2 * (2 * p) + (e >> 1), XL + 2 * (2 * p + 1) + (e >> 1)
            a(f'v_perm_b32 v{BO+4*e+p}, v{hi}, v{lo}, s{4 + (e & 1)}')
    for e in range(4):
        for hf in range(2):
            a(f'v_mfma_f32_16x16x32_bf16 {vr(DD+8*e+4*hf,4)}, {vr(F8+4*hf,4)}, {vr(BO+4*e,4)}, 0')
    for q in range(8):
        a(f'v_cvt_pk_bf16_f32 v{XL+2*q}, v{DD+q}, v{DD+8+q}')
        a(f'v_cvt_pk_bf16_f32 v{XL+2*q+1}, v{DD+16+q}, v{DD+24+q}')
        a(f'ds_write_b64 v3, {vr(XL+2*q,2)} offset:{K1_SIG+q*2048}')
    sync_arrive(a, 4, 6)
    a('.k1_f_phaseB:')
    sync_wait(a, 4, 5, 4)
    AR, AI, DR, DI, T0 = 16, 24, 32, 48, 64
    for c in range(2):
        for jj in range(2):
            a(f'ds_read_b64_tr_b16 {vr(AR+4*c+2*jj,2)}, v{vtr} offset:{c*1024+jj*512}')
    for c in range(2):
        for jj in range(2):
            a(f'ds_read_b64_tr_b16 {vr(AI+4*c+2*jj,2)}, v{vtr} offset:{2048+c*1024+jj*512}')
    a('s_waitcnt lgkmcnt(4)')
    a(f'v_mfma_f32_32x32x16_bf16 {vr(DR,16)}, {vr(AR,4)}, {vr(vC,4)}, 0')
    a(f'v_mfma_f32_32x32x16_bf16 {vr(DI,16)}, {vr(AR,4)}, {vr(vnS,4)}, 0')
    a(f'v_mfma_f32_32x32x16_bf16 {vr(DR,16)}, {vr(AR+4,4)}, {vr(vC+4,4)}, {vr(DR,16)}')
    a(f'v_mfma_f32_32x32x16_bf16 {vr(DI,16)}, {vr(AR+4,4)}, {vr(vnS+4,4)}, {vr(DI,16)}')
    a('s_waitcnt lgkmcnt(0)')
    a('s_cmp_lt_u32 s3, 2')
    a('s_cbranch_scc1 .k1_f_real1')
    for c in range(2):
        a(f'v_mfma_f32_32x32x16_bf16 {vr(DR,16)}, {vr(AI+4*c,4)}, {vr(vS+4*c,4)}, {vr(DR,16)}')
        a(f'v_mfma_f32_32x32x16_bf16 {vr(DI,16)}, {vr(AI+4*c,4)}, {vr(vC+4*c,4)}, {vr(DI,16)}')
    a('.k1_f_real1:')
    for ip in range(8):
        r, i_, c_, s_ = DR + 2 * ip, DI + 2 * ip, tc + 2 * ip, ts + 2 * ip
        t1, t2 = T0 + 4 * (ip & 1), T0 + 4 * (ip & 1) + 2
        a(f'v_pk_mul_f32 {vr(t1,2)}, {vr(i_,2)}, {vr(s_,2)}')
        a(f'v_pk_mul_f32 {vr(t2,2)}, {vr(r,2)}, {vr(s_,2)}')
        a(f'v_pk_fma_f32 {vr(t1,2)}, {vr(r,2)}, {vr(c_,2)}, {vr(t1,2)}')
        a(f'v_pk_fma_f32 {vr(t2,2)}, {vr(i_,2)}, {vr(c_,2)}, {vr(t2,2)} neg_lo:[0,0,1] neg_hi:[0,0,1]')
        a(f'v_cvt_pk_bf16_f32 v{AR+ip}, v{t1}, v{t1+1}')
        a(f'v_cvt_pk_bf16_f32 v{AI+ip}, v{t2}, v{t2+1}')
    a(f'v_mfma_f32_32x32x16_bf16 {vr(DR,16)}, {vr(vC,4)}, {vr(AR,4)}, 0')
    a(f'v_mfma_f32_32x32x16_bf16 {vr(DI,16)}, {vr(vCt,4)}, {vr(AI,4)}, 0')
    a(f'v_mfma_f32_32x32x16_bf16 {vr(DR,16)}, {vr(vS,4)}, {vr(AI,4)}, {vr(DR,16)}')
    a(f'v_mfma_f32_32x32x16_bf16 {vr(DI,16)}, {vr(vnSt,4)}, {vr(AR,4)}, {vr(DI,16)}')
    a(f'v_mfma_f32_32x32x16_bf16 {vr(DR,16)}, {vr(vC+4,4)}, {vr(AR+4,4)}, {vr(DR,16)}')
    a(f'v_mfma_f32_32x32x16_bf16 {vr(DI,16)}, {vr(vCt+4,4)}, {vr(AI+4,4)}, {vr(DI,16)}')
    a(f'v_mfma_f32_32x32x16_bf16 {vr(DR,16)}, {vr(vS+4,4)}, {vr(AI+4,4)}, {vr(DR,16)}')
    a(f'v_mfma_f32_32x32x16_bf16 {vr(DI,16)}, {vr(vnSt+4,4)}, {vr(AR+4,4)}, {vr(DI,16)}')
    a('s_cmp_lt_u32 s3, 2')
    a('s_cbranch_scc0 .k1_f_cplx2')
    a(f'''
    s_mov_b64 exec, 1
    v_mov_b32 v{DI}, v{DR+8}
    s_mov_b64 exec, -1
    s_branch .k1_f_lo
    ''')
    a('.k1_f_cplx2:')
    for i in range(8, 16):
        a(f'v_cvt_pk_bf16_f32 v{T0+i}, v{DR+i}, v{DI+i}')
        a(f's_mov_b32 s5, {z_soff(i)}')
        a(f'buffer_store_dword v{T0+i}, v{vhi}, s[48:51], s5 offen')
    a('.k1_f_lo:')
    for i in range(8):
        a(f'v_cvt_pk_bf16_f32 v{T0+i}, v{DR+i}, v{DI+i}')
        a(f's_mov_b32 s5, {z_soff(i)}')
        a(f'buffer_store_dword v{T0+i}, v{vlo}, s[48:51], s5 offen')
    a('s_endpgm')

    a('.k1_tr:')
    srd(a, 44, P_U, 4 << 20)
    srd(a, 48, P_WS, 1024 * UP, WS_UT)
    a(f'''
    s_sub_u32 s8, s3, 9
    s_lshl_b32 s9, s2, 1
    s_add_u32 s9, s9, s8
    s_mul_i32 s10, s8, {64*144}
    s_add_u32 s10, s10, {K1_TR}
    ''')
    TP = gen_transposer(a, lane, 9, 44, 48, 10, 2048, UP, 'u')
    a('s_barrier')
    a('s_cmp_lg_u32 s5, 0')
    a('s_cbranch_scc1 .k1_tr_nohdr')
    a(f'''
    s_mul_i32 s6, s4, {64*UP}
    v_mul_u32_u24 v10, {UP}, v{lane}
    v_add_u32 v10, s6, v10
    v_mov_b32 v12, 0
    v_mov_b32 v13, 0
    v_mov_b32 v14, 0
    v_mov_b32 v15, 0
    s_waitcnt vmcnt(0)
    buffer_store_dwordx4 v[12:15], v10, s[48:51], 0 offen offset:48
    s_waitcnt vmcnt(0)
    ''')
    a('.k1_tr_nohdr:')
    gen_transposer_tail(a, lane, 48, 10, UP, 64, TP)
    a('s_endpgm')

    a('.k1_kgen:')
    for k, p in enumerate((P_LOGA, P_AIM, P_CRE, P_CIM)):
        srd(a, 44 + 4 * k, p, 1024 * 256)
    srd(a, 60, P_LOGDT, 2048)
    srd(a, 64, P_DSKIP, 2048)
    srd(a, 68, P_WS, 1024 * 2048, WS_KC)
    a(f'''
    s_sub_u32 s8, s3, 5
    s_lshl_b32 s9, s2, 2
    s_add_u32 s9, s9, s8          ; channel d
    s_lshl_b32 s4, s9, 8
    s_lshl_b32 s5, s9, 1
    v_lshlrev_b32 v3, 2, v{lane}
    v_mov_b32 v4, 0
    buffer_load_dword v8, v3, s[44:47], s4 offen
    buffer_load_dword v9, v3, s[48:51], s4 offen
    buffer_load_dword v10, v3, s[52:55], s4 offen
    buffer_load_dword v11, v3, s[56:59], s4 offen
    buffer_load_ushort v12, v4, s[60:63], s5 offen
    buffer_load_ushort v13, v4, s[64:67], s5 offen
    s_barrier
    s_mul_i32 s10, s8, {KG_WAVE}
    s_add_u32 s10, s10, {K1_KG}
    v_lshlrev_b32 v5, 3, v{lane}
    v_add_u32 v5, s10, v5
    ''')
    a(f'''
    v_and_b32 v6, 31, v{lane}
    v_lshrrev_b32 v7, 5, v{lane}
    v_lshlrev_b32 v7, 4, v7
    v_add_u32 v7, s10, v7
    v_mul_u32_u24 v14, {KG_PITCH}, v6
    v_add_u32 v14, v14, v7         ; B address
    v_add_u32 v15, 32, v6
    ''')
    for thr in (11, 15, 19, 23):
        a(f'v_cmp_lt_u32 vcc, {thr}, v6')
        a(f'v_subbrev_co_u32 v15, vcc, 0, v15, vcc')
    a(f'''
    v_mul_u32_u24 v15, {KG_PITCH}, v15
    v_add_u32 v15, v15, v7         ; A address
    ''')
    L2E_HI = struct.unpack('<f', struct.pack('<f', 1.4426950408889634))[0]
    L2E_LO = 1.4426950408889634 - L2E_HI
    a(f'''
    s_mov_b32 s4, {fhex(L2E_HI)}
    s_mov_b32 s5, {fhex(L2E_LO)}
    s_mov_b32 s6, {fhex(0.6931471805599453)}
    s_mov_b32 s7, 0xffff0000
    ''')
    LA, AIM, CR, CI = 16, 18, 20, 22
    DT, DSK = 24, 25
    def unpack(dst, src):
        a(f'v_lshlrev_b32 v{dst}, 16, v{src}')
        a(f'v_and_b32 v{dst+1}, s7, v{src}')
    def expf(dst, x, t):
        a(f'''
        v_mul_f32 v{t}, s4, v{x}
        v_fma_f32 v{t+1}, v{x}, s4, -v{t}
        v_fma_f32 v{t+1}, v{x}, s5, v{t+1}
        v_exp_f32 v{t}, v{t}
        v_mul_f32 v{t+1}, s6, v{t+1}
        v_fma_f32 v{dst}, v{t}, v{t+1}, v{t}
        ''')
    a('s_waitcnt vmcnt(0)')
    unpack(LA, 8); unpack(AIM, 9); unpack(CR, 10); unpack(CI, 11)
    a(f'v_lshlrev_b32 v{DT}, 16, v12')
    a(f'v_lshlrev_b32 v{DSK}, 16, v13')
    expf(DT, DT, 26)
    expf(LA, LA, 28)
    expf(LA + 1, LA + 1, 30)
    a(f'v_cvt_pk_bf16_f32 v{DT}, v{DT}, v{DT}')
    a(f'v_cvt_pk_bf16_f32 v8, v{LA}, v{LA+1}')
    a(f'v_and_b32 v{DT}, s7, v{DT}')
    unpack(LA, 8)
    a(f'''
    v_mul_f32 v{LA}, v{LA}, v{DT}
    v_mul_f32 v{LA+1}, v{LA+1}, v{DT}
    v_mul_f32 v{AIM}, v{AIM}, v{DT}
    v_mul_f32 v{AIM+1}, v{AIM+1}, v{DT}
    v_mul_f32 v{LA}, {fhex(-1.4426950408889634)}, v{LA}
    v_mul_f32 v{LA+1}, {fhex(-1.4426950408889634)}, v{LA+1}
    v_mul_f32 v{AIM}, 0.15915494, v{AIM}
    v_mul_f32 v{AIM+1}, 0.15915494, v{AIM+1}
    v_add_f32 v{DT}, v{DT}, v{DT}
    v_mul_f32 v{CR}, v{CR}, v{DT}
    v_mul_f32 v{CR+1}, v{CR+1}, v{DT}
    v_mul_f32 v{CI}, v{CI}, v{DT}
    v_mul_f32 v{CI+1}, v{CI+1}, v{DT}
    ''')
    E1, E8, EG = 32, 36, 40
    for E, tmul in ((E8, 8.0), (E1, 1.0), (EG, 256.0)):
        for e in range(2):
            t = 26 + 2 * e
            a(f'''
            v_mul_f32 v{t}, {fhex(tmul)}, v{LA+e}
            v_mul_f32 v{t+1}, {fhex(tmul)}, v{AIM+e}
            v_exp_f32 v{t}, v{t}
            v_fract_f32 v{t+1}, v{t+1}
            v_cos_f32 v{E+e}, v{t+1}
            v_sin_f32 v{E+2+e}, v{t+1}
            v_mul_f32 v{E+e}, v{E+e}, v{t}
            v_mul_f32 v{E+2+e}, v{E+2+e}, v{t}
            ''')
    C0 = CR
    state = {'t': 0, 'o': 0}
    def cmul(dst, x, w):
        t = 44 + 4 * (state['t'] & 1); state['t'] += 1
        a(f'v_pk_mul_f32 {vr(t,2)}, {vr(x+2,2)}, {vr(w+2,2)}')
        a(f'v_pk_mul_f32 {vr(t+2,2)}, {vr(x+2,2)}, {vr(w,2)}')
        a(f'v_pk_fma_f32 {vr(dst,2)}, {vr(x,2)}, {vr(w,2)}, {vr(t,2)} neg_lo:[0,0,1] neg_hi:[0,0,1]')
        a(f'v_pk_fma_f32 {vr(dst+2,2)}, {vr(x,2)}, {vr(w+2,2)}, {vr(t+2,2)}')
    def emit(rows, x, neg):
        o = 52 + 2 * (state['o'] & 3); state['o'] += 1
        n = '-' if neg else ''
        a(f'v_cvt_pk_bf16_f32 v{o}, v{x}, {n}v{x+2}')
        a(f'v_cvt_pk_bf16_f32 v{o+1}, v{x+1}, {n}v{x+3}')
        for row in rows:
            a(f'ds_write_b64 v5, {vr(o,2)} offset:{row*KG_PITCH}')
    from model import coarse_a
    arow = {}
    for i in range(16):
        for h in range(2):
            aa = coarse_a(i, h)
            if aa is None: continue
            m = 8 * (i >> 2) + 4 * h + (i & 3)
            cm = m - sum(m > thr for thr in (11, 15, 19, 23))
            arow.setdefault(aa, []).append(32 + cm)
    slot = {}
    nxt = [60]
    def alloc():
        r = nxt[0]; nxt[0] += 4; return r
    prog = [(i + 1, i, E1) for i in range(7)] + [(8, 0, E8)]
    prog += [(258, 2, EG), (262, 6, EG), (260, 4, EG), (516, 260, EG), (772, 516, EG)]
    for j in range(7):
        prog += [(256 * (j + 1), 256 * j, EG), (256 * (j + 1) + 8, 256 * j + 8, EG)]
    slot[0] = C0
    ring = [alloc() for _ in range(14)]
    fa, fb = alloc(), alloc()
    a('v_mov_b32 v52, 0x3f80')
    a('v_mov_b32 v53, 0x3f80')
    a(f'ds_write_b64 v5, v[52:53] offset:0')
    state['o'] = 1
    emit([1], E8, False)
    emit(arow[0], C0, True)
    fcur = E8
    ri = 0
    for step in range(30):
        fn = fa if (step & 1) == 0 else fb
        cmul(fn, fcur, E8)
        if step < len(prog):
            d_, s_, w_ = prog[step]
            slot[d_] = ring[ri % 14]; ri += 1
            cmul(slot[d_], slot[s_], w_)
        emit([step + 2], fn, False)
        if step < len(prog) and d_ in arow:
            emit(arow[d_], slot[d_], True)
        fcur = fn
    assert nxt[0] <= 128
    a('s_waitcnt lgkmcnt(0)')
    D = 16
    FB = 32
    def rd(kk):
        b = FB + 8 * (kk & 3)
        a(f'ds_read_b128 {vr(b,4)}, v15 offset:{kk*32}')
        a(f'ds_read_b128 {vr(b+4,4)}, v14 offset:{kk*32}')
    a(f'v_mov_b32 v13, v{DSK}')
    for kk in range(4): rd(kk)
    for kk in range(16):
        b = FB + 8 * (kk & 3)
        rem = min(3, 15 - kk)
        a(f's_waitcnt lgkmcnt({2*rem})')
        a(f'v_mfma_f32_32x32x16_bf16 {vr(D,16)}, {vr(b,4)}, {vr(b+4,4)}, ' + ('0' if kk == 0 else vr(D, 16)))
        if kk + 4 < 16: rd(kk + 4)
    a(f'''
    s_mov_b64 exec, 1
    v_add_f32 v{D}, v{D}, v13
    s_mov_b64 exec, -1
    ''')
    O = 64
    for k, (lo, hi) in enumerate(((3, 2), (1, 0), (6, 5), (4, 4), (10, 10), (9, 8), (12, 13), (14, 15))):
        a(f'v_cvt_pk_bf16_f32 v{O+k}, v{D+lo}, v{D+hi}')
    a(f'''
    s_lshl_b32 s4, s9, 11
    v_lshlrev_b32 v3, 4, v{lane}
    buffer_store_dwordx4 {vr(O,4)}, v3, s[68:71], s4 offen
    buffer_store_dwordx4 {vr(O+4,4)}, v3, s[68:71], s4 offen offset:1024
    ''')
    a(f'{EXIT}:')
    a('s_endpgm')

def kd(name, vgpr, sgpr=96):
    acc = (vgpr + 3) // 4 * 4
    return f'''.p2align 6
.amdhsa_kernel {name}
  .amdhsa_next_free_vgpr {vgpr}
  .amdhsa_next_free_sgpr {sgpr}
  .amdhsa_accum_offset {acc}
  .amdhsa_group_segment_fixed_size 0
  .amdhsa_kernarg_size 104
  .amdhsa_user_sgpr_count 2
  .amdhsa_user_sgpr_kernarg_segment_ptr 1
  .amdhsa_system_sgpr_workgroup_id_x 1
.end_amdhsa_kernel
'''

def build(kernels):
    hdr = open(f'cdna_kernels/{NAME}.s.ref').read().split('\n')
    head = [l for l in hdr if l.startswith(';') and '@launch' not in l.lower()]
    head = [l for l in head if 'Override launch' not in l and 'grid=ceil' not in l]
    out = '\n'.join(head) + '\n'
    for name, gen, grid, block, lds, vgpr in kernels:
        out += f'; @launch kernel={name} grid=({grid},1,1) block=({block},1,1) lds={lds}\n'
    out += '.amdgcn_target "amdgcn-amd-amdhsa--gfx950"\n.text\n'
    a = Asm()
    for name, gen, grid, block, lds, vgpr in kernels:
        a.raw(f'.globl {name}')
        a.raw(f'.type {name},@function')
        gen(a)
    out += a.render()
    out += '.section .rodata,"a"\n'
    for name, gen, grid, block, lds, vgpr in kernels:
        out += kd(name, vgpr)
    return out

if __name__ == '__main__':
    ks = [('k1_kernel', gen_k1, 256, 704, K1_LDS, 160)]
    try:
        from gen23 import KERNELS23
        ks += KERNELS23
    except ImportError:
        pass
    path = sys.argv[1] if len(sys.argv) > 1 else f'cdna_kernels/{NAME}.s'
    open(path, 'w').write(build(ks))
    print('wrote', path)
```

```python
import sys
sys.path.insert(0, 'dev')
from gen import *

CS = 4640
CV_K = 4 * CS
CV_WAVE = CV_K + 4224
K2_ZB = 4 * CV_WAVE
K2_WB = K2_ZB + 16384
K2_CNT = K2_WB + 16384
K2_LDS = K2_CNT + 64

def swap4x4(a, base):
    for i in range(4):
        for j in range(i + 1, 4):
            a(f'v_swap_b32 v{base+4*i+j}, v{base+4*j+i}')

def cmul_pk(a, dr, di, xr, xi, cr, ci, conj):
    a(f'v_pk_mul_f32 {vr(dr,2)}, {vr(xi,2)}, {vr(ci,2)}')
    a(f'v_pk_mul_f32 {vr(di,2)}, {vr(xr,2)}, {vr(ci,2)}')
    neg = ' neg_lo:[0,0,1] neg_hi:[0,0,1]'
    a(f'v_pk_fma_f32 {vr(dr,2)}, {vr(xr,2)}, {vr(cr,2)}, {vr(dr,2)}' + ('' if conj else neg))
    a(f'v_pk_fma_f32 {vr(di,2)}, {vr(xi,2)}, {vr(cr,2)}, {vr(di,2)}' + (neg if conj else ''))

def cmul_sc(a, dr, di, xr, xi, cr, ci, conj):
    for e in range(2):
        a(f'v_mul_f32 v{dr+e}, v{xr+e}, v{cr+e}')
        a(f'v_mul_f32 v{di+e}, v{xi+e}, v{cr+e}')
    for e in range(2):
        if conj:
            a(f'v_fmac_f32 v{dr+e}, v{xi+e}, v{ci+e}')
            a(f'v_fma_f32 v{di+e}, -v{xr+e}, v{ci+e}, v{di+e}')
        else:
            a(f'v_fma_f32 v{dr+e}, -v{xi+e}, v{ci+e}, v{dr+e}')
            a(f'v_fmac_f32 v{di+e}, v{xr+e}, v{ci+e}')

def gen_k2(a):
    a.raw('.p2align 8')
    a.raw('k2_kernel:')
    EXIT = '.k2_exit'
    prologue(a, 256, EXIT, early=K2_CNT)
    lane = 2
    a('s_cmp_ge_u32 s3, 4')
    a('s_cbranch_scc1 .k2_fft')
    srd(a, 44, P_WS, 1024 * UP, WS_UT)
    srd(a, 48, P_WS, 1024 * 2048, WS_KC)
    srd(a, 52, P_WS, 4 << 20, WS_YT)
    KC = 8
    UR = 64
    a(f'''
    s_lshl_b32 s9, s2, 2
    s_add_u32 s9, s9, s3            ; channel
    s_mul_i32 s10, s3, {CV_WAVE}
    v_lshlrev_b32 v3, 4, v{lane}
    s_lshl_b32 s4, s9, 11
    buffer_load_dwordx4 {vr(KC,4)}, v3, s[48:51], s4 offen
    buffer_load_dwordx4 {vr(KC+4,4)}, v3, s[48:51], s4 offen offset:1024
    s_mul_i32 s4, s9, {UP}
    s_add_u32 s4, s4, {64-8}
    ''')
    for p in range(4):
        a(f'buffer_load_dwordx4 {vr(UR+8*p+2,4)}, v3, s[44:47], s4 offen offset:{p*1024+8}')
        a(f'buffer_load_dwordx2 {vr(UR+8*p,2)}, v3, s[44:47], s4 offen offset:{p*1024}')
    a(f's_add_u32 s5, s10, {384 + 3*CS}')
    a('s_add_u32 s4, s4, 8')
    a('s_mov_b32 m0, s5')
    for p in range(4):
        a(f'buffer_load_dwordx4 v3, s[44:47], s4 offen offset:{p*1024} lds')
    a(f's_add_u32 s5, s10, {384 + 1*CS}')
    a('s_sub_u32 s4, s4, 4')
    a('s_mov_b32 m0, s5')
    for p in range(4):
        a(f'buffer_load_dwordx4 v3, s[44:47], s4 offen offset:{p*1024} lds')
    a(f'''
    v_mov_b32 v4, {K2_CNT+12}
    v_mov_b32 v5, 1
    ''')
    sync_arrive(a, 4, 5)
    stamp(a, 1)
    a(f'''
    v_mov_b32 v16, 0
    v_mov_b32 v17, 0
    v_mov_b32 v18, 0
    v_mov_b32 v19, 0
    v_add_u32 v4, s10, v3
    s_mov_b64 exec, 0xffffff
    ''')
    for c in range(4):
        a(f'ds_write_b128 v4, v[16:19] offset:{c*CS}')
    a(f'''
    s_mov_b64 exec, 0xff
    ds_write_b128 v4, v[16:19] offset:{CV_K+4096}
    s_mov_b64 exec, -1
    ''')
    a(f'''
    v_and_b32 v4, 31, v{lane}             ; b
    v_lshrrev_b32 v5, 5, v{lane}          ; h
    v_lshlrev_b32 v6, 4, v4               ; 16 b
    s_add_u32 s11, s10, {CV_K}
    v_sub_u32 v6, s11, v6                 ; Kr - 16 b
    v_lshlrev_b32 v7, 3, v5
    v_sub_u32 v20, v6, v7                 ; - 8h   (+2*1788)
    v_lshlrev_b32 v7, 9, v5
    v_sub_u32 v21, v6, v7                 ; - 512h (+2*1528)
    v_sub_u32 v22, v21, v7                ; - 1024h (+2*760)
    v_add_u32 v22, {2*760}, v22
    v_add_u32 v21, {2*1528}, v21
    v_add_u32 v20, {2*1788}, v20
    v_and_b32 v7, 1, v4
    v_mul_u32_u24 v7, 0x20200, v7
    v_lshlrev_b32 v7, 8, v7
    v_add_u32 v7, 0x01000302, v7
    s_mov_b32 s4, 0x01000100
    s_mov_b32 s5, 0x03020302
    ''')
    vF, vG = 24, 25
    a(f'''
    v_and_b32 v26, 15, v{lane}            ; n / m
    v_lshrrev_b32 v27, 4, v{lane}         ; g
    v_lshlrev_b32 v28, 4, v27             ; 16 g
    v_lshlrev_b32 v29, 3, v26             ; 8 n
    v_sub_u32 v{vF}, v28, v29
    s_add_u32 s6, s11, {2*2044-3968}
    v_add_u32 v{vF}, s6, v{vF}
    v_and_b32 v30, 3, v26
    v_mul_u32_u24 v30, {CS}, v30
    v_lshrrev_b32 v31, 2, v26
    v_lshl_add_u32 v30, v31, 7, v30
    v_add3_u32 v{vG}, v30, v28, s10
    v_lshl_add_u32 v26, v27, 7, v29
    ''')
    a('s_waitcnt vmcnt(16)')
    stamp(a, 2)
    a(f'ds_write_b64 v20, {vr(KC,2)} offset:512')
    a(f'ds_write_b64 v20, {vr(KC+2,2)}')
    a(f'''
    v_mov_b32 v32, v{KC+4}
    v_perm_b32 v33, v{KC+5}, v{KC+5}, s4
    v_mov_b32 v34, v{KC+5}
    v_perm_b32 v35, v{KC+5}, v{KC+5}, s5
    ds_write_b128 v21, v[32:35]
    ''')
    for j in range(2):
        k, q = KC + 6 + j, 36 + 4 * j
        a(f'''
        v_perm_b32 v{q}, v{k}, v{k}, s5
        v_perm_b32 v{q+1}, v{k}, v{k}, v7
        v_perm_b32 v{q+2}, v{k}, v{k}, s4
        v_perm_b32 v{q+3}, v{k}, v{k}, s4
        ds_write_b128 v22, {vr(q,4)} offset:{512*(1-j)}
        ''')
    a('v_add_u32 v4, s10, v3')
    for p in range(4):
        r = UR + 8 * p
        q = 44 + 8 * (p & 1)
        a(f's_waitcnt vmcnt({8 + 2*(3-p)})')
        for j in range(4):
            a(f'v_alignbit_b32 v{q+j}, v{r+j+1}, v{r+j}, 16')
        a(f'ds_write_b128 v4, {vr(q,4)} offset:{384 + 1024*p}')
        for j in range(4):
            a(f'v_alignbit_b32 v{q+4+j}, v{r+j+2}, v{r+j+1}, 16')
        a(f'ds_write_b128 v4, {vr(q+4,4)} offset:{384 + 2*CS + 1024*p}')
    ACC = 32
    SET = [64, 128]
    def reads(st):
        lst = []
        for i in range(8):
            lst.append(f'ds_read_b128 {vr(st+4*i,4)}, v{vG} offset:{512*i}')
            lst.append(f'ds_read_b64 {vr(st+32+4*i,2)}, v{vF} offset:{512*(7-i)}')
            lst.append(f'ds_read_b64 {vr(st+32+4*i+2,2)}, v{vF} offset:{512*(7-i)+8}')
        return lst
    a('s_waitcnt vmcnt(0) lgkmcnt(0)')
    stamp(a, 3)
    for r in reads(SET[0]): a(r)
    for k in range(32): a(f'v_mov_b32 v{ACC+k}, 0')
    a('s_mov_b32 s12, 0')
    a('.k2_cv_loop:')
    for half in range(2):
        cur, nxt = SET[half], SET[1 - half]
        a(f'v_add_u32 v{vG}, 64, v{vG}')
        a(f'v_add_u32 v{vF}, 64, v{vF}')
        a('s_waitcnt lgkmcnt(0)')
        rl = reads(nxt)
        pairs = [(i, c) for i in range(8) for c in range(8 - i)]
        for n_, (i, c) in enumerate(pairs):
            A = i + c
            a(f'v_mfma_f32_16x16x32_bf16 {vr(ACC+4*A,4)}, {vr(cur+4*i,4)}, {vr(cur+32+4*c,4)}, {vr(ACC+4*A,4)}')
            if n_ < 24:
                skip = os.environ.get('CV_SKIP', '')
                if not (('G' in skip and 'b128' in rl[n_]) or ('F' in skip and 'b64' in rl[n_])): a(rl[n_])
    a('''
    s_add_u32 s12, s12, 1
    s_cmp_lt_u32 s12, 4
    s_cbranch_scc1 .k2_cv_loop
    ''')
    stamp(a, 4)
    a('s_lshl_b32 s4, s9, 12')
    for A in range(8):
        a(f'v_cvt_pk_bf16_f32 v{8+2*A}, v{ACC+4*A}, v{ACC+4*A+1}')
        a(f'v_cvt_pk_bf16_f32 v{9+2*A}, v{ACC+4*A+2}, v{ACC+4*A+3}')
        a(f'buffer_store_dwordx2 {vr(8+2*A,2)}, v26, s[52:55], s4 offen offset:{512*A}')
    stamp(a, 5)
    stamp_flush(a, 1, 6)
    a('s_endpgm')

    a('.k2_fft:')
    srd(a, 44, P_WS, 4 << 20, WS_Z1)
    srd(a, 48, P_WS, 4 << 20, WS_Z2)
    srd(a, 52, P_WR, 2048 * 1026)
    srd(a, 56, P_WI, 2048 * 1026)
    a(f'''
    s_and_b32 s8, s2, 7
    s_lshr_b32 s9, s2, 3
    s_sub_u32 s10, s3, 4
    s_lshl_b32 s11, s8, 5
    s_add_u32 s11, s11, s9
    s_lshl_b32 s11, s11, 14
    v_and_b32 v3, 15, v{lane}          ; n
    v_lshrrev_b32 v4, 4, v{lane}       ; g
    s_mov_b32 s13, 0
    s_cmp_ge_u32 s8, 5
    s_cbranch_scc1 .k2_sp_hi
    s_or_b32 s4, s9, s10
    s_cmp_lg_u32 s4, 0
    s_cbranch_scc1 .k2_sp_done
    s_and_b32 s4, s8, 3
    s_cmp_eq_u32 s4, 0
    s_cselect_b32 s13, 3, 1
    s_branch .k2_sp_load
    .k2_sp_hi:
    s_cmp_lg_u32 s9, 31
    s_cbranch_scc1 .k2_sp_done
    s_cmp_lg_u32 s10, 3
    s_cbranch_scc1 .k2_sp_done
    s_mov_b32 s13, 2
    .k2_sp_load:
    ''')
    WM = 160
    a(f'''
    v_lshl_add_u32 v5, v4, 6, v3
    v_lshlrev_b32 v5, 3, v5
    v_add_u32 v5, s8, v5
    s_cmp_eq_u32 s13, 1
    s_cselect_b32 s4, 0, 1024
    s_cmp_eq_u32 s13, 3
    s_movk_i32 s5, -1026
    s_cselect_b32 s5, 1026, s5
    s_cselect_b32 s6, 0, {2048*1026}
    s_add_u32 s4, s4, s6
    ''')
    for i in range(4):
        a(f'''
        v_add_u32 v6, {128*i}, v5
        v_mul_i32_i24 v6, s5, v6
        v_add_u32 v6, s4, v6
        buffer_load_ushort v{WM+i}, v6, s[52:55], 0 offen
        buffer_load_ushort v{WM+4+i}, v6, s[56:59], 0 offen
        ''')
    a('.k2_sp_done:')
    a(f'''
    v_lshlrev_b32 v5, 4, v{lane}
    v_and_b32 v6, 255, v0              ; t
    v_lshrrev_b32 v7, 1, v6
    v_lshlrev_b32 v8, 3, v7
    v_add_u32 v8, s8, v8
    v_mul_u32_u24 v8, 1026, v8
    v_and_b32 v9, 1, v6
    v_lshl_add_u32 v8, v9, 4, v8
    ''')
    WL = 144
    vC0, vC1, vC2, vOne, vT = 10, 11, 12, 13, 14
    a(f'''
    v_mov_b32 v{vC0}, {K2_CNT}
    v_mov_b32 v{vC1}, {K2_CNT+4}
    v_mov_b32 v{vC2}, {K2_CNT+8}
    v_mov_b32 v{vOne}, 1
    ''')
    stamp(a, 1)
    vW0, vW1, vZ, vL = 168, 169, 170, 171
    a(f'''
    v_bfe_u32 v15, v6, 3, 2
    v_lshl_add_u32 v15, v9, 1, v15
    v_and_b32 v16, 3, v15
    v_add_u32 v15, 1, v15
    v_and_b32 v15, 3, v15
    v_lshlrev_b32 v7, 6, v7
    v_add_u32 v7, {K2_WB}, v7
    v_lshl_add_u32 v{vW0}, v16, 4, v7
    v_lshl_add_u32 v{vW1}, v15, 4, v7
    v_bfe_u32 v15, v3, 2, 2
    v_add_u32 v15, s10, v15
    v_and_b32 v15, 3, v15
    v_lshlrev_b32 v15, 4, v15
    v_lshl_add_u32 v15, v3, 6, v15
    v_lshl_add_u32 v15, v4, 12, v15
    v_add_u32 v{vZ}, {K2_ZB}, v15
    s_lshl_b32 s4, s10, 12
    s_add_u32 s4, s4, {K2_ZB}
    v_add_u32 v{vL}, s4, v5
    ''')
    B1R, B1I, A2R, A2I, B3R, B3I, A4R, A4I = 16, 20, 24, 28, 32, 36, 40, 44
    T1C, T1S, T3C, T3S = 48, 52, 56, 60
    nf, idx, q1, p_, c_, s_ = 64, 65, 66, 67, 68, 69
    scale = 2.0 / (2048 * 1024)
    a(f'''
    v_cvt_f32_u32 v{nf}, v3
    v_lshlrev_b32 v{idx}, 2, v4
    v_cvt_f32_u32 v{idx}, v{idx}
    v_cvt_f32_u32 v70, s8
    v_fma_f32 v{q1}, v{nf}, 4.0, 0
    v_fma_f32 v{q1}, v{q1}, 2.0, v70       ; 8n + cls
    ''')
    def z_loads():
        a(f'''
        s_lshl_b32 s4, s10, 12
        s_add_u32 s5, s4, {K2_ZB}
        s_add_u32 s12, s11, s4
        s_mov_b32 m0, s5
        ''')
        for p in range(4):
            a(f'buffer_load_dwordx4 v5, s[44:47], s12 offen offset:{p*1024} lds')
    def w_loads():
        a(f'''
        s_lshl_b32 s4, s9, 5
        s_cmp_ge_u32 s8, 5
        s_cselect_b32 s5, 2, 0
        s_add_u32 s4, s4, s5
        s_add_u32 s5, s4, {128*8*1026}
        buffer_load_dwordx4 {vr(WL,4)}, v8, s[52:55], s4 offen
        buffer_load_dwordx4 {vr(WL+4,4)}, v8, s[56:59], s4 offen
        buffer_load_dwordx4 {vr(WL+8,4)}, v8, s[52:55], s5 offen
        buffer_load_dwordx4 {vr(WL+12,4)}, v8, s[56:59], s5 offen
        ''')
    for e in range(4):
        if e == int(os.environ.get('FFT_LOAD_AT', '1')):
            a(f'v_mov_b32 v15, {K2_CNT+12}')
            sync_wait(a, 15, vT, 4)
            z_loads()
        if e == int(os.environ.get('FFT_W_AT', '3')):
            w_loads()
        a(f'''
        v_mul_f32 v{p_}, v{idx}, v{q1}
        v_mul_f32 v{p_}, {fhex(1/128)}, v{p_}
        v_cos_f32 v{c_}, v{p_}
        v_sin_f32 v{s_}, v{p_}
        v_mul_f32 v{p_}, {fhex(1/16)}, v{p_}
        v_cvt_pk_bf16_f32 v{B1R+e}, v{c_}, v{s_}
        v_cvt_pk_bf16_f32 v{B1I+e}, -v{s_}, v{c_}
        v_cos_f32 v{c_}, v{p_}
        v_sin_f32 v{s_}, v{p_}
        v_mul_f32 v{p_}, v{idx}, v{nf}
        v_mul_f32 v{T1C+e}, {fhex(scale)}, v{c_}
        v_mul_f32 v{T1S+e}, {fhex(scale)}, v{s_}
        v_mul_f32 v{p_}, {fhex(1/16)}, v{p_}
        v_cos_f32 v{c_}, v{p_}
        v_sin_f32 v{s_}, v{p_}
        v_fma_f32 v{p_}, v{idx}, 4.0, 0
        v_fma_f32 v{p_}, v{p_}, 2.0, v70
        v_cvt_pk_bf16_f32 v{A2R+e}, v{c_}, v{s_}
        v_cvt_pk_bf16_f32 v{A2I+e}, -v{s_}, v{c_}
        v_cvt_pk_bf16_f32 v{B3R+e}, v{c_}, -v{s_}
        v_cvt_pk_bf16_f32 v{B3I+e}, v{s_}, v{c_}
        v_mul_f32 v{p_}, v{p_}, v{nf}
        v_mul_f32 v{p_}, {fhex(1/128)}, v{p_}
        v_cos_f32 v{c_}, v{p_}
        v_sin_f32 v{s_}, v{p_}
        v_mul_f32 v{p_}, {fhex(1/16)}, v{p_}
        v_cvt_pk_bf16_f32 v{A4R+e}, v{c_}, -v{s_}
        v_cvt_pk_bf16_f32 v{A4I+e}, v{s_}, v{c_}
        v_cos_f32 v{T3C+e}, v{p_}
        v_sin_f32 v{T3S+e}, v{p_}
        v_add_f32 v{idx}, 1.0, v{idx}
        ''')
    stamp(a, 2)
    a('s_waitcnt vmcnt(4)')
    a('s_setprio 2')
    stamp(a, 3)
    sync_arrive(a, vC0, vOne)
    sync_wait(a, vC0, vT, 4)
    stamp(a, 4)
    X = 64
    D = 80
    WF = 112
    TM = 172
    SV = 180
    a('s_mov_b32 s14, 0')
    a('s_mov_b32 s7, 0xffff0000')
    a('.k2_pass:')
    for e in range(4):
        a(f'ds_read_b128 {vr(X+4*e,4)}, v{vZ} offset:{1024*e}')
    a('s_waitcnt lgkmcnt(0)')
    swap4x4(a, X)
    a('s_cmp_lg_u32 s13, 3')
    a('s_cbranch_scc1 .k2_nomask')
    a('s_lshl_b32 s4, s14, 4')
    for e in range(4):
        a(f'v_bfe_u32 v{X+e}, v{X+e}, s4, 16')
    a('.k2_nomask:')
    def stage(Mr, Mi, data_is_A):
        for c in range(4):
            for M, off in ((Mr, 0), (Mi, 4)):
                if data_is_A:
                    a(f'v_mfma_f32_16x16x32_bf16 {vr(D+8*c+off,4)}, {vr(X+4*c,4)}, {vr(M,4)}, 0')
                else:
                    a(f'v_mfma_f32_16x16x32_bf16 {vr(D+8*c+off,4)}, {vr(M,4)}, {vr(X+4*c,4)}, 0')
    def mulpack(cr_of, ci_of, conj):
        k = 0
        for c in range(4):
            for hp in range(2):
                t = TM + 4 * (k & 1); k += 1
                cmul_sc(a, t, t + 2, D + 8 * c + 2 * hp, D + 8 * c + 4 + 2 * hp, cr_of(c) + 2 * hp, ci_of(c) + 2 * hp, conj)
                a(f'v_cvt_pk_bf16_f32 v{X+4*c+2*hp}, v{t}, v{t+2}')
                a(f'v_cvt_pk_bf16_f32 v{X+4*c+2*hp+1}, v{t+1}, v{t+3}')
    stage(B1R, B1I, True)
    mulpack(lambda c: T1C, lambda c: T1S, True)
    stage(A2R, A2I, False)
    a('s_cmp_lg_u32 s14, 0')
    a('s_cbranch_scc1 .k2_wready')
    stamp(a, 5)
    a('s_waitcnt vmcnt(0)')
    stamp(a, 6)
    for rr in range(2):
        for ar in range(2):
            r = WL + 8 * rr + 4 * ar
            a(f'ds_write_b64 v{vW0}, {vr(r,2)} offset:{rr*8192+ar*8}')
            a(f'ds_write_b64 v{vW1}, {vr(r+2,2)} offset:{rr*8192+ar*8}')
    sync_arrive(a, vC1, vOne)
    sync_wait(a, vC1, vT, 4)
    stamp(a, 7)
    a('.k2_wready:')
    for i in range(4):
        a(f'ds_read_b128 {vr(WL+4*i,4)}, v{vZ} offset:{16384+1024*i}')
    for i in range(4):
        a(f's_waitcnt lgkmcnt({3-i})')
        for part in range(2):
            for cp in range(2):
                src = WL + 4 * i + 2 * part + cp
                a(f'v_lshlrev_b32 v{WF+8*(2*cp)+4*part+i}, 16, v{src}')
                a(f'v_and_b32 v{WF+8*(2*cp+1)+4*part+i}, s7, v{src}')
    a('s_cmp_eq_u32 s13, 0')
    a('s_cbranch_scc1 .k2_nopatch')
    h_, nh = fhex(0.5), fhex(-0.5)
    a(f'''
    s_mov_b32 s4, {h_}
    s_mov_b32 s5, {h_}
    s_mov_b32 s6, {nh}
    s_cmp_lg_u32 s13, 3
    s_cbranch_scc1 .k2_pcoef
    s_cmp_eq_u32 s14, 0
    s_cselect_b32 s4, {h_}, 0
    s_cselect_b32 s5, 0, {h_}
    s_mov_b32 s6, s5
    .k2_pcoef:
    s_cmp_eq_u32 s13, 2
    s_cbranch_scc1 .k2_patch_hi
    ''')
    def patch(c):
        for part, sc in ((0, 5), (1, 6)):
            for i in range(4):
                w = WF + 8 * c + 4 * part + i
                a(f'v_lshlrev_b32 v{TM}, 16, v{WM+4*part+i}')
                a(f'v_mul_f32 v{w}, s4, v{w}')
                a(f'v_fmac_f32 v{w}, s{sc}, v{TM}')
    patch(0)
    a('s_branch .k2_nopatch')
    a('.k2_patch_hi:')
    patch(3)
    a('.k2_nopatch:')
    mulpack(lambda c: WF + 8 * c, lambda c: WF + 8 * c + 4, False)
    stage(B3R, B3I, True)
    mulpack(lambda c: T3C, lambda c: T3S, False)
    stage(A4R, A4I, False)
    a('s_cmp_lg_u32 s13, 3')
    a('s_cbranch_scc1 .k2_out')
    a('s_cmp_lg_u32 s14, 0')
    a('s_cbranch_scc1 .k2_pass2done')
    for i in range(4): a(f'v_mov_b32 v{SV+i}, v{D+i}')
    a('s_mov_b32 s14, 1')
    a('s_branch .k2_pass')
    a('.k2_pass2done:')
    for i in range(4):
        a(f'v_mov_b32 v{D+4+i}, v{D+i}')
        a(f'v_mov_b32 v{D+i}, v{SV+i}')
    a('.k2_out:')
    for i in range(4):
        for c in range(4):
            a(f'v_cvt_pk_bf16_f32 v{X+4*i+c}, v{D+8*c+i}, v{D+8*c+4+i}')
        a(f'ds_write_b128 v{vZ}, {vr(X+4*i,4)} offset:{1024*i}')
    stamp(a, 8)
    sync_arrive(a, vC2, vOne)
    sync_wait(a, vC2, vT, 4)
    stamp(a, 9)
    for p in range(4):
        a(f'ds_read_b128 {vr(X+4*p,4)}, v{vL} offset:{1024*p}')
    for p in range(4):
        a(f's_waitcnt lgkmcnt({3-p})')
        a(f'buffer_store_dwordx4 {vr(X+4*p,4)}, v5, s[48:51], s12 offen offset:{1024*p}')
    stamp_flush(a, 1, 10)
    a(f'{EXIT}:')
    a('s_endpgm')

K3_CT = 0
K3_TR = 16384
K3_LDS = K3_TR + 2 * 64 * 144

def gen_k3(a):
    a.raw('.p2align 8')
    a.raw('k3_kernel:')
    EXIT = '.k3_exit'
    prologue(a, 256, EXIT)
    lane = 2
    a('s_cmp_ge_u32 s3, 5')
    a('s_cbranch_scc1 .k3_tr')
    srd(a, 44, P_WS, 4 << 20, WS_Z2)
    srd(a, 48, P_OUT, 8 << 20)
    a(f'''
    s_sub_u32 s8, s3, 1
    s_cmp_eq_u32 s3, 0
    s_cselect_b32 s8, 0, s8
    s_cmp_eq_u32 s3, 1
    s_cselect_b32 s8, 4, s8
    s_sub_u32 s9, 8, s8
    ''')
    vlo, vhi = 4, 5
    gen_z_addr(a, lane, vlo, vhi, 64, 2, 8, 9)
    X = 16
    for i in range(8):
        a(f's_mov_b32 s5, {z_soff(i)}')
        a(f'buffer_load_dword v{X+i}, v{vlo}, s[44:47], s5 offen')
    a('s_cmp_lt_u32 s3, 2')
    a('s_cbranch_scc1 .k3_real_noload')
    for i in range(8, 16):
        a(f's_mov_b32 s5, {z_soff(i)}')
        a(f'buffer_load_dword v{X+i}, v{vhi}, s[44:47], s5 offen')
    a('.k3_real_noload:')
    stamp(a, 1)
    G8 = 8
    gen_dft8_frags(a, lane, G8, 64, False)
    MR, MI, NR, NI, tc, ts = 80, 96, 112 - 8, 120 - 8, 128, 144
    kf, arg, a2, c0, s0, k5 = range(64, 70)
    a(f'''
    v_and_b32 v{kf}, 31, v{lane}
    v_cvt_f32_u32 v{kf}, v{kf}
    v_mul_f32 v{kf}, {fhex(1/32)}, v{kf}
    v_lshrrev_b32 v{arg}, 5, v{lane}
    v_cvt_f32_u32 v{arg}, v{arg}
    v_mul_f32 v{arg}, 4.0, v{arg}
    v_mul_f32 v{arg}, v{arg}, v{kf}
    v_mul_f32 v{k5}, {fhex(5.0)}, v{kf}
    ''')
    for i in range(16):
        a(f'v_cos_f32 v{c0}, v{arg}')
        a(f'v_sin_f32 v{s0}, v{arg}')
        a(f'v_mul_f32 v{a2}, {fhex(1/32)}, v{arg}')
        a(f'v_cos_f32 v{tc+i}, v{a2}')
        a(f'v_sin_f32 v{ts+i}, v{a2}')
        if i != 15:
            a(f'v_add_f32 v{arg}, v{arg}, v{k5 if (i & 3) == 3 else kf}')
        a(f'v_cvt_pk_bf16_f32 v{MR+i}, v{c0}, -v{s0}')
        a(f'v_cvt_pk_bf16_f32 v{MI+i}, v{s0}, v{c0}')
        if i >= 8:
            a(f'v_cvt_pk_bf16_f32 v{NR+i}, v{c0}, v{s0}')
            a(f'v_cvt_pk_bf16_f32 v{NI+i}, v{s0}, -v{c0}')
    a(f'''
    v_and_b32 v6, 31, v{lane}
    v_lshlrev_b32 v6, 2, v6
    v_lshrrev_b32 v7, 5, v{lane}
    v_lshl_add_u32 v6, v7, 9, v6
    s_lshl_b32 s4, s8, 12
    s_lshl_b32 s5, s3, 1
    s_cmp_lt_u32 s3, 2
    s_cselect_b32 s4, s5, s4
    v_add_u32 v6, s4, v6
    ''')
    DR, DI, T0 = 32, 48, 64
    stamp(a, 2)
    a('s_waitcnt vmcnt(0)')
    stamp(a, 3)
    a('s_cmp_lt_u32 s3, 2')
    a('s_cbranch_scc0 .k3_cplx1')
    for i in range(8, 16): a(f'v_mov_b32 v{X+i}, 0')
    a(f'''
    s_mov_b64 exec, 1
    v_lshrrev_b32 v{X+8}, 16, v{X}
    s_mov_b64 exec, -1
    ''')
    a('.k3_cplx1:')
    for c in range(4):
        br, bi = (MR + 4 * c, MI + 4 * c) if c < 2 else (NR + 4 * c, NI + 4 * c)
        a(f'v_mfma_f32_32x32x16_bf16 {vr(DR,16)}, {vr(X+4*c,4)}, {vr(br,4)}, ' + ('0' if c == 0 else vr(DR, 16)))
        a(f'v_mfma_f32_32x32x16_bf16 {vr(DI,16)}, {vr(X+4*c,4)}, {vr(bi,4)}, ' + ('0' if c == 0 else vr(DI, 16)))
    for ip in range(8):
        t = T0 + 4 * (ip & 1)
        cmul_pk(a, t, t + 2, DR + 2 * ip, DI + 2 * ip, tc + 2 * ip, ts + 2 * ip, False)
        a(f'v_cvt_pk_bf16_f32 v{X+2*ip}, v{t}, v{t+2}')
        a(f'v_cvt_pk_bf16_f32 v{X+2*ip+1}, v{t+1}, v{t+3}')
    for c in range(4):
        a(f'v_mfma_f32_32x32x16_bf16 {vr(DR,16)}, {vr(MR+4*c,4)}, {vr(X+4*c,4)}, ' + ('0' if c == 0 else vr(DR, 16)))
    a('s_cmp_lt_u32 s3, 2')
    a('s_cbranch_scc1 .k3_real2')
    for c in range(4):
        a(f'v_mfma_f32_32x32x16_bf16 {vr(DI,16)}, {vr(MI+4*c,4)}, {vr(X+4*c,4)}, ' + ('0' if c == 0 else vr(DI, 16)))
    for i in range(16):
        a(f'v_cvt_pk_bf16_f32 v{T0+i}, v{DR+i}, v{DI+i}')
        a(f'ds_write_b32 v6, v{T0+i} offset:{(8*(i>>2)+(i&3))*128}')
    a('s_branch .k3_join')
    a('.k3_real2:')
    for ip in range(8):
        i = 2 * ip
        a(f'v_cvt_pk_bf16_f32 v{T0+ip}, v{DR+i}, v{DR+i+1}')
        a(f'ds_write_b16 v6, v{T0+ip} offset:{(8*(i>>2)+(i&3))*128}')
        a(f'ds_write_b16_d16_hi v6, v{T0+ip} offset:{(8*(i>>2)+(i&3)+1)*128}')
    a('.k3_join:')
    a('s_waitcnt lgkmcnt(0)')
    stamp(a, 4)
    a('s_barrier')
    stamp(a, 5)
    a('s_cmp_eq_u32 s3, 4')
    a(f's_cbranch_scc1 {EXIT}')
    a('v_lshlrev_b32 v6, 4, v0')
    for p in range(4):
        a(f'ds_read_b128 {vr(X+4*p,4)}, v6 offset:{4096*p}')
    a(f'''
    s_lshl_b32 s4, s2, 12
    s_add_u32 s4, s4, 2048
    v_lshlrev_b32 v7, 3, v0
    v_add_u32 v7, s4, v7
    s_waitcnt lgkmcnt(0)
    ''')
    swap4x4(a, X)
    DD = 32
    for e in range(4):
        for hf in range(2):
            a(f'v_mfma_f32_16x16x32_bf16 {vr(DD+8*e+4*hf,4)}, {vr(G8+4*hf,4)}, {vr(X+4*e,4)}, 0')
    for s1 in range(8):
        a(f'v_cvt_pk_bf16_f32 v{64+2*s1}, v{DD+s1}, v{DD+8+s1}')
        a(f'v_cvt_pk_bf16_f32 v{65+2*s1}, v{DD+16+s1}, v{DD+24+s1}')
        a(f's_mov_b32 s5, {s1*256*4096}')
        a(f'buffer_store_dwordx2 {vr(64+2*s1,2)}, v7, s[48:51], s5 offen')
    stamp(a, 6)
    stamp_flush(a, 2, 7)
    a('s_endpgm')
    a('.k3_tr:')
    srd(a, 44, P_WS, 4 << 20, WS_YT)
    srd(a, 48, P_OUT, 8 << 20)
    a(f'''
    s_sub_u32 s8, s3, 5
    s_lshl_b32 s9, s2, 1
    s_add_u32 s9, s9, s8
    s_mul_i32 s10, s8, {64*144}
    s_add_u32 s10, s10, {K3_TR}
    ''')
    TP = gen_transposer(a, lane, 9, 44, 48, 10, 4096, 4096, 'y')
    stamp(a, 1)
    gen_transposer_tail(a, lane, 48, 10, 4096, 0, TP)
    stamp(a, 2)
    stamp_flush(a, 2, 3)
    a(f'{EXIT}:')
    a('s_endpgm')

KERNELS23 = [('k2_kernel', gen_k2, 256, 512, K2_LDS, 192), ('k3_kernel', gen_k3, 256, 448, K3_LDS, 160)]
```

```python
import sys, struct
sys.path.insert(0, 'dev')
from asmlib import Asm

NAME = 'concat_heads__ssm_conv_s4d__spectral_gfnet__prompt'

def f2u(x):
    return struct.unpack('<I', struct.pack('<f', x))[0]
def fhex(x):
    return '0x%08x' % f2u(x)

WS_Z1 = 0
WS_Z2 = 4 << 20
WS_UT = 8 << 20
UP = 4160
WS_YT = 16 << 20
WS_KC = 24 << 20
WS_SIZE = 1 << 28

def vr(a, n):
    return f'v[{a}:{a+n-1}]'

import os
DIAG = int(os.environ.get('DIAG', '0'))
WS_DIAG = 32 << 20
def stamp(a, k):
    if DIAG:
        a(f's_memrealtime s[{72+2*k}:{73+2*k}]')
def stamp_flush(a, kern, nst):
    if not DIAG: return
    a('s_waitcnt vmcnt(0) lgkmcnt(0)')
    stamp(a, nst)
    nst += 1
    srd(a, 44, P_WS, 1 << 20, WS_DIAG)
    a(f'''
    s_lshl_b32 s4, s2, 4
    s_add_u32 s4, s4, s3
    s_lshl_b32 s4, s4, 6
    s_add_u32 s4, s4, {kern * 256 * 1024}
    v_mov_b32 v1, 0
    s_waitcnt lgkmcnt(0)
    s_mov_b64 exec, 1
    ''')
    for k in range(nst):
        a(f'v_mov_b32 v{4+k}, s{72+2*k}')
        a(f'buffer_store_dword v{4+k}, v1, s[44:47], s4 offen offset:{4*k}')
    a('s_mov_b64 exec, -1')

def prologue(a, nwg, exit_label, early=None):
    a(f'''
    s_cmp_ge_u32 s2, {nwg}
    s_cbranch_scc1 {exit_label}
    ''')
    stamp(a, 0)
    if os.environ.get('DELAY', '') and os.environ['DELAY'] in exit_label:
        a('s_sleep 127')
    a(f'''
    s_load_dwordx16 s[16:31], s[0:1], 0
    s_load_dwordx8 s[32:39], s[0:1], 64
    s_load_dwordx2 s[40:41], s[0:1], 96
    v_lshrrev_b32 v1, 6, v0
    v_and_b32 v2, 63, v0
    v_readfirstlane_b32 s3, v1
    ''')
    if early is not None:
        a(f'''
        v_mov_b32 v4, {early}
        v_mov_b32 v8, 0
        v_mov_b32 v9, 0
        v_mov_b32 v10, 0
        v_mov_b32 v11, 0
        ds_write_b128 v4, v[8:11]
        s_waitcnt lgkmcnt(0)
        s_barrier
        ''')
    else:
        a('s_waitcnt lgkmcnt(0)')

def srd(a, d, base, nbytes, off=0):
    if off:
        a(f's_add_u32 s{d}, s{base}, {off:#x}')
        a(f's_addc_u32 s{d+1}, s{base+1}, 0')
        a(f's_and_b32 s{d+1}, s{d+1}, 0xffff')
    else:
        a(f's_mov_b32 s{d}, s{base}')
        a(f's_and_b32 s{d+1}, s{base+1}, 0xffff')
    a(f's_mov_b32 s{d+2}, {nbytes:#x}')
    a(f's_mov_b32 s{d+3}, 0x00020000')

P_U, P_LOGA, P_AIM, P_CRE, P_CIM, P_LOGDT, P_DSKIP, P_X = 16, 18, 20, 22, 24, 26, 28, 30
P_WR, P_WI, P_OUT, P_DBG, P_WS = 32, 34, 36, 38, 40

def sync_arrive(a, vaddr, vone):
    a(f'''
    s_waitcnt lgkmcnt(0)
    s_mov_b64 exec, 1
    ds_add_u32 v{vaddr}, v{vone}
    s_mov_b64 exec, -1
    ''')

def sync_wait(a, vaddr, vtmp, n, stmp=4):
    L = a.label('spin')
    a(f'''
    {L}:
    ds_read_b32 v{vtmp}, v{vaddr}
    s_waitcnt lgkmcnt(0)
    v_readfirstlane_b32 s{stmp}, v{vtmp}
    s_cmp_ge_u32 s{stmp}, {n}
    s_cbranch_scc0 {L}
    ''')

def gen_dft8_frags(a, lane, dst, t, fwd):
    m, g, i_, msk, kap, ph, arg, c0, c1, q = range(t, t + 10)
    a(f'''
    v_and_b32 v{m}, 15, v{lane}
    v_lshrrev_b32 v{g}, 4, v{lane}
    v_and_b32 v{i_}, 3, v{lane}
    v_lshrrev_b32 v{m}, 2, v{m}
    v_cmp_eq_u32 vcc, v{m}, v{g}
    v_cndmask_b32 v{msk}, 0, -1, vcc
    ''')
    KAP = [0, 4, 1, 1, 2, 2, 3, 3]
    PH = [0, 0, 0, 1, 0, 1, 0, 1]
    for hf in range(2):
        if fwd:
            a(f'''
            s_mov_b32 s4, 0x33221140
            s_mov_b32 s5, 0xa8
            v_add_u32 v{q}, {4*hf}, v{i_}
            v_bfe_u32 v{ph}, s5, v{q}, 1
            v_lshlrev_b32 v{q}, 2, v{q}
            v_bfe_u32 v{kap}, s4, v{q}, 4
            v_cvt_f32_u32 v{kap}, v{kap}
            v_cvt_f32_u32 v{ph}, v{ph}
            v_mul_f32 v{kap}, {fhex(0.125)}, v{kap}
            v_mul_f32 v{arg}, {fhex(0.25)}, v{ph}
            ''')
            for jp in range(4):
                a(f'v_cos_f32 v{c0}, v{arg}')
                a(f'v_add_f32 v{arg}, v{arg}, v{kap}')
                a(f'v_cos_f32 v{c1}, v{arg}')
                a(f'v_add_f32 v{arg}, v{arg}, v{kap}')
                a(f'v_cvt_pk_bf16_f32 v{dst+4*hf+jp}, v{c0}, v{c1}')
                a(f'v_and_b32 v{dst+4*hf+jp}, v{msk}, v{dst+4*hf+jp}')
        else:
            a(f'''
            v_add_u32 v{q}, {4*hf}, v{i_}
            v_cvt_f32_u32 v{q}, v{q}
            v_mul_f32 v{q}, {fhex(0.125)}, v{q}
            ''')
            for jp in range(4):
                for e, cr in ((0, c0), (1, c1)):
                    qq = 2 * jp + e
                    a(f'v_mul_f32 v{arg}, {fhex(float(KAP[qq]))}, v{q}')
                    if PH[qq]:
                        a(f'v_add_f32 v{arg}, {fhex(0.25)}, v{arg}')
                    a(f'v_cos_f32 v{cr}, v{arg}')
                a(f'v_cvt_pk_bf16_f32 v{dst+4*hf+jp}, v{c0}, v{c1}')
                a(f'v_and_b32 v{dst+4*hf+jp}, v{msk}, v{dst+4*hf+jp}')

def gen_z_addr(a, lane, vlo, vhi, t, s_s2, s_cls, s_cls2):
    k1, h, x, y = t, t + 1, t + 2, t + 3
    a(f'''
    v_and_b32 v{k1}, 31, v{lane}
    v_lshrrev_b32 v{h}, 5, v{lane}
    s_lshr_b32 s4, s{s_s2}, 2
    s_lshl_b32 s5, s{s_s2}, 6
    ''')
    for which, dst, cls in ((0, vlo, s_cls), (1, vhi, s_cls2)):
        if which == 1:
            a(f'v_sub_u32 v{k1}, 31, v{k1}')
            a(f'v_sub_u32 v{h}, 1, v{h}')
        a(f'''
        v_bfe_u32 v{x}, v{k1}, 2, 2
        v_add_u32 v{x}, s4, v{x}
        v_and_b32 v{x}, 3, v{x}
        v_lshlrev_b32 v{x}, 4, v{x}
        v_and_b32 v{y}, 3, v{k1}
        v_lshl_add_u32 v{x}, v{y}, 2, v{x}
        v_lshrrev_b32 v{y}, 4, v{k1}
        v_lshl_add_u32 v{x}, v{y}, 14, v{x}
        v_lshl_add_u32 v{x}, v{h}, 17, v{x}
        s_lshl_b32 s6, s{cls}, 19
        s_add_u32 s6, s6, s5
        v_add_u32 v{dst}, s6, v{x}
        ''')

def z_soff(i):
    e = 8 * (i >> 2) + (i & 3)
    return (e if i < 8 else 27 - e) * 32768

def gen_transposer(a, lane, s_tile, src_srd, dst_srd, lds_base, src_pitch, dst_pitch, mode):
    TP = 144
    if mode == 'u':
        a(f's_and_b32 s4, s{s_tile}, 15')
        a(f's_lshr_b32 s5, s{s_tile}, 4')
    else:
        a(f's_lshr_b32 s4, s{s_tile}, 4')
        a(f's_and_b32 s5, s{s_tile}, 15')
    a(f'''
    s_mul_i32 s6, s5, {64*src_pitch}
    s_lshl_b32 s7, s4, 7
    s_add_u32 s6, s6, s7
    v_lshrrev_b32 v3, 3, v{lane}
    v_and_b32 v4, 7, v{lane}
    v_lshlrev_b32 v4, 4, v4
    v_mul_u32_u24 v5, {src_pitch}, v3
    v_add3_u32 v5, v5, v4, s6
    v_mul_u32_u24 v6, {TP}, v3
    v_add3_u32 v6, v6, v4, s{lds_base}
    ''')
    for it in range(8):
        a(f's_mov_b32 s7, {8*it*src_pitch}')
        a(f'buffer_load_dwordx4 {vr(16+4*it,4)}, v5, s[{src_srd}:{src_srd+3}], s7 offen')
    return TP

def gen_transposer_tail(a, lane, dst_srd, lds_base, dst_pitch, dst_off, TP):
    a(f'''
    v_lshrrev_b32 v7, 4, v{lane}
    v_bfe_u32 v8, v{lane}, 2, 2
    v_lshl_add_u32 v8, v7, 3, v8
    v_mul_u32_u24 v8, {TP}, v8
    v_and_b32 v9, 3, v{lane}
    v_lshl_add_u32 v8, v9, 3, v8
    v_add_u32 v8, s{lds_base}, v8
    ''')
    a(f'''
    s_mul_i32 s6, s4, {64*dst_pitch}
    s_lshl_b32 s7, s5, 7
    s_add_u32 s6, s6, s7
    s_add_u32 s6, s6, {dst_off}
    v_and_b32 v9, 15, v{lane}
    v_mul_u32_u24 v9, {dst_pitch}, v9
    v_lshl_add_u32 v9, v7, 4, v9
    v_add_u32 v9, s6, v9
    ''')
    for it in range(8):
        a(f's_waitcnt vmcnt({7-it})')
        a(f'ds_write_b128 v6, {vr(16+4*it,4)} offset:{8*it*TP}')
    a('s_waitcnt lgkmcnt(0)')
    k = 0
    for cb in range(4):
        for th in range(2):
            for jj in range(2):
                a(f'ds_read_b64_tr_b16 {vr(48+4*k+2*jj,2)}, v8 offset:{(32*th+4*jj)*TP+cb*32}')
            k += 1
    k = 0
    for cb in range(4):
        for th in range(2):
            a(f's_waitcnt lgkmcnt({14-2*k})')
            a(f's_mov_b32 s7, {16*cb*dst_pitch}')
            a(f'buffer_store_dwordx4 {vr(48+4*k,4)}, v9, s[{dst_srd}:{dst_srd+3}], s7 offen offset:{64*th}')
            k += 1

K1_SIG = 0
K1_CNT = 16384
K1_TR = 16448
K1_KG = K1_TR + 2 * 64 * 144
KG_PITCH = 528
KG_WAVE = 60 * KG_PITCH
K1_LDS = K1_KG + 4 * KG_WAVE

def gen_rowfft_tables(a, lane, t, vC, vS, tc, ts, extra):
    pass

def gen_k1(a):
    a.raw('.p2align 8')
    a.raw('k1_kernel:')
    EXIT = '.k1_exit'
    prologue(a, 256, EXIT)
    a(f'''
    s_cmp_ge_u32 s3, 9
    s_cbranch_scc1 .k1_tr
    s_cmp_ge_u32 s3, 5
    s_cbranch_scc1 .k1_kgen
    ''')
    lane = 2
    srd(a, 44, P_X, 4 << 20)
    srd(a, 48, P_WS, 4 << 20, WS_Z1)
    XL = 16
    a('s_cmp_eq_u32 s3, 4')
    a('s_cbranch_scc1 .k1_f_noload')
    a(f'''
    s_lshl_b32 s4, s2, 11
    v_lshlrev_b32 v3, 3, v0
    v_add_u32 v3, s4, v3
    ''')
    for s1 in range(8):
        a(f's_mov_b32 s5, {s1*256*2048}')
        a(f'buffer_load_dwordx2 {vr(XL+2*s1,2)}, v3, s[44:47], s5 offen')
    a('.k1_f_noload:')
    a(f'''
    v_mov_b32 v4, {K1_CNT}
    v_mov_b32 v5, 0
    v_mov_b32 v6, 1
    ds_write_b32 v4, v5
    s_waitcnt lgkmcnt(0)
    s_barrier
    ''')
    stamp(a, 1)
    F8 = 8
    gen_dft8_frags(a, lane, F8, 64, True)
    vC, vS, vnS, vCt, vnSt, tc, ts = 80, 88, 96, 104, 112, 120, 136
    kf, arg, a2, c0, c1, s0, s1_, k5, sg = range(64, 73)
    a(f'''
    v_and_b32 v{kf}, 31, v{lane}
    v_cvt_f32_u32 v{kf}, v{kf}
    v_mul_f32 v{kf}, {fhex(1/32)}, v{kf}
    v_lshrrev_b32 v{arg}, 5, v{lane}
    v_cvt_f32_u32 v{arg}, v{arg}
    v_mul_f32 v{arg}, 4.0, v{arg}
    v_mul_f32 v{arg}, v{arg}, v{kf}
    v_mul_f32 v{k5}, {fhex(5.0)}, v{kf}
    ''')
    a(f'''
    v_and_b32 v{sg}, 16, v{lane}
    v_lshlrev_b32 v{sg}, 11, v{sg}
    v_lshl_or_b32 v{sg}, v{sg}, 16, v{sg}
    ''')
    for ip in range(8):
        for e, (cr, sr) in enumerate(((c0, s0), (c1, s1_))):
            i = 2 * ip + e
            a(f'v_cos_f32 v{cr}, v{arg}')
            a(f'v_sin_f32 v{sr}, v{arg}')
            a(f'v_mul_f32 v{a2}, {fhex(1/32)}, v{arg}')
            a(f'v_cos_f32 v{tc+i}, v{a2}')
            a(f'v_sin_f32 v{ts+i}, v{a2}')
            if i != 15:
                a(f'v_add_f32 v{arg}, v{arg}, v{k5 if (i & 3) == 3 else kf}')
        a(f'v_cvt_pk_bf16_f32 v{vC+ip}, v{c0}, v{c1}')
        a(f'v_cvt_pk_bf16_f32 v{vS+ip}, v{s0}, v{s1_}')
        a(f'v_cvt_pk_bf16_f32 v{vnS+ip}, -v{s0}, -v{s1_}')
        a(f'v_xor_b32 v{vCt+ip}, v{sg}, v{vC+ip}')
        a(f'v_xor_b32 v{vnSt+ip}, v{sg}, v{vnS+ip}')
    a(f'''
    s_sub_u32 s8, s3, 1
    s_cmp_eq_u32 s3, 0
    s_cselect_b32 s8, 0, s8
    s_cmp_eq_u32 s3, 1
    s_cselect_b32 s8, 4, s8
    s_sub_u32 s9, 8, s8
    ''')
    vlo, vhi, vtr = 152, 153, 154
    gen_z_addr(a, lane, vlo, vhi, 64, 2, 8, 9)
    a(f'''
    v_lshrrev_b32 v64, 5, v{lane}
    v_bfe_u32 v65, v{lane}, 2, 2
    v_lshl_add_u32 v64, v64, 2, v65
    v_lshlrev_b32 v64, 6, v64
    v_bfe_u32 v65, v{lane}, 4, 1
    v_lshl_add_u32 v64, v65, 5, v64
    v_and_b32 v65, 3, v{lane}
    v_lshl_add_u32 v64, v65, 3, v64
    s_lshl_b32 s4, s8, 1
    s_cmp_lt_u32 s3, 2
    s_cselect_b32 s4, s3, s4
    s_lshl_b32 s4, s4, 11
    v_add_u32 v{vtr}, s4, v64
    ''')
    stamp(a, 2)
    stamp(a, 3)
    a('s_cmp_eq_u32 s3, 4')
    a('s_cbranch_scc1 .k1_f_phaseB')
    BO, DD = 32, 48
    a('s_mov_b32 s4, 0x05040100')
    a('s_mov_b32 s5, 0x07060302')
    a('v_lshlrev_b32 v3, 3, v0')
    a('s_waitcnt vmcnt(0)')
    stamp(a, 3)
    for e in range(4):
        for p in range(4):
            lo, hi = XL + 2 * (2 * p) + (e >> 1), XL + 2 * (2 * p + 1) + (e >> 1)
            a(f'v_perm_b32 v{BO+4*e+p}, v{hi}, v{lo}, s{4 + (e & 1)}')
    for e in range(4):
        for hf in range(2):
            a(f'v_mfma_f32_16x16x32_bf16 {vr(DD+8*e+4*hf,4)}, {vr(F8+4*hf,4)}, {vr(BO+4*e,4)}, 0')
    for q in range(8):
        a(f'v_cvt_pk_bf16_f32 v{XL+2*q}, v{DD+q}, v{DD+8+q}')
        a(f'v_cvt_pk_bf16_f32 v{XL+2*q+1}, v{DD+16+q}, v{DD+24+q}')
        a(f'ds_write_b64 v3, {vr(XL+2*q,2)} offset:{K1_SIG+q*2048}')
    sync_arrive(a, 4, 6)
    a('.k1_f_phaseB:')
    stamp(a, 4)
    sync_wait(a, 4, 5, 4)
    stamp(a, 5)
    AR, AI, DR, DI, T0 = 16, 24, 32, 48, 64
    for c in range(2):
        for jj in range(2):
            a(f'ds_read_b64_tr_b16 {vr(AR+4*c+2*jj,2)}, v{vtr} offset:{c*1024+jj*512}')
    for c in range(2):
        for jj in range(2):
            a(f'ds_read_b64_tr_b16 {vr(AI+4*c+2*jj,2)}, v{vtr} offset:{2048+c*1024+jj*512}')
    a('s_waitcnt lgkmcnt(4)')
    a(f'v_mfma_f32_32x32x16_bf16 {vr(DR,16)}, {vr(AR,4)}, {vr(vC,4)}, 0')
    a(f'v_mfma_f32_32x32x16_bf16 {vr(DI,16)}, {vr(AR,4)}, {vr(vnS,4)}, 0')
    a(f'v_mfma_f32_32x32x16_bf16 {vr(DR,16)}, {vr(AR+4,4)}, {vr(vC+4,4)}, {vr(DR,16)}')
    a(f'v_mfma_f32_32x32x16_bf16 {vr(DI,16)}, {vr(AR+4,4)}, {vr(vnS+4,4)}, {vr(DI,16)}')
    a('s_waitcnt lgkmcnt(0)')
    a('s_cmp_lt_u32 s3, 2')
    a('s_cbranch_scc1 .k1_f_real1')
    for c in range(2):
        a(f'v_mfma_f32_32x32x16_bf16 {vr(DR,16)}, {vr(AI+4*c,4)}, {vr(vS+4*c,4)}, {vr(DR,16)}')
        a(f'v_mfma_f32_32x32x16_bf16 {vr(DI,16)}, {vr(AI+4*c,4)}, {vr(vC+4*c,4)}, {vr(DI,16)}')
    a('.k1_f_real1:')
    for ip in range(8):
        r, i_, c_, s_ = DR + 2 * ip, DI + 2 * ip, tc + 2 * ip, ts + 2 * ip
        t1, t2 = T0 + 4 * (ip & 1), T0 + 4 * (ip & 1) + 2
        a(f'v_pk_mul_f32 {vr(t1,2)}, {vr(i_,2)}, {vr(s_,2)}')
        a(f'v_pk_mul_f32 {vr(t2,2)}, {vr(r,2)}, {vr(s_,2)}')
        a(f'v_pk_fma_f32 {vr(t1,2)}, {vr(r,2)}, {vr(c_,2)}, {vr(t1,2)}')
        a(f'v_pk_fma_f32 {vr(t2,2)}, {vr(i_,2)}, {vr(c_,2)}, {vr(t2,2)} neg_lo:[0,0,1] neg_hi:[0,0,1]')
        a(f'v_cvt_pk_bf16_f32 v{AR+ip}, v{t1}, v{t1+1}')
        a(f'v_cvt_pk_bf16_f32 v{AI+ip}, v{t2}, v{t2+1}')
    a(f'v_mfma_f32_32x32x16_bf16 {vr(DR,16)}, {vr(vC,4)}, {vr(AR,4)}, 0')
    a(f'v_mfma_f32_32x32x16_bf16 {vr(DI,16)}, {vr(vCt,4)}, {vr(AI,4)}, 0')
    a(f'v_mfma_f32_32x32x16_bf16 {vr(DR,16)}, {vr(vS,4)}, {vr(AI,4)}, {vr(DR,16)}')
    a(f'v_mfma_f32_32x32x16_bf16 {vr(DI,16)}, {vr(vnSt,4)}, {vr(AR,4)}, {vr(DI,16)}')
    a(f'v_mfma_f32_32x32x16_bf16 {vr(DR,16)}, {vr(vC+4,4)}, {vr(AR+4,4)}, {vr(DR,16)}')
    a(f'v_mfma_f32_32x32x16_bf16 {vr(DI,16)}, {vr(vCt+4,4)}, {vr(AI+4,4)}, {vr(DI,16)}')
    a(f'v_mfma_f32_32x32x16_bf16 {vr(DR,16)}, {vr(vS+4,4)}, {vr(AI+4,4)}, {vr(DR,16)}')
    a(f'v_mfma_f32_32x32x16_bf16 {vr(DI,16)}, {vr(vnSt+4,4)}, {vr(AR+4,4)}, {vr(DI,16)}')
    a('s_cmp_lt_u32 s3, 2')
    a('s_cbranch_scc0 .k1_f_cplx2')
    a(f'''
    s_mov_b64 exec, 1
    v_mov_b32 v{DI}, v{DR+8}
    s_mov_b64 exec, -1
    s_branch .k1_f_lo
    ''')
    a('.k1_f_cplx2:')
    for i in range(8, 16):
        a(f'v_cvt_pk_bf16_f32 v{T0+i}, v{DR+i}, v{DI+i}')
        a(f's_mov_b32 s5, {z_soff(i)}')
        a(f'buffer_store_dword v{T0+i}, v{vhi}, s[48:51], s5 offen')
    a('.k1_f_lo:')
    for i in range(8):
        a(f'v_cvt_pk_bf16_f32 v{T0+i}, v{DR+i}, v{DI+i}')
        a(f's_mov_b32 s5, {z_soff(i)}')
        a(f'buffer_store_dword v{T0+i}, v{vlo}, s[48:51], s5 offen')
    stamp(a, 6)
    stamp_flush(a, 0, 7)
    a('s_endpgm')

    a('.k1_tr:')
    srd(a, 44, P_U, 4 << 20)
    srd(a, 48, P_WS, 1024 * UP, WS_UT)
    a(f'''
    s_sub_u32 s8, s3, 9
    s_lshl_b32 s9, s2, 1
    s_add_u32 s9, s9, s8
    s_mul_i32 s10, s8, {64*144}
    s_add_u32 s10, s10, {K1_TR}
    ''')
    TP = gen_transposer(a, lane, 9, 44, 48, 10, 2048, UP, 'u')
    a('s_barrier')
    a('s_cmp_lg_u32 s5, 0')
    a('s_cbranch_scc1 .k1_tr_nohdr')
    a(f'''
    s_mul_i32 s6, s4, {64*UP}
    v_mul_u32_u24 v10, {UP}, v{lane}
    v_add_u32 v10, s6, v10
    v_mov_b32 v12, 0
    v_mov_b32 v13, 0
    v_mov_b32 v14, 0
    v_mov_b32 v15, 0
    s_waitcnt vmcnt(0)
    buffer_store_dwordx4 v[12:15], v10, s[48:51], 0 offen offset:48
    s_waitcnt vmcnt(0)
    ''')
    a('.k1_tr_nohdr:')
    stamp(a, 1)
    gen_transposer_tail(a, lane, 48, 10, UP, 64, TP)
    stamp(a, 2)
    stamp_flush(a, 0, 3)
    a('s_endpgm')

    a('.k1_kgen:')
    for k, p in enumerate((P_LOGA, P_AIM, P_CRE, P_CIM)):
        srd(a, 44 + 4 * k, p, 1024 * 256)
    srd(a, 60, P_LOGDT, 2048)
    srd(a, 64, P_DSKIP, 2048)
    srd(a, 68, P_WS, 1024 * 2048, WS_KC)
    a(f'''
    s_sub_u32 s8, s3, 5
    s_lshl_b32 s9, s2, 2
    s_add_u32 s9, s9, s8          ; channel d
    s_lshl_b32 s4, s9, 8
    s_lshl_b32 s5, s9, 1
    v_lshlrev_b32 v3, 2, v{lane}
    v_mov_b32 v4, 0
    buffer_load_dword v8, v3, s[44:47], s4 offen
    buffer_load_dword v9, v3, s[48:51], s4 offen
    buffer_load_dword v10, v3, s[52:55], s4 offen
    buffer_load_dword v11, v3, s[56:59], s4 offen
    buffer_load_ushort v12, v4, s[60:63], s5 offen
    buffer_load_ushort v13, v4, s[64:67], s5 offen
    s_barrier
    s_mul_i32 s10, s8, {KG_WAVE}
    s_add_u32 s10, s10, {K1_KG}
    v_lshlrev_b32 v5, 3, v{lane}
    v_add_u32 v5, s10, v5
    ''')
    a(f'''
    v_and_b32 v6, 31, v{lane}
    v_lshrrev_b32 v7, 5, v{lane}
    v_lshlrev_b32 v7, 4, v7
    v_add_u32 v7, s10, v7
    v_mul_u32_u24 v14, {KG_PITCH}, v6
    v_add_u32 v14, v14, v7         ; B address
    v_add_u32 v15, 32, v6
    ''')
    for thr in (11, 15, 19, 23):
        a(f'v_cmp_lt_u32 vcc, {thr}, v6')
        a(f'v_subbrev_co_u32 v15, vcc, 0, v15, vcc')
    a(f'''
    v_mul_u32_u24 v15, {KG_PITCH}, v15
    v_add_u32 v15, v15, v7         ; A address
    ''')
    L2E_HI = struct.unpack('<f', struct.pack('<f', 1.4426950408889634))[0]
    L2E_LO = 1.4426950408889634 - L2E_HI
    a(f'''
    s_mov_b32 s4, {fhex(L2E_HI)}
    s_mov_b32 s5, {fhex(L2E_LO)}
    s_mov_b32 s6, {fhex(0.6931471805599453)}
    s_mov_b32 s7, 0xffff0000
    ''')
    LA, AIM, CR, CI = 16, 18, 20, 22
    DT, DSK = 24, 25
    def unpack(dst, src):
        a(f'v_lshlrev_b32 v{dst}, 16, v{src}')
        a(f'v_and_b32 v{dst+1}, s7, v{src}')
    def expf(dst, x, t):
        a(f'''
        v_mul_f32 v{t}, s4, v{x}
        v_fma_f32 v{t+1}, v{x}, s4, -v{t}
        v_fma_f32 v{t+1}, v{x}, s5, v{t+1}
        v_exp_f32 v{t}, v{t}
        v_mul_f32 v{t+1}, s6, v{t+1}
        v_fma_f32 v{dst}, v{t}, v{t+1}, v{t}
        ''')
    stamp(a, 1)
    a('s_waitcnt vmcnt(0)')
    stamp(a, 2)
    unpack(LA, 8); unpack(AIM, 9); unpack(CR, 10); unpack(CI, 11)
    a(f'v_lshlrev_b32 v{DT}, 16, v12')
    a(f'v_lshlrev_b32 v{DSK}, 16, v13')
    expf(DT, DT, 26)
    expf(LA, LA, 28)
    expf(LA + 1, LA + 1, 30)
    a(f'v_cvt_pk_bf16_f32 v{DT}, v{DT}, v{DT}')
    a(f'v_cvt_pk_bf16_f32 v8, v{LA}, v{LA+1}')
    a(f'v_and_b32 v{DT}, s7, v{DT}')
    unpack(LA, 8)
    a(f'''
    v_mul_f32 v{LA}, v{LA}, v{DT}
    v_mul_f32 v{LA+1}, v{LA+1}, v{DT}
    v_mul_f32 v{AIM}, v{AIM}, v{DT}
    v_mul_f32 v{AIM+1}, v{AIM+1}, v{DT}
    v_mul_f32 v{LA}, {fhex(-1.4426950408889634)}, v{LA}
    v_mul_f32 v{LA+1}, {fhex(-1.4426950408889634)}, v{LA+1}
    v_mul_f32 v{AIM}, 0.15915494, v{AIM}
    v_mul_f32 v{AIM+1}, 0.15915494, v{AIM+1}
    v_add_f32 v{DT}, v{DT}, v{DT}
    v_mul_f32 v{CR}, v{CR}, v{DT}
    v_mul_f32 v{CR+1}, v{CR+1}, v{DT}
    v_mul_f32 v{CI}, v{CI}, v{DT}
    v_mul_f32 v{CI+1}, v{CI+1}, v{DT}
    ''')
    E1, E8, EG = 32, 36, 40
    for E, tmul in ((E8, 8.0), (E1, 1.0), (EG, 256.0)):
        for e in range(2):
            t = 26 + 2 * e
            a(f'''
            v_mul_f32 v{t}, {fhex(tmul)}, v{LA+e}
            v_mul_f32 v{t+1}, {fhex(tmul)}, v{AIM+e}
            v_exp_f32 v{t}, v{t}
            v_fract_f32 v{t+1}, v{t+1}
            v_cos_f32 v{E+e}, v{t+1}
            v_sin_f32 v{E+2+e}, v{t+1}
            v_mul_f32 v{E+e}, v{E+e}, v{t}
            v_mul_f32 v{E+2+e}, v{E+2+e}, v{t}
            ''')
    stamp(a, 3)
    C0 = CR
    state = {'t': 0, 'o': 0}
    def cmul(dst, x, w):
        t = 44 + 4 * (state['t'] & 1); state['t'] += 1
        a(f'v_pk_mul_f32 {vr(t,2)}, {vr(x+2,2)}, {vr(w+2,2)}')
        a(f'v_pk_mul_f32 {vr(t+2,2)}, {vr(x+2,2)}, {vr(w,2)}')
        a(f'v_pk_fma_f32 {vr(dst,2)}, {vr(x,2)}, {vr(w,2)}, {vr(t,2)} neg_lo:[0,0,1] neg_hi:[0,0,1]')
        a(f'v_pk_fma_f32 {vr(dst+2,2)}, {vr(x,2)}, {vr(w+2,2)}, {vr(t+2,2)}')
    def emit(rows, x, neg):
        o = 52 + 2 * (state['o'] & 3); state['o'] += 1
        n = '-' if neg else ''
        a(f'v_cvt_pk_bf16_f32 v{o}, v{x}, {n}v{x+2}')
        a(f'v_cvt_pk_bf16_f32 v{o+1}, v{x+1}, {n}v{x+3}')
        for row in rows:
            a(f'ds_write_b64 v5, {vr(o,2)} offset:{row*KG_PITCH}')
    from model import coarse_a
    arow = {}
    for i in range(16):
        for h in range(2):
            aa = coarse_a(i, h)
            if aa is None: continue
            m = 8 * (i >> 2) + 4 * h + (i & 3)
            cm = m - sum(m > thr for thr in (11, 15, 19, 23))
            arow.setdefault(aa, []).append(32 + cm)
    slot = {}
    nxt = [60]
    def alloc():
        r = nxt[0]; nxt[0] += 4; return r
    prog = [(i + 1, i, E1) for i in range(7)] + [(8, 0, E8)]
    prog += [(258, 2, EG), (262, 6, EG), (260, 4, EG), (516, 260, EG), (772, 516, EG)]
    for j in range(7):
        prog += [(256 * (j + 1), 256 * j, EG), (256 * (j + 1) + 8, 256 * j + 8, EG)]
    slot[0] = C0
    ring = [alloc() for _ in range(14)]
    fa, fb = alloc(), alloc()
    a('v_mov_b32 v52, 0x3f80')
    a('v_mov_b32 v53, 0x3f80')
    a(f'ds_write_b64 v5, v[52:53] offset:0')
    state['o'] = 1
    emit([1], E8, False)
    emit(arow[0], C0, True)
    fcur = E8
    ri = 0
    for step in range(30):
        fn = fa if (step & 1) == 0 else fb
        cmul(fn, fcur, E8)
        if step < len(prog):
            d_, s_, w_ = prog[step]
            slot[d_] = ring[ri % 14]; ri += 1
            cmul(slot[d_], slot[s_], w_)
        emit([step + 2], fn, False)
        if step < len(prog) and d_ in arow:
            emit(arow[d_], slot[d_], True)
        fcur = fn
    assert nxt[0] <= 128
    a('s_waitcnt lgkmcnt(0)')
    stamp(a, 4)
    D = 16
    FB = 32
    def rd(kk):
        b = FB + 8 * (kk & 3)
        a(f'ds_read_b128 {vr(b,4)}, v15 offset:{kk*32}')
        a(f'ds_read_b128 {vr(b+4,4)}, v14 offset:{kk*32}')
    a(f'v_mov_b32 v13, v{DSK}')
    for kk in range(4): rd(kk)
    for kk in range(16):
        b = FB + 8 * (kk & 3)
        rem = min(3, 15 - kk)
        a(f's_waitcnt lgkmcnt({2*rem})')
        a(f'v_mfma_f32_32x32x16_bf16 {vr(D,16)}, {vr(b,4)}, {vr(b+4,4)}, ' + ('0' if kk == 0 else vr(D, 16)))
        if kk + 4 < 16: rd(kk + 4)
    a(f'''
    s_mov_b64 exec, 1
    v_add_f32 v{D}, v{D}, v13
    s_mov_b64 exec, -1
    ''')
    O = 64
    for k, (lo, hi) in enumerate(((3, 2), (1, 0), (6, 5), (4, 4), (10, 10), (9, 8), (12, 13), (14, 15))):
        a(f'v_cvt_pk_bf16_f32 v{O+k}, v{D+lo}, v{D+hi}')
    a(f'''
    s_lshl_b32 s4, s9, 11
    v_lshlrev_b32 v3, 4, v{lane}
    buffer_store_dwordx4 {vr(O,4)}, v3, s[68:71], s4 offen
    buffer_store_dwordx4 {vr(O+4,4)}, v3, s[68:71], s4 offen offset:1024
    ''')
    stamp(a, 5)
    stamp_flush(a, 0, 6)
    a(f'{EXIT}:')
    a('s_endpgm')

def kd(name, vgpr, sgpr=96):
    acc = (vgpr + 3) // 4 * 4
    return f'''.p2align 6
.amdhsa_kernel {name}
  .amdhsa_next_free_vgpr {vgpr}
  .amdhsa_next_free_sgpr {sgpr}
  .amdhsa_accum_offset {acc}
  .amdhsa_group_segment_fixed_size 0
  .amdhsa_kernarg_size 104
  .amdhsa_user_sgpr_count 2
  .amdhsa_user_sgpr_kernarg_segment_ptr 1
  .amdhsa_system_sgpr_workgroup_id_x 1
.end_amdhsa_kernel
'''

def build(kernels):
    hdr = open(f'cdna_kernels/{NAME}.s.ref').read().split('\n')
    head = [l for l in hdr if l.startswith(';') and '@launch' not in l.lower()]
    head = [l for l in head if 'Override launch' not in l and 'grid=ceil' not in l]
    out = '\n'.join(head) + '\n'
    for name, gen, grid, block, lds, vgpr in kernels:
        out += f'; @launch kernel={name} grid=({grid},1,1) block=({block},1,1) lds={lds}\n'
    out += '.amdgcn_target "amdgcn-amd-amdhsa--gfx950"\n.text\n'
    a = Asm()
    for name, gen, grid, block, lds, vgpr in kernels:
        a.raw(f'.globl {name}')
        a.raw(f'.type {name},@function')
        gen(a)
    out += a.render()
    out += '.section .rodata,"a"\n'
    for name, gen, grid, block, lds, vgpr in kernels:
        out += kd(name, vgpr)
    return out

if __name__ == '__main__':
    ks = [('k1_kernel', gen_k1, 256, 704, K1_LDS, 160)]
    try:
        from gen23 import KERNELS23
        ks += KERNELS23
    except ImportError:
        pass
    if os.environ.get('EXTRA_EMPTY'):
        def gen_k4(a):
            a.raw('.p2align 8'); a.raw('k4_kernel:'); a('s_endpgm')
        ks += [('k4_kernel', gen_k4, 256, 256, 0, 8)]
    path = sys.argv[1] if len(sys.argv) > 1 else f'cdna_kernels/{NAME}.s'
    open(path, 'w').write(build(ks))
    print('wrote', path)
```

```python
import sys
sys.path.insert(0, 'dev')
from gen import *

CS = 4640
CV_K = 4 * CS
CV_WAVE = CV_K + 4224
K2_ZB = 4 * CV_WAVE
K2_WB = K2_ZB + 16384
K2_CNT = K2_WB + 16384
K2_LDS = K2_CNT + 64

def swap4x4(a, base):
    for i in range(4):
        for j in range(i + 1, 4):
            a(f'v_swap_b32 v{base+4*i+j}, v{base+4*j+i}')

def cmul_pk(a, dr, di, xr, xi, cr, ci, conj):
    a(f'v_pk_mul_f32 {vr(dr,2)}, {vr(xi,2)}, {vr(ci,2)}')
    a(f'v_pk_mul_f32 {vr(di,2)}, {vr(xr,2)}, {vr(ci,2)}')
    neg = ' neg_lo:[0,0,1] neg_hi:[0,0,1]'
    a(f'v_pk_fma_f32 {vr(dr,2)}, {vr(xr,2)}, {vr(cr,2)}, {vr(dr,2)}' + ('' if conj else neg))
    a(f'v_pk_fma_f32 {vr(di,2)}, {vr(xi,2)}, {vr(cr,2)}, {vr(di,2)}' + (neg if conj else ''))

def cmul_sc(a, dr, di, xr, xi, cr, ci, conj):
    for e in range(2):
        a(f'v_mul_f32 v{dr+e}, v{xr+e}, v{cr+e}')
        a(f'v_mul_f32 v{di+e}, v{xi+e}, v{cr+e}')
    for e in range(2):
        if conj:
            a(f'v_fmac_f32 v{dr+e}, v{xi+e}, v{ci+e}')
            a(f'v_fma_f32 v{di+e}, -v{xr+e}, v{ci+e}, v{di+e}')
        else:
            a(f'v_fma_f32 v{dr+e}, -v{xi+e}, v{ci+e}, v{dr+e}')
            a(f'v_fmac_f32 v{di+e}, v{xr+e}, v{ci+e}')

def gen_k2(a):
    a.raw('.p2align 8')
    a.raw('k2_kernel:')
    EXIT = '.k2_exit'
    prologue(a, 256, EXIT, early=K2_CNT)
    lane = 2
    a('s_cmp_ge_u32 s3, 4')
    a('s_cbranch_scc1 .k2_fft')
    srd(a, 44, P_WS, 1024 * UP, WS_UT)
    srd(a, 48, P_WS, 1024 * 2048, WS_KC)
    srd(a, 52, P_WS, 4 << 20, WS_YT)
    KC = 8
    UR = 64
    a(f'''
    s_lshl_b32 s9, s2, 2
    s_add_u32 s9, s9, s3            ; channel
    s_mul_i32 s10, s3, {CV_WAVE}
    v_lshlrev_b32 v3, 4, v{lane}
    s_lshl_b32 s4, s9, 11
    buffer_load_dwordx4 {vr(KC,4)}, v3, s[48:51], s4 offen
    buffer_load_dwordx4 {vr(KC+4,4)}, v3, s[48:51], s4 offen offset:1024
    s_mul_i32 s4, s9, {UP}
    s_add_u32 s4, s4, {64-8}
    ''')
    for p in range(4):
        a(f'buffer_load_dwordx4 {vr(UR+8*p+2,4)}, v3, s[44:47], s4 offen offset:{p*1024+8}')
        a(f'buffer_load_dwordx2 {vr(UR+8*p,2)}, v3, s[44:47], s4 offen offset:{p*1024}')
    a(f's_add_u32 s5, s10, {384 + 3*CS}')
    a('s_add_u32 s4, s4, 8')
    a('s_mov_b32 m0, s5')
    for p in range(4):
        a(f'buffer_load_dwordx4 v3, s[44:47], s4 offen offset:{p*1024} lds')
    a(f's_add_u32 s5, s10, {384 + 1*CS}')
    a('s_sub_u32 s4, s4, 4')
    a('s_mov_b32 m0, s5')
    for p in range(4):
        a(f'buffer_load_dwordx4 v3, s[44:47], s4 offen offset:{p*1024} lds')
    a(f'''
    v_mov_b32 v4, {K2_CNT+12}
    v_mov_b32 v5, 1
    ''')
    sync_arrive(a, 4, 5)
    stamp(a, 1)
    a(f'''
    v_mov_b32 v16, 0
    v_mov_b32 v17, 0
    v_mov_b32 v18, 0
    v_mov_b32 v19, 0
    v_add_u32 v4, s10, v3
    s_mov_b64 exec, 0xffffff
    ''')
    for c in range(4):
        a(f'ds_write_b128 v4, v[16:19] offset:{c*CS}')
    a(f'''
    s_mov_b64 exec, 0xff
    ds_write_b128 v4, v[16:19] offset:{CV_K+4096}
    s_mov_b64 exec, -1
    ''')
    a(f'''
    v_and_b32 v4, 31, v{lane}             ; b
    v_lshrrev_b32 v5, 5, v{lane}          ; h
    v_lshlrev_b32 v6, 4, v4               ; 16 b
    s_add_u32 s11, s10, {CV_K}
    v_sub_u32 v6, s11, v6                 ; Kr - 16 b
    v_lshlrev_b32 v7, 3, v5
    v_sub_u32 v20, v6, v7                 ; - 8h   (+2*1788)
    v_lshlrev_b32 v7, 9, v5
    v_sub_u32 v21, v6, v7                 ; - 512h (+2*1528)
    v_sub_u32 v22, v21, v7                ; - 1024h (+2*760)
    v_add_u32 v22, {2*760}, v22
    v_add_u32 v21, {2*1528}, v21
    v_add_u32 v20, {2*1788}, v20
    v_and_b32 v7, 1, v4
    v_mul_u32_u24 v7, 0x20200, v7
    v_lshlrev_b32 v7, 8, v7
    v_add_u32 v7, 0x01000302, v7
    s_mov_b32 s4, 0x01000100
    s_mov_b32 s5, 0x03020302
    ''')
    vF, vG = 24, 25
    a(f'''
    v_and_b32 v26, 15, v{lane}            ; n / m
    v_lshrrev_b32 v27, 4, v{lane}         ; g
    v_lshlrev_b32 v28, 4, v27             ; 16 g
    v_lshlrev_b32 v29, 3, v26             ; 8 n
    v_sub_u32 v{vF}, v28, v29
    s_add_u32 s6, s11, {2*2044-3968}
    v_add_u32 v{vF}, s6, v{vF}
    v_and_b32 v30, 3, v26
    v_mul_u32_u24 v30, {CS}, v30
    v_lshrrev_b32 v31, 2, v26
    v_lshl_add_u32 v30, v31, 7, v30
    v_add3_u32 v{vG}, v30, v28, s10
    v_lshl_add_u32 v26, v27, 7, v29
    ''')
    a('s_waitcnt vmcnt(16)')
    stamp(a, 2)
    a(f'ds_write_b64 v20, {vr(KC,2)} offset:512')
    a(f'ds_write_b64 v20, {vr(KC+2,2)}')
    a(f'''
    v_mov_b32 v32, v{KC+4}
    v_perm_b32 v33, v{KC+5}, v{KC+5}, s4
    v_mov_b32 v34, v{KC+5}
    v_perm_b32 v35, v{KC+5}, v{KC+5}, s5
    ds_write_b128 v21, v[32:35]
    ''')
    for j in range(2):
        k, q = KC + 6 + j, 36 + 4 * j
        a(f'''
        v_perm_b32 v{q}, v{k}, v{k}, s5
        v_perm_b32 v{q+1}, v{k}, v{k}, v7
        v_perm_b32 v{q+2}, v{k}, v{k}, s4
        v_perm_b32 v{q+3}, v{k}, v{k}, s4
        ds_write_b128 v22, {vr(q,4)} offset:{512*(1-j)}
        ''')
    a('v_add_u32 v4, s10, v3')
    for p in range(4):
        r = UR + 8 * p
        q = 44 + 8 * (p & 1)
        a(f's_waitcnt vmcnt({8 + 2*(3-p)})')
        for j in range(4):
            a(f'v_alignbit_b32 v{q+j}, v{r+j+1}, v{r+j}, 16')
        a(f'ds_write_b128 v4, {vr(q,4)} offset:{384 + 1024*p}')
        for j in range(4):
            a(f'v_alignbit_b32 v{q+4+j}, v{r+j+2}, v{r+j+1}, 16')
        a(f'ds_write_b128 v4, {vr(q+4,4)} offset:{384 + 2*CS + 1024*p}')
    ACC = 32
    SET = [64, 128]
    def reads(st):
        lst = []
        for i in range(8):
            lst.append(f'ds_read_b128 {vr(st+4*i,4)}, v{vG} offset:{512*i}')
            lst.append(f'ds_read_b64 {vr(st+32+4*i,2)}, v{vF} offset:{512*(7-i)}')
            lst.append(f'ds_read_b64 {vr(st+32+4*i+2,2)}, v{vF} offset:{512*(7-i)+8}')
        return lst
    a('s_waitcnt vmcnt(0) lgkmcnt(0)')
    stamp(a, 3)
    for r in reads(SET[0]): a(r)
    for k in range(32): a(f'v_mov_b32 v{ACC+k}, 0')
    a('s_mov_b32 s12, 0')
    a('.k2_cv_loop:')
    for half in range(2):
        cur, nxt = SET[half], SET[1 - half]
        a(f'v_add_u32 v{vG}, 64, v{vG}')
        a(f'v_add_u32 v{vF}, 64, v{vF}')
        a('s_waitcnt lgkmcnt(0)')
        rl = reads(nxt)
        pairs = [(i, c) for i in range(8) for c in range(8 - i)]
        for n_, (i, c) in enumerate(pairs):
            A = i + c
            a(f'v_mfma_f32_16x16x32_bf16 {vr(ACC+4*A,4)}, {vr(cur+4*i,4)}, {vr(cur+32+4*c,4)}, {vr(ACC+4*A,4)}')
            if n_ < 24:
                skip = os.environ.get('CV_SKIP', '')
                if not (('G' in skip and 'b128' in rl[n_]) or ('F' in skip and 'b64' in rl[n_])): a(rl[n_])
    a('''
    s_add_u32 s12, s12, 1
    s_cmp_lt_u32 s12, 4
    s_cbranch_scc1 .k2_cv_loop
    ''')
    stamp(a, 4)
    a('s_lshl_b32 s4, s9, 12')
    for A in range(8):
        a(f'v_cvt_pk_bf16_f32 v{8+2*A}, v{ACC+4*A}, v{ACC+4*A+1}')
        a(f'v_cvt_pk_bf16_f32 v{9+2*A}, v{ACC+4*A+2}, v{ACC+4*A+3}')
        a(f'buffer_store_dwordx2 {vr(8+2*A,2)}, v26, s[52:55], s4 offen offset:{512*A}')
    stamp(a, 5)
    stamp_flush(a, 1, 6)
    a('s_endpgm')

    a('.k2_fft:')
    srd(a, 44, P_WS, 4 << 20, WS_Z1)
    srd(a, 48, P_WS, 4 << 20, WS_Z2)
    srd(a, 52, P_WR, 2048 * 1026)
    srd(a, 56, P_WI, 2048 * 1026)
    a(f'''
    s_and_b32 s8, s2, 7
    s_lshr_b32 s9, s2, 3
    s_sub_u32 s10, s3, 4
    s_lshl_b32 s11, s8, 5
    s_add_u32 s11, s11, s9
    s_lshl_b32 s11, s11, 14
    v_and_b32 v3, 15, v{lane}          ; n
    v_lshrrev_b32 v4, 4, v{lane}       ; g
    s_mov_b32 s13, 0
    s_cmp_ge_u32 s8, 5
    s_cbranch_scc1 .k2_sp_hi
    s_or_b32 s4, s9, s10
    s_cmp_lg_u32 s4, 0
    s_cbranch_scc1 .k2_sp_done
    s_and_b32 s4, s8, 3
    s_cmp_eq_u32 s4, 0
    s_cselect_b32 s13, 3, 1
    s_branch .k2_sp_load
    .k2_sp_hi:
    s_cmp_lg_u32 s9, 31
    s_cbranch_scc1 .k2_sp_done
    s_cmp_lg_u32 s10, 3
    s_cbranch_scc1 .k2_sp_done
    s_mov_b32 s13, 2
    .k2_sp_load:
    ''')
    WM = 160
    a(f'''
    v_lshl_add_u32 v5, v4, 6, v3
    v_lshlrev_b32 v5, 3, v5
    v_add_u32 v5, s8, v5
    s_cmp_eq_u32 s13, 1
    s_cselect_b32 s4, 0, 1024
    s_cmp_eq_u32 s13, 3
    s_movk_i32 s5, -1026
    s_cselect_b32 s5, 1026, s5
    s_cselect_b32 s6, 0, {2048*1026}
    s_add_u32 s4, s4, s6
    ''')
    for i in range(4):
        a(f'''
        v_add_u32 v6, {128*i}, v5
        v_mul_i32_i24 v6, s5, v6
        v_add_u32 v6, s4, v6
        buffer_load_ushort v{WM+i}, v6, s[52:55], 0 offen
        buffer_load_ushort v{WM+4+i}, v6, s[56:59], 0 offen
        ''')
    a('.k2_sp_done:')
    a(f'''
    v_lshlrev_b32 v5, 4, v{lane}
    v_and_b32 v6, 255, v0              ; t
    v_lshrrev_b32 v7, 1, v6
    v_lshlrev_b32 v8, 3, v7
    v_add_u32 v8, s8, v8
    v_mul_u32_u24 v8, 1026, v8
    v_and_b32 v9, 1, v6
    v_lshl_add_u32 v8, v9, 4, v8
    ''')
    WL = 144
    vC0, vC1, vC2, vOne, vT = 10, 11, 12, 13, 14
    a(f'''
    v_mov_b32 v{vC0}, {K2_CNT}
    v_mov_b32 v{vC1}, {K2_CNT+4}
    v_mov_b32 v{vC2}, {K2_CNT+8}
    v_mov_b32 v{vOne}, 1
    ''')
    stamp(a, 1)
    vW0, vW1, vZ, vL = 168, 169, 170, 171
    a(f'''
    v_bfe_u32 v15, v6, 3, 2
    v_lshl_add_u32 v15, v9, 1, v15
    v_and_b32 v16, 3, v15
    v_add_u32 v15, 1, v15
    v_and_b32 v15, 3, v15
    v_lshlrev_b32 v7, 6, v7
    v_add_u32 v7, {K2_WB}, v7
    v_lshl_add_u32 v{vW0}, v16, 4, v7
    v_lshl_add_u32 v{vW1}, v15, 4, v7
    v_bfe_u32 v15, v3, 2, 2
    v_add_u32 v15, s10, v15
    v_and_b32 v15, 3, v15
    v_lshlrev_b32 v15, 4, v15
    v_lshl_add_u32 v15, v3, 6, v15
    v_lshl_add_u32 v15, v4, 12, v15
    v_add_u32 v{vZ}, {K2_ZB}, v15
    s_lshl_b32 s4, s10, 12
    s_add_u32 s4, s4, {K2_ZB}
    v_add_u32 v{vL}, s4, v5
    ''')
    B1R, B1I, A2R, A2I, B3R, B3I, A4R, A4I = 16, 20, 24, 28, 32, 36, 40, 44
    T1C, T1S, T3C, T3S = 48, 52, 56, 60
    nf, idx, q1, p_, c_, s_ = 64, 65, 66, 67, 68, 69
    scale = 2.0 / (2048 * 1024)
    a(f'''
    v_cvt_f32_u32 v{nf}, v3
    v_lshlrev_b32 v{idx}, 2, v4
    v_cvt_f32_u32 v{idx}, v{idx}
    v_cvt_f32_u32 v70, s8
    v_fma_f32 v{q1}, v{nf}, 4.0, 0
    v_fma_f32 v{q1}, v{q1}, 2.0, v70       ; 8n + cls
    ''')
    def z_loads():
        a(f'''
        s_lshl_b32 s4, s10, 12
        s_add_u32 s5, s4, {K2_ZB}
        s_add_u32 s12, s11, s4
        s_mov_b32 m0, s5
        ''')
        for p in range(4):
            a(f'buffer_load_dwordx4 v5, s[44:47], s12 offen offset:{p*1024} lds')
    def w_loads():
        a(f'''
        s_lshl_b32 s4, s9, 5
        s_cmp_ge_u32 s8, 5
        s_cselect_b32 s5, 2, 0
        s_add_u32 s4, s4, s5
        s_add_u32 s5, s4, {128*8*1026}
        buffer_load_dwordx4 {vr(WL,4)}, v8, s[52:55], s4 offen
        buffer_load_dwordx4 {vr(WL+4,4)}, v8, s[56:59], s4 offen
        buffer_load_dwordx4 {vr(WL+8,4)}, v8, s[52:55], s5 offen
        buffer_load_dwordx4 {vr(WL+12,4)}, v8, s[56:59], s5 offen
        ''')
    for e in range(4):
        if e == int(os.environ.get('FFT_LOAD_AT', '1')):
            a(f'v_mov_b32 v15, {K2_CNT+12}')
            sync_wait(a, 15, vT, 4)
            z_loads()
        if e == int(os.environ.get('FFT_W_AT', '3')):
            w_loads()
        a(f'''
        v_mul_f32 v{p_}, v{idx}, v{q1}
        v_mul_f32 v{p_}, {fhex(1/128)}, v{p_}
        v_cos_f32 v{c_}, v{p_}
        v_sin_f32 v{s_}, v{p_}
        v_mul_f32 v{p_}, {fhex(1/16)}, v{p_}
        v_cvt_pk_bf16_f32 v{B1R+e}, v{c_}, v{s_}
        v_cvt_pk_bf16_f32 v{B1I+e}, -v{s_}, v{c_}
        v_cos_f32 v{c_}, v{p_}
        v_sin_f32 v{s_}, v{p_}
        v_mul_f32 v{p_}, v{idx}, v{nf}
        v_mul_f32 v{T1C+e}, {fhex(scale)}, v{c_}
        v_mul_f32 v{T1S+e}, {fhex(scale)}, v{s_}
        v_mul_f32 v{p_}, {fhex(1/16)}, v{p_}
        v_cos_f32 v{c_}, v{p_}
        v_sin_f32 v{s_}, v{p_}
        v_fma_f32 v{p_}, v{idx}, 4.0, 0
        v_fma_f32 v{p_}, v{p_}, 2.0, v70
        v_cvt_pk_bf16_f32 v{A2R+e}, v{c_}, v{s_}
        v_cvt_pk_bf16_f32 v{A2I+e}, -v{s_}, v{c_}
        v_cvt_pk_bf16_f32 v{B3R+e}, v{c_}, -v{s_}
        v_cvt_pk_bf16_f32 v{B3I+e}, v{s_}, v{c_}
        v_mul_f32 v{p_}, v{p_}, v{nf}
        v_mul_f32 v{p_}, {fhex(1/128)}, v{p_}
        v_cos_f32 v{c_}, v{p_}
        v_sin_f32 v{s_}, v{p_}
        v_mul_f32 v{p_}, {fhex(1/16)}, v{p_}
        v_cvt_pk_bf16_f32 v{A4R+e}, v{c_}, -v{s_}
        v_cvt_pk_bf16_f32 v{A4I+e}, v{s_}, v{c_}
        v_cos_f32 v{T3C+e}, v{p_}
        v_sin_f32 v{T3S+e}, v{p_}
        v_add_f32 v{idx}, 1.0, v{idx}
        ''')
    stamp(a, 2)
    a('s_waitcnt vmcnt(4)')
    a('s_setprio 2')
    stamp(a, 3)
    sync_arrive(a, vC0, vOne)
    sync_wait(a, vC0, vT, 4)
    stamp(a, 4)
    X = 64
    D = 80
    WF = 112
    TM = 172
    SV = 180
    a('s_mov_b32 s14, 0')
    a('s_mov_b32 s7, 0xffff0000')
    a('.k2_pass:')
    for e in range(4):
        a(f'ds_read_b128 {vr(X+4*e,4)}, v{vZ} offset:{1024*e}')
    a('s_waitcnt lgkmcnt(0)')
    swap4x4(a, X)
    a('s_cmp_lg_u32 s13, 3')
    a('s_cbranch_scc1 .k2_nomask')
    a('s_lshl_b32 s4, s14, 4')
    for e in range(4):
        a(f'v_bfe_u32 v{X+e}, v{X+e}, s4, 16')
    a('.k2_nomask:')
    def stage(Mr, Mi, data_is_A):
        for c in range(4):
            for M, off in ((Mr, 0), (Mi, 4)):
                if data_is_A:
                    a(f'v_mfma_f32_16x16x32_bf16 {vr(D+8*c+off,4)}, {vr(X+4*c,4)}, {vr(M,4)}, 0')
                else:
                    a(f'v_mfma_f32_16x16x32_bf16 {vr(D+8*c+off,4)}, {vr(M,4)}, {vr(X+4*c,4)}, 0')
    def mulpack(cr_of, ci_of, conj):
        k = 0
        for c in range(4):
            for hp in range(2):
                t = TM + 4 * (k & 1); k += 1
                cmul_sc(a, t, t + 2, D + 8 * c + 2 * hp, D + 8 * c + 4 + 2 * hp, cr_of(c) + 2 * hp, ci_of(c) + 2 * hp, conj)
                a(f'v_cvt_pk_bf16_f32 v{X+4*c+2*hp}, v{t}, v{t+2}')
                a(f'v_cvt_pk_bf16_f32 v{X+4*c+2*hp+1}, v{t+1}, v{t+3}')
    stage(B1R, B1I, True)
    mulpack(lambda c: T1C, lambda c: T1S, True)
    stage(A2R, A2I, False)
    a('s_cmp_lg_u32 s14, 0')
    a('s_cbranch_scc1 .k2_wready')
    stamp(a, 5)
    a('s_waitcnt vmcnt(0)')
    stamp(a, 6)
    for rr in range(2):
        for ar in range(2):
            r = WL + 8 * rr + 4 * ar
            a(f'ds_write_b64 v{vW0}, {vr(r,2)} offset:{rr*8192+ar*8}')
            a(f'ds_write_b64 v{vW1}, {vr(r+2,2)} offset:{rr*8192+ar*8}')
    sync_arrive(a, vC1, vOne)
    sync_wait(a, vC1, vT, 4)
    stamp(a, 7)
    a('.k2_wready:')
    for i in range(4):
        a(f'ds_read_b128 {vr(WL+4*i,4)}, v{vZ} offset:{16384+1024*i}')
    for i in range(4):
        a(f's_waitcnt lgkmcnt({3-i})')
        for part in range(2):
            for cp in range(2):
                src = WL + 4 * i + 2 * part + cp
                a(f'v_lshlrev_b32 v{WF+8*(2*cp)+4*part+i}, 16, v{src}')
                a(f'v_and_b32 v{WF+8*(2*cp+1)+4*part+i}, s7, v{src}')
    a('s_cmp_eq_u32 s13, 0')
    a('s_cbranch_scc1 .k2_nopatch')
    h_, nh = fhex(0.5), fhex(-0.5)
    a(f'''
    s_mov_b32 s4, {h_}
    s_mov_b32 s5, {h_}
    s_mov_b32 s6, {nh}
    s_cmp_lg_u32 s13, 3
    s_cbranch_scc1 .k2_pcoef
    s_cmp_eq_u32 s14, 0
    s_cselect_b32 s4, {h_}, 0
    s_cselect_b32 s5, 0, {h_}
    s_mov_b32 s6, s5
    .k2_pcoef:
    s_cmp_eq_u32 s13, 2
    s_cbranch_scc1 .k2_patch_hi
    ''')
    def patch(c):
        for part, sc in ((0, 5), (1, 6)):
            for i in range(4):
                w = WF + 8 * c + 4 * part + i
                a(f'v_lshlrev_b32 v{TM}, 16, v{WM+4*part+i}')
                a(f'v_mul_f32 v{w}, s4, v{w}')
                a(f'v_fmac_f32 v{w}, s{sc}, v{TM}')
    patch(0)
    a('s_branch .k2_nopatch')
    a('.k2_patch_hi:')
    patch(3)
    a('.k2_nopatch:')
    mulpack(lambda c: WF + 8 * c, lambda c: WF + 8 * c + 4, False)
    stage(B3R, B3I, True)
    mulpack(lambda c: T3C, lambda c: T3S, False)
    stage(A4R, A4I, False)
    a('s_cmp_lg_u32 s13, 3')
    a('s_cbranch_scc1 .k2_out')
    a('s_cmp_lg_u32 s14, 0')
    a('s_cbranch_scc1 .k2_pass2done')
    for i in range(4): a(f'v_mov_b32 v{SV+i}, v{D+i}')
    a('s_mov_b32 s14, 1')
    a('s_branch .k2_pass')
    a('.k2_pass2done:')
    for i in range(4):
        a(f'v_mov_b32 v{D+4+i}, v{D+i}')
        a(f'v_mov_b32 v{D+i}, v{SV+i}')
    a('.k2_out:')
    for i in range(4):
        for c in range(4):
            a(f'v_cvt_pk_bf16_f32 v{X+4*i+c}, v{D+8*c+i}, v{D+8*c+4+i}')
        a(f'ds_write_b128 v{vZ}, {vr(X+4*i,4)} offset:{1024*i}')
    stamp(a, 8)
    sync_arrive(a, vC2, vOne)
    sync_wait(a, vC2, vT, 4)
    stamp(a, 9)
    for p in range(4):
        a(f'ds_read_b128 {vr(X+4*p,4)}, v{vL} offset:{1024*p}')
    for p in range(4):
        a(f's_waitcnt lgkmcnt({3-p})')
        a(f'buffer_store_dwordx4 {vr(X+4*p,4)}, v5, s[48:51], s12 offen offset:{1024*p}')
    stamp_flush(a, 1, 10)
    a(f'{EXIT}:')
    a('s_endpgm')

K3_CT = 0
K3_TR = 16384
K3_LDS = K3_TR + 2 * 64 * 144

def gen_k3(a):
    a.raw('.p2align 8')
    a.raw('k3_kernel:')
    EXIT = '.k3_exit'
    prologue(a, 256, EXIT)
    lane = 2
    a('s_cmp_ge_u32 s3, 5')
    a('s_cbranch_scc1 .k3_tr')
    srd(a, 44, P_WS, 4 << 20, WS_Z2)
    srd(a, 48, P_OUT, 8 << 20)
    a(f'''
    s_sub_u32 s8, s3, 1
    s_cmp_eq_u32 s3, 0
    s_cselect_b32 s8, 0, s8
    s_cmp_eq_u32 s3, 1
    s_cselect_b32 s8, 4, s8
    s_sub_u32 s9, 8, s8
    ''')
    vlo, vhi = 4, 5
    gen_z_addr(a, lane, vlo, vhi, 64, 2, 8, 9)
    X = 16
    for i in range(8):
        a(f's_mov_b32 s5, {z_soff(i)}')
        a(f'buffer_load_dword v{X+i}, v{vlo}, s[44:47], s5 offen')
    a('s_cmp_lt_u32 s3, 2')
    a('s_cbranch_scc1 .k3_real_noload')
    for i in range(8, 16):
        a(f's_mov_b32 s5, {z_soff(i)}')
        a(f'buffer_load_dword v{X+i}, v{vhi}, s[44:47], s5 offen')
    a('.k3_real_noload:')
    stamp(a, 1)
    G8 = 8
    gen_dft8_frags(a, lane, G8, 64, False)
    MR, MI, NR, NI, tc, ts = 80, 96, 112 - 8, 120 - 8, 128, 144
    kf, arg, a2, c0, s0, k5 = range(64, 70)
    a(f'''
    v_and_b32 v{kf}, 31, v{lane}
    v_cvt_f32_u32 v{kf}, v{kf}
    v_mul_f32 v{kf}, {fhex(1/32)}, v{kf}
    v_lshrrev_b32 v{arg}, 5, v{lane}
    v_cvt_f32_u32 v{arg}, v{arg}
    v_mul_f32 v{arg}, 4.0, v{arg}
    v_mul_f32 v{arg}, v{arg}, v{kf}
    v_mul_f32 v{k5}, {fhex(5.0)}, v{kf}
    ''')
    for i in range(16):
        a(f'v_cos_f32 v{c0}, v{arg}')
        a(f'v_sin_f32 v{s0}, v{arg}')
        a(f'v_mul_f32 v{a2}, {fhex(1/32)}, v{arg}')
        a(f'v_cos_f32 v{tc+i}, v{a2}')
        a(f'v_sin_f32 v{ts+i}, v{a2}')
        if i != 15:
            a(f'v_add_f32 v{arg}, v{arg}, v{k5 if (i & 3) == 3 else kf}')
        a(f'v_cvt_pk_bf16_f32 v{MR+i}, v{c0}, -v{s0}')
        a(f'v_cvt_pk_bf16_f32 v{MI+i}, v{s0}, v{c0}')
        if i >= 8:
            a(f'v_cvt_pk_bf16_f32 v{NR+i}, v{c0}, v{s0}')
            a(f'v_cvt_pk_bf16_f32 v{NI+i}, v{s0}, -v{c0}')
    a(f'''
    v_and_b32 v6, 31, v{lane}
    v_lshlrev_b32 v6, 2, v6
    v_lshrrev_b32 v7, 5, v{lane}
    v_lshl_add_u32 v6, v7, 9, v6
    s_lshl_b32 s4, s8, 12
    s_lshl_b32 s5, s3, 1
    s_cmp_lt_u32 s3, 2
    s_cselect_b32 s4, s5, s4
    v_add_u32 v6, s4, v6
    ''')
    DR, DI, T0 = 32, 48, 64
    stamp(a, 2)
    a('s_waitcnt vmcnt(0)')
    stamp(a, 3)
    a('s_cmp_lt_u32 s3, 2')
    a('s_cbranch_scc0 .k3_cplx1')
    for i in range(8, 16): a(f'v_mov_b32 v{X+i}, 0')
    a(f'''
    s_mov_b64 exec, 1
    v_lshrrev_b32 v{X+8}, 16, v{X}
    s_mov_b64 exec, -1
    ''')
    a('.k3_cplx1:')
    for c in range(4):
        br, bi = (MR + 4 * c, MI + 4 * c) if c < 2 else (NR + 4 * c, NI + 4 * c)
        a(f'v_mfma_f32_32x32x16_bf16 {vr(DR,16)}, {vr(X+4*c,4)}, {vr(br,4)}, ' + ('0' if c == 0 else vr(DR, 16)))
        a(f'v_mfma_f32_32x32x16_bf16 {vr(DI,16)}, {vr(X+4*c,4)}, {vr(bi,4)}, ' + ('0' if c == 0 else vr(DI, 16)))
    for ip in range(8):
        t = T0 + 4 * (ip & 1)
        cmul_pk(a, t, t + 2, DR + 2 * ip, DI + 2 * ip, tc + 2 * ip, ts + 2 * ip, False)
        a(f'v_cvt_pk_bf16_f32 v{X+2*ip}, v{t}, v{t+2}')
        a(f'v_cvt_pk_bf16_f32 v{X+2*ip+1}, v{t+1}, v{t+3}')
    for c in range(4):
        a(f'v_mfma_f32_32x32x16_bf16 {vr(DR,16)}, {vr(MR+4*c,4)}, {vr(X+4*c,4)}, ' + ('0' if c == 0 else vr(DR, 16)))
    a('s_cmp_lt_u32 s3, 2')
    a('s_cbranch_scc1 .k3_real2')
    for c in range(4):
        a(f'v_mfma_f32_32x32x16_bf16 {vr(DI,16)}, {vr(MI+4*c,4)}, {vr(X+4*c,4)}, ' + ('0' if c == 0 else vr(DI, 16)))
    for i in range(16):
        a(f'v_cvt_pk_bf16_f32 v{T0+i}, v{DR+i}, v{DI+i}')
        a(f'ds_write_b32 v6, v{T0+i} offset:{(8*(i>>2)+(i&3))*128}')
    a('s_branch .k3_join')
    a('.k3_real2:')
    for ip in range(8):
        i = 2 * ip
        a(f'v_cvt_pk_bf16_f32 v{T0+ip}, v{DR+i}, v{DR+i+1}')
        a(f'ds_write_b16 v6, v{T0+ip} offset:{(8*(i>>2)+(i&3))*128}')
        a(f'ds_write_b16_d16_hi v6, v{T0+ip} offset:{(8*(i>>2)+(i&3)+1)*128}')
    a('.k3_join:')
    a('s_waitcnt lgkmcnt(0)')
    stamp(a, 4)
    a('s_barrier')
    stamp(a, 5)
    a('s_cmp_eq_u32 s3, 4')
    a(f's_cbranch_scc1 {EXIT}')
    a('v_lshlrev_b32 v6, 4, v0')
    for p in range(4):
        a(f'ds_read_b128 {vr(X+4*p,4)}, v6 offset:{4096*p}')
    a(f'''
    s_lshl_b32 s4, s2, 12
    s_add_u32 s4, s4, 2048
    v_lshlrev_b32 v7, 3, v0
    v_add_u32 v7, s4, v7
    s_waitcnt lgkmcnt(0)
    ''')
    swap4x4(a, X)
    DD = 32
    for e in range(4):
        for hf in range(2):
            a(f'v_mfma_f32_16x16x32_bf16 {vr(DD+8*e+4*hf,4)}, {vr(G8+4*hf,4)}, {vr(X+4*e,4)}, 0')
    for s1 in range(8):
        a(f'v_cvt_pk_bf16_f32 v{64+2*s1}, v{DD+s1}, v{DD+8+s1}')
        a(f'v_cvt_pk_bf16_f32 v{65+2*s1}, v{DD+16+s1}, v{DD+24+s1}')
        a(f's_mov_b32 s5, {s1*256*4096}')
        a(f'buffer_store_dwordx2 {vr(64+2*s1,2)}, v7, s[48:51], s5 offen')
    stamp(a, 6)
    stamp_flush(a, 2, 7)
    if DIAG == 2:
        sel = [(0,0,0),(0,0,1),(0,0,3),(0,0,7),(0,5,2),(0,5,4),(0,5,6),(1,0,0),(1,0,1),(1,0,3),(1,0,4),(1,0,6),(1,4,10),(2,0,0),(2,2,3),(2,0,7)]
        a('s_cmp_lg_u32 s2, 128')
        a('s_cbranch_scc1 .k3_nodbg')
        a('s_cmp_lg_u32 s3, 0')
        a('s_cbranch_scc1 .k3_nodbg')
        a('s_waitcnt vmcnt(0)')
        a('s_sleep 20')
        a('s_sub_u32 s52, s38, 0')
        a('s_subb_u32 s53, s39, 0')
        a('s_and_b32 s53, s53, 0xffff')
        a('s_mov_b32 s54, 256')
        a('s_mov_b32 s55, 0x00020000')
        a('v_mov_b32 v1, 0')
        for k, (kern, w, idx) in enumerate(sel):
            a(f's_mov_b32 s4, {kern*256*1024 + (128*16+w)*64 + idx*4}')
            a(f'buffer_load_dword v{4+k}, v1, s[44:47], s4 offen sc0 sc1')
        a('s_waitcnt vmcnt(0)')
        a('s_mov_b64 exec, 1')
        for k in range(16):
            if k: a(f'v_sub_u32 v{4+k}, v{4+k}, v4')
            a(f'buffer_store_dword v{4+k}, v1, s[52:55], 0 offen offset:{4*k}')
        a('.k3_nodbg:')
    a('s_endpgm')
    a('.k3_tr:')
    srd(a, 44, P_WS, 4 << 20, WS_YT)
    srd(a, 48, P_OUT, 8 << 20)
    a(f'''
    s_sub_u32 s8, s3, 5
    s_lshl_b32 s9, s2, 1
    s_add_u32 s9, s9, s8
    s_mul_i32 s10, s8, {64*144}
    s_add_u32 s10, s10, {K3_TR}
    ''')
    TP = gen_transposer(a, lane, 9, 44, 48, 10, 4096, 4096, 'y')
    stamp(a, 1)
    gen_transposer_tail(a, lane, 48, 10, 4096, 0, TP)
    stamp(a, 2)
    stamp_flush(a, 2, 3)
    a(f'{EXIT}:')
    a('s_endpgm')

KERNELS23 = [('k2_kernel', gen_k2, 256, 512, K2_LDS, 192), ('k3_kernel', gen_k3, 256, 448, K3_LDS, 160)]
```

```python
import sys
sys.path.insert(0, 'dev')
from gen import *

CS = 4640
CV_K = 4 * CS
CV_WAVE = CV_K + 4224
K2_ZB = 4 * CV_WAVE
K2_WB = K2_ZB + 16384
K2_CNT = K2_WB + 16384
K2_LDS = K2_CNT + 64

def swap4x4(a, base):
    for i in range(4):
        for j in range(i + 1, 4):
            a(f'v_swap_b32 v{base+4*i+j}, v{base+4*j+i}')

def cmul_pk(a, dr, di, xr, xi, cr, ci, conj):
    a(f'v_pk_mul_f32 {vr(dr,2)}, {vr(xi,2)}, {vr(ci,2)}')
    a(f'v_pk_mul_f32 {vr(di,2)}, {vr(xr,2)}, {vr(ci,2)}')
    neg = ' neg_lo:[0,0,1] neg_hi:[0,0,1]'
    a(f'v_pk_fma_f32 {vr(dr,2)}, {vr(xr,2)}, {vr(cr,2)}, {vr(dr,2)}' + ('' if conj else neg))
    a(f'v_pk_fma_f32 {vr(di,2)}, {vr(xi,2)}, {vr(cr,2)}, {vr(di,2)}' + (neg if conj else ''))

def cmul_sc(a, dr, di, xr, xi, cr, ci, conj):
    for e in range(2):
        a(f'v_mul_f32 v{dr+e}, v{xr+e}, v{cr+e}')
        a(f'v_mul_f32 v{di+e}, v{xi+e}, v{cr+e}')
    for e in range(2):
        if conj:
            a(f'v_fmac_f32 v{dr+e}, v{xi+e}, v{ci+e}')
            a(f'v_fma_f32 v{di+e}, -v{xr+e}, v{ci+e}, v{di+e}')
        else:
            a(f'v_fma_f32 v{dr+e}, -v{xi+e}, v{ci+e}, v{dr+e}')
            a(f'v_fmac_f32 v{di+e}, v{xr+e}, v{ci+e}')

def gen_k2(a):
    a.raw('.p2align 8')
    a.raw('k2_kernel:')
    EXIT = '.k2_exit'
    prologue(a, 256, EXIT, early=K2_CNT)
    lane = 2
    a('s_cmp_ge_u32 s3, 4')
    a('s_cbranch_scc1 .k2_fft')
    srd(a, 44, P_WS, 1024 * UP, WS_UT)
    srd(a, 48, P_WS, 1024 * 2048, WS_KC)
    srd(a, 52, P_WS, 4 << 20, WS_YT)
    KC = 8
    UR = 64
    a(f'''
    s_lshl_b32 s9, s2, 2
    s_add_u32 s9, s9, s3            ; channel
    s_mul_i32 s10, s3, {CV_WAVE}
    v_lshlrev_b32 v3, 4, v{lane}
    s_lshl_b32 s4, s9, 11
    buffer_load_dwordx4 {vr(KC,4)}, v3, s[48:51], s4 offen
    buffer_load_dwordx4 {vr(KC+4,4)}, v3, s[48:51], s4 offen offset:1024
    s_mul_i32 s4, s9, {UP}
    s_add_u32 s4, s4, {64-8}
    ''')
    for p in range(4):
        a(f'buffer_load_dwordx4 {vr(UR+8*p+2,4)}, v3, s[44:47], s4 offen offset:{p*1024+8}')
        a(f'buffer_load_dwordx2 {vr(UR+8*p,2)}, v3, s[44:47], s4 offen offset:{p*1024}')
    a(f's_add_u32 s5, s10, {384 + 3*CS}')
    a('s_add_u32 s4, s4, 8')
    a('s_mov_b32 m0, s5')
    for p in range(4):
        a(f'buffer_load_dwordx4 v3, s[44:47], s4 offen offset:{p*1024} lds')
    a(f's_add_u32 s5, s10, {384 + 1*CS}')
    a('s_sub_u32 s4, s4, 4')
    a('s_mov_b32 m0, s5')
    for p in range(4):
        a(f'buffer_load_dwordx4 v3, s[44:47], s4 offen offset:{p*1024} lds')
    a(f'''
    v_mov_b32 v4, {K2_CNT+12}
    v_mov_b32 v5, 1
    ''')
    sync_arrive(a, 4, 5)
    stamp(a, 1)
    a(f'''
    v_mov_b32 v16, 0
    v_mov_b32 v17, 0
    v_mov_b32 v18, 0
    v_mov_b32 v19, 0
    v_add_u32 v4, s10, v3
    s_mov_b64 exec, 0xffffff
    ''')
    for c in range(4):
        a(f'ds_write_b128 v4, v[16:19] offset:{c*CS}')
    a(f'''
    s_mov_b64 exec, 0xff
    ds_write_b128 v4, v[16:19] offset:{CV_K+4096}
    s_mov_b64 exec, -1
    ''')
    a(f'''
    v_and_b32 v4, 31, v{lane}             ; b
    v_lshrrev_b32 v5, 5, v{lane}          ; h
    v_lshlrev_b32 v6, 4, v4               ; 16 b
    s_add_u32 s11, s10, {CV_K}
    v_sub_u32 v6, s11, v6                 ; Kr - 16 b
    v_lshlrev_b32 v7, 3, v5
    v_sub_u32 v20, v6, v7                 ; - 8h   (+2*1788)
    v_lshlrev_b32 v7, 9, v5
    v_sub_u32 v21, v6, v7                 ; - 512h (+2*1528)
    v_sub_u32 v22, v21, v7                ; - 1024h (+2*760)
    v_add_u32 v22, {2*760}, v22
    v_add_u32 v21, {2*1528}, v21
    v_add_u32 v20, {2*1788}, v20
    v_and_b32 v7, 1, v4
    v_mul_u32_u24 v7, 0x20200, v7
    v_lshlrev_b32 v7, 8, v7
    v_add_u32 v7, 0x01000302, v7
    s_mov_b32 s4, 0x01000100
    s_mov_b32 s5, 0x03020302
    ''')
    vF, vG = 24, 25
    a(f'''
    v_and_b32 v26, 15, v{lane}            ; n / m
    v_lshrrev_b32 v27, 4, v{lane}         ; g
    v_lshlrev_b32 v28, 4, v27             ; 16 g
    v_lshlrev_b32 v29, 3, v26             ; 8 n
    v_sub_u32 v{vF}, v28, v29
    s_add_u32 s6, s11, {2*2044-3968}
    v_add_u32 v{vF}, s6, v{vF}
    v_and_b32 v30, 3, v26
    v_mul_u32_u24 v30, {CS}, v30
    v_lshrrev_b32 v31, 2, v26
    v_lshl_add_u32 v30, v31, 7, v30
    v_add3_u32 v{vG}, v30, v28, s10
    v_lshl_add_u32 v26, v27, 7, v29
    ''')
    a('s_waitcnt vmcnt(16)')
    stamp(a, 2)
    a(f'ds_write_b64 v20, {vr(KC,2)} offset:512')
    a(f'ds_write_b64 v20, {vr(KC+2,2)}')
    a(f'''
    v_mov_b32 v32, v{KC+4}
    v_perm_b32 v33, v{KC+5}, v{KC+5}, s4
    v_mov_b32 v34, v{KC+5}
    v_perm_b32 v35, v{KC+5}, v{KC+5}, s5
    ds_write_b128 v21, v[32:35]
    ''')
    for j in range(2):
        k, q = KC + 6 + j, 36 + 4 * j
        a(f'''
        v_perm_b32 v{q}, v{k}, v{k}, s5
        v_perm_b32 v{q+1}, v{k}, v{k}, v7
        v_perm_b32 v{q+2}, v{k}, v{k}, s4
        v_perm_b32 v{q+3}, v{k}, v{k}, s4
        ds_write_b128 v22, {vr(q,4)} offset:{512*(1-j)}
        ''')
    a('v_add_u32 v4, s10, v3')
    for p in range(4):
        r = UR + 8 * p
        q = 44 + 8 * (p & 1)
        a(f's_waitcnt vmcnt({8 + 2*(3-p)})')
        for j in range(4):
            a(f'v_alignbit_b32 v{q+j}, v{r+j+1}, v{r+j}, 16')
        a(f'ds_write_b128 v4, {vr(q,4)} offset:{384 + 1024*p}')
        for j in range(4):
            a(f'v_alignbit_b32 v{q+4+j}, v{r+j+2}, v{r+j+1}, 16')
        a(f'ds_write_b128 v4, {vr(q+4,4)} offset:{384 + 2*CS + 1024*p}')
    ACC = 32
    SET = [64, 128]
    def reads(st):
        lst = []
        for i in range(8):
            lst.append(f'ds_read_b128 {vr(st+4*i,4)}, v{vG} offset:{512*i}')
            lst.append(f'ds_read_b64 {vr(st+32+4*i,2)}, v{vF} offset:{512*(7-i)}')
            lst.append(f'ds_read_b64 {vr(st+32+4*i+2,2)}, v{vF} offset:{512*(7-i)+8}')
        return lst
    a('s_waitcnt vmcnt(0) lgkmcnt(0)')
    stamp(a, 3)
    for r in reads(SET[0]): a(r)
    for k in range(32): a(f'v_mov_b32 v{ACC+k}, 0')
    a('s_mov_b32 s12, 0')
    a('.k2_cv_loop:')
    for half in range(2):
        cur, nxt = SET[half], SET[1 - half]
        a(f'v_add_u32 v{vG}, 64, v{vG}')
        a(f'v_add_u32 v{vF}, 64, v{vF}')
        a('s_waitcnt lgkmcnt(0)')
        rl = reads(nxt)
        pairs = [(i, c) for i in range(8) for c in range(8 - i)]
        for n_, (i, c) in enumerate(pairs):
            A = i + c
            a(f'v_mfma_f32_16x16x32_bf16 {vr(ACC+4*A,4)}, {vr(cur+4*i,4)}, {vr(cur+32+4*c,4)}, {vr(ACC+4*A,4)}')
            if n_ < 24:
                skip = os.environ.get('CV_SKIP', '')
                if not (('G' in skip and 'b128' in rl[n_]) or ('F' in skip and 'b64' in rl[n_])): a(rl[n_])
    a('''
    s_add_u32 s12, s12, 1
    s_cmp_lt_u32 s12, 4
    s_cbranch_scc1 .k2_cv_loop
    ''')
    stamp(a, 4)
    a('s_lshl_b32 s4, s9, 12')
    for A in range(8):
        a(f'v_cvt_pk_bf16_f32 v{8+2*A}, v{ACC+4*A}, v{ACC+4*A+1}')
        a(f'v_cvt_pk_bf16_f32 v{9+2*A}, v{ACC+4*A+2}, v{ACC+4*A+3}')
        a(f'buffer_store_dwordx2 {vr(8+2*A,2)}, v26, s[52:55], s4 offen offset:{512*A}')
    stamp(a, 5)
    stamp_flush(a, 1, 6)
    a('s_endpgm')

    a('.k2_fft:')
    srd(a, 44, P_WS, 4 << 20, WS_Z1)
    srd(a, 48, P_WS, 4 << 20, WS_Z2)
    srd(a, 52, P_WR, 2048 * 1026)
    srd(a, 56, P_WI, 2048 * 1026)
    a(f'''
    s_and_b32 s8, s2, 7
    s_lshr_b32 s9, s2, 3
    s_sub_u32 s10, s3, 4
    s_lshl_b32 s11, s8, 5
    s_add_u32 s11, s11, s9
    s_lshl_b32 s11, s11, 14
    v_and_b32 v3, 15, v{lane}          ; n
    v_lshrrev_b32 v4, 4, v{lane}       ; g
    s_mov_b32 s13, 0
    s_cmp_ge_u32 s8, 5
    s_cbranch_scc1 .k2_sp_hi
    s_or_b32 s4, s9, s10
    s_cmp_lg_u32 s4, 0
    s_cbranch_scc1 .k2_sp_done
    s_and_b32 s4, s8, 3
    s_cmp_eq_u32 s4, 0
    s_cselect_b32 s13, 3, 1
    s_branch .k2_sp_load
    .k2_sp_hi:
    s_cmp_lg_u32 s9, 31
    s_cbranch_scc1 .k2_sp_done
    s_cmp_lg_u32 s10, 3
    s_cbranch_scc1 .k2_sp_done
    s_mov_b32 s13, 2
    .k2_sp_load:
    ''')
    WM = 160
    a(f'''
    v_lshl_add_u32 v5, v4, 6, v3
    v_lshlrev_b32 v5, 3, v5
    v_add_u32 v5, s8, v5
    s_cmp_eq_u32 s13, 1
    s_cselect_b32 s4, 0, 1024
    s_cmp_eq_u32 s13, 3
    s_movk_i32 s5, -1026
    s_cselect_b32 s5, 1026, s5
    s_cselect_b32 s6, 0, {2048*1026}
    s_add_u32 s4, s4, s6
    ''')
    for i in range(4):
        a(f'''
        v_add_u32 v6, {128*i}, v5
        v_mul_i32_i24 v6, s5, v6
        v_add_u32 v6, s4, v6
        buffer_load_ushort v{WM+i}, v6, s[52:55], 0 offen
        buffer_load_ushort v{WM+4+i}, v6, s[56:59], 0 offen
        ''')
    a('.k2_sp_done:')
    a(f'''
    v_lshlrev_b32 v5, 4, v{lane}
    v_and_b32 v6, 255, v0              ; t
    v_lshrrev_b32 v7, 1, v6
    v_lshlrev_b32 v8, 3, v7
    v_add_u32 v8, s8, v8
    v_mul_u32_u24 v8, 1026, v8
    v_and_b32 v9, 1, v6
    v_lshl_add_u32 v8, v9, 4, v8
    ''')
    WL = 144
    vC0, vC1, vC2, vOne, vT = 10, 11, 12, 13, 14
    a(f'''
    v_mov_b32 v{vC0}, {K2_CNT}
    v_mov_b32 v{vC1}, {K2_CNT+4}
    v_mov_b32 v{vC2}, {K2_CNT+8}
    v_mov_b32 v{vOne}, 1
    ''')
    stamp(a, 1)
    vW0, vW1, vZ, vL = 168, 169, 170, 171
    a(f'''
    v_bfe_u32 v15, v6, 3, 2
    v_lshl_add_u32 v15, v9, 1, v15
    v_and_b32 v16, 3, v15
    v_add_u32 v15, 1, v15
    v_and_b32 v15, 3, v15
    v_lshlrev_b32 v7, 6, v7
    v_add_u32 v7, {K2_WB}, v7
    v_lshl_add_u32 v{vW0}, v16, 4, v7
    v_lshl_add_u32 v{vW1}, v15, 4, v7
    v_bfe_u32 v15, v3, 2, 2
    v_add_u32 v15, s10, v15
    v_and_b32 v15, 3, v15
    v_lshlrev_b32 v15, 4, v15
    v_lshl_add_u32 v15, v3, 6, v15
    v_lshl_add_u32 v15, v4, 12, v15
    v_add_u32 v{vZ}, {K2_ZB}, v15
    s_lshl_b32 s4, s10, 12
    s_add_u32 s4, s4, {K2_ZB}
    v_add_u32 v{vL}, s4, v5
    ''')
    B1R, B1I, A2R, A2I, B3R, B3I, A4R, A4I = 16, 20, 24, 28, 32, 36, 40, 44
    T1C, T1S, T3C, T3S = 48, 52, 56, 60
    nf, idx, q1, p_, c_, s_ = 64, 65, 66, 67, 68, 69
    scale = 2.0 / (2048 * 1024)
    a(f'''
    v_cvt_f32_u32 v{nf}, v3
    v_lshlrev_b32 v{idx}, 2, v4
    v_cvt_f32_u32 v{idx}, v{idx}
    v_cvt_f32_u32 v70, s8
    v_fma_f32 v{q1}, v{nf}, 4.0, 0
    v_fma_f32 v{q1}, v{q1}, 2.0, v70       ; 8n + cls
    ''')
    def z_loads():
        a(f'''
        s_lshl_b32 s4, s10, 12
        s_add_u32 s5, s4, {K2_ZB}
        s_add_u32 s12, s11, s4
        s_mov_b32 m0, s5
        ''')
        for p in range(4):
            a(f'buffer_load_dwordx4 v5, s[44:47], s12 offen offset:{p*1024} lds')
    def w_loads():
        a(f'''
        s_lshl_b32 s4, s9, 5
        s_cmp_ge_u32 s8, 5
        s_cselect_b32 s5, 2, 0
        s_add_u32 s4, s4, s5
        s_add_u32 s5, s4, {128*8*1026}
        buffer_load_dwordx4 {vr(WL,4)}, v8, s[52:55], s4 offen
        buffer_load_dwordx4 {vr(WL+4,4)}, v8, s[56:59], s4 offen
        buffer_load_dwordx4 {vr(WL+8,4)}, v8, s[52:55], s5 offen
        buffer_load_dwordx4 {vr(WL+12,4)}, v8, s[56:59], s5 offen
        ''')
    for e in range(4):
        if e == int(os.environ.get('FFT_LOAD_AT', '1')):
            a(f'v_mov_b32 v15, {K2_CNT+12}')
            sync_wait(a, 15, vT, 4)
            z_loads()
        if e == int(os.environ.get('FFT_W_AT', '3')):
            w_loads()
        a(f'''
        v_mul_f32 v{p_}, v{idx}, v{q1}
        v_mul_f32 v{p_}, {fhex(1/128)}, v{p_}
        v_cos_f32 v{c_}, v{p_}
        v_sin_f32 v{s_}, v{p_}
        v_mul_f32 v{p_}, {fhex(1/16)}, v{p_}
        v_cvt_pk_bf16_f32 v{B1R+e}, v{c_}, v{s_}
        v_cvt_pk_bf16_f32 v{B1I+e}, -v{s_}, v{c_}
        v_cos_f32 v{c_}, v{p_}
        v_sin_f32 v{s_}, v{p_}
        v_mul_f32 v{p_}, v{idx}, v{nf}
        v_mul_f32 v{T1C+e}, {fhex(scale)}, v{c_}
        v_mul_f32 v{T1S+e}, {fhex(scale)}, v{s_}
        v_mul_f32 v{p_}, {fhex(1/16)}, v{p_}
        v_cos_f32 v{c_}, v{p_}
        v_sin_f32 v{s_}, v{p_}
        v_fma_f32 v{p_}, v{idx}, 4.0, 0
        v_fma_f32 v{p_}, v{p_}, 2.0, v70
        v_cvt_pk_bf16_f32 v{A2R+e}, v{c_}, v{s_}
        v_cvt_pk_bf16_f32 v{A2I+e}, -v{s_}, v{c_}
        v_cvt_pk_bf16_f32 v{B3R+e}, v{c_}, -v{s_}
        v_cvt_pk_bf16_f32 v{B3I+e}, v{s_}, v{c_}
        v_mul_f32 v{p_}, v{p_}, v{nf}
        v_mul_f32 v{p_}, {fhex(1/128)}, v{p_}
        v_cos_f32 v{c_}, v{p_}
        v_sin_f32 v{s_}, v{p_}
        v_mul_f32 v{p_}, {fhex(1/16)}, v{p_}
        v_cvt_pk_bf16_f32 v{A4R+e}, v{c_}, -v{s_}
        v_cvt_pk_bf16_f32 v{A4I+e}, v{s_}, v{c_}
        v_cos_f32 v{T3C+e}, v{p_}
        v_sin_f32 v{T3S+e}, v{p_}
        v_add_f32 v{idx}, 1.0, v{idx}
        ''')
    stamp(a, 2)
    a('s_waitcnt vmcnt(4)')
    a('s_setprio 2')
    stamp(a, 3)
    sync_arrive(a, vC0, vOne)
    sync_wait(a, vC0, vT, 4)
    stamp(a, 4)
    X = 64
    D = 80
    WF = 112
    TM = 172
    SV = 180
    a('s_mov_b32 s14, 0')
    a('s_mov_b32 s7, 0xffff0000')
    a('.k2_pass:')
    for e in range(4):
        a(f'ds_read_b128 {vr(X+4*e,4)}, v{vZ} offset:{1024*e}')
    a('s_waitcnt lgkmcnt(0)')
    swap4x4(a, X)
    a('s_cmp_lg_u32 s13, 3')
    a('s_cbranch_scc1 .k2_nomask')
    a('s_lshl_b32 s4, s14, 4')
    for e in range(4):
        a(f'v_bfe_u32 v{X+e}, v{X+e}, s4, 16')
    a('.k2_nomask:')
    def stage(Mr, Mi, data_is_A):
        for c in range(4):
            for M, off in ((Mr, 0), (Mi, 4)):
                if data_is_A:
                    a(f'v_mfma_f32_16x16x32_bf16 {vr(D+8*c+off,4)}, {vr(X+4*c,4)}, {vr(M,4)}, 0')
                else:
                    a(f'v_mfma_f32_16x16x32_bf16 {vr(D+8*c+off,4)}, {vr(M,4)}, {vr(X+4*c,4)}, 0')
    def mulpack(cr_of, ci_of, conj):
        k = 0
        for c in range(4):
            for hp in range(2):
                t = TM + 4 * (k & 1); k += 1
                cmul_sc(a, t, t + 2, D + 8 * c + 2 * hp, D + 8 * c + 4 + 2 * hp, cr_of(c) + 2 * hp, ci_of(c) + 2 * hp, conj)
                a(f'v_cvt_pk_bf16_f32 v{X+4*c+2*hp}, v{t}, v{t+2}')
                a(f'v_cvt_pk_bf16_f32 v{X+4*c+2*hp+1}, v{t+1}, v{t+3}')
    stage(B1R, B1I, True)
    mulpack(lambda c: T1C, lambda c: T1S, True)
    stage(A2R, A2I, False)
    a('s_cmp_lg_u32 s14, 0')
    a('s_cbranch_scc1 .k2_wready')
    stamp(a, 5)
    a('s_waitcnt vmcnt(0)')
    stamp(a, 6)
    for rr in range(2):
        for ar in range(2):
            r = WL + 8 * rr + 4 * ar
            a(f'ds_write_b64 v{vW0}, {vr(r,2)} offset:{rr*8192+ar*8}')
            a(f'ds_write_b64 v{vW1}, {vr(r+2,2)} offset:{rr*8192+ar*8}')
    sync_arrive(a, vC1, vOne)
    sync_wait(a, vC1, vT, 4)
    stamp(a, 7)
    a('.k2_wready:')
    for i in range(4):
        a(f'ds_read_b128 {vr(WL+4*i,4)}, v{vZ} offset:{16384+1024*i}')
    for i in range(4):
        a(f's_waitcnt lgkmcnt({3-i})')
        for part in range(2):
            for cp in range(2):
                src = WL + 4 * i + 2 * part + cp
                a(f'v_lshlrev_b32 v{WF+8*(2*cp)+4*part+i}, 16, v{src}')
                a(f'v_and_b32 v{WF+8*(2*cp+1)+4*part+i}, s7, v{src}')
    a('s_cmp_eq_u32 s13, 0')
    a('s_cbranch_scc1 .k2_nopatch')
    h_, nh = fhex(0.5), fhex(-0.5)
    a(f'''
    s_mov_b32 s4, {h_}
    s_mov_b32 s5, {h_}
    s_mov_b32 s6, {nh}
    s_cmp_lg_u32 s13, 3
    s_cbranch_scc1 .k2_pcoef
    s_cmp_eq_u32 s14, 0
    s_cselect_b32 s4, {h_}, 0
    s_cselect_b32 s5, 0, {h_}
    s_mov_b32 s6, s5
    .k2_pcoef:
    s_cmp_eq_u32 s13, 2
    s_cbranch_scc1 .k2_patch_hi
    ''')
    def patch(c):
        for part, sc in ((0, 5), (1, 6)):
            for i in range(4):
                w = WF + 8 * c + 4 * part + i
                a(f'v_lshlrev_b32 v{TM}, 16, v{WM+4*part+i}')
                a(f'v_mul_f32 v{w}, s4, v{w}')
                a(f'v_fmac_f32 v{w}, s{sc}, v{TM}')
    patch(0)
    a('s_branch .k2_nopatch')
    a('.k2_patch_hi:')
    patch(3)
    a('.k2_nopatch:')
    mulpack(lambda c: WF + 8 * c, lambda c: WF + 8 * c + 4, False)
    stage(B3R, B3I, True)
    mulpack(lambda c: T3C, lambda c: T3S, False)
    stage(A4R, A4I, False)
    a('s_cmp_lg_u32 s13, 3')
    a('s_cbranch_scc1 .k2_out')
    a('s_cmp_lg_u32 s14, 0')
    a('s_cbranch_scc1 .k2_pass2done')
    for i in range(4): a(f'v_mov_b32 v{SV+i}, v{D+i}')
    a('s_mov_b32 s14, 1')
    a('s_branch .k2_pass')
    a('.k2_pass2done:')
    for i in range(4):
        a(f'v_mov_b32 v{D+4+i}, v{D+i}')
        a(f'v_mov_b32 v{D+i}, v{SV+i}')
    a('.k2_out:')
    for i in range(4):
        for c in range(4):
            a(f'v_cvt_pk_bf16_f32 v{X+4*i+c}, v{D+8*c+i}, v{D+8*c+4+i}')
        a(f'ds_write_b128 v{vZ}, {vr(X+4*i,4)} offset:{1024*i}')
    stamp(a, 8)
    sync_arrive(a, vC2, vOne)
    sync_wait(a, vC2, vT, 4)
    stamp(a, 9)
    for p in range(4):
        a(f'ds_read_b128 {vr(X+4*p,4)}, v{vL} offset:{1024*p}')
    for p in range(4):
        a(f's_waitcnt lgkmcnt({3-p})')
        a(f'buffer_store_dwordx4 {vr(X+4*p,4)}, v5, s[48:51], s12 offen offset:{1024*p}')
    stamp_flush(a, 1, 10)
    a(f'{EXIT}:')
    a('s_endpgm')

K3_CT = 0
K3_TR = 16384
K3_LDS = K3_TR + 2 * 64 * 144

def gen_k3(a):
    a.raw('.p2align 8')
    a.raw('k3_kernel:')
    EXIT = '.k3_exit'
    prologue(a, 256, EXIT)
    lane = 2
    a('s_cmp_ge_u32 s3, 5')
    a('s_cbranch_scc1 .k3_tr')
    srd(a, 44, P_WS, 4 << 20, WS_Z2)
    srd(a, 48, P_OUT, 8 << 20)
    a(f'''
    s_sub_u32 s8, s3, 1
    s_cmp_eq_u32 s3, 0
    s_cselect_b32 s8, 0, s8
    s_cmp_eq_u32 s3, 1
    s_cselect_b32 s8, 4, s8
    s_sub_u32 s9, 8, s8
    ''')
    vlo, vhi = 4, 5
    gen_z_addr(a, lane, vlo, vhi, 64, 2, 8, 9)
    X = 16
    for i in range(8):
        a(f's_mov_b32 s5, {z_soff(i)}')
        a(f'buffer_load_dword v{X+i}, v{vlo}, s[44:47], s5 offen')
    a('s_cmp_lt_u32 s3, 2')
    a('s_cbranch_scc1 .k3_real_noload')
    for i in range(8, 16):
        a(f's_mov_b32 s5, {z_soff(i)}')
        a(f'buffer_load_dword v{X+i}, v{vhi}, s[44:47], s5 offen')
    a('.k3_real_noload:')
    stamp(a, 1)
    G8 = 8
    gen_dft8_frags(a, lane, G8, 64, False)
    MR, MI, NR, NI, tc, ts = 80, 96, 112 - 8, 120 - 8, 128, 144
    kf, arg, a2, c0, s0, k5 = range(64, 70)
    a(f'''
    v_and_b32 v{kf}, 31, v{lane}
    v_cvt_f32_u32 v{kf}, v{kf}
    v_mul_f32 v{kf}, {fhex(1/32)}, v{kf}
    v_lshrrev_b32 v{arg}, 5, v{lane}
    v_cvt_f32_u32 v{arg}, v{arg}
    v_mul_f32 v{arg}, 4.0, v{arg}
    v_mul_f32 v{arg}, v{arg}, v{kf}
    v_mul_f32 v{k5}, {fhex(5.0)}, v{kf}
    ''')
    for i in range(16):
        a(f'v_cos_f32 v{c0}, v{arg}')
        a(f'v_sin_f32 v{s0}, v{arg}')
        a(f'v_mul_f32 v{a2}, {fhex(1/32)}, v{arg}')
        a(f'v_cos_f32 v{tc+i}, v{a2}')
        a(f'v_sin_f32 v{ts+i}, v{a2}')
        if i != 15:
            a(f'v_add_f32 v{arg}, v{arg}, v{k5 if (i & 3) == 3 else kf}')
        a(f'v_cvt_pk_bf16_f32 v{MR+i}, v{c0}, -v{s0}')
        a(f'v_cvt_pk_bf16_f32 v{MI+i}, v{s0}, v{c0}')
        if i >= 8:
            a(f'v_cvt_pk_bf16_f32 v{NR+i}, v{c0}, v{s0}')
            a(f'v_cvt_pk_bf16_f32 v{NI+i}, v{s0}, -v{c0}')
    a(f'''
    v_and_b32 v6, 31, v{lane}
    v_lshlrev_b32 v6, 2, v6
    v_lshrrev_b32 v7, 5, v{lane}
    v_lshl_add_u32 v6, v7, 9, v6
    s_lshl_b32 s4, s8, 12
    s_lshl_b32 s5, s3, 1
    s_cmp_lt_u32 s3, 2
    s_cselect_b32 s4, s5, s4
    v_add_u32 v6, s4, v6
    ''')
    DR, DI, T0 = 32, 48, 64
    stamp(a, 2)
    a('s_waitcnt vmcnt(0)')
    stamp(a, 3)
    a('s_cmp_lt_u32 s3, 2')
    a('s_cbranch_scc0 .k3_cplx1')
    for i in range(8, 16): a(f'v_mov_b32 v{X+i}, 0')
    a(f'''
    s_mov_b64 exec, 1
    v_lshrrev_b32 v{X+8}, 16, v{X}
    s_mov_b64 exec, -1
    ''')
    a('.k3_cplx1:')
    for c in range(4):
        br, bi = (MR + 4 * c, MI + 4 * c) if c < 2 else (NR + 4 * c, NI + 4 * c)
        a(f'v_mfma_f32_32x32x16_bf16 {vr(DR,16)}, {vr(X+4*c,4)}, {vr(br,4)}, ' + ('0' if c == 0 else vr(DR, 16)))
        a(f'v_mfma_f32_32x32x16_bf16 {vr(DI,16)}, {vr(X+4*c,4)}, {vr(bi,4)}, ' + ('0' if c == 0 else vr(DI, 16)))
    for ip in range(8):
        t = T0 + 4 * (ip & 1)
        cmul_pk(a, t, t + 2, DR + 2 * ip, DI + 2 * ip, tc + 2 * ip, ts + 2 * ip, False)
        a(f'v_cvt_pk_bf16_f32 v{X+2*ip}, v{t}, v{t+2}')
        a(f'v_cvt_pk_bf16_f32 v{X+2*ip+1}, v{t+1}, v{t+3}')
    for c in range(4):
        a(f'v_mfma_f32_32x32x16_bf16 {vr(DR,16)}, {vr(MR+4*c,4)}, {vr(X+4*c,4)}, ' + ('0' if c == 0 else vr(DR, 16)))
    a('s_cmp_lt_u32 s3, 2')
    a('s_cbranch_scc1 .k3_real2')
    for c in range(4):
        a(f'v_mfma_f32_32x32x16_bf16 {vr(DI,16)}, {vr(MI+4*c,4)}, {vr(X+4*c,4)}, ' + ('0' if c == 0 else vr(DI, 16)))
    for i in range(16):
        a(f'v_cvt_pk_bf16_f32 v{T0+i}, v{DR+i}, v{DI+i}')
        a(f'ds_write_b32 v6, v{T0+i} offset:{(8*(i>>2)+(i&3))*128}')
    a('s_branch .k3_join')
    a('.k3_real2:')
    for ip in range(8):
        i = 2 * ip
        a(f'v_cvt_pk_bf16_f32 v{T0+ip}, v{DR+i}, v{DR+i+1}')
        a(f'ds_write_b16 v6, v{T0+ip} offset:{(8*(i>>2)+(i&3))*128}')
        a(f'ds_write_b16_d16_hi v6, v{T0+ip} offset:{(8*(i>>2)+(i&3)+1)*128}')
    a('.k3_join:')
    a('s_waitcnt lgkmcnt(0)')
    stamp(a, 4)
    a('s_barrier')
    stamp(a, 5)
    a('s_cmp_eq_u32 s3, 4')
    a(f's_cbranch_scc1 {EXIT}')
    a('v_lshlrev_b32 v6, 4, v0')
    for p in range(4):
        a(f'ds_read_b128 {vr(X+4*p,4)}, v6 offset:{4096*p}')
    a(f'''
    s_lshl_b32 s4, s2, 12
    s_add_u32 s4, s4, 2048
    v_lshlrev_b32 v7, 3, v0
    v_add_u32 v7, s4, v7
    s_waitcnt lgkmcnt(0)
    ''')
    swap4x4(a, X)
    DD = 32
    for e in range(4):
        for hf in range(2):
            a(f'v_mfma_f32_16x16x32_bf16 {vr(DD+8*e+4*hf,4)}, {vr(G8+4*hf,4)}, {vr(X+4*e,4)}, 0')
    for s1 in range(8):
        a(f'v_cvt_pk_bf16_f32 v{64+2*s1}, v{DD+s1}, v{DD+8+s1}')
        a(f'v_cvt_pk_bf16_f32 v{65+2*s1}, v{DD+16+s1}, v{DD+24+s1}')
        a(f's_mov_b32 s5, {s1*256*4096}')
        a(f'buffer_store_dwordx2 {vr(64+2*s1,2)}, v7, s[48:51], s5 offen')
    stamp(a, 6)
    stamp_flush(a, 2, 7)
    if DIAG == 3:
        kern, w, idx = [int(x) for x in os.environ['SEL'].split(',')]
        a('s_cmp_lg_u32 s2, 128')
        a('s_cbranch_scc1 .k3_nodbg')
        a('s_cmp_lg_u32 s3, 0')
        a('s_cbranch_scc1 .k3_nodbg')
        a('s_waitcnt vmcnt(0)')
        a('s_sleep 40')
        a('v_mov_b32 v1, 0')
        a(f's_mov_b32 s4, {kern*256*1024 + (128*16+w)*64 + idx*4}')
        a(f'buffer_load_dword v4, v1, s[44:47], s4 offen sc0 sc1')
        a('s_waitcnt vmcnt(0)')
        a('v_readfirstlane_b32 s6, v4')
        a('s_add_u32 s6, s6, 6000')
        a('.k3_spin:')
        a('s_memrealtime s[8:9]')
        a('s_waitcnt lgkmcnt(0)')
        a('s_sub_u32 s7, s8, s6')
        a('s_cmp_lt_i32 s7, 0')
        a('s_cbranch_scc1 .k3_spin')
        a('.k3_nodbg:')
    if DIAG == 2:
        sel = [(0,0,0),(0,0,1),(0,0,3),(0,0,7),(0,5,2),(0,5,4),(0,5,6),(1,0,0),(1,0,1),(1,0,3),(1,0,4),(1,0,6),(1,4,10),(2,0,0),(2,2,3),(2,0,7)]
        a('s_cmp_lg_u32 s2, 128')
        a('s_cbranch_scc1 .k3_nodbg')
        a('s_cmp_lg_u32 s3, 0')
        a('s_cbranch_scc1 .k3_nodbg')
        a('s_waitcnt vmcnt(0)')
        a('s_sleep 20')
        a('s_sub_u32 s52, s38, 0')
        a('s_subb_u32 s53, s39, 0')
        a('s_and_b32 s53, s53, 0xffff')
        a('s_mov_b32 s54, 256')
        a('s_mov_b32 s55, 0x00020000')
        a('v_mov_b32 v1, 0')
        for k, (kern, w, idx) in enumerate(sel):
            a(f's_mov_b32 s4, {kern*256*1024 + (128*16+w)*64 + idx*4}')
            a(f'buffer_load_dword v{4+k}, v1, s[44:47], s4 offen sc0 sc1')
        a('s_waitcnt vmcnt(0)')
        a('s_mov_b64 exec, 1')
        for k in range(16):
            if k: a(f'v_sub_u32 v{4+k}, v{4+k}, v4')
            a(f'buffer_store_dword v{4+k}, v1, s[52:55], 0 offen offset:{4*k}')
        a('.k3_nodbg:')
    a('s_endpgm')
    a('.k3_tr:')
    srd(a, 44, P_WS, 4 << 20, WS_YT)
    srd(a, 48, P_OUT, 8 << 20)
    a(f'''
    s_sub_u32 s8, s3, 5
    s_lshl_b32 s9, s2, 1
    s_add_u32 s9, s9, s8
    s_mul_i32 s10, s8, {64*144}
    s_add_u32 s10, s10, {K3_TR}
    ''')
    TP = gen_transposer(a, lane, 9, 44, 48, 10, 4096, 4096, 'y')
    stamp(a, 1)
    gen_transposer_tail(a, lane, 48, 10, 4096, 0, TP)
    stamp(a, 2)
    stamp_flush(a, 2, 3)
    a(f'{EXIT}:')
    a('s_endpgm')

KERNELS23 = [('k2_kernel', gen_k2, 256, 512, K2_LDS, 192), ('k3_kernel', gen_k3, 256, 448, K3_LDS, 160)]
```

```python
import sys
sys.path.insert(0, 'dev')
from gen import *

CS = 4640
CV_K = 4 * CS
CV_WAVE = CV_K + 4224
K2_ZB = 4 * CV_WAVE
K2_WB = K2_ZB + 16384
K2_CNT = K2_WB + 16384
K2_LDS = K2_CNT + 64

def swap4x4(a, base):
    for i in range(4):
        for j in range(i + 1, 4):
            a(f'v_swap_b32 v{base+4*i+j}, v{base+4*j+i}')

def cmul_pk(a, dr, di, xr, xi, cr, ci, conj):
    a(f'v_pk_mul_f32 {vr(dr,2)}, {vr(xi,2)}, {vr(ci,2)}')
    a(f'v_pk_mul_f32 {vr(di,2)}, {vr(xr,2)}, {vr(ci,2)}')
    neg = ' neg_lo:[0,0,1] neg_hi:[0,0,1]'
    a(f'v_pk_fma_f32 {vr(dr,2)}, {vr(xr,2)}, {vr(cr,2)}, {vr(dr,2)}' + ('' if conj else neg))
    a(f'v_pk_fma_f32 {vr(di,2)}, {vr(xi,2)}, {vr(cr,2)}, {vr(di,2)}' + (neg if conj else ''))

def cmul_sc(a, dr, di, xr, xi, cr, ci, conj):
    for e in range(2):
        a(f'v_mul_f32 v{dr+e}, v{xr+e}, v{cr+e}')
        a(f'v_mul_f32 v{di+e}, v{xi+e}, v{cr+e}')
    for e in range(2):
        if conj:
            a(f'v_fmac_f32 v{dr+e}, v{xi+e}, v{ci+e}')
            a(f'v_fma_f32 v{di+e}, -v{xr+e}, v{ci+e}, v{di+e}')
        else:
            a(f'v_fma_f32 v{dr+e}, -v{xi+e}, v{ci+e}, v{dr+e}')
            a(f'v_fmac_f32 v{di+e}, v{xr+e}, v{ci+e}')

def prologue2(a, exit_label, loads):
    a(f'''
    s_cmp_ge_u32 s2, 256
    s_cbranch_scc1 {exit_label}
    ''')
    stamp(a, 0)
    for l in loads: a(l)
    a('''
    v_lshrrev_b32 v1, 6, v0
    v_and_b32 v2, 63, v0
    v_readfirstlane_b32 s3, v1
    ''')

K2_SCR = K2_CNT + 64
K2_LDS = K2_SCR + 2048

def gen_k2(a):
    a.raw('.p2align 8')
    a.raw('k2_kernel:')
    EXIT = '.k2_exit'
    prologue2(a, EXIT, ['s_load_dwordx2 s[40:41], s[0:1], 96', 's_load_dwordx4 s[32:35], s[0:1], 64'])
    lane = 2
    a('s_cmp_ge_u32 s3, 4')
    a('s_cbranch_scc1 .k2_fft')
    KC = 8
    UR = 192
    a(f'''
    s_lshl_b32 s9, s2, 2
    s_add_u32 s9, s9, s3            ; channel
    s_mul_i32 s10, s3, {CV_WAVE}
    v_lshlrev_b32 v3, 4, v{lane}
    s_lshl_b32 s13, s9, 11
    s_mul_i32 s14, s9, {UP}
    s_add_u32 s14, s14, {64-8}
    ''')
    a(f'''
    v_mov_b32 v16, 0
    v_mov_b32 v17, 0
    v_mov_b32 v18, 0
    v_mov_b32 v19, 0
    v_add_u32 v23, s10, v3
    s_mov_b64 exec, 0xffffff
    ''')
    for c in range(4):
        a(f'ds_write_b128 v23, v[16:19] offset:{c*CS}')
    a(f'''
    s_mov_b64 exec, 0xff
    ds_write_b128 v23, v[16:19] offset:{CV_K+4096}
    s_mov_b64 exec, -1
    ''')
    a(f'''
    v_and_b32 v4, 31, v{lane}             ; b
    v_lshrrev_b32 v5, 5, v{lane}          ; h
    v_lshlrev_b32 v6, 4, v4               ; 16 b
    s_add_u32 s11, s10, {CV_K}
    v_sub_u32 v6, s11, v6                 ; Kr - 16 b
    v_lshlrev_b32 v7, 3, v5
    v_sub_u32 v20, v6, v7                 ; - 8h   (+2*1788)
    v_lshlrev_b32 v7, 9, v5
    v_sub_u32 v21, v6, v7                 ; - 512h (+2*1528)
    v_sub_u32 v22, v21, v7                ; - 1024h (+2*760)
    v_add_u32 v22, {2*760}, v22
    v_add_u32 v21, {2*1528}, v21
    v_add_u32 v20, {2*1788}, v20
    v_and_b32 v7, 1, v4
    v_mul_u32_u24 v7, 0x20200, v7
    v_lshlrev_b32 v7, 8, v7
    v_add_u32 v7, 0x01000302, v7
    ''')
    vF, vG = 24, 25
    a(f'''
    v_and_b32 v26, 15, v{lane}            ; n / m
    v_lshrrev_b32 v27, 4, v{lane}         ; g
    v_lshlrev_b32 v28, 4, v27             ; 16 g
    v_lshlrev_b32 v29, 3, v26             ; 8 n
    v_sub_u32 v{vF}, v28, v29
    s_add_u32 s6, s11, {2*2044-3968}
    v_add_u32 v{vF}, s6, v{vF}
    v_and_b32 v30, 3, v26
    v_mul_u32_u24 v30, {CS}, v30
    v_lshrrev_b32 v31, 2, v26
    v_lshl_add_u32 v30, v31, 7, v30
    v_add3_u32 v{vG}, v30, v28, s10
    v_lshl_add_u32 v26, v27, 7, v29
    ''')
    ACC = 32
    for k in range(32): a(f'v_mov_b32 v{ACC+k}, 0')
    a('s_waitcnt lgkmcnt(0)')
    srd(a, 48, P_WS, 1024 * 2048, WS_KC)
    a(f'buffer_load_dwordx4 {vr(KC,4)}, v3, s[48:51], s13 offen')
    a(f'buffer_load_dwordx4 {vr(KC+4,4)}, v3, s[48:51], s13 offen offset:1024')
    srd(a, 44, P_WS, 1024 * UP, WS_UT)
    for p in range(4):
        a(f'buffer_load_dwordx4 {vr(UR+8*p+2,4)}, v3, s[44:47], s14 offen offset:{p*1024+8}')
    a('s_barrier')
    stamp(a, 1)
    srd(a, 52, P_WS, 4 << 20, WS_YT)
    a(f'''
    s_mov_b32 s4, 0x01000100
    s_mov_b32 s5, 0x03020302
    v_mov_b32 v{UR}, 0
    v_mov_b32 v{UR+1}, 0
    s_waitcnt vmcnt(4)
    ''')
    stamp(a, 2)
    Q = 128
    a(f'ds_write_b64 v20, {vr(KC,2)} offset:512')
    a(f'ds_write_b64 v20, {vr(KC+2,2)}')
    a(f'''
    v_mov_b32 v{Q}, v{KC+4}
    v_perm_b32 v{Q+1}, v{KC+5}, v{KC+5}, s4
    v_mov_b32 v{Q+2}, v{KC+5}
    v_perm_b32 v{Q+3}, v{KC+5}, v{KC+5}, s5
    ds_write_b128 v21, {vr(Q,4)}
    ''')
    for j in range(2):
        k, q = KC + 6 + j, Q + 4 + 4 * j
        a(f'''
        v_perm_b32 v{q}, v{k}, v{k}, s5
        v_perm_b32 v{q+1}, v{k}, v{k}, v7
        v_perm_b32 v{q+2}, v{k}, v{k}, s4
        v_mov_b32 v{q+3}, v{q+2}
        ds_write_b128 v22, {vr(q,4)} offset:{512*(1-j)}
        ''')
    dpp = 'row_mask:0xf bank_mask:0xf'
    def copies(p, q, nstores):
        r = UR + 8 * p
        a(f's_waitcnt vmcnt({3-p+nstores})')
        a(f'ds_write_b128 v23, {vr(r+2,4)} offset:{384 + 3*CS + 1024*p}')
        a(f'v_mov_b32_dpp v{r}, v{r+4} wave_shr:1 {dpp}')
        a(f'v_mov_b32_dpp v{r+1}, v{r+5} wave_shr:1 {dpp}')
        if p < 3:
            a(f'v_mov_b32_dpp v{r+8}, v{r+4} wave_ror:1 {dpp}')
            a(f'v_mov_b32_dpp v{r+9}, v{r+5} wave_ror:1 {dpp}')
        for j in range(4):
            a(f'v_mov_b32 v{q+8+j}, v{r+1+j}')
        a(f'ds_write_b128 v23, {vr(q+8,4)} offset:{384 + 1*CS + 1024*p}')
        for j in range(4):
            a(f'v_alignbit_b32 v{q+j}, v{r+j+1}, v{r+j}, 16')
        a(f'ds_write_b128 v23, {vr(q,4)} offset:{384 + 1024*p}')
        for j in range(3):
            a(f'v_mov_b32 v{q+4+j}, v{q+1+j}')
        a(f'v_alignbit_b32 v{q+7}, v{r+5}, v{r+4}, 16')
        a(f'ds_write_b128 v23, {vr(q+4,4)} offset:{384 + 2*CS + 1024*p}')
    for p in range(2): copies(p, Q + 12 + 12 * p, 0)
    SET = [64, 128]
    def reads(st, nf):
        lst = []
        for i in range(nf):
            lst.append(f'ds_read_b128 {vr(st+4*i,4)}, v{vG} offset:{512*i}')
            lst.append(f'ds_read_b64 {vr(st+32+4*i,2)}, v{vF} offset:{512*(7-i)}')
            lst.append(f'ds_read_b64 {vr(st+32+4*i+2,2)}, v{vF} offset:{512*(7-i)+8}')
        return lst
    def conv_phase(name, nf, lo, hi):
        a('s_waitcnt lgkmcnt(0)')
        for r in reads(SET[0], nf): a(r)
        a('s_mov_b32 s12, 0')
        a(f'{name}:')
        for half in range(2):
            cur, nxt = SET[half], SET[1 - half]
            a(f'v_add_u32 v{vG}, 64, v{vG}')
            a(f'v_add_u32 v{vF}, 64, v{vF}')
            a('s_waitcnt lgkmcnt(0)')
            rl = reads(nxt, nf)
            pairs = [(i, c) for i in range(nf) for c in range(nf) if lo <= i + c <= hi]
            per = 2 if len(rl) > len(pairs) - 2 else 1
            k = 0
            for n_, (i, c) in enumerate(pairs):
                A = i + c
                a(f'v_mfma_f32_16x16x32_bf16 {vr(ACC+4*A,4)}, {vr(cur+4*i,4)}, {vr(cur+32+4*c,4)}, {vr(ACC+4*A,4)}')
                for _ in range(per):
                    if k < len(rl): a(rl[k]); k += 1
            assert k == len(rl)
        a(f'''
        s_add_u32 s12, s12, 1
        s_cmp_lt_u32 s12, 4
        s_cbranch_scc1 {name}
        ''')
    def store_pair(P):
        o = 8 + 4 * P
        for e in range(2):
            A = 2 * P + e
            a(f'v_cvt_pk_bf16_f32 v{o+2*e}, v{ACC+4*A}, v{ACC+4*A+1}')
            a(f'v_cvt_pk_bf16_f32 v{o+2*e+1}, v{ACC+4*A+2}, v{ACC+4*A+3}')
        a(f'buffer_store_dwordx4 {vr(o,4)}, v3, s[52:55], s13 offen offset:{1024*P}')
    for p in range(2, 4): copies(p, Q + 12 + 12 * p, 0)
    stamp(a, 3)
    a('s_lshl_b32 s13, s9, 12')
    conv_phase('.k2_cv_loop2', 8, 0, 7)
    stamp(a, 4)
    for P in range(4): store_pair(P)
    stamp(a, 5)
    stamp_flush(a, 1, 6)
    a('s_endpgm')

    a('.k2_fft:')
    vC0, vC1, vC2, vOne, vT = 10, 11, 12, 13, 14
    WL = 144
    vW0, vW1, vZ, vL = 184, 185, 186, 187
    a(f'''
    s_and_b32 s8, s2, 7
    s_lshr_b32 s9, s2, 3
    s_sub_u32 s10, s3, 4
    s_lshl_b32 s11, s8, 5
    s_add_u32 s11, s11, s9
    s_lshl_b32 s11, s11, 14
    v_and_b32 v3, 15, v{lane}          ; n
    v_lshrrev_b32 v4, 4, v{lane}       ; g
    v_mov_b32 v{vC0}, {K2_CNT}
    v_mov_b32 v16, 0
    v_mov_b32 v17, 0
    v_mov_b32 v18, 0
    v_mov_b32 v19, 0
    ds_write_b128 v{vC0}, v[16:19]
    v_mov_b32 v{vC1}, {K2_CNT+4}
    v_mov_b32 v{vC2}, {K2_CNT+8}
    v_mov_b32 v{vOne}, 1
    v_lshlrev_b32 v5, 4, v{lane}
    s_lshl_b32 s4, s10, 12
    s_add_u32 s15, s4, {K2_ZB}
    s_add_u32 s12, s11, s4
    v_add_u32 v{vL}, s15, v5
    ''')
    B1R, B1I, A2R, A2I, B3R, B3I, A4R, A4I = 16, 20, 24, 28, 32, 36, 40, 44
    T1C, T1S, T3C, T3S = 48, 52, 56, 60
    nf, idx, q1, p_, c_, s_, p2, c2, s2_, p3, c3, s3_ = range(64, 76)
    scale = 2.0 / (2048 * 1024)
    a(f'''
    v_cvt_f32_u32 v{nf}, v3
    v_lshlrev_b32 v{idx}, 2, v4
    v_cvt_f32_u32 v{idx}, v{idx}
    v_cvt_f32_u32 v76, s8
    v_mul_f32 v76, {fhex(1/128)}, v76      ; cls/128
    v_mul_f32 v77, {fhex(1/16)}, v{nf}     ; n/16
    v_add_f32 v{q1}, v77, v76              ; (8n + cls)/128
    v_mul_f32 v76, v76, v{nf}              ; n*cls/128
    ''')
    def consts(e):
        a(f'''
        v_mul_f32 v{p_}, v{idx}, v{q1}
        v_mul_f32 v{p2}, v{idx}, v77
        v_cos_f32 v{c_}, v{p_}
        v_sin_f32 v{s_}, v{p_}
        v_add_f32 v{p3}, v{p2}, v76
        v_cos_f32 v{c2}, v{p2}
        v_sin_f32 v{s2_}, v{p2}
        v_mul_f32 v{p_}, {fhex(1/16)}, v{p_}
        v_cos_f32 v{c3}, v{p3}
        v_sin_f32 v{s3_}, v{p3}
        v_mul_f32 v{p3}, {fhex(1/16)}, v{p3}
        v_cvt_pk_bf16_f32 v{B1R+e}, v{c_}, v{s_}
        v_cvt_pk_bf16_f32 v{B1I+e}, -v{s_}, v{c_}
        v_cos_f32 v{c_}, v{p_}
        v_sin_f32 v{s_}, v{p_}
        v_cvt_pk_bf16_f32 v{A2R+e}, v{c2}, v{s2_}
        v_cvt_pk_bf16_f32 v{A2I+e}, -v{s2_}, v{c2}
        v_cvt_pk_bf16_f32 v{B3R+e}, v{c2}, -v{s2_}
        v_cvt_pk_bf16_f32 v{B3I+e}, v{s2_}, v{c2}
        v_cos_f32 v{T3C+e}, v{p3}
        v_sin_f32 v{T3S+e}, v{p3}
        v_cvt_pk_bf16_f32 v{A4R+e}, v{c3}, -v{s3_}
        v_cvt_pk_bf16_f32 v{A4I+e}, v{s3_}, v{c3}
        v_mul_f32 v{T1C+e}, {fhex(scale)}, v{c_}
        v_mul_f32 v{T1S+e}, {fhex(scale)}, v{s_}
        v_add_f32 v{idx}, 1.0, v{idx}
        ''')
    NPRE = int(os.environ.get('K2_NPRE', '3'))
    for e in range(NPRE): consts(e)
    a('s_waitcnt lgkmcnt(0)')
    srd(a, 44, P_WS, 4 << 20, WS_Z1)
    a('s_mov_b32 m0, s15')
    a('s_barrier')
    for p in range(4):
        a(f'buffer_load_dwordx4 v5, s[44:47], s12 offen offset:{p*1024} lds')
    srd(a, 52, P_WR, 2048 * 1026)
    srd(a, 56, P_WI, 2048 * 1026)
    a(f'''
    v_and_b32 v6, 255, v0              ; t
    v_lshrrev_b32 v7, 1, v6
    v_lshlrev_b32 v8, 3, v7
    v_add_u32 v8, s8, v8
    v_mul_u32_u24 v8, 1026, v8
    v_and_b32 v9, 1, v6
    v_lshl_add_u32 v8, v9, 4, v8
    s_lshl_b32 s4, s9, 5
    s_cmp_ge_u32 s8, 5
    s_cselect_b32 s5, 2, 0
    s_add_u32 s4, s4, s5
    {'v_and_b32 v8, 0xfffffffc, v8' if os.environ.get('WALIGN') else ''}
    {'s_and_b32 s4, s4, 0xfffffffc' if os.environ.get('WALIGN') else ''}
    s_add_u32 s5, s4, {128*8*1026}
    buffer_load_dwordx4 {vr(WL,4)}, v8, s[52:55], s4 offen
    buffer_load_dwordx4 {vr(WL+4,4)}, v8, s[56:59], s4 offen
    buffer_load_dwordx4 {vr(WL+8,4)}, v8, s[52:55], s5 offen
    buffer_load_dwordx4 {vr(WL+12,4)}, v8, s[56:59], s5 offen
    ''')
    stamp(a, 1)
    for e in range(NPRE, 4): consts(e)
    srd(a, 48, P_WS, 4 << 20, WS_Z2)
    a(f'''
    v_bfe_u32 v15, v6, 3, 2
    v_lshl_add_u32 v15, v9, 1, v15
    v_and_b32 v64, 3, v15
    v_add_u32 v15, 1, v15
    v_and_b32 v15, 3, v15
    v_lshlrev_b32 v7, 6, v7
    v_add_u32 v7, {K2_WB}, v7
    v_lshl_add_u32 v{vW0}, v64, 4, v7
    v_lshl_add_u32 v{vW1}, v15, 4, v7
    v_bfe_u32 v15, v3, 2, 2
    v_add_u32 v15, s10, v15
    v_and_b32 v15, 3, v15
    v_lshlrev_b32 v15, 4, v15
    v_lshl_add_u32 v15, v3, 6, v15
    v_lshl_add_u32 v15, v4, 12, v15
    v_add_u32 v{vZ}, {K2_ZB}, v15
    s_mov_b32 s7, 0xffff0000
    ''')
    stamp(a, 2)
    a('s_waitcnt vmcnt(4)')
    a('s_setprio 2')
    stamp(a, 3)
    sync_arrive(a, vC0, vOne)
    WM = 160
    a(f'''
    s_mov_b32 s13, 0
    s_cmp_ge_u32 s8, 5
    s_cbranch_scc1 .k2_sp_hi
    s_or_b32 s4, s9, s10
    s_cmp_lg_u32 s4, 0
    s_cbranch_scc1 .k2_sp_done
    s_and_b32 s4, s8, 3
    s_cmp_eq_u32 s4, 0
    s_cselect_b32 s13, 3, 1
    s_branch .k2_sp_load
    .k2_sp_hi:
    s_cmp_lg_u32 s9, 31
    s_cbranch_scc1 .k2_sp_done
    s_cmp_lg_u32 s10, 3
    s_cbranch_scc1 .k2_sp_done
    s_mov_b32 s13, 2
    .k2_sp_load:
    v_lshl_add_u32 v64, v4, 6, v3
    v_lshlrev_b32 v64, 3, v64
    v_add_u32 v64, s8, v64
    s_cmp_eq_u32 s13, 2
    s_cselect_b32 s4, 1024, 0
    s_movk_i32 s5, 1024
    ''')
    for i in range(4):
        a(f'''
        v_add_u32 v65, {128*i}, v64
        v_sub_u32 v66, 2048, v65
        v_and_b32 v66, 2047, v66
        v_mul_u32_u24 v65, 1026, v65
        v_mul_u32_u24 v66, 1026, v66
        buffer_load_ushort v{WM+i}, v66, s[52:55], s4 offen
        buffer_load_ushort v{WM+4+i}, v66, s[56:59], s4 offen
        buffer_load_ushort v{WM+8+i}, v65, s[52:55], s5 offen
        buffer_load_ushort v{WM+12+i}, v65, s[56:59], s5 offen
        buffer_load_ushort v{WM+16+i}, v66, s[52:55], s5 offen
        buffer_load_ushort v{WM+20+i}, v66, s[56:59], s5 offen
        ''')
    a('.k2_sp_done:')
    sync_wait(a, vC0, vT, 4, slp=0)
    stamp(a, 4)
    X = 64
    D = 80
    WF = 112
    TM = 188
    for e in range(4):
        a(f'ds_read_b128 {vr(D+4*e,4)}, v{vZ} offset:{1024*e}')
    for e in range(4):
        a(f's_waitcnt lgkmcnt({3-e})')
        for c in range(4):
            a(f'v_mov_b32 v{X+4*c+e}, v{D+4*e+c}')
    def stage(Mr, Mi, data_is_A):
        for c in range(4):
            for M, off in ((Mr, 0), (Mi, 4)):
                if data_is_A:
                    a(f'v_mfma_f32_16x16x32_bf16 {vr(D+8*c+off,4)}, {vr(X+4*c,4)}, {vr(M,4)}, 0')
                else:
                    a(f'v_mfma_f32_16x16x32_bf16 {vr(D+8*c+off,4)}, {vr(M,4)}, {vr(X+4*c,4)}, 0')
    def mulpack(cr_of, ci_of, conj):
        k = 0
        for c in range(4):
            for hp in range(2):
                t = TM + 4 * (k & 1); k += 1
                cmul_sc(a, t, t + 2, D + 8 * c + 2 * hp, D + 8 * c + 4 + 2 * hp, cr_of(c) + 2 * hp, ci_of(c) + 2 * hp, conj)
                a(f'v_cvt_pk_bf16_f32 v{X+4*c+2*hp}, v{t}, v{t+2}')
                a(f'v_cvt_pk_bf16_f32 v{X+4*c+2*hp+1}, v{t+1}, v{t+3}')
    stage(B1R, B1I, True)
    mulpack(lambda c: T1C, lambda c: T1S, True)
    stage(A2R, A2I, False)
    stamp(a, 5)
    a('s_waitcnt vmcnt(0)')
    stamp(a, 6)
    for rr in range(2):
        for ar in range(2):
            r = WL + 8 * rr + 4 * ar
            a(f'ds_write_b64 v{vW0}, {vr(r,2)} offset:{rr*8192+ar*8}')
            a(f'ds_write_b64 v{vW1}, {vr(r+2,2)} offset:{rr*8192+ar*8}')
    sync_arrive(a, vC1, vOne)
    sync_wait(a, vC1, vT, 4, slp=0)
    stamp(a, 7)
    for i in range(4):
        a(f'ds_read_b128 {vr(WL+4*i,4)}, v{vZ} offset:{16384+1024*i}')
    for i in range(4):
        a(f's_waitcnt lgkmcnt({3-i})')
        for part in range(2):
            for cp in range(2):
                src = WL + 4 * i + 2 * part + cp
                a(f'v_lshlrev_b32 v{WF+8*(2*cp)+4*part+i}, 16, v{src}')
                a(f'v_and_b32 v{WF+8*(2*cp+1)+4*part+i}, s7, v{src}')
    a('s_cmp_eq_u32 s13, 0')
    a('s_cbranch_scc1 .k2_nopatch')
    for k in range(24):
        a(f'v_lshlrev_b32 v{WM+k}, 16, v{WM+k}')
    a('s_cmp_eq_u32 s13, 2')
    a('s_cbranch_scc1 .k2_patch_hi')
    def patch(c):
        for i in range(4):
            a(f'v_add_f32 v{WF+8*c+i}, v{WF+8*c+i}, v{WM+i}')
            a(f'v_sub_f32 v{WF+8*c+4+i}, v{WF+8*c+4+i}, v{WM+4+i}')
        for i in range(8):
            a(f'v_mul_f32 v{WF+8*c+i}, 0.5, v{WF+8*c+i}')
    patch(0)
    a('s_cmp_eq_u32 s13, 1')
    a('s_cbranch_scc1 .k2_nopatch')
    a(f'''
    v_lshl_add_u32 v{TM}, v4, 6, v3
    s_lshr_b32 s4, s8, 2
    s_sub_u32 s4, 256, s4
    v_sub_u32 v{TM+1}, s4, v{TM}
    v_lshlrev_b32 v{TM}, 2, v{TM}
    v_add_u32 v{TM}, {K2_SCR}, v{TM}
    ''')
    for i in range(4):
        a(f'ds_write_b32 v{TM}, v{D+i} offset:{64*i}')
        a(f'ds_write_b32 v{TM}, v{D+4+i} offset:{1024+64*i}')
    ZM = WL
    for i in range(4):
        a(f'''
        v_subrev_u32 v{TM+2}, {16*i}, v{TM+1}
        v_and_b32 v{TM+2}, 255, v{TM+2}
        v_lshlrev_b32 v{TM+2}, 2, v{TM+2}
        v_add_u32 v{TM+2}, {K2_SCR}, v{TM+2}
        ds_read_b32 v{ZM+i}, v{TM+2}
        ds_read_b32 v{ZM+4+i}, v{TM+2} offset:1024
        ''')
    for i in range(4):
        a(f'v_add_f32 v{WM+8+i}, v{WM+8+i}, v{WM+16+i}')
        a(f'v_sub_f32 v{WM+12+i}, v{WM+12+i}, v{WM+20+i}')
    for i in range(8):
        a(f'v_mul_f32 v{WM+8+i}, {fhex(0.125)}, v{WM+8+i}')
        a(f'v_mul_f32 v{WF+i}, {fhex(0.25)}, v{WF+i}')
        a(f'v_sub_f32 v{WM+i}, v{WF+i}, v{WM+8+i}')
        a(f'v_add_f32 v{WM+8+i}, v{WF+i}, v{WM+8+i}')
    a('s_waitcnt lgkmcnt(0)')
    for i in range(4):
        zr, zi, mr, mi = D + i, D + 4 + i, ZM + i, ZM + 4 + i
        pr, pi, qr, qi = WM + 8 + i, WM + 12 + i, WM + i, WM + 4 + i
        a(f'''
        v_mul_f32 v{TM}, v{zr}, v{pr}
        v_mul_f32 v{TM+1}, v{zr}, v{pi}
        v_fma_f32 v{TM}, -v{zi}, v{pi}, v{TM}
        v_fmac_f32 v{TM+1}, v{zi}, v{pr}
        v_fmac_f32 v{TM}, v{mr}, v{qr}
        v_fmac_f32 v{TM+1}, v{mr}, v{qi}
        v_fma_f32 v{zr}, v{mi}, v{qi}, v{TM}
        v_fma_f32 v{zi}, -v{mi}, v{qr}, v{TM+1}
        v_mov_b32 v{WF+i}, 1.0
        v_mov_b32 v{WF+4+i}, 0
        ''')
    a('s_branch .k2_nopatch')
    a('.k2_patch_hi:')
    patch(3)
    a('.k2_nopatch:')
    mulpack(lambda c: WF + 8 * c, lambda c: WF + 8 * c + 4, False)
    stage(B3R, B3I, True)
    mulpack(lambda c: T3C, lambda c: T3S, False)
    stage(A4R, A4I, False)
    for i in range(4):
        for c in range(4):
            a(f'v_cvt_pk_bf16_f32 v{X+4*i+c}, v{D+8*c+i}, v{D+8*c+4+i}')
        a(f'ds_write_b128 v{vZ}, {vr(X+4*i,4)} offset:{1024*i}')
    stamp(a, 8)
    sync_arrive(a, vC2, vOne)
    sync_wait(a, vC2, vT, 4, slp=0)
    stamp(a, 9)
    for p in range(4):
        a(f'ds_read_b128 {vr(X+4*p,4)}, v{vL} offset:{1024*p}')
    for p in range(4):
        a(f's_waitcnt lgkmcnt({3-p})')
        a(f'buffer_store_dwordx4 {vr(X+4*p,4)}, v5, s[48:51], s12 offen offset:{1024*p}')
    stamp_flush(a, 1, 10)
    a(f'{EXIT}:')
    a('s_endpgm')

K3_CT = 0
K3_CNT = 16384
K3_TR = 16448
K3_LDS = K3_TR + 2 * 64 * 144

def gen_k3(a):
    a.raw('.p2align 8')
    a.raw('k3_kernel:')
    EXIT = '.k3_exit'
    prologue2(a, EXIT, ['s_load_dwordx2 s[40:41], s[0:1], 96', 's_load_dwordx4 s[36:39], s[0:1], 80'])
    lane = 2
    a('s_cmp_ge_u32 s3, 5')
    a('s_cbranch_scc1 .k3_tr')
    a(f'''
    s_mov_b32 s8, s3
    s_and_b32 s15, s3, 3
    s_sub_u32 s9, 8, s8
    v_mov_b32 v6, {K3_CNT}
    v_mov_b32 v7, 0
    ds_write_b32 v6, v7
    ''')
    vlo, vhi = 4, 5
    gen_z_addr(a, lane, vlo, vhi, 64, 2, 8, 9)
    X = 16
    G8 = 8
    MR, MI, NR, NI, tc, ts = 80, 96, 112 - 8, 120 - 8, 128, 144
    kf, arg, a2, c0, s0, k5 = range(74, 80)
    a(f'''
    v_and_b32 v{kf}, 31, v{lane}
    v_cvt_f32_u32 v{kf}, v{kf}
    v_mul_f32 v{kf}, {fhex(1/32)}, v{kf}
    v_lshrrev_b32 v{arg}, 5, v{lane}
    v_cvt_f32_u32 v{arg}, v{arg}
    v_mul_f32 v{arg}, 4.0, v{arg}
    v_mul_f32 v{arg}, v{arg}, v{kf}
    v_mul_f32 v{k5}, {fhex(5.0)}, v{kf}
    ''')
    def tab(i):
        a(f'v_cos_f32 v{c0}, v{arg}')
        a(f'v_sin_f32 v{s0}, v{arg}')
        a(f'v_mul_f32 v{a2}, {fhex(1/32)}, v{arg}')
        a(f'v_cos_f32 v{tc+i}, v{a2}')
        a(f'v_sin_f32 v{ts+i}, v{a2}')
        if i != 15:
            a(f'v_add_f32 v{arg}, v{arg}, v{k5 if (i & 3) == 3 else kf}')
        a(f'v_cvt_pk_bf16_f32 v{MR+i}, v{c0}, -v{s0}')
        a(f'v_cvt_pk_bf16_f32 v{MI+i}, v{s0}, v{c0}')
        if i >= 8:
            a(f'v_cvt_pk_bf16_f32 v{NR+i}, v{c0}, v{s0}')
            a(f'v_cvt_pk_bf16_f32 v{NI+i}, v{s0}, -v{c0}')
    NPRE = int(os.environ.get('K3_NPRE', '4'))
    for i in range(NPRE): tab(i)
    a('s_waitcnt lgkmcnt(0)')
    srd(a, 44, P_WS, 4 << 20, WS_Z2)
    for i in range(8):
        a(f's_mov_b32 s5, {z_soff(i)}')
        a(f'buffer_load_dword v{X+i}, v{vlo}, s[44:47], s5 offen')
    a('s_cmp_eq_u32 s15, 0')
    a('s_cbranch_scc1 .k3_real_noload')
    for i in range(8, 16):
        a(f's_mov_b32 s5, {z_soff(i)}')
        a(f'buffer_load_dword v{X+i}, v{vhi}, s[44:47], s5 offen')
    a('.k3_real_noload:')
    a('s_barrier')
    stamp(a, 1)
    srd(a, 48, P_OUT, 8 << 20)
    for i in range(NPRE, 16): tab(i)
    gen_dft8_frags(a, lane, G8, 64, False)
    a(f'''
    v_and_b32 v6, 31, v{lane}
    v_lshlrev_b32 v6, 2, v6
    v_lshrrev_b32 v7, 5, v{lane}
    v_lshl_add_u32 v6, v7, 9, v6
    s_lshl_b32 s4, s8, 12
    s_cmp_eq_u32 s8, 4
    s_cselect_b32 s4, 2, s4
    v_add_u32 v6, s4, v6
    ''')
    DR, DI, T0 = 32, 48, 64
    stamp(a, 2)
    a('s_waitcnt vmcnt(0)')
    stamp(a, 3)
    a('s_cmp_eq_u32 s15, 0')
    a('s_cbranch_scc0 .k3_cplx1')
    for i in range(8, 16): a(f'v_mov_b32 v{X+i}, 0')
    a(f'''
    s_mov_b64 exec, 1
    v_lshrrev_b32 v{X+8}, 16, v{X}
    s_mov_b64 exec, -1
    ''')
    a('.k3_cplx1:')
    for c in range(4):
        br, bi = (MR + 4 * c, MI + 4 * c) if c < 2 else (NR + 4 * c, NI + 4 * c)
        a(f'v_mfma_f32_32x32x16_bf16 {vr(DR,16)}, {vr(X+4*c,4)}, {vr(br,4)}, ' + ('0' if c == 0 else vr(DR, 16)))
        a(f'v_mfma_f32_32x32x16_bf16 {vr(DI,16)}, {vr(X+4*c,4)}, {vr(bi,4)}, ' + ('0' if c == 0 else vr(DI, 16)))
    for ip in range(8):
        t = T0 + 4 * (ip & 1)
        cmul_pk(a, t, t + 2, DR + 2 * ip, DI + 2 * ip, tc + 2 * ip, ts + 2 * ip, False)
        a(f'v_cvt_pk_bf16_f32 v{X+2*ip}, v{t}, v{t+2}')
        a(f'v_cvt_pk_bf16_f32 v{X+2*ip+1}, v{t+1}, v{t+3}')
    for c in range(4):
        a(f'v_mfma_f32_32x32x16_bf16 {vr(DR,16)}, {vr(MR+4*c,4)}, {vr(X+4*c,4)}, ' + ('0' if c == 0 else vr(DR, 16)))
    a('s_cmp_eq_u32 s15, 0')
    a('s_cbranch_scc1 .k3_real2')
    for c in range(4):
        a(f'v_mfma_f32_32x32x16_bf16 {vr(DI,16)}, {vr(MI+4*c,4)}, {vr(X+4*c,4)}, ' + ('0' if c == 0 else vr(DI, 16)))
    for i in range(16):
        a(f'v_cvt_pk_bf16_f32 v{T0+i}, v{DR+i}, v{DI+i}')
        a(f'ds_write_b32 v6, v{T0+i} offset:{(8*(i>>2)+(i&3))*128}')
    a('s_branch .k3_join')
    a('.k3_real2:')
    for ip in range(8):
        i = 2 * ip
        a(f'v_cvt_pk_bf16_f32 v{T0+ip}, v{DR+i}, v{DR+i+1}')
        a(f'ds_write_b16 v6, v{T0+ip} offset:{(8*(i>>2)+(i&3))*128}')
        a(f'ds_write_b16_d16_hi v6, v{T0+ip} offset:{(8*(i>>2)+(i&3)+1)*128}')
    a('.k3_join:')
    a(f'v_mov_b32 v4, {K3_CNT}')
    a('v_mov_b32 v5, 1')
    sync_arrive(a, 4, 5)
    stamp(a, 4)
    a('s_cmp_eq_u32 s3, 4')
    a(f's_cbranch_scc1 {EXIT}')
    sync_wait(a, 4, 5, 5, slp=0)
    stamp(a, 5)
    a('v_lshlrev_b32 v6, 4, v0')
    for p in range(4):
        a(f'ds_read_b128 {vr(X+4*p,4)}, v6 offset:{4096*p}')
    a(f'''
    s_lshl_b32 s4, s2, 12
    s_add_u32 s4, s4, 2048
    v_lshlrev_b32 v7, 3, v0
    v_add_u32 v7, s4, v7
    s_waitcnt lgkmcnt(0)
    ''')
    swap4x4(a, X)
    DD = 32
    for e in range(4):
        for hf in range(2):
            a(f'v_mfma_f32_16x16x32_bf16 {vr(DD+8*e+4*hf,4)}, {vr(G8+4*hf,4)}, {vr(X+4*e,4)}, 0')
    for s1 in range(8):
        a(f'v_cvt_pk_bf16_f32 v{64+2*s1}, v{DD+s1}, v{DD+8+s1}')
        a(f'v_cvt_pk_bf16_f32 v{65+2*s1}, v{DD+16+s1}, v{DD+24+s1}')
        a(f's_mov_b32 s5, {s1*256*4096}')
        a(f'buffer_store_dwordx2 {vr(64+2*s1,2)}, v7, s[48:51], s5 offen')
    stamp(a, 6)
    stamp_flush(a, 2, 7)
    if DIAG == 3:
        kern, w, idx = [int(x) for x in os.environ['SEL'].split(',')]
        a('s_cmp_lg_u32 s2, 128')
        a('s_cbranch_scc1 .k3_nodbg')
        a('s_cmp_lg_u32 s3, 0')
        a('s_cbranch_scc1 .k3_nodbg')
        a('s_waitcnt vmcnt(0)')
        a('s_sleep 40')
        a('v_mov_b32 v1, 0')
        a(f's_mov_b32 s4, {kern*256*1024 + (128*16+w)*64 + idx*4}')
        a(f'buffer_load_dword v4, v1, s[44:47], s4 offen sc0 sc1')
        a('s_waitcnt vmcnt(0)')
        a('v_readfirstlane_b32 s6, v4')
        a('s_add_u32 s6, s6, 6000')
        a('.k3_spin:')
        a('s_memrealtime s[8:9]')
        a('s_waitcnt lgkmcnt(0)')
        a('s_sub_u32 s7, s8, s6')
        a('s_cmp_lt_i32 s7, 0')
        a('s_cbranch_scc1 .k3_spin')
        a('.k3_nodbg:')
    if DIAG == 2:
        sel = [(0,0,0),(0,0,1),(0,0,3),(0,0,7),(0,5,2),(0,5,4),(0,5,6),(1,0,0),(1,0,1),(1,0,3),(1,0,4),(1,0,6),(1,4,10),(2,0,0),(2,2,3),(2,0,7)]
        a('s_cmp_lg_u32 s2, 128')
        a('s_cbranch_scc1 .k3_nodbg')
        a('s_cmp_lg_u32 s3, 0')
        a('s_cbranch_scc1 .k3_nodbg')
        a('s_waitcnt vmcnt(0)')
        a('s_sleep 20')
        a('s_sub_u32 s52, s38, 0')
        a('s_subb_u32 s53, s39, 0')
        a('s_and_b32 s53, s53, 0xffff')
        a('s_mov_b32 s54, 256')
        a('s_mov_b32 s55, 0x00020000')
        a('v_mov_b32 v1, 0')
        for k, (kern, w, idx) in enumerate(sel):
            a(f's_mov_b32 s4, {kern*256*1024 + (128*16+w)*64 + idx*4}')
            a(f'buffer_load_dword v{4+k}, v1, s[44:47], s4 offen sc0 sc1')
        a('s_waitcnt vmcnt(0)')
        a('s_mov_b64 exec, 1')
        for k in range(16):
            if k: a(f'v_sub_u32 v{4+k}, v{4+k}, v4')
            a(f'buffer_store_dword v{4+k}, v1, s[52:55], 0 offen offset:{4*k}')
        a('.k3_nodbg:')
    a('s_endpgm')
    a('.k3_tr:')
    a('s_waitcnt lgkmcnt(0)')
    a('s_barrier')
    srd(a, 44, P_WS, 4 << 20, WS_YT)
    srd(a, 48, P_OUT, 8 << 20)
    a(f'''
    s_sub_u32 s8, s3, 5
    s_lshl_b32 s9, s2, 1
    s_add_u32 s9, s9, s8
    s_mul_i32 s10, s8, {64*144}
    s_add_u32 s10, s10, {K3_TR}
    ''')
    TP = gen_transposer(a, lane, 9, 44, 48, 10, 4096, 4096, 'y')
    stamp(a, 1)
    gen_transposer_tail(a, lane, 48, 10, 4096, 0, TP, ymode=True)
    stamp(a, 2)
    stamp_flush(a, 2, 3)
    a(f'{EXIT}:')
    a('s_endpgm')

KERNELS23 = [('k2_kernel', gen_k2, 256, 512, K2_LDS, 224), ('k3_kernel', gen_k3, 256, 448, K3_LDS, 160)]
```

```python
import sys, struct
sys.path.insert(0, 'dev')
from asmlib import Asm

NAME = 'concat_heads__ssm_conv_s4d__spectral_gfnet__prompt'

def f2u(x):
    return struct.unpack('<I', struct.pack('<f', x))[0]
def fhex(x):
    return '0x%08x' % f2u(x)

WS_Z1 = 0
WS_Z2 = 4 << 20
WS_UT = 8 << 20
UP = 4160
WS_YT = 16 << 20
WS_KC = 24 << 20
WS_SIZE = 1 << 28

def vr(a, n):
    return f'v[{a}:{a+n-1}]'

import os
DIAG = int(os.environ.get('DIAG', '0'))
WS_DIAG = 24 << 20
def stamp(a, k):
    if DIAG:
        ins = 's_memtime' if os.environ.get('CYC') else 's_memrealtime'
        a(f'{ins} s[{72+2*k}:{73+2*k}]')
def stamp_flush(a, kern, nst):
    if not DIAG: return
    a('s_waitcnt vmcnt(0) lgkmcnt(0)')
    stamp(a, nst)
    nst += 1
    srd(a, 44, P_WS, 1 << 20, WS_DIAG)
    a(f'''
    s_lshl_b32 s4, s2, 4
    s_add_u32 s4, s4, s3
    s_lshl_b32 s4, s4, 6
    s_add_u32 s4, s4, {kern * 256 * 1024}
    v_mov_b32 v1, 0
    s_waitcnt lgkmcnt(0)
    s_mov_b64 exec, 1
    ''')
    for k in range(nst):
        if os.environ.get('PSTAMP') and k == 1:
            a(f'v_mov_b32 v{4+k}, s{72+2*11}')
        else:
            a(f'v_mov_b32 v{4+k}, s{72+2*k}')
        a(f'buffer_store_dword v{4+k}, v1, s[44:47], s4 offen offset:{4*k}')
    a('s_mov_b64 exec, -1')

def prologue(a, nwg, exit_label, early=None, early2=False, hook=None):
    a(f'''
    s_cmp_ge_u32 s2, {nwg}
    s_cbranch_scc1 {exit_label}
    ''')
    stamp(a, 0)
    if os.environ.get('DELAY', '') and os.environ['DELAY'] in exit_label:
        a('s_sleep 127')
    a(f'''
    s_load_dwordx16 s[16:31], s[0:1], 0
    s_load_dwordx8 s[32:39], s[0:1], 64
    s_load_dwordx2 s[40:41], s[0:1], 96
    v_lshrrev_b32 v1, 6, v0
    v_and_b32 v2, 63, v0
    v_readfirstlane_b32 s3, v1
    ''')
    if hook: hook()
    if early is not None:
        a(f'''
        v_mov_b32 v4, {early}
        v_mov_b32 v8, 0
        v_mov_b32 v9, 0
        v_mov_b32 v10, 0
        v_mov_b32 v11, 0
        ds_write_b128 v4, v[8:11]
        ds_write_b128 v4, v[8:11] offset:16
        s_waitcnt lgkmcnt(0)
        ''')
        if os.environ.get('PSTAMP'): stamp(a, 11)
        if not early2: a('s_barrier')
    else:
        a('s_waitcnt lgkmcnt(0)')

def srd(a, d, base, nbytes, off=0):
    if off:
        a(f's_add_u32 s{d}, s{base}, {off:#x}')
        a(f's_addc_u32 s{d+1}, s{base+1}, 0')
        a(f's_and_b32 s{d+1}, s{d+1}, 0xffff')
    else:
        a(f's_mov_b32 s{d}, s{base}')
        a(f's_and_b32 s{d+1}, s{base+1}, 0xffff')
    a(f's_mov_b32 s{d+2}, {nbytes:#x}')
    a(f's_mov_b32 s{d+3}, 0x00020000')

P_U, P_LOGA, P_AIM, P_CRE, P_CIM, P_LOGDT, P_DSKIP, P_X = 16, 18, 20, 22, 24, 26, 28, 30
P_WR, P_WI, P_OUT, P_DBG, P_WS = 32, 34, 36, 38, 40

def sync_arrive(a, vaddr, vone):
    a(f'''
    s_waitcnt lgkmcnt(0)
    s_mov_b64 exec, 1
    ds_add_u32 v{vaddr}, v{vone}
    s_mov_b64 exec, -1
    ''')

def sync_wait(a, vaddr, vtmp, n, stmp=4, slp=1):
    L = a.label('spin')
    E = a.label('spun')
    a(f'''
    {L}:
    ds_read_b32 v{vtmp}, v{vaddr}
    s_waitcnt lgkmcnt(0)
    v_readfirstlane_b32 s{stmp}, v{vtmp}
    s_cmp_ge_u32 s{stmp}, {n}
    s_cbranch_scc1 {E}
    s_sleep {slp}
    s_branch {L}
    {E}:
    ''')

def gen_dft8_frags(a, lane, dst, t, fwd):
    m, g, i_, msk, kap, ph, arg, c0, c1, q = range(t, t + 10)
    a(f'''
    v_and_b32 v{m}, 15, v{lane}
    v_lshrrev_b32 v{g}, 4, v{lane}
    v_and_b32 v{i_}, 3, v{lane}
    v_lshrrev_b32 v{m}, 2, v{m}
    v_cmp_eq_u32 vcc, v{m}, v{g}
    v_cndmask_b32 v{msk}, 0, -1, vcc
    ''')
    KAP = [0, 4, 1, 1, 2, 2, 3, 3]
    PH = [0, 0, 0, 1, 0, 1, 0, 1]
    for hf in range(2):
        if fwd:
            a(f'''
            s_mov_b32 s4, 0x33221140
            s_mov_b32 s5, 0xa8
            v_add_u32 v{q}, {4*hf}, v{i_}
            v_bfe_u32 v{ph}, s5, v{q}, 1
            v_lshlrev_b32 v{q}, 2, v{q}
            v_bfe_u32 v{kap}, s4, v{q}, 4
            v_cvt_f32_u32 v{kap}, v{kap}
            v_cvt_f32_u32 v{ph}, v{ph}
            v_mul_f32 v{kap}, {fhex(0.125)}, v{kap}
            v_mul_f32 v{arg}, {fhex(0.25)}, v{ph}
            ''')
            for jp in range(4):
                a(f'v_cos_f32 v{c0}, v{arg}')
                a(f'v_add_f32 v{arg}, v{arg}, v{kap}')
                a(f'v_cos_f32 v{c1}, v{arg}')
                a(f'v_add_f32 v{arg}, v{arg}, v{kap}')
                a(f'v_cvt_pk_bf16_f32 v{dst+4*hf+jp}, v{c0}, v{c1}')
                a(f'v_and_b32 v{dst+4*hf+jp}, v{msk}, v{dst+4*hf+jp}')
        else:
            a(f'''
            v_add_u32 v{q}, {4*hf}, v{i_}
            v_cvt_f32_u32 v{q}, v{q}
            v_mul_f32 v{q}, {fhex(0.125)}, v{q}
            ''')
            for jp in range(4):
                for e, cr in ((0, c0), (1, c1)):
                    qq = 2 * jp + e
                    a(f'v_mul_f32 v{arg}, {fhex(float(KAP[qq]))}, v{q}')
                    if PH[qq]:
                        a(f'v_add_f32 v{arg}, {fhex(0.25)}, v{arg}')
                    a(f'v_cos_f32 v{cr}, v{arg}')
                a(f'v_cvt_pk_bf16_f32 v{dst+4*hf+jp}, v{c0}, v{c1}')
                a(f'v_and_b32 v{dst+4*hf+jp}, v{msk}, v{dst+4*hf+jp}')

def gen_z_addr(a, lane, vlo, vhi, t, s_s2, s_cls, s_cls2):
    k1, h, x, y = t, t + 1, t + 2, t + 3
    a(f'''
    v_and_b32 v{k1}, 31, v{lane}
    v_lshrrev_b32 v{h}, 5, v{lane}
    s_lshr_b32 s4, s{s_s2}, 2
    s_lshl_b32 s5, s{s_s2}, 6
    ''')
    for which, dst, cls in ((0, vlo, s_cls), (1, vhi, s_cls2)):
        if which == 1:
            a(f'v_sub_u32 v{k1}, 31, v{k1}')
            a(f'v_sub_u32 v{h}, 1, v{h}')
        a(f'''
        v_bfe_u32 v{x}, v{k1}, 2, 2
        v_add_u32 v{x}, s4, v{x}
        v_and_b32 v{x}, 3, v{x}
        v_lshlrev_b32 v{x}, 4, v{x}
        v_and_b32 v{y}, 3, v{k1}
        v_lshl_add_u32 v{x}, v{y}, 2, v{x}
        v_lshrrev_b32 v{y}, 4, v{k1}
        v_lshl_add_u32 v{x}, v{y}, 14, v{x}
        v_lshl_add_u32 v{x}, v{h}, 17, v{x}
        s_lshl_b32 s6, s{cls}, 19
        s_add_u32 s6, s6, s5
        v_add_u32 v{dst}, s6, v{x}
        ''')

def z_soff(i):
    e = 8 * (i >> 2) + (i & 3)
    return (e if i < 8 else 27 - e) * 32768

def gen_transposer(a, lane, s_tile, src_srd, dst_srd, lds_base, src_pitch, dst_pitch, mode):
    TP = 144
    if mode == 'u':
        a(f's_and_b32 s4, s{s_tile}, 15')
        a(f's_lshr_b32 s5, s{s_tile}, 4')
    else:
        a(f's_lshr_b32 s4, s{s_tile}, 4')
        a(f's_and_b32 s5, s{s_tile}, 15')
    a(f'''
    s_mul_i32 s6, s5, {64*src_pitch}
    s_lshl_b32 s7, s4, 7
    s_add_u32 s6, s6, s7
    v_lshrrev_b32 v3, 3, v{lane}
    v_and_b32 v4, 7, v{lane}
    v_lshlrev_b32 v4, 4, v4
    v_mul_u32_u24 v5, {src_pitch}, v3
    v_add3_u32 v5, v5, v4, s6
    v_mul_u32_u24 v6, {TP}, v3
    v_add3_u32 v6, v6, v4, s{lds_base}
    ''')
    for it in range(8):
        a(f's_mov_b32 s7, {8*it*src_pitch}')
        a(f'buffer_load_dwordx4 {vr(16+4*it,4)}, v5, s[{src_srd}:{src_srd+3}], s7 offen')
    return TP

def gen_transposer_tail(a, lane, dst_srd, lds_base, dst_pitch, dst_off, TP, ymode=False):
    a(f'''
    v_lshrrev_b32 v7, 4, v{lane}
    v_bfe_u32 v8, v{lane}, 2, 2
    v_lshl_add_u32 v8, v7, 3, v8
    v_mul_u32_u24 v8, {TP}, v8
    v_and_b32 v9, 3, v{lane}
    v_lshl_add_u32 v8, v9, {4 if ymode else 3}, v8
    v_add_u32 v8, s{lds_base}, v8
    ''')
    if ymode:
        a(f'''
        s_lshr_b32 s6, s4, 3
        s_lshl_b32 s6, s6, 4
        s_and_b32 s7, s4, 7
        s_add_u32 s6, s6, s7
        s_mul_i32 s6, s6, {32*dst_pitch}
        ''')
    else:
        a(f's_mul_i32 s6, s4, {64*dst_pitch}')
    a(f'''
    s_lshl_b32 s7, s5, 7
    s_add_u32 s6, s6, s7
    s_add_u32 s6, s6, {dst_off}
    v_and_b32 v9, 15, v{lane}
    v_mul_u32_u24 v9, {dst_pitch}, v9
    v_lshl_add_u32 v9, v7, 4, v9
    v_add_u32 v9, s6, v9
    ''')
    for it in range(8):
        a(f's_waitcnt vmcnt({7-it})')
        a(f'ds_write_b128 v6, {vr(16+4*it,4)} offset:{8*it*TP}')
    a('s_waitcnt lgkmcnt(0)')
    k = 0
    for cb in range(4):
        for th in range(2):
            for jj in range(2):
                coff = (cb & 1) * 64 + (cb >> 1) * 8 if ymode else cb * 32
                a(f'ds_read_b64_tr_b16 {vr(48+4*k+2*jj,2)}, v8 offset:{(32*th+4*jj)*TP+coff}')
            k += 1
    k = 0
    for cb in range(4):
        for th in range(2):
            a(f's_waitcnt lgkmcnt({14-2*k})')
            roff = 256 * (cb >> 1) + 16 * (cb & 1) if ymode else 16 * cb
            a(f's_mov_b32 s7, {roff*dst_pitch}')
            a(f'buffer_store_dwordx4 {vr(48+4*k,4)}, v9, s[{dst_srd}:{dst_srd+3}], s7 offen offset:{64*th}')
            k += 1

KG_PITCH = 2064
KG_CO = 0
KG_FI = 27 * KG_PITCH
K1_SIG = 59 * KG_PITCH
K1_CNT = K1_SIG + 16384
K1_TR = K1_CNT + 64
K1_LDS = K1_TR + 2 * 64 * 144

def gen_rowfft_tables(a, lane, t, vC, vS, tc, ts, extra):
    pass

import numpy as np
from model import bf16r
def _bf(x):
    return (bf16r(np.asarray(x, np.float32)).view(np.uint32) >> 16).astype(np.uint32)
def _pk(lo, hi):
    return _bf(lo) | (_bf(hi) << 16)
def k1_tables():
    l = np.arange(64)
    regs = []
    KAP = [0, 4, 1, 1, 2, 2, 3, 3]; PH = [0, 0, 0, 1, 0, 1, 0, 1]
    m, g_ = l & 15, l >> 4
    for hf in range(2):
        q = (m & 3) + 4 * hf
        kap = np.array(KAP)[q]; ph = np.array(PH)[q]
        for jp in range(4):
            v = [np.round(np.cos(2 * np.pi * (kap * s1 / 8 + ph / 4)), 12) * ((m >> 2) == g_) for s1 in (2 * jp, 2 * jp + 1)]
            regs.append(_pk(v[0], v[1]))
    k1, h = l & 31, l >> 5
    idx = lambda i: 8 * (i >> 2) + 4 * h + (i & 3)
    cs = lambda f, i, n: np.round(f(2 * np.pi * ((idx(i) * k1) % n) / n), 12)
    for f, sgn in ((np.cos, 1), (np.sin, 1), (np.sin, -1)):
        for ip in range(8):
            regs.append(_pk(sgn * cs(f, 2 * ip, 32), sgn * cs(f, 2 * ip + 1, 32)))
    for f in (np.cos, np.sin):
        for i in range(16):
            regs.append(cs(f, i, 1024).astype(np.float32).view(np.uint32))
    regs += kgen_lane_consts()
    for rot in range(4):
        regs += fft_lane_consts(rot)
    return np.array(regs, np.uint32)
def kgen_rows():
    from model import coarse_a
    avals = sorted({coarse_a(i, h) for i in range(16) for h in range(2)} - {None})
    arow = {aa: k for k, aa in enumerate(avals)}
    assert len(avals) == 27
    piece = {0: [3, 2, 1, 0, 6, 5, 4, 4], 1: [10, 10, 9, 8, 12, 13, 14, 15]}
    rowidx = [[0] * 16 for _ in range(2)]
    for T in range(2):
        for g_ in range(4):
            for i in range(4):
                rowidx[T][4 * g_ + i] = arow[coarse_a(piece[g_ >> 1][4 * T + i], g_ & 1)]
    return arow, rowidx
def kgen_lane_consts():
    arow, rowidx = kgen_rows()
    l = np.arange(64); n, g_ = l & 15, l >> 4
    A0 = np.array(rowidx[0])[n] * KG_PITCH + 16 * g_
    A1 = np.array(rowidx[1])[n] * KG_PITCH + 16 * g_
    B = (27 + n) * KG_PITCH + 16 * g_
    ST = (g_ >> 1) * 1024 + (g_ & 1) * 512 + n * 16
    return [x.astype(np.uint32) for x in (A0, A1, B, ST)]
def z_lane(rot):
    l = np.arange(64)
    out = []
    for mir in range(2):
        k1, h = l & 31, l >> 5
        if mir: k1, h = 31 - k1, 1 - h
        out.append(((((k1 >> 2) & 3) + rot) & 3) * 16 + (k1 & 3) * 4 + (k1 >> 4) * 16384 + h * 131072)
    return out
def fft_lane_consts(rot):
    l = np.arange(64)
    lo, hi = z_lane(rot)
    tr = (4 * (l >> 5) + ((l >> 2) & 3)) * 64 + 32 * ((l >> 4) & 1) + 8 * (l & 3) + K1_SIG
    sg = np.where(l & 16, 0x80008000, 0)
    return [np.asarray(x).astype(np.uint32) for x in (lo, hi, tr, sg)]
def tab_addr(a, lane, vdst, name, off_expr=None, tag=''):
    L = a.label('pc')
    a(f'''
    s_getpc_b64 s[4:5]
    {L}:
    s_add_u32 s4, s4, {name}-{L}
    s_addc_u32 s5, s5, 0
    ''')
    if off_expr:
        a(f's_add_u32 s4, s4, {off_expr}')
        a('s_addc_u32 s5, s5, 0')
    a(f'''
    v_lshlrev_b32 v{vdst}, 4, v{lane}
    v_mov_b32 v{vdst+1}, s5
    v_add_co_u32 v{vdst}, vcc, s4, v{vdst}
    v_addc_co_u32 v{vdst+1}, vcc, 0, v{vdst+1}, vcc
    ''')
def emit_table(a, name, regs):
    n = regs.shape[0] // 4
    img = regs.reshape(n, 4, 64).transpose(0, 2, 1).reshape(-1)
    a.raw('.p2align 8')
    a.raw(f'.type {name},@object')
    a.raw(f'{name}:')
    for k in range(0, len(img), 8):
        a.raw('.long ' + ','.join('0x%x' % v for v in img[k:k + 8]))
    a.raw(f'.size {name}, {len(img)*4}')

def gen_k1(a):
    a.raw('.p2align 8')
    a.raw('k1_kernel:')
    EXIT = '.k1_exit'
    lane = 2
    def hook():
        a('s_cmp_lg_u32 s3, 0')
        a('s_cbranch_scc1 .k1_notab')
        tab_addr(a, lane, 16, 'k1_tab')
        for q4 in range(4):
            a(f's_mov_b32 m0, {K1_SIG + q4*4096}')
            for q in range(4):
                a(f'global_load_lds_dwordx4 v[16:17], off offset:{q*1024}')
            if q4 < 3:
                a('v_add_co_u32 v16, vcc, 0x1000, v16')
                a('v_addc_co_u32 v17, vcc, 0, v17, vcc')
        a('.k1_notab:')
    prologue(a, 256, EXIT, early=K1_CNT, early2=True, hook=hook)
    a(f'''
    s_cmp_lt_u32 s3, 8
    s_cbranch_scc1 .k1_kgen
    s_barrier
    s_cmp_ge_u32 s3, 13
    s_cbranch_scc1 .k1_tr
    s_sub_u32 s14, s3, 8
    s_and_b32 s15, s3, 3
    v_subrev_u32 v0, 576, v0
    ''')
    srd(a, 44, P_X, 4 << 20)
    a('s_bfe_u32 s6, s2, 0x20002')
    a('s_lshl_b32 s6, s6, 10')
    a(f's_add_u32 s6, s6, {17*1024}')
    tab_addr(a, lane, 14, 'k1_tab', 's6')
    a('global_load_dwordx4 v[68:71], v[14:15], off')
    XL = 16
    a('s_cmp_eq_u32 s14, 0')
    a('s_cbranch_scc1 .k1_f_noload')
    a(f'''
    s_lshl_b32 s4, s2, 11
    v_lshlrev_b32 v3, 3, v0
    v_add_u32 v3, s4, v3
    ''')
    for s1 in range(8):
        a(f's_mov_b32 s5, {s1*256*2048}')
        a(f'buffer_load_dwordx2 {vr(XL+2*s1,2)}, v3, s[44:47], s5 offen')
    a('.k1_f_noload:')
    a('.k1_f_loaded:')
    stamp(a, 1)
    F8 = 8
    vC, vS, vnS, tc, ts = 72, 80, 88, 96, 112
    vCt = F8
    sg = 71
    a('v_mov_b32 v6, 1')
    srd(a, 48, P_WS, 4 << 20, WS_Z1)
    a(f'''
    s_mov_b32 s8, s14
    s_sub_u32 s9, 8, s8
    ''')
    vlo, vhi, vtr = 68, 69, 70
    a(f'''
    s_lshl_b32 s5, s2, 6
    s_lshl_b32 s10, s8, 19
    s_add_u32 s10, s10, s5
    s_lshl_b32 s11, s9, 19
    s_add_u32 s11, s11, s5
    s_lshl_b32 s12, s8, 1
    s_cmp_eq_u32 s14, 4
    s_cselect_b32 s12, 1, s12
    s_lshl_b32 s12, s12, 11
    ''')
    a(f'v_mov_b32 v4, {K1_CNT+4}')
    a(f'v_lshlrev_b32 v3, 4, v{lane}')
    a(f'v_add_u32 v3, {K1_SIG}, v3')
    sync_wait(a, 4, 5, 1, slp=2)
    a('s_setprio 3')
    for q in range(16):
        dst = F8 + 4 * q if q < 2 else vC + 4 * (q - 2)
        a(f'ds_read_b128 {vr(dst,4)}, v3 offset:{q*1024}')
    a(f'v_mov_b32 v4, {K1_CNT+8}')
    sync_arrive(a, 4, 6)
    stamp(a, 2)
    stamp(a, 3)
    a('s_cmp_eq_u32 s14, 0')
    a('s_cbranch_scc1 .k1_f_phaseB')
    DD = 32
    a('s_mov_b32 s4, 0x05040100')
    a('s_mov_b32 s5, 0x07060302')
    a('v_lshlrev_b32 v3, 3, v0')
    a(f'v_add_u32 v3, {K1_SIG}, v3')
    a('s_waitcnt vmcnt(0)')
    stamp(a, 3)
    stage = [DD + 8, DD + 16, DD + 24, 64]
    for e in range(4):
        for p in range(4):
            lo, hi = XL + 2 * (2 * p) + (e >> 1), XL + 2 * (2 * p + 1) + (e >> 1)
            a(f'v_perm_b32 v{stage[e]+p}, v{hi}, v{lo}, s{4 + (e & 1)}')
    for e in range(4):
        for hf in (1, 0):
            a(f'v_mfma_f32_16x16x32_bf16 {vr(DD+8*e+4*hf,4)}, {vr(F8+4*hf,4)}, {vr(stage[e],4)}, 0')
    sync_wait(a, 4, 5, 5)
    a(f'v_mov_b32 v4, {K1_CNT}')
    for q in range(8):
        a(f'v_cvt_pk_bf16_f32 v{XL+2*q}, v{DD+q}, v{DD+8+q}')
        a(f'v_cvt_pk_bf16_f32 v{XL+2*q+1}, v{DD+16+q}, v{DD+24+q}')
        a(f'ds_write_b64 v3, {vr(XL+2*q,2)} offset:{q*2048}')
    sync_arrive(a, 4, 6)
    a('.k1_f_phaseB:')
    a(f'''
    s_waitcnt vmcnt(0)
    v_mov_b32 v4, {K1_CNT}
    v_add_u32 v{vlo}, s10, v{vlo}
    v_add_u32 v{vhi}, s11, v{vhi}
    v_add_u32 v{vtr}, s12, v{vtr}
    ''')
    for ip in range(8):
        a(f'v_xor_b32 v{vCt+ip}, v{sg}, v{vC+ip}')
    stamp(a, 4)
    sync_wait(a, 4, 5, 4, slp=2)
    stamp(a, 5)
    AR, AI, DR, DI, T0 = 16, 24, 32, 48, 64
    for c in range(2):
        for jj in range(2):
            a(f'ds_read_b64_tr_b16 {vr(AR+4*c+2*jj,2)}, v{vtr} offset:{c*1024+jj*512}')
    for c in range(2):
        for jj in range(2):
            a(f'ds_read_b64_tr_b16 {vr(AI+4*c+2*jj,2)}, v{vtr} offset:{2048+c*1024+jj*512}')
    a('s_waitcnt lgkmcnt(4)')
    a(f'v_mfma_f32_32x32x16_bf16 {vr(DR,16)}, {vr(AR,4)}, {vr(vC,4)}, 0')
    a(f'v_mfma_f32_32x32x16_bf16 {vr(DI,16)}, {vr(AR,4)}, {vr(vnS,4)}, 0')
    a(f'v_mfma_f32_32x32x16_bf16 {vr(DR,16)}, {vr(AR+4,4)}, {vr(vC+4,4)}, {vr(DR,16)}')
    a(f'v_mfma_f32_32x32x16_bf16 {vr(DI,16)}, {vr(AR+4,4)}, {vr(vnS+4,4)}, {vr(DI,16)}')
    a('s_waitcnt lgkmcnt(0)')
    a('s_cmp_eq_u32 s15, 0')
    a('s_cbranch_scc1 .k1_f_real1')
    for c in range(2):
        a(f'v_mfma_f32_32x32x16_bf16 {vr(DR,16)}, {vr(AI+4*c,4)}, {vr(vS+4*c,4)}, {vr(DR,16)}')
        a(f'v_mfma_f32_32x32x16_bf16 {vr(DI,16)}, {vr(AI+4*c,4)}, {vr(vC+4*c,4)}, {vr(DI,16)}')
    a('.k1_f_real1:')
    vnSt = vnS
    for ip in range(8):
        a(f'v_xor_b32 v{vnSt+ip}, v{sg}, v{vnS+ip}')
    for ib in range(4):
        prs = [2 * ib, 2 * ib + 1]
        for k, ip in enumerate(prs):
            r, i_, c_, s_ = DR + 2 * ip, DI + 2 * ip, tc + 2 * ip, ts + 2 * ip
            a(f'v_pk_mul_f32 {vr(T0+2*k,2)}, {vr(i_,2)}, {vr(s_,2)}')
            a(f'v_pk_mul_f32 {vr(s_,2)}, {vr(r,2)}, {vr(s_,2)}')
        for k, ip in enumerate(prs):
            r, i_, c_, s_ = DR + 2 * ip, DI + 2 * ip, tc + 2 * ip, ts + 2 * ip
            a(f'v_pk_fma_f32 {vr(r,2)}, {vr(r,2)}, {vr(c_,2)}, {vr(T0+2*k,2)}')
            a(f'v_pk_fma_f32 {vr(i_,2)}, {vr(i_,2)}, {vr(c_,2)}, {vr(s_,2)} neg_lo:[0,0,1] neg_hi:[0,0,1]')
        if ib > 0:
            for ip in (2 * ib - 2, 2 * ib - 1):
                a(f'v_cvt_pk_bf16_f32 v{AR+ip}, v{DR+2*ip}, v{DR+2*ip+1}')
                a(f'v_cvt_pk_bf16_f32 v{AI+ip}, v{DI+2*ip}, v{DI+2*ip+1}')
    for ip in (6, 7):
        a(f'v_cvt_pk_bf16_f32 v{AR+ip}, v{DR+2*ip}, v{DR+2*ip+1}')
        a(f'v_cvt_pk_bf16_f32 v{AI+ip}, v{DI+2*ip}, v{DI+2*ip+1}')
    a(f'v_mfma_f32_32x32x16_bf16 {vr(DR,16)}, {vr(vC,4)}, {vr(AR,4)}, 0')
    a(f'v_mfma_f32_32x32x16_bf16 {vr(DI,16)}, {vr(vCt,4)}, {vr(AI,4)}, 0')
    a(f'v_mfma_f32_32x32x16_bf16 {vr(DR,16)}, {vr(vS,4)}, {vr(AI,4)}, {vr(DR,16)}')
    a(f'v_mfma_f32_32x32x16_bf16 {vr(DI,16)}, {vr(vnSt,4)}, {vr(AR,4)}, {vr(DI,16)}')
    a(f'v_mfma_f32_32x32x16_bf16 {vr(DR,16)}, {vr(vC+4,4)}, {vr(AR+4,4)}, {vr(DR,16)}')
    a(f'v_mfma_f32_32x32x16_bf16 {vr(DI,16)}, {vr(vCt+4,4)}, {vr(AI+4,4)}, {vr(DI,16)}')
    a(f'v_mfma_f32_32x32x16_bf16 {vr(DR,16)}, {vr(vS+4,4)}, {vr(AI+4,4)}, {vr(DR,16)}')
    a(f'v_mfma_f32_32x32x16_bf16 {vr(DI,16)}, {vr(vnSt+4,4)}, {vr(AR+4,4)}, {vr(DI,16)}')
    a('s_cmp_eq_u32 s15, 0')
    a('s_cbranch_scc0 .k1_f_cplx2')
    a(f'''
    s_mov_b64 exec, 1
    v_mov_b32 v{DI}, v{DR+8}
    s_mov_b64 exec, -1
    s_branch .k1_f_lo
    ''')
    O = tc
    a('.k1_f_cplx2:')
    for i in range(8, 16):
        a(f'v_cvt_pk_bf16_f32 v{O+i}, v{DR+i}, v{DI+i}')
        a(f's_mov_b32 s5, {z_soff(i)}')
        a(f'buffer_store_dword v{O+i}, v{vhi}, s[48:51], s5 offen')
    a('.k1_f_lo:')
    for i in range(8):
        a(f'v_cvt_pk_bf16_f32 v{O+i}, v{DR+i}, v{DI+i}')
        a(f's_mov_b32 s5, {z_soff(i)}')
        a(f'buffer_store_dword v{O+i}, v{vlo}, s[48:51], s5 offen')
    stamp(a, 6)
    stamp_flush(a, 0, 7)
    a('s_endpgm')

    a('.k1_tr:')
    srd(a, 44, P_U, 4 << 20)
    srd(a, 48, P_WS, 1024 * UP, WS_UT)
    a(f'''
    s_sub_u32 s8, s3, 13
    s_lshl_b32 s9, s2, 1
    s_add_u32 s9, s9, s8
    s_mul_i32 s10, s8, {64*144}
    s_add_u32 s10, s10, {K1_TR}
    ''')
    a(f'''
    s_cmp_ge_u32 s9, 16
    s_cbranch_scc1 .k1_tr_nohdr
    s_mul_i32 s6, s9, {64*UP}
    v_mul_u32_u24 v10, {UP}, v{lane}
    v_add_u32 v10, s6, v10
    v_mov_b32 v12, 0
    v_mov_b32 v13, 0
    v_mov_b32 v14, 0
    v_mov_b32 v15, 0
    buffer_store_dwordx4 v[12:15], v10, s[48:51], 0 offen offset:48
    .k1_tr_nohdr:
    ''')
    TP = gen_transposer(a, lane, 9, 44, 48, 10, 2048, UP, 'u')
    stamp(a, 1)
    a('s_setprio 2')
    gen_transposer_tail(a, lane, 48, 10, UP, 64, TP)
    if os.environ.get('WPF', '0') == '1':
        a(f'''
        s_cmp_eq_u32 s8, 0
        s_cselect_b32 s44, s{P_WR}, s{P_WI}
        s_cselect_b32 s45, s{P_WR+1}, s{P_WI+1}
        s_and_b32 s45, s45, 0xffff
        s_mov_b32 s46, {2048*1026}
        s_mul_i32 s4, s2, 8208
        v_lshlrev_b32 v3, 7, v{lane}
        buffer_load_dword v16, v3, s[44:47], s4 offen
        s_add_u32 s4, s4, 8192
        s_mov_b64 exec, 1
        buffer_load_dword v17, v3, s[44:47], s4 offen
        s_mov_b64 exec, -1
        ''')
    stamp(a, 2)
    stamp_flush(a, 0, 3)
    a('s_endpgm')

    a('.k1_kgen:')
    srd(a, 44, P_LOGA, 1024 * 256)
    srd(a, 48, P_AIM, 1024 * 256)
    srd(a, 60, P_LOGDT, 2048)
    a(f'''
    s_lshr_b32 s8, s3, 1
    s_and_b32 s15, s3, 1
    s_lshl_b32 s9, s2, 2
    s_add_u32 s9, s9, s8          ; channel d
    s_lshl_b32 s11, s9, 8
    s_lshl_b32 s12, s9, 1
    v_lshlrev_b32 v3, 2, v{lane}
    v_mov_b32 v4, 0
    buffer_load_ushort v12, v4, s[60:63], s12 offen
    buffer_load_dword v8, v3, s[44:47], s11 offen
    buffer_load_dword v9, v3, s[48:51], s11 offen
    ''')
    srd(a, 52, P_CRE, 1024 * 256)
    srd(a, 56, P_CIM, 1024 * 256)
    srd(a, 64, P_DSKIP, 2048)
    a(f'''
    buffer_load_dword v10, v3, s[52:55], s11 offen
    buffer_load_dword v11, v3, s[56:59], s11 offen
    buffer_load_ushort v13, v4, s[64:67], s12 offen
    ''')
    tab_addr(a, lane, 14, 'k1_tab', 16 * 1024)
    a('global_load_dwordx4 v[64:67], v[14:15], off')
    a('s_barrier')
    srd(a, 68, P_WS, 1024 * 2048, WS_KC)
    arow, rowidx = kgen_rows()
    vA, vB, vST = [64, 65], 66, 67
    a(f'''
    s_lshl_b32 s10, s8, 9
    s_mul_i32 s13, s15, {-KG_FI}
    s_add_u32 s13, s13, {KG_FI}
    s_add_u32 s13, s13, s10
    v_lshlrev_b32 v5, 3, v{lane}
    v_add_u32 v5, s13, v5
    s_lshl_b32 s4, s8, 2
    s_add_u32 s4, s4, {K1_CNT+16}
    v_mov_b32 v69, s4
    v_mov_b32 v68, 1
    ''')
    L2E_HI = struct.unpack('<f', struct.pack('<f', 1.4426950408889634))[0]
    L2E_LO = 1.4426950408889634 - L2E_HI
    a(f'''
    s_mov_b32 s4, {fhex(L2E_HI)}
    s_mov_b32 s5, {fhex(L2E_LO)}
    s_mov_b32 s6, {fhex(0.6931471805599453)}
    s_mov_b32 s7, 0xffff0000
    ''')
    LA, AIM, CR, CI = 16, 18, 20, 22
    DT, DSK = 24, 25
    def unpack(dst, src):
        a(f'v_lshlrev_b32 v{dst}, 16, v{src}')
        a(f'v_and_b32 v{dst+1}, s7, v{src}')
    def expf(dst, x, t):
        a(f'''
        v_mul_f32 v{t}, s4, v{x}
        v_fma_f32 v{t+1}, v{x}, s4, -v{t}
        v_fma_f32 v{t+1}, v{x}, s5, v{t+1}
        v_exp_f32 v{t}, v{t}
        v_mul_f32 v{t+1}, s6, v{t+1}
        v_fma_f32 v{dst}, v{t}, v{t+1}, v{t}
        ''')
    stamp(a, 1)
    a('s_waitcnt vmcnt(4)')
    a(f'''
    s_cmp_lg_u32 s3, 0
    s_cbranch_scc1 .k1_kg_nosig
    v_mov_b32 v14, {K1_CNT+4}
    s_mov_b64 exec, 1
    ds_add_u32 v14, v68
    s_mov_b64 exec, -1
    .k1_kg_nosig:
    ''')
    stamp(a, 2)
    unpack(LA, 8); unpack(AIM, 9)
    a(f'v_lshlrev_b32 v{DT}, 16, v12')
    expf(DT, DT, 26)
    expf(LA, LA, 28)
    expf(LA + 1, LA + 1, 30)
    a(f'v_cvt_pk_bf16_f32 v{DT}, v{DT}, v{DT}')
    a(f'v_cvt_pk_bf16_f32 v8, v{LA}, v{LA+1}')
    a(f'v_and_b32 v{DT}, s7, v{DT}')
    unpack(LA, 8)
    a(f'''
    v_mul_f32 v{LA}, v{LA}, v{DT}
    v_mul_f32 v{LA+1}, v{LA+1}, v{DT}
    v_mul_f32 v{AIM}, v{AIM}, v{DT}
    v_mul_f32 v{AIM+1}, v{AIM+1}, v{DT}
    v_mul_f32 v{LA}, {fhex(-1.4426950408889634)}, v{LA}
    v_mul_f32 v{LA+1}, {fhex(-1.4426950408889634)}, v{LA+1}
    v_mul_f32 v{AIM}, 0.15915494, v{AIM}
    v_mul_f32 v{AIM+1}, 0.15915494, v{AIM+1}
    ''')
    def cexp(E, tmul):
        for e in range(2):
            t = 26 + 2 * e
            a(f'''
            v_mul_f32 v{t}, {fhex(tmul)}, v{LA+e}
            v_mul_f32 v{t+1}, {fhex(tmul)}, v{AIM+e}
            v_exp_f32 v{t}, v{t}
            v_fract_f32 v{t+1}, v{t+1}
            v_cos_f32 v{E+e}, v{t+1}
            v_sin_f32 v{E+2+e}, v{t+1}
            v_mul_f32 v{E+e}, v{E+e}, v{t}
            v_mul_f32 v{E+2+e}, v{E+2+e}, v{t}
            ''')
    state = {'o': 0}
    def cmuln(ops):
        for k, (dst, x, w) in enumerate(ops):
            t = 44 + 4 * k
            a(f'v_pk_mul_f32 {vr(t,2)}, {vr(x+2,2)}, {vr(w+2,2)}')
            a(f'v_pk_mul_f32 {vr(t+2,2)}, {vr(x+2,2)}, {vr(w,2)}')
        for k, (dst, x, w) in enumerate(ops):
            t = 44 + 4 * k
            a(f'v_pk_fma_f32 {vr(dst,2)}, {vr(x,2)}, {vr(w,2)}, {vr(t,2)} neg_lo:[0,0,1] neg_hi:[0,0,1]')
            a(f'v_pk_fma_f32 {vr(dst+2,2)}, {vr(x,2)}, {vr(w+2,2)}, {vr(t+2,2)}')
    def emit(row, x, neg):
        o = 56 + 2 * (state['o'] & 3); state['o'] += 1
        n = '-' if neg else ''
        a(f'v_cvt_pk_bf16_f32 v{o}, v{x}, {n}v{x+2}')
        a(f'v_cvt_pk_bf16_f32 v{o+1}, v{x+1}, {n}v{x+3}')
        a(f'ds_write_b64 v5, {vr(o,2)} offset:{row*KG_PITCH}')
    def run_prog(groups, slot, rows, neg, free):
        end = {}
        for k, grp in enumerate(groups):
            for d_, s_, w_ in grp:
                end[d_] = max(end.get(d_, 0), k + 1)
                end[s_] = max(end.get(s_, 0), k)
        live, pend = [], []
        for k, grp in enumerate(groups):
            for d_, s_, w_ in grp:
                slot[d_] = free.pop(0); live.append(d_)
            cmuln([(slot[d_], slot[s_], w_) for d_, s_, w_ in grp])
            for p in pend:
                if p in rows: emit(rows[p], slot[p], neg)
            for v_ in list(live):
                if end[v_] <= k:
                    live.remove(v_); free.append(slot[v_])
            pend = [d_ for d_, s_, w_ in grp]
        for p in pend:
            if p in rows: emit(rows[p], slot[p], neg)
    E1, E8, EG = 32, 36, 40
    cexp(E8, 8.0)
    a('s_cmp_eq_u32 s15, 1')
    a('s_cbranch_scc1 .k1_kg_coarse')
    E16, E24 = E1, EG
    stamp(a, 3)
    cmuln([(E16, E8, E8)])
    a('v_mov_b32 v56, 0x3f80')
    a('v_mov_b32 v57, 0x3f80')
    a(f'ds_write_b64 v5, v[56:57] offset:0')
    state['o'] = 1
    emit(1, E8, False)
    cmuln([(E24, E16, E8)])
    emit(2, E16, False)
    slot = {1: E8, 2: E16, 3: E24}
    groups = [[(b, b - 3, E24) for b in range(b0, min(b0 + 3, 32))] for b0 in range(4, 32, 3)]
    frows = {b: b for b in range(32)}
    first = True
    cm0 = groups[0]
    free = [72 + 4 * k for k in range(13)]
    emit(3, E24, False)
    run_prog(groups, slot, frows, False, free)
    a('s_branch .k1_kg_join')
    a('.k1_kg_coarse:')
    cexp(E1, 1.0)
    cexp(EG, 256.0)
    a('s_waitcnt vmcnt(2)')
    unpack(CR, 10); unpack(CI, 11)
    a(f'''
    v_add_f32 v{DT}, v{DT}, v{DT}
    v_mul_f32 v{CR}, v{CR}, v{DT}
    v_mul_f32 v{CR+1}, v{CR+1}, v{DT}
    v_mul_f32 v{CI}, v{CI}, v{DT}
    v_mul_f32 v{CI+1}, v{CI+1}, v{DT}
    ''')
    stamp(a, 3)
    C0 = CR
    chA = [(i + 1, i, E1) for i in range(7)] + [(262, 6, EG)]
    chB = [(256 * (j + 1), 256 * j, EG) for j in range(7)] + [(258, 2, EG)]
    chC = [(8, 0, E8)] + [(256 * (j + 1) + 8, 256 * j + 8, EG) for j in range(7)]
    groups = [[chA[k], chB[k], chC[k]] for k in range(8)]
    groups = groups[:5] + [groups[5]] + [groups[6]] + [groups[7]]
    extra = [(260, 4, EG), (516, 260, EG), (772, 516, EG)]
    groups += [[e] for e in extra[2:]]
    groups = [[chA[k], chB[k], chC[k]] for k in range(4)] + \
             [[chA[4], chB[4], extra[0]], [chA[5], chC[4], extra[1]], [chA[6], chB[5], extra[2]], [chA[7], chC[5], chB[6]], [chB[7], chC[6]], [chC[7]]]
    slot = {0: C0}
    emit(arow[0], C0, True)
    run_prog(groups, slot, arow, True, [72 + 4 * k for k in range(13)])
    a('.k1_kg_join:')
    sync_arrive(a, 69, 68)
    stamp(a, 4)
    a(f'''
    s_waitcnt vmcnt(0)
    v_lshlrev_b32 v13, 16, v13
    s_mul_i32 s4, s15, {16*KG_PITCH}
    s_add_u32 s4, s4, s10
    v_add_u32 v{vA[0]}, s10, v{vA[0]}
    v_add_u32 v{vA[1]}, s10, v{vA[1]}
    v_add_u32 v{vB}, s4, v{vB}
    ''')
    sync_wait(a, 69, 16, 2)
    D = 16
    FB = 72
    def rd(kk):
        b = FB + 12 * (kk & 3)
        a(f'ds_read_b128 {vr(b,4)}, v{vB} offset:{kk*64}')
        a(f'ds_read_b128 {vr(b+4,4)}, v{vA[0]} offset:{kk*64}')
        a(f'ds_read_b128 {vr(b+8,4)}, v{vA[1]} offset:{kk*64}')
    for kk in range(4): rd(kk)
    for kk in range(8):
        b = FB + 12 * (kk & 3)
        rem = min(3, 7 - kk)
        a(f's_waitcnt lgkmcnt({3*rem})')
        for T in range(2):
            a(f'v_mfma_f32_16x16x32_bf16 {vr(D+4*T,4)}, {vr(b+4+4*T,4)}, {vr(b,4)}, ' + ('0' if kk == 0 else vr(D + 4 * T, 4)))
        if kk + 4 < 8: rd(kk + 4)
    a(f'''
    s_xor_b32 s4, s15, 1
    s_mov_b32 s5, 0
    s_waitcnt vmcnt(0)
    s_mov_b64 exec, s[4:5]
    v_add_f32 v{D+3}, v{D+3}, v13
    s_mov_b64 exec, -1
    ''')
    O = 24
    for k in range(4):
        a(f'v_cvt_pk_bf16_f32 v{O+k}, v{D+2*k}, v{D+2*k+1}')
    a(f'''
    s_lshl_b32 s4, s9, 11
    s_lshl_b32 s5, s15, 8
    s_add_u32 s4, s4, s5
    buffer_store_dwordx4 {vr(O,4)}, v{vST}, s[68:71], s4 offen
    ''')
    stamp(a, 5)
    stamp_flush(a, 0, 6)
    a(f'{EXIT}:')
    a('s_endpgm')

def kd(name, vgpr, sgpr=96):
    acc = (vgpr + 3) // 4 * 4
    return f'''.p2align 6
.amdhsa_kernel {name}
  .amdhsa_next_free_vgpr {vgpr}
  .amdhsa_next_free_sgpr {sgpr}
  .amdhsa_accum_offset {acc}
  .amdhsa_group_segment_fixed_size 0
  .amdhsa_kernarg_size 104
  .amdhsa_user_sgpr_count 2
  .amdhsa_user_sgpr_kernarg_segment_ptr 1
  .amdhsa_system_sgpr_workgroup_id_x 1
.end_amdhsa_kernel
'''

def build(kernels):
    hdr = open(f'cdna_kernels/{NAME}.s.ref').read().split('\n')
    head = [l for l in hdr if l.startswith(';') and '@launch' not in l.lower()]
    head = [l for l in head if 'Override launch' not in l and 'grid=ceil' not in l]
    out = '\n'.join(head) + '\n'
    for name, gen, grid, block, lds, vgpr in kernels:
        out += f'; @launch kernel={name} grid=({grid},1,1) block=({block},1,1) lds={lds}\n'
    out += '.amdgcn_target "amdgcn-amd-amdhsa--gfx950"\n.text\n'
    a = Asm()
    for name, gen, grid, block, lds, vgpr in kernels:
        a.raw(f'.globl {name}')
        a.raw(f'.type {name},@function')
        gen(a)
    emit_table(a, 'k1_tab', k1_tables())
    body = a.render()
    sc = os.environ.get('SC1', '')
    if sc:
        res, cur = [], ''
        for l in body.split('\n'):
            if l.endswith('_kernel:'): cur = l[:2]
            if l.strip().startswith('buffer_store') and cur in sc.split(','):
                l = l + ' ' + os.environ.get('SCFLAG', 'sc1')
            res.append(l)
        body = '\n'.join(res)
    out += body
    out += '.section .rodata,"a"\n'
    for name, gen, grid, block, lds, vgpr in kernels:
        out += kd(name, vgpr)
    return out

if __name__ == '__main__':
    ks = [('k1_kernel', gen_k1, 256, 960, K1_LDS, 128)]
    try:
        from gen23 import KERNELS23
        ks += KERNELS23
    except ImportError:
        pass
    if os.environ.get('EXTRA_EMPTY'):
        def gen_k4(a):
            a.raw('.p2align 8'); a.raw('k4_kernel:'); a('s_endpgm')
        ks += [('k4_kernel', gen_k4, 256, 256, 0, 8)]
    path = sys.argv[1] if len(sys.argv) > 1 else f'cdna_kernels/{NAME}.s'
    open(path, 'w').write(build(ks))
    print('wrote', path)
```

```python
import sys, os, struct
sys.path.insert(0, 'dev')
from gen import (Asm, NAME, fhex, vr, srd, stamp, stamp_flush, sync_arrive, sync_wait, gen_dft8_frags, gen_z_addr, z_soff,
                 gen_transposer, gen_transposer_tail, kd, DIAG,
                 WS_Z1, WS_Z2, WS_UT, UP, WS_YT,
                 P_U, P_LOGA, P_AIM, P_CRE, P_CIM, P_LOGDT, P_DSKIP, P_X, P_WR, P_WI, P_OUT, P_DBG, P_WS)
from gen23 import prologue2, cmul_sc, cmul_pk, gen_k3, K3_LDS
from model import coarse_a

K1_SIG = 0
K1_CNT = 16384
K1_TR = K1_CNT + 64
K1_LDS = K1_TR + 2 * 64 * 144

def gen_k1(a):
    a.raw('.p2align 8')
    a.raw('k1_kernel:')
    EXIT = '.k1_exit'
    prologue2(a, EXIT, ['s_load_dwordx2 s[30:31], s[0:1], 56', 's_load_dwordx2 s[16:17], s[0:1], 0', 's_load_dwordx2 s[40:41], s[0:1], 96'])
    lane = 2
    a('s_cmp_ge_u32 s3, 5')
    a('s_cbranch_scc1 .k1_tr')
    a(f'''
    s_mov_b32 s8, s3
    s_and_b32 s15, s3, 3
    s_sub_u32 s9, 8, s8
    v_subrev_u32 v0, 64, v0
    v_mov_b32 v4, {K1_CNT}
    v_mov_b32 v5, 0
    v_mov_b32 v6, 1
    ds_write_b32 v4, v5
    s_lshl_b32 s4, s2, 11
    v_lshlrev_b32 v3, 3, v0
    v_add_u32 v7, s4, v3
    ''')
    XL = 16
    F8 = 8
    vC, vS, vnS, vCt, vnSt, tc, ts = 80, 88, 96, 104, 112, 120, 136
    kf, arg, a2, c0, c1, s0, s1_, k5, sg = range(64, 73)
    a(f'''
    v_and_b32 v{kf}, 31, v{lane}
    v_cvt_f32_u32 v{kf}, v{kf}
    v_mul_f32 v{kf}, {fhex(1/32)}, v{kf}
    v_lshrrev_b32 v{arg}, 5, v{lane}
    v_cvt_f32_u32 v{arg}, v{arg}
    v_mul_f32 v{arg}, 4.0, v{arg}
    v_mul_f32 v{arg}, v{arg}, v{kf}
    v_mul_f32 v{k5}, {fhex(5.0)}, v{kf}
    v_and_b32 v{sg}, 16, v{lane}
    v_lshlrev_b32 v{sg}, 11, v{sg}
    v_lshl_or_b32 v{sg}, v{sg}, 16, v{sg}
    ''')
    def tab(ip):
        for e, (cr, sr) in enumerate(((c0, s0), (c1, s1_))):
            i = 2 * ip + e
            a(f'v_cos_f32 v{cr}, v{arg}')
            a(f'v_sin_f32 v{sr}, v{arg}')
            a(f'v_mul_f32 v{a2}, {fhex(1/32)}, v{arg}')
            a(f'v_cos_f32 v{tc+i}, v{a2}')
            a(f'v_sin_f32 v{ts+i}, v{a2}')
            if i != 15:
                a(f'v_add_f32 v{arg}, v{arg}, v{k5 if (i & 3) == 3 else kf}')
        a(f'v_cvt_pk_bf16_f32 v{vC+ip}, v{c0}, v{c1}')
        a(f'v_cvt_pk_bf16_f32 v{vS+ip}, v{s0}, v{s1_}')
        a(f'v_cvt_pk_bf16_f32 v{vnS+ip}, -v{s0}, -v{s1_}')
        a(f'v_xor_b32 v{vCt+ip}, v{sg}, v{vC+ip}')
        a(f'v_xor_b32 v{vnSt+ip}, v{sg}, v{vnS+ip}')
    NPRE = int(os.environ.get('K1_NPRE', '3'))
    for ip in range(NPRE): tab(ip)
    a('s_waitcnt lgkmcnt(0)')
    srd(a, 44, P_X, 4 << 20)
    a('s_cmp_eq_u32 s3, 0')
    a('s_cbranch_scc1 .k1_f_noload')
    for s1 in range(8):
        a(f's_mov_b32 s5, {s1*256*2048}')
        a(f'buffer_load_dwordx2 {vr(XL+2*s1,2)}, v7, s[44:47], s5 offen')
    a('.k1_f_noload:')
    a('s_barrier')
    stamp(a, 1)
    srd(a, 48, P_WS, 4 << 20, WS_Z1)
    gen_dft8_frags(a, lane, F8, 32, True)
    for ip in range(NPRE, 8): tab(ip)
    vlo, vhi, vtr = 152, 153, 154
    gen_z_addr(a, lane, vlo, vhi, 64, 2, 8, 9)
    a(f'''
    v_lshrrev_b32 v64, 5, v{lane}
    v_bfe_u32 v65, v{lane}, 2, 2
    v_lshl_add_u32 v64, v64, 2, v65
    v_lshlrev_b32 v64, 6, v64
    v_bfe_u32 v65, v{lane}, 4, 1
    v_lshl_add_u32 v64, v65, 5, v64
    v_and_b32 v65, 3, v{lane}
    v_lshl_add_u32 v64, v65, 3, v64
    s_lshl_b32 s4, s8, 1
    s_cmp_eq_u32 s8, 4
    s_cselect_b32 s4, 1, s4
    s_lshl_b32 s4, s4, 11
    v_add_u32 v{vtr}, s4, v64
    ''')
    stamp(a, 2)
    stamp(a, 3)
    a('s_cmp_eq_u32 s3, 0')
    a('s_cbranch_scc1 .k1_f_phaseB')
    BO, DD = 32, 48
    a('s_mov_b32 s4, 0x05040100')
    a('s_mov_b32 s5, 0x07060302')
    a('s_waitcnt vmcnt(0)')
    stamp(a, 3)
    for e in range(4):
        for p in range(4):
            lo, hi = XL + 2 * (2 * p) + (e >> 1), XL + 2 * (2 * p + 1) + (e >> 1)
            a(f'v_perm_b32 v{BO+4*e+p}, v{hi}, v{lo}, s{4 + (e & 1)}')
        for hf in range(2):
            a(f'v_mfma_f32_16x16x32_bf16 {vr(DD+8*e+4*hf,4)}, {vr(F8+4*hf,4)}, {vr(BO+4*e,4)}, 0')
    for q in range(8):
        a(f'v_cvt_pk_bf16_f32 v{XL+2*q}, v{DD+q}, v{DD+8+q}')
        a(f'v_cvt_pk_bf16_f32 v{XL+2*q+1}, v{DD+16+q}, v{DD+24+q}')
        a(f'ds_write_b64 v3, {vr(XL+2*q,2)} offset:{K1_SIG+q*2048}')
    sync_arrive(a, 4, 6)
    a('.k1_f_phaseB:')
    stamp(a, 4)
    sync_wait(a, 4, 5, 4, slp=0)
    stamp(a, 5)
    AR, AI, DR, DI, T0 = 16, 24, 32, 48, 64
    for c in range(2):
        for jj in range(2):
            a(f'ds_read_b64_tr_b16 {vr(AR+4*c+2*jj,2)}, v{vtr} offset:{c*1024+jj*512}')
    for c in range(2):
        for jj in range(2):
            a(f'ds_read_b64_tr_b16 {vr(AI+4*c+2*jj,2)}, v{vtr} offset:{2048+c*1024+jj*512}')
    a('s_waitcnt lgkmcnt(4)')
    a(f'v_mfma_f32_32x32x16_bf16 {vr(DR,16)}, {vr(AR,4)}, {vr(vC,4)}, 0')
    a(f'v_mfma_f32_32x32x16_bf16 {vr(DI,16)}, {vr(AR,4)}, {vr(vnS,4)}, 0')
    a(f'v_mfma_f32_32x32x16_bf16 {vr(DR,16)}, {vr(AR+4,4)}, {vr(vC+4,4)}, {vr(DR,16)}')
    a(f'v_mfma_f32_32x32x16_bf16 {vr(DI,16)}, {vr(AR+4,4)}, {vr(vnS+4,4)}, {vr(DI,16)}')
    a('s_waitcnt lgkmcnt(0)')
    a('s_cmp_eq_u32 s15, 0')
    a('s_cbranch_scc1 .k1_f_real1')
    for c in range(2):
        a(f'v_mfma_f32_32x32x16_bf16 {vr(DR,16)}, {vr(AI+4*c,4)}, {vr(vS+4*c,4)}, {vr(DR,16)}')
        a(f'v_mfma_f32_32x32x16_bf16 {vr(DI,16)}, {vr(AI+4*c,4)}, {vr(vC+4*c,4)}, {vr(DI,16)}')
    a('.k1_f_real1:')
    def tw(ib):
        prs = [2 * ib, 2 * ib + 1]
        for k, ip in enumerate(prs):
            r, i_, c_, s_ = DR + 2 * ip, DI + 2 * ip, tc + 2 * ip, ts + 2 * ip
            a(f'v_pk_mul_f32 {vr(c_+0 if False else T0+4*(ib&1)+2*k,2)}, {vr(i_,2)}, {vr(s_,2)}')
            a(f'v_pk_mul_f32 {vr(s_,2)}, {vr(r,2)}, {vr(s_,2)}')
        for k, ip in enumerate(prs):
            r, i_, c_, s_ = DR + 2 * ip, DI + 2 * ip, tc + 2 * ip, ts + 2 * ip
            a(f'v_pk_fma_f32 {vr(T0+4*(ib&1)+2*k,2)}, {vr(r,2)}, {vr(c_,2)}, {vr(T0+4*(ib&1)+2*k,2)}')
            a(f'v_pk_fma_f32 {vr(s_,2)}, {vr(i_,2)}, {vr(c_,2)}, {vr(s_,2)} neg_lo:[0,0,1] neg_hi:[0,0,1]')
    def pk(ib):
        for k, ip in enumerate((2 * ib, 2 * ib + 1)):
            t = T0 + 4 * (ib & 1) + 2 * k
            a(f'v_cvt_pk_bf16_f32 v{AR+ip}, v{t}, v{t+1}')
            a(f'v_cvt_pk_bf16_f32 v{AI+ip}, v{ts+2*ip}, v{ts+2*ip+1}')
    D2R, D2I = 160, 176
    tw(0); tw(1); pk(0); pk(1)
    a(f'v_mfma_f32_32x32x16_bf16 {vr(D2R,16)}, {vr(vC,4)}, {vr(AR,4)}, 0')
    a(f'v_mfma_f32_32x32x16_bf16 {vr(D2I,16)}, {vr(vCt,4)}, {vr(AI,4)}, 0')
    a(f'v_mfma_f32_32x32x16_bf16 {vr(D2R,16)}, {vr(vS,4)}, {vr(AI,4)}, {vr(D2R,16)}')
    a(f'v_mfma_f32_32x32x16_bf16 {vr(D2I,16)}, {vr(vnSt,4)}, {vr(AR,4)}, {vr(D2I,16)}')
    tw(2); tw(3); pk(2); pk(3)
    a(f'v_mfma_f32_32x32x16_bf16 {vr(D2R,16)}, {vr(vC+4,4)}, {vr(AR+4,4)}, {vr(D2R,16)}')
    a(f'v_mfma_f32_32x32x16_bf16 {vr(D2I,16)}, {vr(vCt+4,4)}, {vr(AI+4,4)}, {vr(D2I,16)}')
    a(f'v_mfma_f32_32x32x16_bf16 {vr(D2R,16)}, {vr(vS+4,4)}, {vr(AI+4,4)}, {vr(D2R,16)}')
    a(f'v_mfma_f32_32x32x16_bf16 {vr(D2I,16)}, {vr(vnSt+4,4)}, {vr(AR+4,4)}, {vr(D2I,16)}')
    DR, DI = D2R, D2I
    a('s_cmp_eq_u32 s15, 0')
    a('s_cbranch_scc0 .k1_f_cplx2')
    a(f'''
    s_mov_b64 exec, 1
    v_mov_b32 v{DI}, v{DR+8}
    s_mov_b64 exec, -1
    s_branch .k1_f_lo
    ''')
    O = 32
    a('.k1_f_cplx2:')
    for i in range(8, 16):
        a(f'v_cvt_pk_bf16_f32 v{O+i}, v{DR+i}, v{DI+i}')
        a(f's_mov_b32 s5, {z_soff(i)}')
        a(f'buffer_store_dword v{O+i}, v{vhi}, s[48:51], s5 offen')
    a('.k1_f_lo:')
    for i in range(8):
        a(f'v_cvt_pk_bf16_f32 v{O+i}, v{DR+i}, v{DI+i}')
        a(f's_mov_b32 s5, {z_soff(i)}')
        a(f'buffer_store_dword v{O+i}, v{vlo}, s[48:51], s5 offen')
    stamp(a, 6)
    stamp_flush(a, 0, 7)
    a('s_endpgm')
    a('.k1_tr:')
    a('s_waitcnt lgkmcnt(0)')
    a('s_barrier')
    srd(a, 44, P_U, 4 << 20)
    srd(a, 48, P_WS, 1024 * UP, WS_UT)
    a(f'''
    s_sub_u32 s8, s3, 5
    s_lshl_b32 s9, s2, 1
    s_add_u32 s9, s9, s8
    s_mul_i32 s10, s8, {64*144}
    s_add_u32 s10, s10, {K1_TR}
    ''')
    TP = gen_transposer(a, lane, 9, 44, 48, 10, 2048, UP, 'u')
    stamp(a, 1)
    gen_transposer_tail(a, lane, 48, 10, UP, 64, TP)
    stamp(a, 2)
    stamp_flush(a, 0, 3)
    a(f'{EXIT}:')
    a('s_endpgm')

KP = 528
KROWS = 60
CH_REG = KROWS * KP
CS = 4640
CV_K = 4 * CS
K2_ZB = 4 * CH_REG
K2_WB = K2_ZB + 16384
K2_CNT = K2_WB + 16384
K2_SCR = K2_CNT + 64
K2_LDS = K2_SCR + 2048

def coarse_rows():
    arow = {}
    for i in range(16):
        for h in range(2):
            aa = coarse_a(i, h)
            if aa is None: continue
            m = 8 * (i >> 2) + 4 * h + (i & 3)
            cm = m - sum(m > thr for thr in (11, 15, 19, 23))
            arow.setdefault(aa, []).append(cm)
    return arow

def gen_kgen(a, part, KB, vW, wait1, wait2, skip_setup=False):
    R = lambda x: KB + x
    L2E_HI = struct.unpack('<f', struct.pack('<f', 1.4426950408889634))[0]
    L2E_LO = 1.4426950408889634 - L2E_HI
    a(f'''
    s_mov_b32 s4, {fhex(L2E_HI)}
    s_mov_b32 s5, {fhex(L2E_LO)}
    s_mov_b32 s6, {fhex(0.6931471805599453)}
    s_mov_b32 s7, 0xffff0000
    ''')
    LA, AIM, CR, CI, DT = R(16), R(18), R(20), R(22), R(24)
    def unpack(dst, src):
        a(f'v_lshlrev_b32 v{dst}, 16, v{src}')
        a(f'v_and_b32 v{dst+1}, s7, v{src}')
    n_setup = len(a.items)
    a(wait1)
    unpack(LA, R(8))
    a(f'v_lshlrev_b32 v{DT}, 16, v{R(12)}')
    xs = [(DT, R(26)), (LA, R(28)), (LA + 1, R(30))]
    for step in range(6):
        for x, t in xs:
            a([f'v_mul_f32 v{t}, s4, v{x}', f'v_fma_f32 v{t+1}, v{x}, s4, -v{t}', f'v_fma_f32 v{t+1}, v{x}, s5, v{t+1}',
               f'v_exp_f32 v{t}, v{t}', f'v_mul_f32 v{t+1}, s6, v{t+1}', f'v_fma_f32 v{x}, v{t}, v{t+1}, v{t}'][step])
    unpack(AIM, R(9))
    a(f'v_cvt_pk_bf16_f32 v{DT}, v{DT}, v{DT}')
    a(f'v_cvt_pk_bf16_f32 v{R(8)}, v{LA}, v{LA+1}')
    a(f'v_and_b32 v{DT}, s7, v{DT}')
    unpack(LA, R(8))
    a(f'''
    v_mul_f32 v{AIM}, v{AIM}, v{DT}
    v_mul_f32 v{AIM+1}, v{AIM+1}, v{DT}
    v_mul_f32 v{LA}, v{LA}, v{DT}
    v_mul_f32 v{LA+1}, v{LA+1}, v{DT}
    v_mul_f32 v{AIM}, 0.15915494, v{AIM}
    v_mul_f32 v{AIM+1}, 0.15915494, v{AIM+1}
    v_mul_f32 v{LA}, {fhex(-1.4426950408889634)}, v{LA}
    v_mul_f32 v{LA+1}, {fhex(-1.4426950408889634)}, v{LA+1}
    ''')
    def cexp(E, tmul):
        for step in range(8):
            for e in range(2):
                t = R(26) + 2 * e
                a([f'v_mul_f32 v{t+1}, {fhex(tmul)}, v{AIM+e}', f'v_mul_f32 v{t}, {fhex(tmul)}, v{LA+e}', f'v_fract_f32 v{t+1}, v{t+1}',
                   f'v_exp_f32 v{t}, v{t}', f'v_cos_f32 v{E+e}, v{t+1}', f'v_sin_f32 v{E+2+e}, v{t+1}',
                   f'v_mul_f32 v{E+e}, v{E+e}, v{t}', f'v_mul_f32 v{E+2+e}, v{E+2+e}, v{t}'][step])
    state = {'o': 0}
    def cmuln(ops):
        for k, (dst, x, w) in enumerate(ops):
            t = R(44) + 4 * k
            a(f'v_pk_mul_f32 {vr(t,2)}, {vr(x+2,2)}, {vr(w+2,2)}')
            a(f'v_pk_mul_f32 {vr(t+2,2)}, {vr(x+2,2)}, {vr(w,2)}')
        for k, (dst, x, w) in enumerate(ops):
            t = R(44) + 4 * k
            a(f'v_pk_fma_f32 {vr(dst,2)}, {vr(x,2)}, {vr(w,2)}, {vr(t,2)} neg_lo:[0,0,1] neg_hi:[0,0,1]')
            a(f'v_pk_fma_f32 {vr(dst+2,2)}, {vr(x,2)}, {vr(w+2,2)}, {vr(t+2,2)}')
    def emit(rows, x, neg):
        o = R(56) + 2 * (state['o'] & 3); state['o'] += 1
        n = '-' if neg else ''
        a(f'v_cvt_pk_bf16_f32 v{o}, v{x}, {n}v{x+2}')
        a(f'v_cvt_pk_bf16_f32 v{o+1}, v{x+1}, {n}v{x+3}')
        for row in rows:
            a(f'ds_write_b64 v{vW}, {vr(o,2)} offset:{row*KP}')
    def run_prog(groups, slot, rows, neg, free):
        end = {}
        for k, grp in enumerate(groups):
            for d_, s_, w_ in grp:
                end[d_] = max(end.get(d_, 0), k + 1)
                end[s_] = max(end.get(s_, 0), k)
        live, pend = [], []
        for k, grp in enumerate(groups):
            for d_, s_, w_ in grp:
                slot[d_] = free.pop(0); live.append(d_)
            cmuln([(slot[d_], slot[s_], w_) for d_, s_, w_ in grp])
            for p in pend:
                if p in rows: emit(rows[p], slot[p], neg)
            for v_ in list(live):
                if end[v_] <= k:
                    live.remove(v_); free.append(slot[v_])
            pend = [d_ for d_, s_, w_ in grp]
        for p in pend:
            if p in rows: emit(rows[p], slot[p], neg)
    E1, E8, EG = R(32), R(36), R(40)
    free = [R(72) + 4 * k for k in range(13)]
    cexp(E8, 8.0)
    if skip_setup: del a.items[n_setup:]
    if part == 0:
        E16, E24 = E1, EG
        frows = {b: [28 + b] for b in range(32)}
        cmuln([(E16, E8, E8)])
        a(f'v_mov_b32 v{R(56)}, 0x3f80')
        a(f'v_mov_b32 v{R(57)}, 0x3f80')
        a(f'ds_write_b64 v{vW}, {vr(R(56),2)} offset:{28*KP}')
        state['o'] = 1
        emit(frows[1], E8, False)
        cmuln([(E24, E16, E8)])
        emit(frows[2], E16, False)
        slot = {1: E8, 2: E16, 3: E24}
        groups = [[(b, b - 3, E24) for b in range(b0, min(b0 + 3, 32))] for b0 in range(4, 32, 3)]
        emit(frows[3], E24, False)
        run_prog(groups, slot, frows, False, free)
    else:
        arow = coarse_rows()
        cexp(E1, 1.0)
        cexp(EG, 256.0)
        a(wait2)
        unpack(CR, R(10)); unpack(CI, R(11))
        a(f'''
        v_add_f32 v{DT}, v{DT}, v{DT}
        v_mul_f32 v{CR}, v{CR}, v{DT}
        v_mul_f32 v{CR+1}, v{CR+1}, v{DT}
        v_mul_f32 v{CI}, v{CI}, v{DT}
        v_mul_f32 v{CI+1}, v{CI+1}, v{DT}
        ''')
        C0 = CR
        chA = [(i + 1, i, E1) for i in range(7)] + [(262, 6, EG)]
        chB = [(256 * (j + 1), 256 * j, EG) for j in range(7)] + [(258, 2, EG)]
        chC = [(8, 0, E8)] + [(256 * (j + 1) + 8, 256 * j + 8, EG) for j in range(7)]
        extra = [(260, 4, EG), (516, 260, EG), (772, 516, EG)]
        groups = [[chA[k], chB[k], chC[k]] for k in range(4)] + \
                 [[chA[4], chB[4], extra[0]], [chA[5], chC[4], extra[1]], [chA[6], chB[5], extra[2]], [chA[7], chC[5], chB[6]], [chB[7], chC[6]], [chC[7]]]
        slot = {0: C0}
        emit(arow[0], C0, True)
        run_prog(groups, slot, arow, True, free)

def gen_k2(a):
    a.raw('.p2align 8')
    a.raw('k2_kernel:')
    EXIT = '.k2_exit'
    prologue2(a, EXIT, ['s_load_dwordx16 s[16:31], s[0:1], 0', 's_load_dwordx4 s[32:35], s[0:1], 64', 's_load_dwordx2 s[40:41], s[0:1], 96'])
    lane = 2
    KB = 64
    a(f'''
    s_and_b32 s10, s3, 3
    s_lshl_b32 s9, s2, 2
    s_add_u32 s9, s9, s10           ; channel
    s_lshl_b32 s70, s10, 2
    s_add_u32 s70, s70, {K2_CNT+16}
    s_mul_i32 s71, s10, {CH_REG}
    s_lshl_b32 s68, s9, 8
    s_lshl_b32 s69, s9, 1
    v_lshlrev_b32 v{KB+5}, 3, v{lane}
    v_add_u32 v{KB+5}, s71, v{KB+5}
    v_lshlrev_b32 v{KB+3}, 2, v{lane}
    v_mov_b32 v{KB+4}, 0
    s_cmp_ge_u32 s3, 4
    s_cbranch_scc1 .k2_fft
    ''')
    UR = 192
    a(f'''
    s_mov_b32 s10, s71
    v_lshlrev_b32 v3, 4, v{lane}
    s_mul_i32 s14, s9, {UP}
    s_add_u32 s14, s14, 64
    v_add_u32 v23, s10, v3
    ''')
    a(f'''
    v_and_b32 v4, 31, v{lane}             ; b
    v_lshrrev_b32 v5, 5, v{lane}          ; h
    v_lshlrev_b32 v6, 4, v4               ; 16 b
    s_add_u32 s11, s10, {CV_K}
    v_sub_u32 v6, s11, v6                 ; Kr - 16 b
    v_lshlrev_b32 v7, 3, v5
    v_sub_u32 v20, v6, v7                 ; - 8h   (+2*1788)
    v_lshlrev_b32 v7, 9, v5
    v_sub_u32 v21, v6, v7                 ; - 512h (+2*1528)
    v_sub_u32 v22, v21, v7                ; - 1024h (+2*760)
    v_add_u32 v22, {2*760}, v22
    v_add_u32 v21, {2*1528}, v21
    v_add_u32 v20, {2*1788}, v20
    ''')
    vKA, vKB = 18, 19
    a(f'''
    v_lshlrev_b32 v7, 4, v5
    v_add_u32 v7, s10, v7
    v_add_u32 v6, 28, v4
    v_mul_u32_u24 v6, {KP}, v6
    v_add_u32 v{vKB}, v6, v7
    v_mov_b32 v6, v4
    ''')
    for thr in (11, 15, 19, 23):
        a(f'v_cmp_lt_u32 vcc, {thr}, v4')
        a(f'v_subbrev_co_u32 v6, vcc, 0, v6, vcc')
    a(f'''
    v_mul_u32_u24 v6, {KP}, v6
    v_add_u32 v{vKA}, v6, v7
    v_and_b32 v7, 1, v4
    v_cmp_eq_u32 s[66:67], 1, v7          ; odd b
    ''')
    vF, vG = 24, 25
    a(f'''
    v_and_b32 v26, 15, v{lane}            ; n / m
    v_lshrrev_b32 v27, 4, v{lane}         ; g
    v_lshlrev_b32 v28, 4, v27             ; 16 g
    v_lshlrev_b32 v29, 3, v26             ; 8 n
    v_sub_u32 v{vF}, v28, v29
    s_add_u32 s6, s11, {2*2044-3968}
    v_add_u32 v{vF}, s6, v{vF}
    v_and_b32 v30, 3, v26
    v_mul_u32_u24 v30, {CS}, v30
    v_lshrrev_b32 v31, 2, v26
    v_lshl_add_u32 v30, v31, 7, v30
    v_add3_u32 v{vG}, v30, v28, s10
    v_mov_b32 v16, s70
    v_mov_b32 v{UR}, 0
    v_mov_b32 v{UR+1}, 0
    ''')
    ACC = 32
    for k in range(32): a(f'v_mov_b32 v{ACC+k}, 0')
    a('s_waitcnt lgkmcnt(0)')
    srd(a, 44, P_LOGA, 1024 * 256)
    srd(a, 48, P_LOGDT, 2048)
    a(f'buffer_load_dword v{KB+8}, v{KB+3}, s[44:47], s68 offen')
    a(f'buffer_load_ushort v{KB+12}, v{KB+4}, s[48:51], s69 offen')
    srd(a, 52, P_AIM, 1024 * 256)
    srd(a, 56, P_DSKIP, 2048)
    a(f'buffer_load_dword v{KB+9}, v{KB+3}, s[52:55], s68 offen')
    a(f'buffer_load_ushort v17, v{KB+4}, s[56:59], s69 offen')
    a('s_barrier')
    srd(a, 44, P_WS, 1024 * UP, WS_UT)
    for p in range(4):
        a(f'buffer_load_dwordx4 {vr(UR+8*p+2,4)}, v3, s[44:47], s14 offen offset:{p*1024}')
    a('s_barrier')
    stamp(a, 1)
    srd(a, 52, P_WS, 4 << 20, WS_YT)
    gen_kgen(a, 0, KB, KB + 5, 's_waitcnt vmcnt(5)', None)
    stamp(a, 2)
    a('s_waitcnt lgkmcnt(0)')
    sync_wait(a, 16, 8, 1, slp=1)
    a('s_setprio 3')
    D = 64
    FB = 96
    def rd(kk):
        b = FB + 8 * (kk & 7)
        a(f'ds_read_b128 {vr(b,4)}, v{vKA} offset:{kk*32}')
        a(f'ds_read_b128 {vr(b+4,4)}, v{vKB} offset:{kk*32}')
    for kk in range(6): rd(kk)
    for kk in range(16):
        b = FB + 8 * (kk & 7)
        rem = min(5, 15 - kk)
        a(f's_waitcnt lgkmcnt({2*rem})')
        a(f'v_mfma_f32_32x32x16_bf16 {vr(D,16)}, {vr(b,4)}, {vr(b+4,4)}, ' + ('0' if kk == 0 else vr(D, 16)))
        if kk + 6 < 16: rd(kk + 6)
    stamp(a, 3)
    a(f'''
    v_mov_b32 v8, 0
    v_mov_b32 v9, 0
    v_mov_b32 v10, 0
    v_mov_b32 v11, 0
    s_mov_b64 exec, 0xffffff
    ''')
    for c in range(4):
        a(f'ds_write_b128 v23, v[8:11] offset:{c*CS}')
    a(f'''
    s_mov_b64 exec, 0xff
    ds_write_b128 v23, v[8:11] offset:{CV_K+4096}
    s_mov_b64 exec, -1
    ''')
    dpp = 'row_mask:0xf bank_mask:0xf'
    Q = 128
    for p in range(4):
        r = UR + 8 * p
        q = Q + 12 * p
        a(f's_waitcnt vmcnt({3-p})')
        a(f'ds_write_b128 v23, {vr(r+2,4)} offset:{384 + 3*CS + 1024*p}')
        a(f'v_mov_b32_dpp v{r}, v{r+4} wave_shr:1 {dpp}')
        a(f'v_mov_b32_dpp v{r+1}, v{r+5} wave_shr:1 {dpp}')
        if p < 3:
            a(f'v_mov_b32_dpp v{r+8}, v{r+4} wave_ror:1 {dpp}')
            a(f'v_mov_b32_dpp v{r+9}, v{r+5} wave_ror:1 {dpp}')
        for j in range(4):
            a(f'v_mov_b32 v{q+8+j}, v{r+1+j}')
        a(f'ds_write_b128 v23, {vr(q+8,4)} offset:{384 + 1*CS + 1024*p}')
        for j in range(4):
            a(f'v_alignbit_b32 v{q+j}, v{r+j+1}, v{r+j}, 16')
        a(f'ds_write_b128 v23, {vr(q,4)} offset:{384 + 1024*p}')
        for j in range(3):
            a(f'v_mov_b32 v{q+4+j}, v{q+1+j}')
        a(f'v_alignbit_b32 v{q+7}, v{r+5}, v{r+4}, 16')
        a(f'ds_write_b128 v23, {vr(q+4,4)} offset:{384 + 2*CS + 1024*p}')
    E = 96
    a(f'''
    v_lshlrev_b32 v17, 16, v17
    s_mov_b64 exec, 1
    v_add_f32 v{D}, v{D}, v17
    s_mov_b64 exec, -1
    v_cvt_pk_bf16_f32 v{E}, v{D+3}, v{D+2}
    v_cvt_pk_bf16_f32 v{E+1}, v{D+1}, v{D}
    ds_write_b64 v20, {vr(E,2)} offset:512
    v_cvt_pk_bf16_f32 v{E+2}, v{D+6}, v{D+5}
    v_cvt_pk_bf16_f32 v{E+3}, v{D+4}, v{D+4}
    ds_write_b64 v20, {vr(E+2,2)}
    v_cvt_pk_bf16_f32 v{E+4}, v{D+10}, v{D+10}
    v_cvt_pk_bf16_f32 v{E+5}, v{D+9}, v{D+9}
    v_cvt_pk_bf16_f32 v{E+6}, v{D+9}, v{D+8}
    v_cvt_pk_bf16_f32 v{E+7}, v{D+8}, v{D+8}
    ds_write_b128 v21, {vr(E+4,4)}
    ''')
    for j in range(2):
        x, z, q = D + 12 + 2 * j, D + 13 + 2 * j, E + 8 + 4 * j
        a(f'''
        v_cndmask_b32 v{D+7}, v{x}, v{z}, s[66:67]
        v_cvt_pk_bf16_f32 v{q}, v{z}, v{z}
        v_cvt_pk_bf16_f32 v{q+1}, v{z}, v{D+7}
        v_cvt_pk_bf16_f32 v{q+2}, v{x}, v{x}
        v_cvt_pk_bf16_f32 v{q+3}, v{x}, v{x}
        ds_write_b128 v22, {vr(q,4)} offset:{512*(1-j)}
        ''')
    SET = [64, 128]
    def reads(st):
        lst = []
        for i in range(8):
            lst.append(f'ds_read_b128 {vr(st+4*i,4)}, v{vG} offset:{512*i}')
            lst.append(f'ds_read_b64 {vr(st+32+4*i,2)}, v{vF} offset:{512*(7-i)}')
            lst.append(f'ds_read_b64 {vr(st+32+4*i+2,2)}, v{vF} offset:{512*(7-i)+8}')
        return lst
    a('s_lshl_b32 s13, s9, 12')
    a('s_waitcnt lgkmcnt(0)')
    stamp(a, 4)
    for r in reads(SET[0]): a(r)
    a('s_mov_b32 s12, 0')
    a('s_setprio 0')
    a('.k2_cv_loop:')
    for half in range(2):
        cur, nxt = SET[half], SET[1 - half]
        a(f'v_add_u32 v{vG}, 64, v{vG}')
        a(f'v_add_u32 v{vF}, 64, v{vF}')
        a('s_waitcnt lgkmcnt(0)')
        rl = reads(nxt)
        pairs = [(i, c) for i in range(8) for c in range(8 - i)]
        for n_, (i, c) in enumerate(pairs):
            A = i + c
            a(f'v_mfma_f32_16x16x32_bf16 {vr(ACC+4*A,4)}, {vr(cur+4*i,4)}, {vr(cur+32+4*c,4)}, {vr(ACC+4*A,4)}')
            if n_ < 24: a(rl[n_])
    a('''
    s_add_u32 s12, s12, 1
    s_cmp_lt_u32 s12, 4
    s_cbranch_scc1 .k2_cv_loop
    ''')
    stamp(a, 5)
    for P in range(4):
        o = 8 + 4 * P
        for e in range(2):
            A = 2 * P + e
            a(f'v_cvt_pk_bf16_f32 v{o+2*e}, v{ACC+4*A}, v{ACC+4*A+1}')
            a(f'v_cvt_pk_bf16_f32 v{o+2*e+1}, v{ACC+4*A+2}, v{ACC+4*A+3}')
        a(f'buffer_store_dwordx4 {vr(o,4)}, v3, s[52:55], s13 offen offset:{1024*P}')
    stamp(a, 6)
    stamp_flush(a, 1, 7)
    a('s_endpgm')

    a('.k2_fft:')
    vC0, vC1, vC2, vOne, vT = 10, 11, 12, 13, 14
    WL = 192
    WM = 208
    vW0, vW1, vZ, vL = 232, 233, 234, 235
    TM = 236
    a(f'''
    s_and_b32 s8, s2, 7
    s_lshr_b32 s9, s2, 3
    s_lshl_b32 s11, s8, 5
    s_add_u32 s11, s11, s9
    s_lshl_b32 s11, s11, 14
    v_and_b32 v3, 15, v{lane}          ; n
    v_lshrrev_b32 v4, 4, v{lane}       ; g
    v_mov_b32 v{vC0}, {K2_CNT}
    v_mov_b32 v16, 0
    v_mov_b32 v17, 0
    v_mov_b32 v18, 0
    v_mov_b32 v19, 0
    ds_write_b128 v{vC0}, v[16:19]
    ds_write_b128 v{vC0}, v[16:19] offset:16
    v_mov_b32 v{vC1}, {K2_CNT+4}
    v_mov_b32 v{vC2}, {K2_CNT+8}
    v_mov_b32 v{vOne}, 1
    v_lshlrev_b32 v5, 4, v{lane}
    s_lshl_b32 s4, s10, 12
    s_add_u32 s15, s4, {K2_ZB}
    s_add_u32 s12, s11, s4
    v_add_u32 v{vL}, s15, v5
    ''')
    B1R, B1I, A2R, A2I, B3R, B3I, A4R, A4I = 16, 20, 24, 28, 32, 36, 40, 44
    T1C, T1S, T3C, T3S = 48, 52, 56, 60
    nf, idx, q1, p_, c_, s_, p2, c2, s2_, p3, c3, s3_, k1_, k2_ = range(208, 222)
    scale = 2.0 / (2048 * 1024)
    a(f'''
    v_cvt_f32_u32 v{nf}, v3
    v_lshlrev_b32 v{idx}, 2, v4
    v_cvt_f32_u32 v{idx}, v{idx}
    v_cvt_f32_u32 v{k1_}, s8
    v_mul_f32 v{k1_}, {fhex(1/128)}, v{k1_}      ; cls/128
    v_mul_f32 v{k2_}, {fhex(1/16)}, v{nf}     ; n/16
    v_add_f32 v{q1}, v{k2_}, v{k1_}              ; (8n + cls)/128
    v_mul_f32 v{k1_}, v{k1_}, v{nf}              ; n*cls/128
    ''')
    def consts(e):
        a(f'''
        v_mul_f32 v{p_}, v{idx}, v{q1}
        v_mul_f32 v{p2}, v{idx}, v{k2_}
        v_cos_f32 v{c_}, v{p_}
        v_sin_f32 v{s_}, v{p_}
        v_add_f32 v{p3}, v{p2}, v{k1_}
        v_cos_f32 v{c2}, v{p2}
        v_sin_f32 v{s2_}, v{p2}
        v_mul_f32 v{p_}, {fhex(1/16)}, v{p_}
        v_cos_f32 v{c3}, v{p3}
        v_sin_f32 v{s3_}, v{p3}
        v_mul_f32 v{p3}, {fhex(1/16)}, v{p3}
        v_cvt_pk_bf16_f32 v{B1R+e}, v{c_}, v{s_}
        v_cvt_pk_bf16_f32 v{B1I+e}, -v{s_}, v{c_}
        v_cos_f32 v{c_}, v{p_}
        v_sin_f32 v{s_}, v{p_}
        v_cvt_pk_bf16_f32 v{A2R+e}, v{c2}, v{s2_}
        v_cvt_pk_bf16_f32 v{A2I+e}, -v{s2_}, v{c2}
        v_cvt_pk_bf16_f32 v{B3R+e}, v{c2}, -v{s2_}
        v_cvt_pk_bf16_f32 v{B3I+e}, v{s2_}, v{c2}
        v_cos_f32 v{T3C+e}, v{p3}
        v_sin_f32 v{T3S+e}, v{p3}
        v_cvt_pk_bf16_f32 v{A4R+e}, v{c3}, -v{s3_}
        v_cvt_pk_bf16_f32 v{A4I+e}, v{s3_}, v{c3}
        v_mul_f32 v{T1C+e}, {fhex(scale)}, v{c_}
        v_mul_f32 v{T1S+e}, {fhex(scale)}, v{s_}
        v_add_f32 v{idx}, 1.0, v{idx}
        ''')
    NPRE = int(os.environ.get('K2_NPRE', '2'))
    for e in range(NPRE): consts(e)
    a('s_waitcnt lgkmcnt(0)')
    srd(a, 44, P_LOGA, 1024 * 256)
    srd(a, 48, P_LOGDT, 2048)
    a(f'buffer_load_dword v{KB+8}, v{KB+3}, s[44:47], s68 offen')
    a(f'buffer_load_ushort v{KB+12}, v{KB+4}, s[48:51], s69 offen')
    srd(a, 52, P_AIM, 1024 * 256)
    srd(a, 56, P_CRE, 1024 * 256)
    srd(a, 60, P_CIM, 1024 * 256)
    a(f'buffer_load_dword v{KB+9}, v{KB+3}, s[52:55], s68 offen')
    a(f'buffer_load_dword v{KB+10}, v{KB+3}, s[56:59], s68 offen')
    a(f'buffer_load_dword v{KB+11}, v{KB+3}, s[60:63], s68 offen')
    srd(a, 44, P_WS, 4 << 20, WS_Z1)
    a('s_mov_b32 m0, s15')
    a('s_barrier')
    for p in range(4):
        a(f'buffer_load_dwordx4 v5, s[44:47], s12 offen offset:{p*1024} lds')
    srd(a, 52, P_WR, 2048 * 1026)
    srd(a, 56, P_WI, 2048 * 1026)
    a(f'''
    v_and_b32 v6, 255, v0              ; t
    v_lshrrev_b32 v7, 1, v6
    v_lshlrev_b32 v8, 3, v7
    v_add_u32 v8, s8, v8
    v_mul_u32_u24 v8, 1026, v8
    v_and_b32 v9, 1, v6
    v_lshl_add_u32 v8, v9, 4, v8
    s_lshl_b32 s4, s9, 5
    s_cmp_ge_u32 s8, 5
    s_cselect_b32 s5, 2, 0
    s_add_u32 s4, s4, s5
    s_add_u32 s5, s4, {128*8*1026}
    s_barrier
    buffer_load_dwordx4 {vr(WL,4)}, v8, s[52:55], s4 offen
    buffer_load_dwordx4 {vr(WL+4,4)}, v8, s[56:59], s4 offen
    buffer_load_dwordx4 {vr(WL+8,4)}, v8, s[52:55], s5 offen
    buffer_load_dwordx4 {vr(WL+12,4)}, v8, s[56:59], s5 offen
    ''')
    stamp(a, 1)
    a(f"s_setprio {os.environ.get('K2_CPRIO', '1')}")
    gen_kgen(a, 1, KB, KB + 5, 's_waitcnt vmcnt(10)', 's_waitcnt vmcnt(8)')
    a('v_mov_b32 v15, s70')
    sync_arrive(a, 15, vOne)
    a('s_setprio 0')
    stamp(a, 2)
    for e in range(NPRE, 4): consts(e)
    srd(a, 48, P_WS, 4 << 20, WS_Z2)
    a(f'''
    v_bfe_u32 v15, v6, 3, 2
    v_lshl_add_u32 v15, v9, 1, v15
    v_and_b32 v64, 3, v15
    v_add_u32 v15, 1, v15
    v_and_b32 v15, 3, v15
    v_lshlrev_b32 v7, 6, v7
    v_add_u32 v7, {K2_WB}, v7
    v_lshl_add_u32 v{vW0}, v64, 4, v7
    v_lshl_add_u32 v{vW1}, v15, 4, v7
    v_bfe_u32 v15, v3, 2, 2
    v_add_u32 v15, s10, v15
    v_and_b32 v15, 3, v15
    v_lshlrev_b32 v15, 4, v15
    v_lshl_add_u32 v15, v3, 6, v15
    v_lshl_add_u32 v15, v4, 12, v15
    v_add_u32 v{vZ}, {K2_ZB}, v15
    s_mov_b32 s7, 0xffff0000
    ''')
    a('s_waitcnt vmcnt(4)')
    a(f"s_setprio {os.environ.get('K2_FPRIO', '2')}")
    stamp(a, 3)
    sync_arrive(a, vC0, vOne)
    a(f'''
    s_mov_b32 s13, 0
    s_cmp_ge_u32 s8, 5
    s_cbranch_scc1 .k2_sp_hi
    s_or_b32 s4, s9, s10
    s_cmp_lg_u32 s4, 0
    s_cbranch_scc1 .k2_sp_done
    s_and_b32 s4, s8, 3
    s_cmp_eq_u32 s4, 0
    s_cselect_b32 s13, 3, 1
    s_branch .k2_sp_load
    .k2_sp_hi:
    s_cmp_lg_u32 s9, 31
    s_cbranch_scc1 .k2_sp_done
    s_cmp_lg_u32 s10, 3
    s_cbranch_scc1 .k2_sp_done
    s_mov_b32 s13, 2
    .k2_sp_load:
    v_lshl_add_u32 v64, v4, 6, v3
    v_lshlrev_b32 v64, 3, v64
    v_add_u32 v64, s8, v64
    s_cmp_eq_u32 s13, 2
    s_cselect_b32 s4, 1024, 0
    s_movk_i32 s5, 1024
    ''')
    for i in range(4):
        a(f'''
        v_add_u32 v65, {128*i}, v64
        v_sub_u32 v66, 2048, v65
        v_and_b32 v66, 2047, v66
        v_mul_u32_u24 v{68+i}, 1026, v65
        v_mul_u32_u24 v{72+i}, 1026, v66
        buffer_load_ushort v{WM+i}, v{72+i}, s[52:55], s4 offen
        buffer_load_ushort v{WM+4+i}, v{72+i}, s[56:59], s4 offen
        ''')
    a('s_cmp_lg_u32 s13, 3')
    a('s_cbranch_scc1 .k2_sp_done')
    for i in range(4):
        a(f'''
        buffer_load_ushort v{WM+8+i}, v{68+i}, s[52:55], s5 offen
        buffer_load_ushort v{WM+12+i}, v{68+i}, s[56:59], s5 offen
        buffer_load_ushort v{WM+16+i}, v{72+i}, s[52:55], s5 offen
        buffer_load_ushort v{WM+20+i}, v{72+i}, s[56:59], s5 offen
        ''')
    a('.k2_sp_done:')
    sync_wait(a, vC0, vT, 4, slp=0)
    stamp(a, 4)
    X = 64; D = 80; WF = 112
    for e in range(4):
        a(f'ds_read_b128 {vr(D+4*e,4)}, v{vZ} offset:{1024*e}')
    for e in range(4):
        a(f's_waitcnt lgkmcnt({3-e})')
        for c in range(4):
            a(f'v_mov_b32 v{X+4*c+e}, v{D+4*e+c}')
    def stage(Mr, Mi, data_is_A):
        for c in range(4):
            for M, off in ((Mr, 0), (Mi, 4)):
                if data_is_A:
                    a(f'v_mfma_f32_16x16x32_bf16 {vr(D+8*c+off,4)}, {vr(X+4*c,4)}, {vr(M,4)}, 0')
                else:
                    a(f'v_mfma_f32_16x16x32_bf16 {vr(D+8*c+off,4)}, {vr(M,4)}, {vr(X+4*c,4)}, 0')
    def mulpack(cr_of, ci_of, conj):
        k = 0
        for c in range(4):
            for hp in range(2):
                t = TM + 4 * (k & 1); k += 1
                cmul_sc(a, t, t + 2, D + 8 * c + 2 * hp, D + 8 * c + 4 + 2 * hp, cr_of(c) + 2 * hp, ci_of(c) + 2 * hp, conj)
                a(f'v_cvt_pk_bf16_f32 v{X+4*c+2*hp}, v{t}, v{t+2}')
                a(f'v_cvt_pk_bf16_f32 v{X+4*c+2*hp+1}, v{t+1}, v{t+3}')
    stage(B1R, B1I, True)
    mulpack(lambda c: T1C, lambda c: T1S, True)
    stage(A2R, A2I, False)
    stamp(a, 5)
    a('s_waitcnt vmcnt(0)')
    stamp(a, 6)
    for rr in range(2):
        for ar in range(2):
            r = WL + 8 * rr + 4 * ar
            a(f'ds_write_b64 v{vW0}, {vr(r,2)} offset:{rr*8192+ar*8}')
            a(f'ds_write_b64 v{vW1}, {vr(r+2,2)} offset:{rr*8192+ar*8}')
    sync_arrive(a, vC1, vOne)
    sync_wait(a, vC1, vT, 4, slp=0)
    stamp(a, 7)
    for i in range(4):
        a(f'ds_read_b128 {vr(WL+4*i,4)}, v{vZ} offset:{16384+1024*i}')
    for i in range(4):
        a(f's_waitcnt lgkmcnt({3-i})')
        for part in range(2):
            for cp in range(2):
                src = WL + 4 * i + 2 * part + cp
                a(f'v_lshlrev_b32 v{WF+8*(2*cp)+4*part+i}, 16, v{src}')
                a(f'v_and_b32 v{WF+8*(2*cp+1)+4*part+i}, s7, v{src}')
    a('s_cmp_eq_u32 s13, 0')
    a('s_cbranch_scc1 .k2_nopatch')
    for k in range(24):
        a(f'v_lshlrev_b32 v{WM+k}, 16, v{WM+k}')
    a('s_cmp_eq_u32 s13, 2')
    a('s_cbranch_scc1 .k2_patch_hi')
    def patch(c):
        for i in range(4):
            a(f'v_add_f32 v{WF+8*c+i}, v{WF+8*c+i}, v{WM+i}')
            a(f'v_sub_f32 v{WF+8*c+4+i}, v{WF+8*c+4+i}, v{WM+4+i}')
        for i in range(8):
            a(f'v_mul_f32 v{WF+8*c+i}, 0.5, v{WF+8*c+i}')
    patch(0)
    a('s_cmp_eq_u32 s13, 1')
    a('s_cbranch_scc1 .k2_nopatch')
    a(f'''
    v_lshl_add_u32 v{TM}, v4, 6, v3
    s_lshr_b32 s4, s8, 2
    s_sub_u32 s4, 256, s4
    v_sub_u32 v{TM+1}, s4, v{TM}
    v_lshlrev_b32 v{TM}, 2, v{TM}
    v_add_u32 v{TM}, {K2_SCR}, v{TM}
    ''')
    for i in range(4):
        a(f'ds_write_b32 v{TM}, v{D+i} offset:{64*i}')
        a(f'ds_write_b32 v{TM}, v{D+4+i} offset:{1024+64*i}')
    ZM = WL
    for i in range(4):
        a(f'''
        v_subrev_u32 v{TM+2}, {16*i}, v{TM+1}
        v_and_b32 v{TM+2}, 255, v{TM+2}
        v_lshlrev_b32 v{TM+2}, 2, v{TM+2}
        v_add_u32 v{TM+2}, {K2_SCR}, v{TM+2}
        ds_read_b32 v{ZM+i}, v{TM+2}
        ds_read_b32 v{ZM+4+i}, v{TM+2} offset:1024
        ''')
    for i in range(4):
        a(f'v_add_f32 v{WM+8+i}, v{WM+8+i}, v{WM+16+i}')
        a(f'v_sub_f32 v{WM+12+i}, v{WM+12+i}, v{WM+20+i}')
    for i in range(8):
        a(f'v_mul_f32 v{WM+8+i}, {fhex(0.125)}, v{WM+8+i}')
        a(f'v_mul_f32 v{WF+i}, {fhex(0.25)}, v{WF+i}')
        a(f'v_sub_f32 v{WM+i}, v{WF+i}, v{WM+8+i}')
        a(f'v_add_f32 v{WM+8+i}, v{WF+i}, v{WM+8+i}')
    a('s_waitcnt lgkmcnt(0)')
    for i in range(4):
        zr, zi, mr, mi = D + i, D + 4 + i, ZM + i, ZM + 4 + i
        pr, pi, qr, qi = WM + 8 + i, WM + 12 + i, WM + i, WM + 4 + i
        a(f'''
        v_mul_f32 v{TM}, v{zr}, v{pr}
        v_mul_f32 v{TM+1}, v{zr}, v{pi}
        v_fma_f32 v{TM}, -v{zi}, v{pi}, v{TM}
        v_fmac_f32 v{TM+1}, v{zi}, v{pr}
        v_fmac_f32 v{TM}, v{mr}, v{qr}
        v_fmac_f32 v{TM+1}, v{mr}, v{qi}
        v_fma_f32 v{zr}, v{mi}, v{qi}, v{TM}
        v_fma_f32 v{zi}, -v{mi}, v{qr}, v{TM+1}
        v_mov_b32 v{WF+i}, 1.0
        v_mov_b32 v{WF+4+i}, 0
        ''')
    a('s_branch .k2_nopatch')
    a('.k2_patch_hi:')
    patch(3)
    a('.k2_nopatch:')
    mulpack(lambda c: WF + 8 * c, lambda c: WF + 8 * c + 4, False)
    stage(B3R, B3I, True)
    mulpack(lambda c: T3C, lambda c: T3S, False)
    stage(A4R, A4I, False)
    for i in range(4):
        for c in range(4):
            a(f'v_cvt_pk_bf16_f32 v{X+4*i+c}, v{D+8*c+i}, v{D+8*c+4+i}')
        a(f'ds_write_b128 v{vZ}, {vr(X+4*i,4)} offset:{1024*i}')
    stamp(a, 8)
    sync_arrive(a, vC2, vOne)
    sync_wait(a, vC2, vT, 4, slp=0)
    stamp(a, 9)
    for p in range(4):
        a(f'ds_read_b128 {vr(X+4*p,4)}, v{vL} offset:{1024*p}')
    for p in range(4):
        a(f's_waitcnt lgkmcnt({3-p})')
        a(f'buffer_store_dwordx4 {vr(X+4*p,4)}, v5, s[48:51], s12 offen offset:{1024*p}')
    stamp_flush(a, 1, 10)
    a(f'{EXIT}:')
    a('s_endpgm')

def build(kernels):
    hdr = open(f'cdna_kernels/{NAME}.s.ref').read().split('\n')
    head = [l for l in hdr if l.startswith(';') and '@launch' not in l.lower()]
    head = [l for l in head if 'Override launch' not in l and 'grid=ceil' not in l]
    out = '\n'.join(head) + '\n'
    for name, gen, grid, block, lds, vgpr in kernels:
        out += f'; @launch kernel={name} grid=({grid},1,1) block=({block},1,1) lds={lds}\n'
    out += '.amdgcn_target "amdgcn-amd-amdhsa--gfx950"\n.text\n'
    a = Asm()
    for name, gen, grid, block, lds, vgpr in kernels:
        a.raw(f'.globl {name}')
        a.raw(f'.type {name},@function')
        gen(a)
    body = a.render()
    sc = os.environ.get('SC1', 'k1,k2,k3')
    res, cur = [], ''
    for l in body.split('\n'):
        if l.endswith('_kernel:'): cur = l[:2]
        if l.strip().startswith('buffer_store') and cur in sc.split(','):
            l = l + ' sc1'
        res.append(l)
    out += '\n'.join(res)
    out += '.section .rodata,"a"\n'
    for name, gen, grid, block, lds, vgpr in kernels:
        out += kd(name, vgpr)
    return out

if __name__ == '__main__':
    ks = [('k1_kernel', gen_k1, 256, 448, K1_LDS, 192), ('k2_kernel', gen_k2, 256, 512, K2_LDS, 244), ('k3_kernel', gen_k3, 256, 448, K3_LDS, 160)]
    path = sys.argv[1] if len(sys.argv) > 1 else f'cdna_kernels/{NAME}.s'
    open(path, 'w').write(build(ks))
    print('wrote', path)
```

```python
import sys, os, struct
sys.path.insert(0, 'dev')
from gen import (Asm, NAME, fhex, vr, srd, stamp, stamp_flush, gen_dft8_frags, gen_z_addr, z_soff,
                 gen_transposer, gen_transposer_tail, kd, DIAG,
                 WS_Z1, WS_Z2, WS_UT, UP, WS_YT,
                 P_U, P_LOGA, P_AIM, P_CRE, P_CIM, P_LOGDT, P_DSKIP, P_X, P_WR, P_WI, P_OUT, P_DBG, P_WS)
from gen23 import cmul_sc, cmul_pk
import gen3
from gen3 import gen_kgen, KP, CH_REG, CS, CV_K

ZB = 0
WB = 16384
SCR = 32768
TRB = WB
CNT = 34816
CH0 = CNT + 128
LDS_SIZE = CH0 + 4 * CH_REG
WS_CW = 20 << 20
WS_FLG = 28 << 20
C_PA, C_S1, C_R0, C_Z, C_W, C_O, C_S2, C_R1, C_L3, C_T1, C_G0, C_CV, C_G1, C_NONCE, C_TL, C_UL = range(16)
SPIN_MAX = 0x80000

def lds_arrive(a, c, vt):
    a(f'''
    v_mov_b32 v{vt}, {CNT+4*c}
    v_mov_b32 v{vt+1}, 1
    s_waitcnt lgkmcnt(0)
    s_mov_b64 exec, 1
    ds_add_u32 v{vt}, v{vt+1}
    s_mov_b64 exec, -1
    ''')

def lds_wait(a, c, n, vt, slp=0, sreg=4):
    L = a.label('spin'); E = a.label('spun')
    a(f'''
    v_mov_b32 v{vt}, {CNT+4*c}
    {L}:
    ds_read_b32 v{vt+1}, v{vt}
    s_waitcnt lgkmcnt(0)
    v_readfirstlane_b32 s{sreg}, v{vt+1}
    s_cmp_ge_u32 s{sreg}, {n}
    s_cbranch_scc1 {E}
    s_sleep {slp}
    s_branch {L}
    {E}:
    ''')

def publish(a, c, n, flag_off_sreg, vt):
    E = a.label('pub')
    a(f'''
    v_mov_b32 v{vt}, {CNT+4*c}
    v_mov_b32 v{vt+1}, 1
    s_mov_b64 exec, 1
    ds_add_rtn_u32 v{vt+1}, v{vt}, v{vt+1}
    s_mov_b64 exec, -1
    s_waitcnt lgkmcnt(0)
    v_readfirstlane_b32 s4, v{vt+1}
    s_cmp_lg_u32 s4, {n-1}
    s_cbranch_scc1 {E}
    ''')
    lds_wait(a, C_NONCE, 1, vt, slp=1, sreg=5)
    srd(a, 60, P_WS, 16384, WS_FLG)
    a(f'''
    v_mov_b32 v{vt}, 0
    v_mov_b32 v{vt+1}, s5
    s_mov_b64 exec, 1
    buffer_store_dword v{vt+1}, v{vt}, s[60:63], s{flag_off_sreg} offen
    s_mov_b64 exec, -1
    {E}:
    ''')

def poll_release(a, dbg_off, c, vt):
    L = a.label('poll'); E = a.label('polled')
    srd(a, 64, P_DBG, 256)
    a(f'''
    v_mov_b32 v{vt}, 0
    s_mov_b32 s6, {SPIN_MAX}
    {L}:
    buffer_load_dword v{vt+1}, v{vt}, s[64:67], 0 offen offset:{dbg_off} sc1
    s_waitcnt vmcnt(0)
    v_readfirstlane_b32 s4, v{vt+1}
    s_cmp_lg_u32 s4, 0
    s_cbranch_scc1 {E}
    s_sub_u32 s6, s6, 1
    s_cmp_lg_u32 s6, 0
    s_cbranch_scc1 {L}
    {E}:
    ''')
    lds_arrive(a, c, vt)

def poll_group(a, lane, base_sreg, c, vt):
    L = a.label('poll'); E = a.label('polled')
    lds_wait(a, C_NONCE, 1, vt, slp=1, sreg=5)
    srd(a, 60, P_WS, 16384, WS_FLG)
    a(f'''
    v_and_b32 v{vt}, 15, v{lane}
    v_lshlrev_b32 v{vt}, 4, v{vt}
    s_mov_b32 s6, {SPIN_MAX}
    {L}:
    buffer_load_dword v{vt+1}, v{vt}, s[60:63], s{base_sreg} offen sc1
    s_waitcnt vmcnt(0)
    v_cmp_ne_u32 vcc, s5, v{vt+1}
    s_cmp_eq_u64 vcc, 0
    s_cbranch_scc1 {E}
    s_sub_u32 s6, s6, 1
    s_cmp_lg_u32 s6, 0
    s_cbranch_scc1 {L}
    {E}:
    ''')
    lds_arrive(a, c, vt)

def gen_main(a):
    KN = NAME + '_kernel'
    a.raw('.p2align 8')
    a.raw(f'{KN}:')
    EXIT = '.exit'
    lane = 2
    a(f'''
    s_cmp_ge_u32 s2, 256
    s_cbranch_scc1 {EXIT}
    ''')
    stamp(a, 0)
    a('''
    s_load_dwordx16 s[16:31], s[0:1], 0
    s_load_dwordx8 s[32:39], s[0:1], 64
    s_load_dwordx2 s[40:41], s[0:1], 96
    v_lshrrev_b32 v1, 6, v0
    v_and_b32 v2, 63, v0
    v_readfirstlane_b32 s3, v1
    s_cmp_ge_u32 s3, 8
    s_cbranch_scc1 .role_a
    s_cmp_eq_u32 s3, 7
    s_cbranch_scc1 .role_m
    s_cmp_ge_u32 s3, 5
    s_cbranch_scc1 .role_t
    ''')
    gen_B(a, lane, EXIT)
    gen_T(a, lane)
    gen_M(a, lane)
    gen_A(a, lane)
    a(f'{EXIT}:')
    a('s_endpgm')

def gen_B(a, lane, EXIT):
    a(f'''
    s_setprio 2
    s_mov_b32 s8, s3
    s_and_b32 s15, s3, 3
    s_sub_u32 s9, 8, s8
    v_subrev_u32 v1, 64, v0
    s_lshl_b32 s4, s2, 11
    v_lshlrev_b32 v3, 3, v1
    v_add_u32 v7, s4, v3
    ''')
    XL = 16
    F8 = 8
    vC, vS, vnS, vCt, vnSt, tc, ts = 80, 88, 96, 104, 112, 120, 136
    kf, arg, a2, c0, c1, s0, s1_, k5, sg = range(64, 73)
    def tab_init(kf, arg, k5):
        a(f'''
        v_and_b32 v{kf}, 31, v{lane}
        v_cvt_f32_u32 v{kf}, v{kf}
        v_mul_f32 v{kf}, {fhex(1/32)}, v{kf}
        v_lshrrev_b32 v{arg}, 5, v{lane}
        v_cvt_f32_u32 v{arg}, v{arg}
        v_mul_f32 v{arg}, 4.0, v{arg}
        v_mul_f32 v{arg}, v{arg}, v{kf}
        v_mul_f32 v{k5}, {fhex(5.0)}, v{kf}
        ''')
    tab_init(kf, arg, k5)
    a(f'''
    v_and_b32 v{sg}, 16, v{lane}
    v_lshlrev_b32 v{sg}, 11, v{sg}
    v_lshl_or_b32 v{sg}, v{sg}, 16, v{sg}
    ''')
    def tab(ip):
        for e, (cr, sr) in enumerate(((c0, s0), (c1, s1_))):
            i = 2 * ip + e
            a(f'v_cos_f32 v{cr}, v{arg}')
            a(f'v_sin_f32 v{sr}, v{arg}')
            a(f'v_mul_f32 v{a2}, {fhex(1/32)}, v{arg}')
            a(f'v_cos_f32 v{tc+i}, v{a2}')
            a(f'v_sin_f32 v{ts+i}, v{a2}')
            if i != 15:
                a(f'v_add_f32 v{arg}, v{arg}, v{k5 if (i & 3) == 3 else kf}')
        a(f'v_cvt_pk_bf16_f32 v{vC+ip}, v{c0}, v{c1}')
        a(f'v_cvt_pk_bf16_f32 v{vS+ip}, v{s0}, v{s1_}')
        a(f'v_cvt_pk_bf16_f32 v{vnS+ip}, -v{s0}, -v{s1_}')
        a(f'v_xor_b32 v{vCt+ip}, v{sg}, v{vC+ip}')
        a(f'v_xor_b32 v{vnSt+ip}, v{sg}, v{vnS+ip}')
    NPRE = 3
    for ip in range(NPRE): tab(ip)
    a('s_waitcnt lgkmcnt(0)')
    srd(a, 44, P_X, 4 << 20)
    a('s_cmp_eq_u32 s3, 0')
    a('s_cbranch_scc1 .b1_noload')
    for s1 in range(8):
        a(f's_mov_b32 s5, {s1*256*2048}')
        a(f'buffer_load_dwordx2 {vr(XL+2*s1,2)}, v7, s[44:47], s5 offen')
    a('.b1_noload:')
    a('s_barrier')
    srd(a, 48, P_WS, 4 << 20, WS_Z1)
    gen_dft8_frags(a, lane, F8, 32, True)
    for ip in range(NPRE, 8): tab(ip)
    vlo, vhi, vtr = 164, 165, 154
    gen_z_addr(a, lane, vlo, vhi, 64, 2, 8, 9)
    a(f'''
    v_lshrrev_b32 v64, 5, v{lane}
    v_bfe_u32 v65, v{lane}, 2, 2
    v_lshl_add_u32 v64, v64, 2, v65
    v_lshlrev_b32 v64, 6, v64
    v_bfe_u32 v65, v{lane}, 4, 1
    v_lshl_add_u32 v64, v65, 5, v64
    v_and_b32 v65, 3, v{lane}
    v_lshl_add_u32 v64, v65, 3, v64
    s_lshl_b32 s4, s8, 1
    s_cmp_eq_u32 s8, 4
    s_cselect_b32 s4, 1, s4
    s_lshl_b32 s4, s4, 11
    v_add_u32 v{vtr}, s4, v64
    ''')
    a('s_cmp_eq_u32 s3, 0')
    a('s_cbranch_scc1 .b1_phaseB')
    BO, DD = 32, 48
    a('s_mov_b32 s4, 0x05040100')
    a('s_mov_b32 s5, 0x07060302')
    a('s_waitcnt vmcnt(0)')
    for e in range(4):
        for p in range(4):
            lo, hi = XL + 2 * (2 * p) + (e >> 1), XL + 2 * (2 * p + 1) + (e >> 1)
            a(f'v_perm_b32 v{BO+4*e+p}, v{hi}, v{lo}, s{4 + (e & 1)}')
        for hf in range(2):
            a(f'v_mfma_f32_16x16x32_bf16 {vr(DD+8*e+4*hf,4)}, {vr(F8+4*hf,4)}, {vr(BO+4*e,4)}, 0')
    for q in range(8):
        a(f'v_cvt_pk_bf16_f32 v{XL+2*q}, v{DD+q}, v{DD+8+q}')
        a(f'v_cvt_pk_bf16_f32 v{XL+2*q+1}, v{DD+16+q}, v{DD+24+q}')
        a(f'ds_write_b64 v3, {vr(XL+2*q,2)} offset:{ZB+q*2048}')
    lds_arrive(a, C_PA, 4)
    a('.b1_phaseB:')
    lds_wait(a, C_PA, 4, 4)
    stamp(a, 1)
    AR, AI, DR, DI, T0 = 16, 24, 32, 48, 64
    for c in range(2):
        for jj in range(2):
            a(f'ds_read_b64_tr_b16 {vr(AR+4*c+2*jj,2)}, v{vtr} offset:{c*1024+jj*512}')
    for c in range(2):
        for jj in range(2):
            a(f'ds_read_b64_tr_b16 {vr(AI+4*c+2*jj,2)}, v{vtr} offset:{2048+c*1024+jj*512}')
    a('s_waitcnt lgkmcnt(4)')
    a(f'v_mfma_f32_32x32x16_bf16 {vr(DR,16)}, {vr(AR,4)}, {vr(vC,4)}, 0')
    a(f'v_mfma_f32_32x32x16_bf16 {vr(DI,16)}, {vr(AR,4)}, {vr(vnS,4)}, 0')
    a(f'v_mfma_f32_32x32x16_bf16 {vr(DR,16)}, {vr(AR+4,4)}, {vr(vC+4,4)}, {vr(DR,16)}')
    a(f'v_mfma_f32_32x32x16_bf16 {vr(DI,16)}, {vr(AR+4,4)}, {vr(vnS+4,4)}, {vr(DI,16)}')
    a('s_waitcnt lgkmcnt(0)')
    a('s_cmp_eq_u32 s15, 0')
    a('s_cbranch_scc1 .b1_real1')
    for c in range(2):
        a(f'v_mfma_f32_32x32x16_bf16 {vr(DR,16)}, {vr(AI+4*c,4)}, {vr(vS+4*c,4)}, {vr(DR,16)}')
        a(f'v_mfma_f32_32x32x16_bf16 {vr(DI,16)}, {vr(AI+4*c,4)}, {vr(vC+4*c,4)}, {vr(DI,16)}')
    a('.b1_real1:')
    def tw(ib):
        prs = [2 * ib, 2 * ib + 1]
        for k, ip in enumerate(prs):
            r, i_, c_, s_ = DR + 2 * ip, DI + 2 * ip, tc + 2 * ip, ts + 2 * ip
            a(f'v_pk_mul_f32 {vr(T0+4*(ib&1)+2*k,2)}, {vr(i_,2)}, {vr(s_,2)}')
            a(f'v_pk_mul_f32 {vr(s_,2)}, {vr(r,2)}, {vr(s_,2)}')
        for k, ip in enumerate(prs):
            r, i_, c_, s_ = DR + 2 * ip, DI + 2 * ip, tc + 2 * ip, ts + 2 * ip
            a(f'v_pk_fma_f32 {vr(T0+4*(ib&1)+2*k,2)}, {vr(r,2)}, {vr(c_,2)}, {vr(T0+4*(ib&1)+2*k,2)}')
            a(f'v_pk_fma_f32 {vr(s_,2)}, {vr(i_,2)}, {vr(c_,2)}, {vr(s_,2)} neg_lo:[0,0,1] neg_hi:[0,0,1]')
    def pk(ib):
        for k, ip in enumerate((2 * ib, 2 * ib + 1)):
            t = T0 + 4 * (ib & 1) + 2 * k
            a(f'v_cvt_pk_bf16_f32 v{AR+ip}, v{t}, v{t+1}')
            a(f'v_cvt_pk_bf16_f32 v{AI+ip}, v{ts+2*ip}, v{ts+2*ip+1}')
    tw(0); tw(1); pk(0); pk(1); tw(2); tw(3); pk(2); pk(3)
    for c in range(2):
        z = '0' if c == 0 else None
        a(f'v_mfma_f32_32x32x16_bf16 {vr(DR,16)}, {vr(vC+4*c,4)}, {vr(AR+4*c,4)}, {z or vr(DR,16)}')
        a(f'v_mfma_f32_32x32x16_bf16 {vr(DI,16)}, {vr(vCt+4*c,4)}, {vr(AI+4*c,4)}, {z or vr(DI,16)}')
        a(f'v_mfma_f32_32x32x16_bf16 {vr(DR,16)}, {vr(vS+4*c,4)}, {vr(AI+4*c,4)}, {vr(DR,16)}')
        a(f'v_mfma_f32_32x32x16_bf16 {vr(DI,16)}, {vr(vnSt+4*c,4)}, {vr(AR+4*c,4)}, {vr(DI,16)}')
    a('s_cmp_eq_u32 s15, 0')
    a('s_cbranch_scc0 .b1_cplx2')
    a(f'''
    s_mov_b64 exec, 1
    v_mov_b32 v{DI}, v{DR+8}
    s_mov_b64 exec, -1
    s_branch .b1_lo
    ''')
    O = 64
    a('.b1_cplx2:')
    for i in range(8, 16):
        a(f'v_cvt_pk_bf16_f32 v{O+i}, v{DR+i}, v{DI+i}')
        a(f's_mov_b32 s5, {z_soff(i)}')
        a(f'buffer_store_dword v{O+i}, v{vhi}, s[48:51], s5 offen')
    a('.b1_lo:')
    for i in range(8):
        a(f'v_cvt_pk_bf16_f32 v{O+i}, v{DR+i}, v{DI+i}')
        a(f's_mov_b32 s5, {z_soff(i)}')
        a(f'buffer_store_dword v{O+i}, v{vlo}, s[48:51], s5 offen')
    stamp(a, 2)
    a('s_lshl_b32 s14, s2, 4')
    a('s_cmp_eq_u32 s3, 4')
    a('s_cbranch_scc0 .b2_start')
    a('s_waitcnt vmcnt(0)')
    publish(a, C_S1, 6, 14, 4)
    stamp(a, 3)
    poll_release(a, 64, C_R0, 4)
    stamp(a, 4)
    a('s_branch .b3_start')

    a('.b2_start:')
    WL = 144
    WM = 16
    WMr = [16 + k for k in range(16)] + [48 + k for k in range(8)]
    vW0, vW1, vZ, vL = 160, 161, 162, 163
    TM = 8
    a(f'''
    s_and_b32 s12, s2, 7
    s_lshr_b32 s13, s2, 3              ; G
    v_and_b32 v3, 15, v{lane}          ; n
    v_lshrrev_b32 v4, 4, v{lane}       ; g
    ''')
    srd(a, 52, P_WR, 2048 * 1026)
    srd(a, 56, P_WI, 2048 * 1026)
    a('s_waitcnt vmcnt(0)')
    publish(a, C_S1, 6, 14, 10)
    a('s_setprio 1')
    stamp(a, 3)
    a(f'''
    s_lshl_b32 s11, s12, 5
    s_add_u32 s11, s11, s13
    s_lshl_b32 s11, s11, 14
    v_lshlrev_b32 v5, 4, v{lane}
    s_lshl_b32 s4, s3, 12
    s_add_u32 s10, s4, {ZB}
    s_add_u32 s11, s11, s4
    v_add_u32 v{vL}, s10, v5
    v_bfe_u32 v15, v3, 2, 2
    v_add_u32 v15, s3, v15
    v_and_b32 v15, 3, v15
    v_lshlrev_b32 v15, 4, v15
    v_lshl_add_u32 v15, v3, 6, v15
    v_lshl_add_u32 v15, v4, 12, v15
    v_add_u32 v{vZ}, {ZB}, v15
    ''')
    B1R, B1I, A2R, A2I, B3R, B3I, A4R, A4I = 16, 20, 24, 28, 32, 36, 40, 44
    T1C, T1S, T3C, T3S = 48, 52, 56, 60
    nf, idx, q1, p_, c_, s_, p2, c2, s2_, p3, c3, s3_, k1_, k2_ = range(64, 78)
    scale = 2.0 / (2048 * 1024)
    a(f'''
    v_cvt_f32_u32 v{nf}, v3
    v_lshlrev_b32 v{idx}, 2, v4
    v_cvt_f32_u32 v{idx}, v{idx}
    v_cvt_f32_u32 v{k1_}, s12
    v_mul_f32 v{k1_}, {fhex(1/128)}, v{k1_}
    v_mul_f32 v{k2_}, {fhex(1/16)}, v{nf}
    v_add_f32 v{q1}, v{k2_}, v{k1_}
    v_mul_f32 v{k1_}, v{k1_}, v{nf}
    ''')
    for e in range(4):
        a(f'''
        v_mul_f32 v{p_}, v{idx}, v{q1}
        v_mul_f32 v{p2}, v{idx}, v{k2_}
        v_cos_f32 v{c_}, v{p_}
        v_sin_f32 v{s_}, v{p_}
        v_add_f32 v{p3}, v{p2}, v{k1_}
        v_cos_f32 v{c2}, v{p2}
        v_sin_f32 v{s2_}, v{p2}
        v_mul_f32 v{p_}, {fhex(1/16)}, v{p_}
        v_cos_f32 v{c3}, v{p3}
        v_sin_f32 v{s3_}, v{p3}
        v_mul_f32 v{p3}, {fhex(1/16)}, v{p3}
        v_cvt_pk_bf16_f32 v{B1R+e}, v{c_}, v{s_}
        v_cvt_pk_bf16_f32 v{B1I+e}, -v{s_}, v{c_}
        v_cos_f32 v{c_}, v{p_}
        v_sin_f32 v{s_}, v{p_}
        v_cvt_pk_bf16_f32 v{A2R+e}, v{c2}, v{s2_}
        v_cvt_pk_bf16_f32 v{A2I+e}, -v{s2_}, v{c2}
        v_cvt_pk_bf16_f32 v{B3R+e}, v{c2}, -v{s2_}
        v_cvt_pk_bf16_f32 v{B3I+e}, v{s2_}, v{c2}
        v_cos_f32 v{T3C+e}, v{p3}
        v_sin_f32 v{T3S+e}, v{p3}
        v_cvt_pk_bf16_f32 v{A4R+e}, v{c3}, -v{s3_}
        v_cvt_pk_bf16_f32 v{A4I+e}, v{s3_}, v{c3}
        v_mul_f32 v{T1C+e}, {fhex(scale)}, v{c_}
        v_mul_f32 v{T1S+e}, {fhex(scale)}, v{s_}
        v_add_f32 v{idx}, 1.0, v{idx}
        ''')
    X = 64; D = 80; WF = 112
    CWR = 144
    a(f'''
    s_mov_b32 s7, 0xffff0000
    s_mov_b32 s68, 0
    s_cmp_ge_u32 s12, 5
    s_cbranch_scc1 .b2_sp_hi
    s_or_b32 s4, s13, s3
    s_cmp_lg_u32 s4, 0
    s_cbranch_scc1 .b2_sp_done
    s_and_b32 s4, s12, 3
    s_cmp_eq_u32 s4, 0
    s_cselect_b32 s68, 3, 1
    s_branch .b2_sp_done
    .b2_sp_hi:
    s_cmp_lg_u32 s13, 31
    s_cbranch_scc1 .b2_sp_done
    s_cmp_lg_u32 s3, 3
    s_cbranch_scc1 .b2_sp_done
    s_mov_b32 s68, 2
    .b2_sp_done:
    ''')
    srd(a, 44, P_WS, 4 << 20, WS_Z1)
    srd(a, 48, P_WS, 4 << 20, WS_Z2)
    srd(a, 52, P_WS, 16384, WS_CW)
    a('s_mov_b32 m0, s10')
    stamp(a, 4)
    lds_wait(a, C_R0, 1, 10, slp=1)
    a('s_setprio 2')
    stamp(a, 5)
    for p in range(4):
        a(f'buffer_load_dwordx4 v5, s[44:47], s11 offen offset:{p*1024} sc1 lds')
    a('s_cmp_eq_u32 s68, 0')
    a('s_cbranch_scc1 .b2_nocw')
    a(f'''
    v_lshl_add_u32 v64, v4, 6, v3
    s_cmp_eq_u32 s12, 0
    s_cselect_b32 s4, 1, 0
    s_add_u32 s4, s4, 255
    v_sub_u32 v65, s4, v64
    s_sub_u32 s4, 8, s12
    s_and_b32 s4, s4, 7
    s_lshl_b32 s4, s4, 10
    s_add_u32 s5, s4, 8192
    s_cmp_eq_u32 s68, 2
    s_cselect_b32 s4, s5, s4
    s_lshl_b32 s6, s12, 10
    s_add_u32 s6, s6, 8192
    v_lshlrev_b32 v64, 2, v64
    ''')
    for i in range(4):
        a(f'''
        v_subrev_u32 v66, {16*i}, v65
        v_and_b32 v66, 255, v66
        v_lshlrev_b32 v66, 2, v66
        buffer_load_dword v{CWR+i}, v66, s[52:55], s4 offen sc1
        buffer_load_dword v{CWR+4+i}, v64, s[52:55], s6 offen offset:{64*i} sc1
        buffer_load_dword v{CWR+8+i}, v66, s[52:55], s5 offen sc1
        ''')
    a('.b2_nocw:')
    lds_wait(a, C_W, 1, 10)
    WLL = 80
    for i in range(4):
        a(f'ds_read_b128 {vr(WLL+4*i,4)}, v{vZ} offset:{WB-ZB+1024*i}')
    for i in range(4):
        a(f's_waitcnt lgkmcnt({3-i})')
        for part in range(2):
            for cp in range(2):
                src = WLL + 4 * i + 2 * part + cp
                a(f'v_lshlrev_b32 v{WF+8*(2*cp)+4*part+i}, 16, v{src}')
                a(f'v_and_b32 v{WF+8*(2*cp+1)+4*part+i}, s7, v{src}')
    a('s_waitcnt vmcnt(0)')
    lds_arrive(a, C_Z, 10)
    lds_wait(a, C_Z, 4, 10)
    stamp(a, 6)
    for e in range(4):
        a(f'ds_read_b128 {vr(D+4*e,4)}, v{vZ} offset:{1024*e}')
    for e in range(4):
        a(f's_waitcnt lgkmcnt({3-e})')
        for c in range(4):
            a(f'v_mov_b32 v{X+4*c+e}, v{D+4*e+c}')
    def stage(Mr, Mi, data_is_A):
        for c in range(4):
            for M, off in ((Mr, 0), (Mi, 4)):
                if data_is_A:
                    a(f'v_mfma_f32_16x16x32_bf16 {vr(D+8*c+off,4)}, {vr(X+4*c,4)}, {vr(M,4)}, 0')
                else:
                    a(f'v_mfma_f32_16x16x32_bf16 {vr(D+8*c+off,4)}, {vr(M,4)}, {vr(X+4*c,4)}, 0')
    def mulpack(cr_of, ci_of, conj):
        k = 0
        for c in range(4):
            for hp in range(2):
                t = TM + 4 * (k & 1); k += 1
                cmul_sc(a, t, t + 2, D + 8 * c + 2 * hp, D + 8 * c + 4 + 2 * hp, cr_of(c) + 2 * hp, ci_of(c) + 2 * hp, conj)
                a(f'v_cvt_pk_bf16_f32 v{X+4*c+2*hp}, v{t}, v{t+2}')
                a(f'v_cvt_pk_bf16_f32 v{X+4*c+2*hp+1}, v{t+1}, v{t+3}')
    stage(B1R, B1I, True)
    mulpack(lambda c: T1C, lambda c: T1S, True)
    stage(A2R, A2I, False)
    a('s_cmp_eq_u32 s68, 0')
    a('s_cbranch_scc1 .b2_noreal')
    a('s_cmp_eq_u32 s68, 2')
    a('s_cbranch_scc1 .b2_patch_hi')
    def patch(c):
        for i in range(4):
            a(f'v_lshlrev_b32 v{TM}, 16, v{CWR+i}')
            a(f'v_and_b32 v{TM+1}, s7, v{CWR+i}')
            a(f'v_add_f32 v{WF+8*c+i}, v{WF+8*c+i}, v{TM}')
            a(f'v_sub_f32 v{WF+8*c+4+i}, v{WF+8*c+4+i}, v{TM+1}')
        for i in range(8):
            a(f'v_mul_f32 v{WF+8*c+i}, 0.5, v{WF+8*c+i}')
    patch(0)
    a('s_cmp_eq_u32 s68, 1')
    a('s_cbranch_scc1 .b2_noreal')
    ZM, PQ = 16, 24
    QQ = 48
    a(f'''
    v_lshl_add_u32 v{TM}, v4, 6, v3
    s_lshr_b32 s4, s12, 2
    s_sub_u32 s4, 256, s4
    v_sub_u32 v{TM+1}, s4, v{TM}
    v_lshlrev_b32 v{TM}, 2, v{TM}
    v_add_u32 v{TM}, {SCR}, v{TM}
    ''')
    for i in range(4):
        a(f'ds_write_b32 v{TM}, v{D+i} offset:{64*i}')
        a(f'ds_write_b32 v{TM}, v{D+4+i} offset:{1024+64*i}')
    for i in range(4):
        a(f'''
        v_subrev_u32 v{TM+2}, {16*i}, v{TM+1}
        v_and_b32 v{TM+2}, 255, v{TM+2}
        v_lshlrev_b32 v{TM+2}, 2, v{TM+2}
        v_add_u32 v{TM+2}, {SCR}, v{TM+2}
        ds_read_b32 v{ZM+i}, v{TM+2}
        ds_read_b32 v{ZM+4+i}, v{TM+2} offset:1024
        ''')
    for i in range(4):
        a(f'''
        v_lshlrev_b32 v{TM+4}, 16, v{CWR+4+i}
        v_lshlrev_b32 v{TM+5}, 16, v{CWR+8+i}
        v_and_b32 v{TM+6}, s7, v{CWR+4+i}
        v_and_b32 v{TM+7}, s7, v{CWR+8+i}
        v_add_f32 v{TM+4}, v{TM+4}, v{TM+5}
        v_sub_f32 v{TM+6}, v{TM+6}, v{TM+7}
        v_mul_f32 v{TM+4}, {fhex(0.125)}, v{TM+4}
        v_mul_f32 v{TM+6}, {fhex(0.125)}, v{TM+6}
        v_mul_f32 v{WF+i}, {fhex(0.25)}, v{WF+i}
        v_mul_f32 v{WF+4+i}, {fhex(0.25)}, v{WF+4+i}
        v_add_f32 v{PQ+i}, v{WF+i}, v{TM+4}
        v_add_f32 v{PQ+4+i}, v{WF+4+i}, v{TM+6}
        v_sub_f32 v{QQ+i}, v{WF+i}, v{TM+4}
        v_sub_f32 v{QQ+4+i}, v{WF+4+i}, v{TM+6}
        v_mov_b32 v{WF+i}, 1.0
        v_mov_b32 v{WF+4+i}, 0
        ''')
    a('s_waitcnt lgkmcnt(0)')
    for i in range(4):
        zr, zi, mr, mi = D + i, D + 4 + i, ZM + i, ZM + 4 + i
        pr, pi, qr, qi = PQ + i, PQ + 4 + i, QQ + i, QQ + 4 + i
        a(f'''
        v_mul_f32 v{TM}, v{zr}, v{pr}
        v_mul_f32 v{TM+1}, v{zr}, v{pi}
        v_fma_f32 v{TM}, -v{zi}, v{pi}, v{TM}
        v_fmac_f32 v{TM+1}, v{zi}, v{pr}
        v_fmac_f32 v{TM}, v{mr}, v{qr}
        v_fmac_f32 v{TM+1}, v{mr}, v{qi}
        v_fma_f32 v{zr}, v{mi}, v{qi}, v{TM}
        v_fma_f32 v{zi}, -v{mi}, v{qr}, v{TM+1}
        ''')
    a('s_branch .b2_noreal')
    a('.b2_patch_hi:')
    patch(3)
    a('.b2_noreal:')
    mulpack(lambda c: WF + 8 * c, lambda c: WF + 8 * c + 4, False)
    stage(B3R, B3I, True)
    mulpack(lambda c: T3C, lambda c: T3S, False)
    stage(A4R, A4I, False)
    for i in range(4):
        for c in range(4):
            a(f'v_cvt_pk_bf16_f32 v{X+4*i+c}, v{D+8*c+i}, v{D+8*c+4+i}')
        a(f'ds_write_b128 v{vZ}, {vr(X+4*i,4)} offset:{1024*i}')
    lds_arrive(a, C_O, 10)
    lds_wait(a, C_O, 4, 10)
    stamp(a, 7)
    for p in range(4):
        a(f'ds_read_b128 {vr(X+4*p,4)}, v{vL} offset:{1024*p}')
    for p in range(4):
        a(f's_waitcnt lgkmcnt({3-p})')
        a(f'buffer_store_dwordx4 {vr(X+4*p,4)}, v5, s[48:51], s11 offen offset:{1024*p}')
    a('s_add_u32 s14, s14, 4096')
    a('s_waitcnt vmcnt(0)')
    publish(a, C_S2, 4, 14, 10)
    stamp(a, 8)

    a('.b3_start:')
    a('s_setprio 1')
    X = 16
    G8 = 8
    MR, MI, NR, NI, tc, ts = 80, 96, 112 - 8, 120 - 8, 128, 144
    kf, arg, a2, c0, s0, k5 = range(74, 80)
    tab_init(kf, arg, k5)
    for i in range(16):
        a(f'v_cos_f32 v{c0}, v{arg}')
        a(f'v_sin_f32 v{s0}, v{arg}')
        a(f'v_mul_f32 v{a2}, {fhex(1/32)}, v{arg}')
        a(f'v_cos_f32 v{tc+i}, v{a2}')
        a(f'v_sin_f32 v{ts+i}, v{a2}')
        if i != 15:
            a(f'v_add_f32 v{arg}, v{arg}, v{k5 if (i & 3) == 3 else kf}')
        a(f'v_cvt_pk_bf16_f32 v{MR+i}, v{c0}, -v{s0}')
        a(f'v_cvt_pk_bf16_f32 v{MI+i}, v{s0}, v{c0}')
        if i >= 8:
            a(f'v_cvt_pk_bf16_f32 v{NR+i}, v{c0}, v{s0}')
            a(f'v_cvt_pk_bf16_f32 v{NI+i}, v{s0}, -v{c0}')
    gen_dft8_frags(a, lane, G8, 64, False)
    a(f'''
    v_and_b32 v6, 31, v{lane}
    v_lshlrev_b32 v6, 2, v6
    v_lshrrev_b32 v7, 5, v{lane}
    v_lshl_add_u32 v6, v7, 9, v6
    s_lshl_b32 s4, s8, 12
    s_cmp_eq_u32 s8, 4
    s_cselect_b32 s4, 2, s4
    v_add_u32 v6, s4, v6
    ''')
    srd(a, 44, P_WS, 4 << 20, WS_Z2)
    srd(a, 48, P_OUT, 8 << 20)
    a('s_cmp_eq_u32 s3, 4')
    a('s_cbranch_scc0 .b3_wait')
    lds_wait(a, C_S2, 4, 4, slp=2)
    poll_release(a, 128, C_R1, 4)
    a('.b3_wait:')
    stamp(a, 9)
    lds_wait(a, C_R1, 1, 4, slp=1)
    a('s_setprio 2')
    stamp(a, 10)
    for i in range(8):
        a(f's_mov_b32 s5, {z_soff(i)}')
        a(f'buffer_load_dword v{X+i}, v{vlo}, s[44:47], s5 offen sc1')
    a('s_cmp_eq_u32 s15, 0')
    a('s_cbranch_scc1 .b3_real_noload')
    for i in range(8, 16):
        a(f's_mov_b32 s5, {z_soff(i)}')
        a(f'buffer_load_dword v{X+i}, v{vhi}, s[44:47], s5 offen sc1')
    a('.b3_real_noload:')
    DR, DI, T0 = 32, 48, 64
    a('s_waitcnt vmcnt(0)')
    stamp(a, 11)
    a('s_cmp_eq_u32 s15, 0')
    a('s_cbranch_scc0 .b3_cplx1')
    for i in range(8, 16): a(f'v_mov_b32 v{X+i}, 0')
    a(f'''
    s_mov_b64 exec, 1
    v_lshrrev_b32 v{X+8}, 16, v{X}
    s_mov_b64 exec, -1
    ''')
    a('.b3_cplx1:')
    for c in range(4):
        br, bi = (MR + 4 * c, MI + 4 * c) if c < 2 else (NR + 4 * c, NI + 4 * c)
        a(f'v_mfma_f32_32x32x16_bf16 {vr(DR,16)}, {vr(X+4*c,4)}, {vr(br,4)}, ' + ('0' if c == 0 else vr(DR, 16)))
        a(f'v_mfma_f32_32x32x16_bf16 {vr(DI,16)}, {vr(X+4*c,4)}, {vr(bi,4)}, ' + ('0' if c == 0 else vr(DI, 16)))
    for ib in range(4):
        for k in range(2):
            ip = 2 * ib + k; t = T0 + 8 * (ib & 1) + 4 * k
            a(f'v_pk_mul_f32 {vr(t,2)}, {vr(DI+2*ip,2)}, {vr(ts+2*ip,2)}')
            a(f'v_pk_mul_f32 {vr(t+2,2)}, {vr(DR+2*ip,2)}, {vr(ts+2*ip,2)}')
        for k in range(2):
            ip = 2 * ib + k; t = T0 + 8 * (ib & 1) + 4 * k
            a(f'v_pk_fma_f32 {vr(t,2)}, {vr(DR+2*ip,2)}, {vr(tc+2*ip,2)}, {vr(t,2)} neg_lo:[0,0,1] neg_hi:[0,0,1]')
            a(f'v_pk_fma_f32 {vr(t+2,2)}, {vr(DI+2*ip,2)}, {vr(tc+2*ip,2)}, {vr(t+2,2)}')
        for k in range(2):
            ip = 2 * ib + k; t = T0 + 8 * (ib & 1) + 4 * k
            a(f'v_cvt_pk_bf16_f32 v{X+2*ip}, v{t}, v{t+2}')
            a(f'v_cvt_pk_bf16_f32 v{X+2*ip+1}, v{t+1}, v{t+3}')
    for c in range(4):
        a(f'v_mfma_f32_32x32x16_bf16 {vr(DR,16)}, {vr(MR+4*c,4)}, {vr(X+4*c,4)}, ' + ('0' if c == 0 else vr(DR, 16)))
    a('s_cmp_eq_u32 s15, 0')
    a('s_cbranch_scc1 .b3_real2')
    for c in range(4):
        a(f'v_mfma_f32_32x32x16_bf16 {vr(DI,16)}, {vr(MI+4*c,4)}, {vr(X+4*c,4)}, ' + ('0' if c == 0 else vr(DI, 16)))
    for i in range(16):
        a(f'v_cvt_pk_bf16_f32 v{T0+i}, v{DR+i}, v{DI+i}')
        a(f'ds_write_b32 v6, v{T0+i} offset:{ZB+(8*(i>>2)+(i&3))*128}')
    a('s_branch .b3_join')
    a('.b3_real2:')
    for ip in range(8):
        i = 2 * ip
        a(f'v_cvt_pk_bf16_f32 v{T0+ip}, v{DR+i}, v{DR+i+1}')
        a(f'ds_write_b16 v6, v{T0+ip} offset:{ZB+(8*(i>>2)+(i&3))*128}')
        a(f'ds_write_b16_d16_hi v6, v{T0+ip} offset:{ZB+(8*(i>>2)+(i&3)+1)*128}')
    a('.b3_join:')
    lds_arrive(a, C_L3, 4)
    a('s_cmp_eq_u32 s3, 4')
    a(f's_cbranch_scc1 .b3_end')
    lds_wait(a, C_L3, 5, 4)
    a('v_lshlrev_b32 v6, 4, v0')
    DD = 32
    for p in range(4):
        a(f'ds_read_b128 {vr(64+4*p,4)}, v6 offset:{ZB+4096*p}')
    a(f'''
    s_lshl_b32 s4, s2, 12
    s_add_u32 s4, s4, 2048
    v_lshlrev_b32 v7, 3, v0
    v_add_u32 v7, s4, v7
    ''')
    for p in range(4):
        a(f's_waitcnt lgkmcnt({3-p})')
        for e in range(4):
            a(f'v_mov_b32 v{X+4*e+p}, v{64+4*p+e}')
    for e in range(4):
        for hf in range(2):
            a(f'v_mfma_f32_16x16x32_bf16 {vr(DD+8*e+4*hf,4)}, {vr(G8+4*hf,4)}, {vr(X+4*e,4)}, 0')
    for s1 in range(8):
        a(f'v_cvt_pk_bf16_f32 v{64+2*s1}, v{DD+s1}, v{DD+8+s1}')
        a(f'v_cvt_pk_bf16_f32 v{65+2*s1}, v{DD+16+s1}, v{DD+24+s1}')
        a(f's_mov_b32 s5, {s1*256*4096}')
        a(f'buffer_store_dwordx2 {vr(64+2*s1,2)}, v7, s[48:51], s5 offen')
    a('.b3_end:')
    stamp(a, 12)
    stamp_flush(a, 0, 13)
    a('s_endpgm')

def gen_T(a, lane):
    a('.role_t:')
    a(f'''
    s_setprio 2
    s_sub_u32 s8, s3, 5
    s_and_b32 s9, s2, 15
    s_lshl_b32 s9, s9, 1
    s_add_u32 s9, s9, s8
    s_lshl_b32 s9, s9, 4
    s_lshr_b32 s11, s2, 4
    s_add_u32 s9, s9, s11
    s_mul_i32 s10, s8, {64*144}
    s_add_u32 s10, s10, {TRB}
    s_lshl_b32 s14, s2, 4
    s_add_u32 s14, s14, 8192
    s_lshl_b32 s15, s11, 8
    s_add_u32 s15, s15, 8192
    s_waitcnt lgkmcnt(0)
    s_barrier
    ''')
    srd(a, 44, P_U, 4 << 20)
    srd(a, 48, P_WS, 1024 * UP, WS_UT)
    TP = gen_transposer(a, lane, 9, 44, 48, 10, 2048, UP, 'u')
    lds_arrive(a, C_TL, 10)
    gen_transposer_tail(a, lane, 48, 10, UP, 64, TP)
    stamp(a, 1)
    a('s_waitcnt vmcnt(0)')
    publish(a, C_T1, 2, 14, 10)
    stamp(a, 2)
    a('s_cmp_eq_u32 s8, 0')
    a('s_cbranch_scc0 .t_second')
    poll_group(a, lane, 15, C_G0, 10)
    stamp(a, 3)
    lds_wait(a, C_CV, 4, 10, slp=4)
    a('s_add_u32 s15, s15, 4096')
    poll_group(a, lane, 15, C_G1, 10)
    a('s_branch .t_third')
    a('.t_second:')
    a(f's_cmp_eq_u32 s2, {M0}')
    a('s_cbranch_scc0 .t_third')
    lds_wait(a, C_NONCE, 1, 10, slp=1, sreg=5)
    lds_wait(a, C_S1, 6, 10, slp=1)
    master(a, lane, '0', 0, 64)
    a('.t_third:')
    lds_wait(a, C_G1, 1, 10, slp=2)
    lds_wait(a, C_O, 4, 10, slp=1)
    stamp(a, 4)
    srd(a, 44, P_WS, 4 << 20, WS_YT)
    srd(a, 48, P_OUT, 8 << 20)
    n0 = len(a.items)
    TP = gen_transposer(a, lane, 9, 44, 48, 10, 4096, 4096, 'y')
    from asmlib import Ins
    for k in range(n0, len(a.items)):
        kind, it = a.items[k]
        if kind == 'i' and it.op.startswith('buffer_load'):
            a.items[k] = ('i', Ins(it.text + ' sc1'))
    gen_transposer_tail(a, lane, 48, 10, 4096, 0, TP, ymode=True)
    stamp(a, 5)
    stamp_flush(a, 0, 6)
    a('s_endpgm')

def master(a, lane, tag, flag_off, rel_off):
    srd(a, 60, P_WS, 16384, WS_FLG)
    srd(a, 64, P_DBG, 256)
    a(f'v_lshlrev_b32 v6, 4, v{lane}')
    a(f'v_mov_b32 v4, 0')
    a(f's_mov_b32 s6, {SPIN_MAX}')
    a(f's_mov_b32 s7, {flag_off}')
    a(f'.m_loop{tag}:')
    for i in range(4):
        a(f'buffer_load_dword v{8+i}, v6, s[60:63], s7 offen offset:{1024*i} sc1')
    a(f'''
    s_waitcnt vmcnt(0)
    v_xor_b32 v8, s5, v8
    v_xor_b32 v9, s5, v9
    v_xor_b32 v10, s5, v10
    v_xor_b32 v11, s5, v11
    v_or_b32 v8, v8, v9
    v_or3_b32 v8, v8, v10, v11
    v_cmp_ne_u32 vcc, 0, v8
    s_cmp_eq_u64 vcc, 0
    s_cbranch_scc1 .m_rel{tag}
    s_sub_u32 s6, s6, 1
    s_cmp_lg_u32 s6, 0
    s_cbranch_scc1 .m_loop{tag}
    .m_rel{tag}:
    v_mov_b32 v8, 1
    s_mov_b64 exec, 1
    buffer_store_dword v8, v4, s[64:67], 0 offen offset:{rel_off}
    s_mov_b64 exec, -1
    ''')

M0, M1 = 74, 139

def gen_M(a, lane):
    a('.role_m:')
    a(f'''
    s_setprio 3
    v_lshlrev_b32 v4, 4, v{lane}
    v_add_u32 v4, {CNT}, v4
    v_mov_b32 v8, 0
    v_mov_b32 v9, 0
    v_mov_b32 v10, 0
    v_mov_b32 v11, 0
    s_mov_b64 exec, 0xff
    ds_write_b128 v4, v[8:11]
    s_mov_b64 exec, -1
    s_memrealtime s[8:9]
    s_waitcnt lgkmcnt(0)
    ''')
    srd(a, 64, P_DBG, 256)
    a(f'''
    v_mov_b32 v4, 0
    s_or_b32 s5, s8, 1
    s_cmp_lg_u32 s2, 0
    s_cbranch_scc1 .m_nostore
    v_mov_b32 v5, s5
    s_mov_b64 exec, 1
    buffer_store_dword v5, v4, s[64:67], 0 offen
    s_mov_b64 exec, -1
    .m_nostore:
    s_barrier
    s_cmp_eq_u32 s2, 0
    s_cbranch_scc1 .m_got
    s_mov_b32 s6, {SPIN_MAX}
    .m_poll:
    buffer_load_dword v5, v4, s[64:67], 0 offen sc1
    s_waitcnt vmcnt(0)
    v_readfirstlane_b32 s5, v5
    s_cmp_lg_u32 s5, 0
    s_cbranch_scc1 .m_got
    s_sub_u32 s6, s6, 1
    s_cmp_lg_u32 s6, 0
    s_cbranch_scc1 .m_poll
    s_mov_b32 s5, 1
    .m_got:
    v_mov_b32 v6, {CNT+4*C_NONCE}
    v_mov_b32 v5, s5
    ds_write_b32 v6, v5
    ''')
    stamp(a, 1)
    srd(a, 52, P_WR, 2048 * 1026)
    srd(a, 56, P_WI, 2048 * 1026)
    a(f'''
    s_setprio 1
    s_and_b32 s12, s2, 7
    s_lshr_b32 s13, s2, 3
    ''')
    srd(a, 48, P_WS, 16384, WS_CW)
    a(f'''
    v_and_b32 v7, 7, v{lane}
    v_mul_u32_u24 v8, 1026, v7
    v_bfe_u32 v9, v{lane}, 3, 1
    v_lshl_add_u32 v8, v9, 10, v8
    s_mul_i32 s4, s2, 8208
    v_and_b32 v9, 15, v{lane}
    v_lshlrev_b32 v9, 10, v9
    s_lshl_b32 s7, s2, 2
    s_lshl_b32 s14, s2, 4
    s_mov_b64 exec, 0xffff
    buffer_load_ushort v20, v8, s[52:55], s4 offen
    buffer_load_ushort v21, v8, s[56:59], s4 offen
    s_waitcnt vmcnt(0)
    v_lshl_or_b32 v20, v21, 16, v20
    buffer_store_dword v20, v9, s[48:51], s7 offen
    s_mov_b64 exec, -1
    s_waitcnt vmcnt(0)
    s_mov_b32 s69, s5
    ''')
    publish(a, C_S1, 6, 14, 12)
    a('s_mov_b32 s5, s69')
    if os.environ.get('WPF', '0') == '1':
        a(f'''
        v_lshrrev_b32 v7, 3, v{lane}
        v_mul_u32_u24 v7, 8208, v7
        v_and_b32 v8, 7, v{lane}
        v_lshl_add_u32 v7, v8, 7, v7
        s_mul_i32 s4, s13, {8*8208}
        s_mul_i32 s7, s12, 1026
        s_add_u32 s4, s4, s7
        s_and_b32 s4, s4, 0xfffffffc
        ''')
        lds_wait(a, C_PA, 4, 12, slp=2, sreg=7)
        a(f'''
        buffer_load_dword v20, v7, s[52:55], s4 offen
        buffer_load_dword v21, v7, s[56:59], s4 offen
        buffer_load_dword v22, v7, s[52:55], s4 offen offset:124
        buffer_load_dword v23, v7, s[56:59], s4 offen offset:124
        ''')
    a(f'''
    v_lshrrev_b32 v7, 1, v{lane}
    v_lshlrev_b32 v8, 3, v7
    v_add_u32 v8, s12, v8
    v_mul_u32_u24 v8, 1026, v8
    v_and_b32 v9, 1, v{lane}
    v_lshl_add_u32 v8, v9, 4, v8
    s_lshl_b32 s11, s13, 5
    s_cmp_ge_u32 s12, 5
    s_cselect_b32 s7, 2, 0
    s_add_u32 s11, s11, s7
    v_bfe_u32 v15, v{lane}, 3, 2
    v_lshl_add_u32 v15, v9, 1, v15
    v_and_b32 v14, 3, v15
    v_add_u32 v15, 1, v15
    v_and_b32 v15, 3, v15
    v_lshlrev_b32 v7, 6, v7
    v_add_u32 v7, {WB}, v7
    v_lshl_add_u32 v16, v14, 4, v7
    v_lshl_add_u32 v17, v15, 4, v7
    ''')
    lds_wait(a, C_UL, 4, 12, slp=2)
    lds_wait(a, C_S1, 6, 12, slp=2)
    stamp(a, 2)
    WL = 32
    for q in range(8):
        a(f'buffer_load_dwordx4 {vr(WL+8*q,4)}, v8, s[52:55], s11 offen')
        a(f'buffer_load_dwordx4 {vr(WL+8*q+4,4)}, v8, s[56:59], s11 offen')
        if q < 7: a(f's_add_u32 s11, s11, {32*8*1026}')
    for q in range(8):
        a(f's_waitcnt vmcnt({14-2*q})')
        for ar in range(2):
            r = WL + 8 * q + 4 * ar
            a(f'ds_write_b64 v16, {vr(r,2)} offset:{q*2048+ar*8}')
            a(f'ds_write_b64 v17, {vr(r+2,2)} offset:{q*2048+ar*8}')
    lds_arrive(a, C_W, 12)
    stamp(a, 3)
    a(f's_cmp_eq_u32 s2, {M1}')
    a('s_cbranch_scc0 .m_end')
    lds_wait(a, C_S2, 4, 12, slp=2)
    a('s_setprio 3')
    master(a, lane, '1', 4096, 128)
    a('.m_end:')
    stamp(a, 4)
    stamp_flush(a, 0, 5)
    a('s_endpgm')

def gen_A(a, lane):
    a('.role_a:')
    KB = 32
    UR = 128
    a(f'''
    s_and_b32 s10, s3, 3
    s_lshl_b32 s9, s2, 2
    s_add_u32 s9, s9, s10           ; channel
    s_mul_i32 s10, s10, {CH_REG}
    s_add_u32 s10, s10, {CH0}
    s_lshl_b32 s68, s9, 8
    s_lshl_b32 s69, s9, 1
    v_lshlrev_b32 v{KB+5}, 3, v{lane}
    v_add_u32 v{KB+5}, s10, v{KB+5}
    v_lshlrev_b32 v{KB+3}, 2, v{lane}
    v_mov_b32 v{KB+4}, 0
    v_lshlrev_b32 v3, 4, v{lane}
    s_mul_i32 s15, s9, {UP}
    s_add_u32 s15, s15, 64
    v_add_u32 v23, s10, v3
    s_lshl_b32 s14, s2, 4
    s_add_u32 s14, s14, 12288
    v_and_b32 v4, 31, v{lane}             ; b
    v_lshrrev_b32 v5, 5, v{lane}          ; h
    v_lshlrev_b32 v6, 4, v4
    s_add_u32 s11, s10, {CV_K}
    v_sub_u32 v6, s11, v6
    v_lshlrev_b32 v7, 3, v5
    v_sub_u32 v20, v6, v7
    v_lshlrev_b32 v7, 9, v5
    v_sub_u32 v21, v6, v7
    v_sub_u32 v22, v21, v7
    v_add_u32 v22, {2*760}, v22
    v_add_u32 v21, {2*1528}, v21
    v_add_u32 v20, {2*1788}, v20
    ''')
    vKA, vKB = 18, 19
    a(f'''
    v_lshlrev_b32 v7, 4, v5
    v_add_u32 v7, s10, v7
    v_add_u32 v6, 28, v4
    v_mul_u32_u24 v6, {KP}, v6
    v_add_u32 v{vKB}, v6, v7
    v_mov_b32 v6, v4
    ''')
    for thr in (11, 15, 19, 23):
        a(f'v_cmp_lt_u32 vcc, {thr}, v4')
        a(f'v_subbrev_co_u32 v6, vcc, 0, v6, vcc')
    vF, vG = 24, 25
    a(f'''
    v_mul_u32_u24 v6, {KP}, v6
    v_add_u32 v{vKA}, v6, v7
    v_and_b32 v7, 1, v4
    v_cmp_eq_u32 s[70:71], 1, v7          ; odd b
    v_and_b32 v26, 15, v{lane}
    v_lshrrev_b32 v27, 4, v{lane}
    v_lshlrev_b32 v28, 4, v27
    v_lshlrev_b32 v29, 3, v26
    v_sub_u32 v{vF}, v28, v29
    s_add_u32 s6, s11, {2*2044-3968}
    v_add_u32 v{vF}, s6, v{vF}
    v_and_b32 v30, 3, v26
    v_mul_u32_u24 v30, {CS}, v30
    v_lshrrev_b32 v31, 2, v26
    v_lshl_add_u32 v30, v31, 7, v30
    v_add3_u32 v{vG}, v30, v28, s10
    s_waitcnt lgkmcnt(0)
    ''')
    srd(a, 44, P_LOGA, 1024 * 256)
    srd(a, 48, P_LOGDT, 2048)
    srd(a, 52, P_AIM, 1024 * 256)
    a(f'buffer_load_dword v8, v{KB+3}, s[44:47], s68 offen')
    a(f'buffer_load_ushort v12, v{KB+4}, s[48:51], s69 offen')
    a(f'buffer_load_dword v9, v{KB+3}, s[52:55], s68 offen')
    srd(a, 44, P_CRE, 1024 * 256)
    srd(a, 48, P_CIM, 1024 * 256)
    srd(a, 52, P_DSKIP, 2048)
    a(f'buffer_load_dword v10, v{KB+3}, s[44:47], s68 offen')
    a(f'buffer_load_dword v11, v{KB+3}, s[48:51], s68 offen')
    a(f'buffer_load_ushort v17, v{KB+4}, s[52:55], s69 offen')
    a('s_barrier')
    a('s_waitcnt vmcnt(0)')
    stamp(a, 1)
    for part in range(2):
        for k in range(5): a(f'v_mov_b32 v{KB+8+k}, v{8+k}')
        gen_kgen(a, part, KB, KB + 5, 's_nop 0', 's_nop 0')
    a('s_waitcnt lgkmcnt(0)')
    stamp(a, 2)
    D = 32
    FB = 64
    def rd(kk):
        b = FB + 8 * (kk & 7)
        a(f'ds_read_b128 {vr(b,4)}, v{vKA} offset:{kk*32}')
        a(f'ds_read_b128 {vr(b+4,4)}, v{vKB} offset:{kk*32}')
    for kk in range(6): rd(kk)
    for kk in range(16):
        b = FB + 8 * (kk & 7)
        rem = min(5, 15 - kk)
        a(f's_waitcnt lgkmcnt({2*rem})')
        a(f'v_mfma_f32_32x32x16_bf16 {vr(D,16)}, {vr(b,4)}, {vr(b+4,4)}, ' + ('0' if kk == 0 else vr(D, 16)))
        if kk + 6 < 16: rd(kk + 6)
    a(f'''
    v_mov_b32 v8, 0
    v_mov_b32 v9, 0
    v_mov_b32 v10, 0
    v_mov_b32 v11, 0
    s_mov_b64 exec, 0xffffff
    ''')
    for c in range(4):
        a(f'ds_write_b128 v23, v[8:11] offset:{c*CS}')
    E = 128
    a(f'''
    s_mov_b64 exec, 0xff
    ds_write_b128 v23, v[8:11] offset:{CV_K+4096}
    s_mov_b64 exec, -1
    v_lshlrev_b32 v17, 16, v17
    s_mov_b64 exec, 1
    v_add_f32 v{D}, v{D}, v17
    s_mov_b64 exec, -1
    v_cvt_pk_bf16_f32 v{E}, v{D+3}, v{D+2}
    v_cvt_pk_bf16_f32 v{E+1}, v{D+1}, v{D}
    ds_write_b64 v20, {vr(E,2)} offset:512
    v_cvt_pk_bf16_f32 v{E+2}, v{D+6}, v{D+5}
    v_cvt_pk_bf16_f32 v{E+3}, v{D+4}, v{D+4}
    ds_write_b64 v20, {vr(E+2,2)}
    v_cvt_pk_bf16_f32 v{E+4}, v{D+10}, v{D+10}
    v_cvt_pk_bf16_f32 v{E+5}, v{D+9}, v{D+9}
    v_cvt_pk_bf16_f32 v{E+6}, v{D+9}, v{D+8}
    v_cvt_pk_bf16_f32 v{E+7}, v{D+8}, v{D+8}
    ds_write_b128 v21, {vr(E+4,4)}
    ''')
    for j in range(2):
        x, z, q = D + 12 + 2 * j, D + 13 + 2 * j, E + 8 + 4 * j
        a(f'''
        v_cndmask_b32 v{D+7}, v{x}, v{z}, s[70:71]
        v_cvt_pk_bf16_f32 v{q}, v{z}, v{z}
        v_cvt_pk_bf16_f32 v{q+1}, v{z}, v{D+7}
        v_cvt_pk_bf16_f32 v{q+2}, v{x}, v{x}
        v_cvt_pk_bf16_f32 v{q+3}, v{x}, v{x}
        ds_write_b128 v22, {vr(q,4)} offset:{512*(1-j)}
        ''')
    ACC = 32
    a('s_waitcnt lgkmcnt(0)')
    for k in range(32): a(f'v_mov_b32 v{ACC+k}, 0')
    a(f'v_mov_b32 v{UR}, 0')
    a(f'v_mov_b32 v{UR+1}, 0')
    srd(a, 44, P_WS, 1024 * UP, WS_UT)
    srd(a, 52, P_WS, 4 << 20, WS_YT)
    a('s_lshl_b32 s13, s9, 12')
    stamp(a, 3)
    lds_wait(a, C_G0, 1, 8, slp=1)
    a('s_setprio 3')
    stamp(a, 4)
    for p in range(4):
        a(f'buffer_load_dwordx4 {vr(UR+8*p+2,4)}, v3, s[44:47], s15 offen offset:{p*1024} sc1')
    lds_arrive(a, C_UL, 8)
    dpp = 'row_mask:0xf bank_mask:0xf'
    Q = 64
    for p in range(4):
        r = UR + 8 * p
        q = Q + 12 * p
        a(f's_waitcnt vmcnt({3-p})')
        a(f'ds_write_b128 v23, {vr(r+2,4)} offset:{384 + 3*CS + 1024*p}')
        a(f'v_mov_b32_dpp v{r}, v{r+4} wave_shr:1 {dpp}')
        a(f'v_mov_b32_dpp v{r+1}, v{r+5} wave_shr:1 {dpp}')
        if p < 3:
            a(f'v_mov_b32_dpp v{r+8}, v{r+4} wave_ror:1 {dpp}')
            a(f'v_mov_b32_dpp v{r+9}, v{r+5} wave_ror:1 {dpp}')
        for j in range(4):
            a(f'v_mov_b32 v{q+8+j}, v{r+1+j}')
        a(f'ds_write_b128 v23, {vr(q+8,4)} offset:{384 + 1*CS + 1024*p}')
        for j in range(4):
            a(f'v_alignbit_b32 v{q+j}, v{r+j+1}, v{r+j}, 16')
        a(f'ds_write_b128 v23, {vr(q,4)} offset:{384 + 1024*p}')
        for j in range(3):
            a(f'v_mov_b32 v{q+4+j}, v{q+1+j}')
        a(f'v_alignbit_b32 v{q+7}, v{r+5}, v{r+4}, 16')
        a(f'ds_write_b128 v23, {vr(q+4,4)} offset:{384 + 2*CS + 1024*p}')
    G0, F0 = 64, 96
    def ld(kind, idx, off):
        if kind == 'G':
            return [f'ds_read_b128 {vr(G0+4*idx,4)}, v{vG} offset:{512*idx+off}']
        return [f'ds_read_b64 {vr(F0+4*idx,2)}, v{vF} offset:{512*(7-idx)+off}', f'ds_read_b64 {vr(F0+4*idx+2,2)}, v{vF} offset:{512*(7-idx)+off+8}']
    even = [(i, c) for i in range(8) for c in range(7 - i, -1, -1)]
    odd = [(i, c) for c in range(7, -1, -1) for i in range(8 - c)]
    def plan(seq):
        lastG, lastF = {}, {}
        for n, (i, c) in enumerate(seq): lastG[i] = n; lastF[c] = n
        rel = {}
        for i, n in lastG.items(): rel.setdefault(n, []).append(('G', i))
        for c, n in lastF.items(): rel.setdefault(n, []).append(('F', c))
        return rel
    rel_e, rel_o = plan(even), plan(odd)
    order0 = [x for n in range(36) for x in rel_o.get(n, [])]
    a('s_waitcnt lgkmcnt(0)')
    stamp(a, 5)
    queue = []
    for kind, idx in order0:
        for ins in ld(kind, idx, 0):
            a(ins); queue.append((kind, idx))
    a('s_mov_b32 s12, 0')
    a('s_setprio 0')
    a('.cv_loop:')
    q0 = list(queue)
    for seq, rel, off in ((even, rel_e, 64), (odd, rel_o, 128)):
        for n, (i, c) in enumerate(seq):
            need = [k for k, x in enumerate(queue) if x in (('G', i), ('F', c))]
            if need:
                left = len(queue) - 1 - max(need)
                a(f's_waitcnt lgkmcnt({min(left, 15)})')
                queue = queue[max(need) + 1:] if left <= 15 else queue[len(queue) - 15:]
            A = i + c
            a(f'v_mfma_f32_16x16x32_bf16 {vr(ACC+4*A,4)}, {vr(G0+4*i,4)}, {vr(F0+4*c,4)}, {vr(ACC+4*A,4)}')
            for kind, idx in rel.get(n, []):
                for ins in ld(kind, idx, off):
                    a(ins); queue.append((kind, idx))
    assert q0[len(q0) - len(queue):] == queue, (q0, queue)
    a(f'''
    v_add_u32 v{vG}, 128, v{vG}
    v_add_u32 v{vF}, 128, v{vF}
    s_add_u32 s12, s12, 1
    s_cmp_lt_u32 s12, 4
    s_cbranch_scc1 .cv_loop
    ''')
    stamp(a, 6)
    for P in range(4):
        o = 128 + 4 * P
        for e in range(2):
            A = 2 * P + e
            a(f'v_cvt_pk_bf16_f32 v{o+2*e}, v{ACC+4*A}, v{ACC+4*A+1}')
            a(f'v_cvt_pk_bf16_f32 v{o+2*e+1}, v{ACC+4*A+2}, v{ACC+4*A+3}')
        a(f'buffer_store_dwordx4 {vr(o,4)}, v3, s[52:55], s13 offen offset:{1024*P}')
    a('s_waitcnt vmcnt(0) lgkmcnt(0)')
    publish(a, C_CV, 4, 14, 8)
    stamp(a, 7)
    stamp_flush(a, 0, 8)
    a('s_endpgm')

def build():
    hdr = open(f'cdna_kernels/{NAME}.s.ref').read().split('\n')
    head = [l for l in hdr if l.startswith(';') and '@launch' not in l.lower()]
    out = '\n'.join(head) + '\n'
    out += f'; @launch grid=(256,1,1) block=(768,1,1) lds={LDS_SIZE}\n'
    out += '.amdgcn_target "amdgcn-amd-amdhsa--gfx950"\n.text\n'
    a = Asm()
    KN = NAME + '_kernel'
    a.raw(f'.globl {KN}')
    a.raw(f'.type {KN},@function')
    gen_main(a)
    body = a.render()
    res = []
    for l in body.split('\n'):
        if l.strip().startswith('buffer_store'):
            l = l + ' sc1'
        res.append(l)
    out += '\n'.join(res)
    out += '.section .rodata,"a"\n'
    out += kd(KN, 168, 102)
    return out

if __name__ == '__main__':
    path = sys.argv[1] if len(sys.argv) > 1 else f'cdna_kernels/{NAME}.s'
    open(path, 'w').write(build())
    print('wrote', path)
```

```python
import sys, os, struct
sys.path.insert(0, 'dev')
from gen import (Asm, NAME, fhex, vr, srd, stamp, stamp_flush, gen_dft8_frags, gen_z_addr, z_soff,
                 gen_transposer, gen_transposer_tail, kd, DIAG,
                 WS_Z1, WS_Z2, WS_UT, UP, WS_YT,
                 P_U, P_LOGA, P_AIM, P_CRE, P_CIM, P_LOGDT, P_DSKIP, P_X, P_WR, P_WI, P_OUT, P_DBG, P_WS)
from gen23 import cmul_sc, cmul_pk
import gen3
from gen3 import gen_kgen, KP, CH_REG, CS, CV_K

ZB = 0
WB = 16384
SCR = 32768
TRB = WB
CNT = 34816
CH0 = CNT + 128
LDS_SIZE = CH0 + 4 * CH_REG
WS_CW = 20 << 20
WS_FLG = 28 << 20
C_PA, C_S1, C_R0, C_S2, C_Z, C_W, C_O, C_R1, C_L3, C_T1, C_G0, C_CV, C_G1, C_NONCE, C_TL, C_UL, C_RL = range(17)
SPIN_MAX = 0x80000
TFIRST = os.environ.get('TFIRST', '0') == '1'

def lds_arrive(a, c, vt):
    a(f'''
    v_mov_b32 v{vt}, {CNT+4*c}
    v_mov_b32 v{vt+1}, 1
    s_waitcnt lgkmcnt(0)
    s_mov_b64 exec, 1
    ds_add_u32 v{vt}, v{vt+1}
    s_mov_b64 exec, -1
    ''')

def lds_wait(a, c, n, vt, slp=0, sreg=4):
    L = a.label('spin'); E = a.label('spun')
    a(f'''
    v_mov_b32 v{vt}, {CNT+4*c}
    {L}:
    ds_read_b32 v{vt+1}, v{vt}
    s_waitcnt lgkmcnt(0)
    v_readfirstlane_b32 s{sreg}, v{vt+1}
    s_cmp_ge_u32 s{sreg}, {n}
    s_cbranch_scc1 {E}
    s_sleep {slp}
    s_branch {L}
    {E}:
    ''')

FR = int(os.environ.get('FR', '16'))
def publish(a, c, n, flag_off_sreg, vt, rep=1):
    E = a.label('pub')
    a(f'''
    v_mov_b32 v{vt}, {CNT+4*c}
    v_mov_b32 v{vt+1}, 1
    s_mov_b64 exec, 1
    ds_add_rtn_u32 v{vt+1}, v{vt}, v{vt+1}
    s_mov_b64 exec, -1
    s_waitcnt lgkmcnt(0)
    v_readfirstlane_b32 s4, v{vt+1}
    s_cmp_lg_u32 s4, {n-1}
    s_cbranch_scc1 {E}
    ''')
    lds_wait(a, C_NONCE, 1, vt, slp=1, sreg=5)
    srd(a, 60, P_WS, 1 << 18, WS_FLG)
    a(f'''
    v_lshlrev_b32 v{vt}, 10, v2
    v_mov_b32 v{vt+1}, s5
    s_mov_b64 exec, {(1 << rep) - 1}
    buffer_store_dword v{vt+1}, v{vt}, s[60:63], s{flag_off_sreg} offen
    s_mov_b64 exec, -1
    {E}:
    ''')

NREP = int(os.environ.get('NREP', '32'))
def poll_release(a, rel_off, c, vt):
    L = a.label('poll'); E = a.label('polled')
    lds_wait(a, C_NONCE, 1, vt, slp=1, sreg=5)
    srd(a, 60, P_WS, 1 << 18, WS_FLG)
    a(f'''
    v_mov_b32 v{vt}, 0
    s_mov_b32 s6, {SPIN_MAX}
    s_and_b32 s7, s2, {NREP-1}
    s_lshl_b32 s7, s7, 7
    s_add_u32 s7, s7, {rel_off}
    {L}:
    buffer_load_dword v{vt+1}, v{vt}, s[60:63], s7 offen sc1
    s_waitcnt vmcnt(0)
    v_readfirstlane_b32 s4, v{vt+1}
    s_cmp_eq_u32 s4, s5
    s_cbranch_scc1 {E}
    s_sleep {os.environ.get('PSLEEP', '0')}
    s_sub_u32 s6, s6, 1
    s_cmp_lg_u32 s6, 0
    s_cbranch_scc1 {L}
    {E}:
    ''')
    lds_arrive(a, c, vt)

def poll_group(a, lane, base_sreg, c, vt):
    L = a.label('poll'); E = a.label('polled')
    lds_wait(a, C_NONCE, 1, vt, slp=1, sreg=5)
    srd(a, 60, P_WS, 16384, WS_FLG)
    a(f'''
    v_and_b32 v{vt}, 15, v{lane}
    v_lshlrev_b32 v{vt}, 4, v{vt}
    s_mov_b32 s6, {SPIN_MAX}
    {L}:
    buffer_load_dword v{vt+1}, v{vt}, s[60:63], s{base_sreg} offen sc1
    s_waitcnt vmcnt(0)
    v_cmp_ne_u32 vcc, s5, v{vt+1}
    s_cmp_eq_u64 vcc, 0
    s_cbranch_scc1 {E}
    s_sub_u32 s6, s6, 1
    s_cmp_lg_u32 s6, 0
    s_cbranch_scc1 {L}
    {E}:
    ''')
    lds_arrive(a, c, vt)

XL2 = os.environ.get('XL2', '0') == '1'
def remap(a):
    if XL2:
        a('''
        s_mov_b32 s43, s2
        s_and_b32 s4, s2, 7
        s_lshl_b32 s4, s4, 5
        s_lshr_b32 s2, s2, 3
        s_or_b32 s2, s2, s4
        ''')

def gen_main(a):
    KN = NAME + '_kernel'
    a.raw('.p2align 8')
    a.raw(f'{KN}:')
    EXIT = '.exit'
    lane = 2
    a(f'''
    s_cmp_ge_u32 s2, 256
    s_cbranch_scc1 {EXIT}
    ''')
    stamp(a, 0)
    a('''
    s_load_dwordx16 s[16:31], s[0:1], 0
    s_load_dwordx8 s[32:39], s[0:1], 64
    s_load_dwordx2 s[40:41], s[0:1], 96
    v_lshrrev_b32 v1, 6, v0
    v_and_b32 v2, 63, v0
    v_readfirstlane_b32 s3, v1
    s_cmp_ge_u32 s3, 8
    s_cbranch_scc1 .role_a
    s_cmp_eq_u32 s3, 7
    s_cbranch_scc1 .role_m
    s_cmp_ge_u32 s3, 5
    s_cbranch_scc1 .role_t
    ''')
    gen_B(a, lane, EXIT)
    gen_T(a, lane)
    gen_M(a, lane)
    gen_A(a, lane)
    a(f'{EXIT}:')
    a('s_endpgm')

def gen_B(a, lane, EXIT):
    a(f'''
    s_setprio 2
    s_mov_b32 s8, s3
    s_and_b32 s15, s3, 3
    s_sub_u32 s9, 8, s8
    v_subrev_u32 v1, 64, v0
    s_lshl_b32 s4, s2, 11
    v_lshlrev_b32 v3, 3, v1
    v_add_u32 v7, s4, v3
    ''')
    XL = 16
    F8 = 8
    vC, vS, vnS, vCt, vnSt, tc, ts = 80, 88, 96, 104, 112, 120, 136
    kf, arg, a2, c0, c1, s0, s1_, k5, sg = range(64, 73)
    def tab_init(kf, arg, k5):
        a(f'''
        v_and_b32 v{kf}, 31, v{lane}
        v_cvt_f32_u32 v{kf}, v{kf}
        v_mul_f32 v{kf}, {fhex(1/32)}, v{kf}
        v_lshrrev_b32 v{arg}, 5, v{lane}
        v_cvt_f32_u32 v{arg}, v{arg}
        v_mul_f32 v{arg}, 4.0, v{arg}
        v_mul_f32 v{arg}, v{arg}, v{kf}
        v_mul_f32 v{k5}, {fhex(5.0)}, v{kf}
        ''')
    tab_init(kf, arg, k5)
    a(f'''
    v_and_b32 v{sg}, 16, v{lane}
    v_lshlrev_b32 v{sg}, 11, v{sg}
    v_lshl_or_b32 v{sg}, v{sg}, 16, v{sg}
    ''')
    def tab(ip):
        for e, (cr, sr) in enumerate(((c0, s0), (c1, s1_))):
            i = 2 * ip + e
            a(f'v_cos_f32 v{cr}, v{arg}')
            a(f'v_sin_f32 v{sr}, v{arg}')
            a(f'v_mul_f32 v{a2}, {fhex(1/32)}, v{arg}')
            a(f'v_cos_f32 v{tc+i}, v{a2}')
            a(f'v_sin_f32 v{ts+i}, v{a2}')
            if i != 15:
                a(f'v_add_f32 v{arg}, v{arg}, v{k5 if (i & 3) == 3 else kf}')
        a(f'v_cvt_pk_bf16_f32 v{vC+ip}, v{c0}, v{c1}')
        a(f'v_cvt_pk_bf16_f32 v{vS+ip}, v{s0}, v{s1_}')
        a(f'v_cvt_pk_bf16_f32 v{vnS+ip}, -v{s0}, -v{s1_}')
        a(f'v_xor_b32 v{vCt+ip}, v{sg}, v{vC+ip}')
        a(f'v_xor_b32 v{vnSt+ip}, v{sg}, v{vnS+ip}')
    NPRE = 3
    for ip in range(NPRE): tab(ip)
    a('s_waitcnt lgkmcnt(0)')
    srd(a, 44, P_X, 4 << 20)
    if TFIRST: a('s_barrier')
    a('s_cmp_eq_u32 s3, 0')
    a('s_cbranch_scc1 .b1_noload')
    for s1 in range(8):
        a(f's_mov_b32 s5, {s1*256*2048}')
        a(f'buffer_load_dwordx2 {vr(XL+2*s1,2)}, v7, s[44:47], s5 offen')
    a('.b1_noload:')
    if not TFIRST: a('s_barrier')
    srd(a, 48, P_WS, 4 << 20, WS_Z1)
    gen_dft8_frags(a, lane, F8, 32, True)
    for ip in range(NPRE, 8): tab(ip)
    vlo, vhi, vtr = 164, 165, 154
    gen_z_addr(a, lane, vlo, vhi, 64, 2, 8, 9)
    a(f'''
    v_lshrrev_b32 v64, 5, v{lane}
    v_bfe_u32 v65, v{lane}, 2, 2
    v_lshl_add_u32 v64, v64, 2, v65
    v_lshlrev_b32 v64, 6, v64
    v_bfe_u32 v65, v{lane}, 4, 1
    v_lshl_add_u32 v64, v65, 5, v64
    v_and_b32 v65, 3, v{lane}
    v_lshl_add_u32 v64, v65, 3, v64
    s_lshl_b32 s4, s8, 1
    s_cmp_eq_u32 s8, 4
    s_cselect_b32 s4, 1, s4
    s_lshl_b32 s4, s4, 11
    v_add_u32 v{vtr}, s4, v64
    ''')
    a('s_cmp_eq_u32 s3, 0')
    a('s_cbranch_scc1 .b1_phaseB')
    BO, DD = 32, 48
    a('s_mov_b32 s4, 0x05040100')
    a('s_mov_b32 s5, 0x07060302')
    a('s_waitcnt vmcnt(0)')
    for e in range(4):
        for p in range(4):
            lo, hi = XL + 2 * (2 * p) + (e >> 1), XL + 2 * (2 * p + 1) + (e >> 1)
            a(f'v_perm_b32 v{BO+4*e+p}, v{hi}, v{lo}, s{4 + (e & 1)}')
        for hf in range(2):
            a(f'v_mfma_f32_16x16x32_bf16 {vr(DD+8*e+4*hf,4)}, {vr(F8+4*hf,4)}, {vr(BO+4*e,4)}, 0')
    for q in range(8):
        a(f'v_cvt_pk_bf16_f32 v{XL+2*q}, v{DD+q}, v{DD+8+q}')
        a(f'v_cvt_pk_bf16_f32 v{XL+2*q+1}, v{DD+16+q}, v{DD+24+q}')
        a(f'ds_write_b64 v3, {vr(XL+2*q,2)} offset:{ZB+q*2048}')
    lds_arrive(a, C_PA, 4)
    a('.b1_phaseB:')
    lds_wait(a, C_PA, 4, 4)
    stamp(a, 1)
    AR, AI, DR, DI, T0 = 16, 24, 32, 48, 64
    for c in range(2):
        for jj in range(2):
            a(f'ds_read_b64_tr_b16 {vr(AR+4*c+2*jj,2)}, v{vtr} offset:{c*1024+jj*512}')
    for c in range(2):
        for jj in range(2):
            a(f'ds_read_b64_tr_b16 {vr(AI+4*c+2*jj,2)}, v{vtr} offset:{2048+c*1024+jj*512}')
    a('s_waitcnt lgkmcnt(4)')
    a(f'v_mfma_f32_32x32x16_bf16 {vr(DR,16)}, {vr(AR,4)}, {vr(vC,4)}, 0')
    a(f'v_mfma_f32_32x32x16_bf16 {vr(DI,16)}, {vr(AR,4)}, {vr(vnS,4)}, 0')
    a(f'v_mfma_f32_32x32x16_bf16 {vr(DR,16)}, {vr(AR+4,4)}, {vr(vC+4,4)}, {vr(DR,16)}')
    a(f'v_mfma_f32_32x32x16_bf16 {vr(DI,16)}, {vr(AR+4,4)}, {vr(vnS+4,4)}, {vr(DI,16)}')
    a('s_waitcnt lgkmcnt(0)')
    a('s_cmp_eq_u32 s15, 0')
    a('s_cbranch_scc1 .b1_real1')
    for c in range(2):
        a(f'v_mfma_f32_32x32x16_bf16 {vr(DR,16)}, {vr(AI+4*c,4)}, {vr(vS+4*c,4)}, {vr(DR,16)}')
        a(f'v_mfma_f32_32x32x16_bf16 {vr(DI,16)}, {vr(AI+4*c,4)}, {vr(vC+4*c,4)}, {vr(DI,16)}')
    a('.b1_real1:')
    def tw(ib):
        prs = [2 * ib, 2 * ib + 1]
        for k, ip in enumerate(prs):
            r, i_, c_, s_ = DR + 2 * ip, DI + 2 * ip, tc + 2 * ip, ts + 2 * ip
            a(f'v_pk_mul_f32 {vr(T0+4*(ib&1)+2*k,2)}, {vr(i_,2)}, {vr(s_,2)}')
            a(f'v_pk_mul_f32 {vr(s_,2)}, {vr(r,2)}, {vr(s_,2)}')
        for k, ip in enumerate(prs):
            r, i_, c_, s_ = DR + 2 * ip, DI + 2 * ip, tc + 2 * ip, ts + 2 * ip
            a(f'v_pk_fma_f32 {vr(T0+4*(ib&1)+2*k,2)}, {vr(r,2)}, {vr(c_,2)}, {vr(T0+4*(ib&1)+2*k,2)}')
            a(f'v_pk_fma_f32 {vr(s_,2)}, {vr(i_,2)}, {vr(c_,2)}, {vr(s_,2)} neg_lo:[0,0,1] neg_hi:[0,0,1]')
    def pk(ib):
        for k, ip in enumerate((2 * ib, 2 * ib + 1)):
            t = T0 + 4 * (ib & 1) + 2 * k
            a(f'v_cvt_pk_bf16_f32 v{AR+ip}, v{t}, v{t+1}')
            a(f'v_cvt_pk_bf16_f32 v{AI+ip}, v{ts+2*ip}, v{ts+2*ip+1}')
    tw(0); tw(1); pk(0); pk(1); tw(2); tw(3); pk(2); pk(3)
    for c in range(2):
        z = '0' if c == 0 else None
        a(f'v_mfma_f32_32x32x16_bf16 {vr(DR,16)}, {vr(vC+4*c,4)}, {vr(AR+4*c,4)}, {z or vr(DR,16)}')
        a(f'v_mfma_f32_32x32x16_bf16 {vr(DI,16)}, {vr(vCt+4*c,4)}, {vr(AI+4*c,4)}, {z or vr(DI,16)}')
        a(f'v_mfma_f32_32x32x16_bf16 {vr(DR,16)}, {vr(vS+4*c,4)}, {vr(AI+4*c,4)}, {vr(DR,16)}')
        a(f'v_mfma_f32_32x32x16_bf16 {vr(DI,16)}, {vr(vnSt+4*c,4)}, {vr(AR+4*c,4)}, {vr(DI,16)}')
    a('s_cmp_eq_u32 s15, 0')
    a('s_cbranch_scc0 .b1_cplx2')
    a(f'''
    s_mov_b64 exec, 1
    v_mov_b32 v{DI}, v{DR+8}
    s_mov_b64 exec, -1
    s_branch .b1_lo
    ''')
    O = 64
    a('.b1_cplx2:')
    for i in range(8, 16):
        a(f'v_cvt_pk_bf16_f32 v{O+i}, v{DR+i}, v{DI+i}')
        a(f's_mov_b32 s5, {z_soff(i)}')
        a(f'buffer_store_dword v{O+i}, v{vhi}, s[48:51], s5 offen')
    a('.b1_lo:')
    for i in range(8):
        a(f'v_cvt_pk_bf16_f32 v{O+i}, v{DR+i}, v{DI+i}')
        a(f's_mov_b32 s5, {z_soff(i)}')
        a(f'buffer_store_dword v{O+i}, v{vlo}, s[48:51], s5 offen')
    stamp(a, 2)
    a('s_lshl_b32 s14, s2, 4')
    a('s_add_u32 s14, s14, 65536')
    a('s_cmp_eq_u32 s3, 4')
    a('s_cbranch_scc0 .b2_start')
    a('s_waitcnt vmcnt(0)')
    publish(a, C_S1, 6, 14, 4)
    stamp(a, 3)
    a('s_branch .b3_start')

    a('.b2_start:')
    WL = 144
    WM = 16
    WMr = [16 + k for k in range(16)] + [48 + k for k in range(8)]
    vW0, vW1, vZ, vL = 160, 161, 162, 163
    TM = 8
    a(f'''
    s_and_b32 s12, s2, 7
    s_lshr_b32 s13, s2, 3              ; G
    v_and_b32 v3, 15, v{lane}          ; n
    v_lshrrev_b32 v4, 4, v{lane}       ; g
    ''')
    srd(a, 52, P_WR, 2048 * 1026)
    srd(a, 56, P_WI, 2048 * 1026)
    a('s_waitcnt vmcnt(0)')
    publish(a, C_S1, 6, 14, 10)
    a('s_setprio 1')
    stamp(a, 3)
    a(f'''
    s_lshl_b32 s11, s12, 5
    s_add_u32 s11, s11, s13
    s_lshl_b32 s11, s11, 14
    v_lshlrev_b32 v5, 4, v{lane}
    s_lshl_b32 s4, s3, 12
    s_add_u32 s10, s4, {ZB}
    s_add_u32 s11, s11, s4
    v_add_u32 v{vL}, s10, v5
    v_bfe_u32 v15, v3, 2, 2
    v_add_u32 v15, s3, v15
    v_and_b32 v15, 3, v15
    v_lshlrev_b32 v15, 4, v15
    v_lshl_add_u32 v15, v3, 6, v15
    v_lshl_add_u32 v15, v4, 12, v15
    v_add_u32 v{vZ}, {ZB}, v15
    ''')
    B1R, B1I, A2R, A2I, B3R, B3I, A4R, A4I = 16, 20, 24, 28, 32, 36, 40, 44
    T1C, T1S, T3C, T3S = 48, 52, 56, 60
    nf, idx, q1, p_, c_, s_, p2, c2, s2_, p3, c3, s3_, k1_, k2_ = range(64, 78)
    scale = 2.0 / (2048 * 1024)
    a(f'''
    v_cvt_f32_u32 v{nf}, v3
    v_lshlrev_b32 v{idx}, 2, v4
    v_cvt_f32_u32 v{idx}, v{idx}
    v_cvt_f32_u32 v{k1_}, s12
    v_mul_f32 v{k1_}, {fhex(1/128)}, v{k1_}
    v_mul_f32 v{k2_}, {fhex(1/16)}, v{nf}
    v_add_f32 v{q1}, v{k2_}, v{k1_}
    v_mul_f32 v{k1_}, v{k1_}, v{nf}
    ''')
    for e in range(4):
        a(f'''
        v_mul_f32 v{p_}, v{idx}, v{q1}
        v_mul_f32 v{p2}, v{idx}, v{k2_}
        v_cos_f32 v{c_}, v{p_}
        v_sin_f32 v{s_}, v{p_}
        v_add_f32 v{p3}, v{p2}, v{k1_}
        v_cos_f32 v{c2}, v{p2}
        v_sin_f32 v{s2_}, v{p2}
        v_mul_f32 v{p_}, {fhex(1/16)}, v{p_}
        v_cos_f32 v{c3}, v{p3}
        v_sin_f32 v{s3_}, v{p3}
        v_mul_f32 v{p3}, {fhex(1/16)}, v{p3}
        v_cvt_pk_bf16_f32 v{B1R+e}, v{c_}, v{s_}
        v_cvt_pk_bf16_f32 v{B1I+e}, -v{s_}, v{c_}
        v_cos_f32 v{c_}, v{p_}
        v_sin_f32 v{s_}, v{p_}
        v_cvt_pk_bf16_f32 v{A2R+e}, v{c2}, v{s2_}
        v_cvt_pk_bf16_f32 v{A2I+e}, -v{s2_}, v{c2}
        v_cvt_pk_bf16_f32 v{B3R+e}, v{c2}, -v{s2_}
        v_cvt_pk_bf16_f32 v{B3I+e}, v{s2_}, v{c2}
        v_cos_f32 v{T3C+e}, v{p3}
        v_sin_f32 v{T3S+e}, v{p3}
        v_cvt_pk_bf16_f32 v{A4R+e}, v{c3}, -v{s3_}
        v_cvt_pk_bf16_f32 v{A4I+e}, v{s3_}, v{c3}
        v_mul_f32 v{T1C+e}, {fhex(scale)}, v{c_}
        v_mul_f32 v{T1S+e}, {fhex(scale)}, v{s_}
        v_add_f32 v{idx}, 1.0, v{idx}
        ''')
    X = 64; D = 80; WF = 112
    CWR = 144
    a(f'''
    s_mov_b32 s7, 0xffff0000
    s_mov_b32 s68, 0
    s_cmp_ge_u32 s12, 5
    s_cbranch_scc1 .b2_sp_hi
    s_or_b32 s4, s13, s3
    s_cmp_lg_u32 s4, 0
    s_cbranch_scc1 .b2_sp_done
    s_and_b32 s4, s12, 3
    s_cmp_eq_u32 s4, 0
    s_cselect_b32 s68, 3, 1
    s_branch .b2_sp_done
    .b2_sp_hi:
    s_cmp_lg_u32 s13, 31
    s_cbranch_scc1 .b2_sp_done
    s_cmp_lg_u32 s3, 3
    s_cbranch_scc1 .b2_sp_done
    s_mov_b32 s68, 2
    .b2_sp_done:
    ''')
    srd(a, 44, P_WS, 4 << 20, WS_Z1)
    srd(a, 48, P_WS, 4 << 20, WS_Z2)
    srd(a, 52, P_WS, 16384, WS_CW)
    a('s_mov_b32 m0, s10')
    stamp(a, 4)
    lds_wait(a, C_R0, 1, 10, slp=1)
    a('s_setprio 2')
    stamp(a, 5)
    for p in range(4):
        a(f'buffer_load_dwordx4 v5, s[44:47], s11 offen offset:{p*1024} sc1 lds')
    a('s_cmp_eq_u32 s68, 0')
    a('s_cbranch_scc1 .b2_nocw')
    a(f'''
    v_lshl_add_u32 v64, v4, 6, v3
    s_cmp_eq_u32 s12, 0
    s_cselect_b32 s4, 1, 0
    s_add_u32 s4, s4, 255
    v_sub_u32 v65, s4, v64
    s_sub_u32 s4, 8, s12
    s_and_b32 s4, s4, 7
    s_lshl_b32 s4, s4, 10
    s_add_u32 s5, s4, 8192
    s_cmp_eq_u32 s68, 2
    s_cselect_b32 s4, s5, s4
    s_lshl_b32 s6, s12, 10
    s_add_u32 s6, s6, 8192
    v_lshlrev_b32 v64, 2, v64
    ''')
    for i in range(4):
        a(f'''
        v_subrev_u32 v66, {16*i}, v65
        v_and_b32 v66, 255, v66
        v_lshlrev_b32 v66, 2, v66
        buffer_load_dword v{CWR+i}, v66, s[52:55], s4 offen sc1
        buffer_load_dword v{CWR+4+i}, v64, s[52:55], s6 offen offset:{64*i} sc1
        buffer_load_dword v{CWR+8+i}, v66, s[52:55], s5 offen sc1
        ''')
    a('.b2_nocw:')
    lds_wait(a, C_W, 1, 10)
    WLL = 80
    for i in range(4):
        a(f'ds_read_b128 {vr(WLL+4*i,4)}, v{vZ} offset:{WB-ZB+1024*i}')
    for i in range(4):
        a(f's_waitcnt lgkmcnt({3-i})')
        for part in range(2):
            for cp in range(2):
                src = WLL + 4 * i + 2 * part + cp
                a(f'v_lshlrev_b32 v{WF+8*(2*cp)+4*part+i}, 16, v{src}')
                a(f'v_and_b32 v{WF+8*(2*cp+1)+4*part+i}, s7, v{src}')
    a('s_waitcnt vmcnt(0)')
    lds_arrive(a, C_Z, 10)
    lds_wait(a, C_Z, 4, 10)
    stamp(a, 6)
    for e in range(4):
        a(f'ds_read_b128 {vr(D+4*e,4)}, v{vZ} offset:{1024*e}')
    for e in range(4):
        a(f's_waitcnt lgkmcnt({3-e})')
        for c in range(4):
            a(f'v_mov_b32 v{X+4*c+e}, v{D+4*e+c}')
    def stage(Mr, Mi, data_is_A):
        for c in range(4):
            for M, off in ((Mr, 0), (Mi, 4)):
                if data_is_A:
                    a(f'v_mfma_f32_16x16x32_bf16 {vr(D+8*c+off,4)}, {vr(X+4*c,4)}, {vr(M,4)}, 0')
                else:
                    a(f'v_mfma_f32_16x16x32_bf16 {vr(D+8*c+off,4)}, {vr(M,4)}, {vr(X+4*c,4)}, 0')
    def mulpack(cr_of, ci_of, conj):
        k = 0
        for c in range(4):
            for hp in range(2):
                t = TM + 4 * (k & 1); k += 1
                cmul_sc(a, t, t + 2, D + 8 * c + 2 * hp, D + 8 * c + 4 + 2 * hp, cr_of(c) + 2 * hp, ci_of(c) + 2 * hp, conj)
                a(f'v_cvt_pk_bf16_f32 v{X+4*c+2*hp}, v{t}, v{t+2}')
                a(f'v_cvt_pk_bf16_f32 v{X+4*c+2*hp+1}, v{t+1}, v{t+3}')
    stage(B1R, B1I, True)
    mulpack(lambda c: T1C, lambda c: T1S, True)
    stage(A2R, A2I, False)
    a('s_cmp_eq_u32 s68, 0')
    a('s_cbranch_scc1 .b2_noreal')
    a('s_cmp_eq_u32 s68, 2')
    a('s_cbranch_scc1 .b2_patch_hi')
    def patch(c):
        for i in range(4):
            a(f'v_lshlrev_b32 v{TM}, 16, v{CWR+i}')
            a(f'v_and_b32 v{TM+1}, s7, v{CWR+i}')
            a(f'v_add_f32 v{WF+8*c+i}, v{WF+8*c+i}, v{TM}')
            a(f'v_sub_f32 v{WF+8*c+4+i}, v{WF+8*c+4+i}, v{TM+1}')
        for i in range(8):
            a(f'v_mul_f32 v{WF+8*c+i}, 0.5, v{WF+8*c+i}')
    patch(0)
    a('s_cmp_eq_u32 s68, 1')
    a('s_cbranch_scc1 .b2_noreal')
    ZM, PQ = 16, 24
    QQ = 48
    a(f'''
    v_lshl_add_u32 v{TM}, v4, 6, v3
    s_lshr_b32 s4, s12, 2
    s_sub_u32 s4, 256, s4
    v_sub_u32 v{TM+1}, s4, v{TM}
    v_lshlrev_b32 v{TM}, 2, v{TM}
    v_add_u32 v{TM}, {SCR}, v{TM}
    ''')
    for i in range(4):
        a(f'ds_write_b32 v{TM}, v{D+i} offset:{64*i}')
        a(f'ds_write_b32 v{TM}, v{D+4+i} offset:{1024+64*i}')
    for i in range(4):
        a(f'''
        v_subrev_u32 v{TM+2}, {16*i}, v{TM+1}
        v_and_b32 v{TM+2}, 255, v{TM+2}
        v_lshlrev_b32 v{TM+2}, 2, v{TM+2}
        v_add_u32 v{TM+2}, {SCR}, v{TM+2}
        ds_read_b32 v{ZM+i}, v{TM+2}
        ds_read_b32 v{ZM+4+i}, v{TM+2} offset:1024
        ''')
    for i in range(4):
        a(f'''
        v_lshlrev_b32 v{TM+4}, 16, v{CWR+4+i}
        v_lshlrev_b32 v{TM+5}, 16, v{CWR+8+i}
        v_and_b32 v{TM+6}, s7, v{CWR+4+i}
        v_and_b32 v{TM+7}, s7, v{CWR+8+i}
        v_add_f32 v{TM+4}, v{TM+4}, v{TM+5}
        v_sub_f32 v{TM+6}, v{TM+6}, v{TM+7}
        v_mul_f32 v{TM+4}, {fhex(0.125)}, v{TM+4}
        v_mul_f32 v{TM+6}, {fhex(0.125)}, v{TM+6}
        v_mul_f32 v{WF+i}, {fhex(0.25)}, v{WF+i}
        v_mul_f32 v{WF+4+i}, {fhex(0.25)}, v{WF+4+i}
        v_add_f32 v{PQ+i}, v{WF+i}, v{TM+4}
        v_add_f32 v{PQ+4+i}, v{WF+4+i}, v{TM+6}
        v_sub_f32 v{QQ+i}, v{WF+i}, v{TM+4}
        v_sub_f32 v{QQ+4+i}, v{WF+4+i}, v{TM+6}
        v_mov_b32 v{WF+i}, 1.0
        v_mov_b32 v{WF+4+i}, 0
        ''')
    a('s_waitcnt lgkmcnt(0)')
    for i in range(4):
        zr, zi, mr, mi = D + i, D + 4 + i, ZM + i, ZM + 4 + i
        pr, pi, qr, qi = PQ + i, PQ + 4 + i, QQ + i, QQ + 4 + i
        a(f'''
        v_mul_f32 v{TM}, v{zr}, v{pr}
        v_mul_f32 v{TM+1}, v{zr}, v{pi}
        v_fma_f32 v{TM}, -v{zi}, v{pi}, v{TM}
        v_fmac_f32 v{TM+1}, v{zi}, v{pr}
        v_fmac_f32 v{TM}, v{mr}, v{qr}
        v_fmac_f32 v{TM+1}, v{mr}, v{qi}
        v_fma_f32 v{zr}, v{mi}, v{qi}, v{TM}
        v_fma_f32 v{zi}, -v{mi}, v{qr}, v{TM+1}
        ''')
    a('s_branch .b2_noreal')
    a('.b2_patch_hi:')
    patch(3)
    a('.b2_noreal:')
    mulpack(lambda c: WF + 8 * c, lambda c: WF + 8 * c + 4, False)
    stage(B3R, B3I, True)
    mulpack(lambda c: T3C, lambda c: T3S, False)
    stage(A4R, A4I, False)
    for i in range(4):
        for c in range(4):
            a(f'v_cvt_pk_bf16_f32 v{X+4*i+c}, v{D+8*c+i}, v{D+8*c+4+i}')
        a(f'ds_write_b128 v{vZ}, {vr(X+4*i,4)} offset:{1024*i}')
    lds_arrive(a, C_O, 10)
    lds_wait(a, C_O, 4, 10)
    stamp(a, 7)
    for p in range(4):
        a(f'ds_read_b128 {vr(X+4*p,4)}, v{vL} offset:{1024*p}')
    a(f'''
    v_lshrrev_b32 v8, 2, v{lane}
    v_lshlrev_b32 v8, 14, v8
    v_and_b32 v9, 3, v{lane}
    v_lshl_add_u32 v8, v9, 4, v8
    s_lshl_b32 s4, s12, 5
    s_add_u32 s4, s4, s13
    s_lshl_b32 s4, s4, 6
    s_lshl_b32 s5, s3, 20
    s_add_u32 s4, s4, s5
    ''')
    for p in range(4):
        a(f's_waitcnt lgkmcnt({3-p})')
        a(f'buffer_store_dwordx4 {vr(X+4*p,4)}, v8, s[48:51], s4 offen')
        if p < 3: a(f's_add_u32 s4, s4, {16*16384}')
    a('s_add_u32 s14, s14, 65536')
    a('s_waitcnt vmcnt(0)')
    publish(a, C_S2, 4, 14, 10)
    stamp(a, 8)

    a('.b3_start:')
    a('s_setprio 0')
    X = 16
    G8 = 8
    MR, MI, NR, NI, tc, ts = 80, 96, 112 - 8, 120 - 8, 128, 144
    kf, arg, a2, c0, s0, k5 = range(74, 80)
    tab_init(kf, arg, k5)
    for i in range(16):
        a(f'v_cos_f32 v{c0}, v{arg}')
        a(f'v_sin_f32 v{s0}, v{arg}')
        a(f'v_mul_f32 v{a2}, {fhex(1/32)}, v{arg}')
        a(f'v_cos_f32 v{tc+i}, v{a2}')
        a(f'v_sin_f32 v{ts+i}, v{a2}')
        if i != 15:
            a(f'v_add_f32 v{arg}, v{arg}, v{k5 if (i & 3) == 3 else kf}')
        a(f'v_cvt_pk_bf16_f32 v{MR+i}, v{c0}, -v{s0}')
        a(f'v_cvt_pk_bf16_f32 v{MI+i}, v{s0}, v{c0}')
        if i >= 8:
            a(f'v_cvt_pk_bf16_f32 v{NR+i}, v{c0}, v{s0}')
            a(f'v_cvt_pk_bf16_f32 v{NI+i}, v{s0}, -v{c0}')
    gen_dft8_frags(a, lane, G8, 64, False)
    a(f'''
    v_and_b32 v6, 31, v{lane}
    v_lshlrev_b32 v6, 2, v6
    v_lshrrev_b32 v7, 5, v{lane}
    v_lshl_add_u32 v6, v7, 9, v6
    s_lshl_b32 s4, s8, 12
    s_cmp_eq_u32 s8, 4
    s_cselect_b32 s4, 2, s4
    v_add_u32 v6, s4, v6
    ''')
    srd(a, 44, P_WS, 4 << 20, WS_Z2)
    srd(a, 48, P_OUT, 8 << 20)
    a(f'''
    s_lshl_b32 s10, s8, 12
    s_cmp_eq_u32 s8, 4
    s_cselect_b32 s10, 2048, s10
    s_add_u32 s10, s10, {ZB}
    s_lshl_b32 s4, s2, 14
    s_lshl_b32 s11, s8, 11
    s_add_u32 s11, s11, s4
    s_lshl_b32 s12, s9, 11
    s_add_u32 s12, s12, s4
    v_lshlrev_b32 v3, 4, v{lane}
    s_lshr_b32 s4, s2, 2
    ''')
    for which, dst in ((0, vlo), (1, vhi)):
        a(f'v_and_b32 v64, 31, v{lane}')
        a(f'v_lshrrev_b32 v65, 5, v{lane}')
        if which:
            a('v_sub_u32 v64, 31, v64')
            a('v_sub_u32 v65, 1, v65')
        a(f'''
        v_bfe_u32 v66, v64, 2, 2
        v_add_u32 v66, s4, v66
        v_and_b32 v66, 3, v66
        v_lshlrev_b32 v66, 4, v66
        v_and_b32 v67, 3, v64
        v_lshl_add_u32 v66, v67, 2, v66
        v_lshrrev_b32 v67, 4, v64
        v_lshl_add_u32 v66, v67, 6, v66
        v_lshl_add_u32 v66, v65, 9, v66
        v_add_u32 v{dst}, s10, v66
        ''')
    a(f'v_add_u32 v{vhi}, 2048, v{vhi}')
    a('s_cmp_eq_u32 s3, 4')
    a('s_cbranch_scc0 .b3_wait')
    a('s_setprio 2')
    poll_release(a, 16384, C_R0, 4)
    stamp(a, 4)
    lds_wait(a, C_S2, 4, 4, slp=4)
    poll_release(a, 24576, C_R1, 4)
    a('.b3_wait:')
    stamp(a, 9)
    lds_wait(a, C_R1, 1, 4, slp=1)
    a('s_setprio 2')
    stamp(a, 10)
    a('s_mov_b32 m0, s10')
    a('buffer_load_dwordx4 v3, s[44:47], s11 offen sc1 lds')
    a('buffer_load_dwordx4 v3, s[44:47], s11 offen offset:1024 sc1 lds')
    a('s_cmp_eq_u32 s15, 0')
    a('s_cbranch_scc1 .b3_real_noload')
    a('s_add_u32 s4, s10, 2048')
    a('s_mov_b32 m0, s4')
    a('buffer_load_dwordx4 v3, s[44:47], s12 offen sc1 lds')
    a('buffer_load_dwordx4 v3, s[44:47], s12 offen offset:1024 sc1 lds')
    a('.b3_real_noload:')
    DR, DI, T0 = 32, 48, 64
    a('s_waitcnt vmcnt(0)')
    for i in range(16):
        a(f'ds_read_b32 v{X+i}, v{vlo if i < 8 else vhi} offset:{z_soff(i) >> 8}')
    a('s_waitcnt lgkmcnt(0)')
    stamp(a, 11)
    a('s_cmp_eq_u32 s15, 0')
    a('s_cbranch_scc0 .b3_cplx1')
    for i in range(8, 16): a(f'v_mov_b32 v{X+i}, 0')
    a(f'''
    s_mov_b64 exec, 1
    v_lshrrev_b32 v{X+8}, 16, v{X}
    s_mov_b64 exec, -1
    ''')
    lds_arrive(a, C_RL, 4)
    a('.b3_cplx1:')
    for c in range(4):
        br, bi = (MR + 4 * c, MI + 4 * c) if c < 2 else (NR + 4 * c, NI + 4 * c)
        a(f'v_mfma_f32_32x32x16_bf16 {vr(DR,16)}, {vr(X+4*c,4)}, {vr(br,4)}, ' + ('0' if c == 0 else vr(DR, 16)))
        a(f'v_mfma_f32_32x32x16_bf16 {vr(DI,16)}, {vr(X+4*c,4)}, {vr(bi,4)}, ' + ('0' if c == 0 else vr(DI, 16)))
    for ib in range(4):
        for k in range(2):
            ip = 2 * ib + k; t = T0 + 8 * (ib & 1) + 4 * k
            a(f'v_pk_mul_f32 {vr(t,2)}, {vr(DI+2*ip,2)}, {vr(ts+2*ip,2)}')
            a(f'v_pk_mul_f32 {vr(t+2,2)}, {vr(DR+2*ip,2)}, {vr(ts+2*ip,2)}')
        for k in range(2):
            ip = 2 * ib + k; t = T0 + 8 * (ib & 1) + 4 * k
            a(f'v_pk_fma_f32 {vr(t,2)}, {vr(DR+2*ip,2)}, {vr(tc+2*ip,2)}, {vr(t,2)} neg_lo:[0,0,1] neg_hi:[0,0,1]')
            a(f'v_pk_fma_f32 {vr(t+2,2)}, {vr(DI+2*ip,2)}, {vr(tc+2*ip,2)}, {vr(t+2,2)}')
        for k in range(2):
            ip = 2 * ib + k; t = T0 + 8 * (ib & 1) + 4 * k
            a(f'v_cvt_pk_bf16_f32 v{X+2*ip}, v{t}, v{t+2}')
            a(f'v_cvt_pk_bf16_f32 v{X+2*ip+1}, v{t+1}, v{t+3}')
    for c in range(4):
        a(f'v_mfma_f32_32x32x16_bf16 {vr(DR,16)}, {vr(MR+4*c,4)}, {vr(X+4*c,4)}, ' + ('0' if c == 0 else vr(DR, 16)))
    a('s_cmp_eq_u32 s15, 0')
    a('s_cbranch_scc1 .b3_real2')
    for c in range(4):
        a(f'v_mfma_f32_32x32x16_bf16 {vr(DI,16)}, {vr(MI+4*c,4)}, {vr(X+4*c,4)}, ' + ('0' if c == 0 else vr(DI, 16)))
    for i in range(16):
        a(f'v_cvt_pk_bf16_f32 v{T0+i}, v{DR+i}, v{DI+i}')
        a(f'ds_write_b32 v6, v{T0+i} offset:{ZB+(8*(i>>2)+(i&3))*128}')
    a('s_branch .b3_join')
    a('.b3_real2:')
    lds_wait(a, C_RL, 2, 4)
    for ip in range(8):
        i = 2 * ip
        a(f'v_cvt_pk_bf16_f32 v{T0+ip}, v{DR+i}, v{DR+i+1}')
        a(f'ds_write_b16 v6, v{T0+ip} offset:{ZB+(8*(i>>2)+(i&3))*128}')
        a(f'ds_write_b16_d16_hi v6, v{T0+ip} offset:{ZB+(8*(i>>2)+(i&3)+1)*128}')
    a('.b3_join:')
    lds_arrive(a, C_L3, 4)
    a('s_cmp_eq_u32 s3, 4')
    a(f's_cbranch_scc1 .b3_end')
    lds_wait(a, C_L3, 5, 4)
    a('v_lshlrev_b32 v6, 4, v0')
    DD = 32
    for p in range(4):
        a(f'ds_read_b128 {vr(64+4*p,4)}, v6 offset:{ZB+4096*p}')
    a(f'''
    s_lshl_b32 s4, s2, 12
    s_add_u32 s4, s4, 2048
    v_lshlrev_b32 v7, 3, v0
    v_add_u32 v7, s4, v7
    ''')
    for p in range(4):
        a(f's_waitcnt lgkmcnt({3-p})')
        for e in range(4):
            a(f'v_mov_b32 v{X+4*e+p}, v{64+4*p+e}')
    for e in range(4):
        for hf in range(2):
            a(f'v_mfma_f32_16x16x32_bf16 {vr(DD+8*e+4*hf,4)}, {vr(G8+4*hf,4)}, {vr(X+4*e,4)}, 0')
    for s1 in range(8):
        a(f'v_cvt_pk_bf16_f32 v{64+2*s1}, v{DD+s1}, v{DD+8+s1}')
        a(f'v_cvt_pk_bf16_f32 v{65+2*s1}, v{DD+16+s1}, v{DD+24+s1}')
        a(f's_mov_b32 s5, {s1*256*4096}')
        a(f'buffer_store_dwordx2 {vr(64+2*s1,2)}, v7, s[48:51], s5 offen')
    a('.b3_end:')
    stamp(a, 12)
    stamp_flush(a, 0, 13)
    a('s_endpgm')

def gen_T(a, lane):
    a('.role_t:')
    remap(a)
    a(f'''
    s_setprio 2
    s_sub_u32 s8, s3, 5
    s_and_b32 s9, s2, 15
    s_lshl_b32 s9, s9, 1
    s_add_u32 s9, s9, s8
    s_lshl_b32 s9, s9, 4
    s_lshr_b32 s11, s2, 4
    s_add_u32 s9, s9, s11
    s_mul_i32 s10, s8, {64*144}
    s_add_u32 s10, s10, {TRB}
    s_lshl_b32 s14, s2, 4
    s_add_u32 s14, s14, 8192
    s_lshl_b32 s15, s11, 8
    s_add_u32 s15, s15, 8192
    s_waitcnt lgkmcnt(0)
    ''')
    if not TFIRST: a('s_barrier')
    srd(a, 44, P_U, 4 << 20)
    srd(a, 48, P_WS, 1024 * UP, WS_UT)
    TP = gen_transposer(a, lane, 9, 44, 48, 10, 2048, UP, 'u')
    if TFIRST: a('s_barrier')
    a.raw(';PLAIN_ON')
    gen_transposer_tail(a, lane, 48, 10, UP, 64, TP)
    stamp(a, 1)
    a('s_waitcnt vmcnt(0)')
    publish(a, C_T1, 2, 14, 10)
    a.raw(';PLAIN_OFF')
    stamp(a, 2)
    a('s_cmp_eq_u32 s8, 0')
    a('s_cbranch_scc0 .t_second')
    poll_group(a, lane, 15, C_G0, 10)
    stamp(a, 3)
    lds_wait(a, C_CV, 4, 10, slp=4)
    a('s_add_u32 s15, s15, 4096')
    poll_group(a, lane, 15, C_G1, 10)
    a('s_branch .t_third')
    a('.t_second:')
    a(f's_cmp_eq_u32 s2, {M0}')
    a('s_cbranch_scc0 .t_third')
    lds_wait(a, C_NONCE, 1, 10, slp=1, sreg=5)
    lds_wait(a, C_S1, 6, 10, slp=1)
    master(a, lane, '0', 65536, 16384)
    a('.t_third:')
    lds_wait(a, C_G1, 1, 10, slp=2)
    lds_wait(a, C_O, 4, 10, slp=1)
    stamp(a, 4)
    srd(a, 44, P_WS, 4 << 20, WS_YT)
    srd(a, 48, P_OUT, 8 << 20)
    n0 = len(a.items)
    TP = gen_transposer(a, lane, 9, 44, 48, 10, 4096, 4096, 'y')
    from asmlib import Ins
    for k in range(n0, len(a.items)):
        kind, it = a.items[k]
        if kind == 'i' and it.op.startswith('buffer_load'):
            a.items[k] = ('i', Ins(it.text + ' sc1'))
    gen_transposer_tail(a, lane, 48, 10, 4096, 0, TP, ymode=True)
    stamp(a, 5)
    stamp_flush(a, 0, 6)
    a('s_endpgm')

def master(a, lane, tag, flag_off, rel_off):
    srd(a, 60, P_WS, 1 << 18, WS_FLG)
    a(f'v_lshlrev_b32 v6, 4, v{lane}')
    a(f'v_lshlrev_b32 v4, 7, v{lane}')
    a(f's_mov_b32 s6, {SPIN_MAX}')
    a(f's_mov_b32 s7, {flag_off}')
    a(f'.m_loop{tag}:')
    for i in range(4):
        a(f'buffer_load_dword v{8+i}, v6, s[60:63], s7 offen offset:{1024*i} sc1')
    a(f'''
    s_waitcnt vmcnt(0)
    v_xor_b32 v8, s5, v8
    v_xor_b32 v9, s5, v9
    v_xor_b32 v10, s5, v10
    v_xor_b32 v11, s5, v11
    v_or_b32 v8, v8, v9
    v_or3_b32 v8, v8, v10, v11
    v_cmp_ne_u32 vcc, 0, v8
    s_cmp_eq_u64 vcc, 0
    s_cbranch_scc1 .m_rel{tag}
    s_sub_u32 s6, s6, 1
    s_cmp_lg_u32 s6, 0
    s_cbranch_scc1 .m_loop{tag}
    .m_rel{tag}:
    v_mov_b32 v8, s5
    s_mov_b32 s7, {rel_off}
    s_mov_b64 exec, {(1 << NREP) - 1 if NREP < 64 else -1}
    buffer_store_dword v8, v4, s[60:63], s7 offen
    s_mov_b64 exec, -1
    ''')

M0, M1 = 74, 139

def gen_M(a, lane):
    a('.role_m:')
    a(f'''
    s_setprio 3
    v_lshlrev_b32 v4, 4, v{lane}
    v_add_u32 v4, {CNT}, v4
    v_mov_b32 v8, 0
    v_mov_b32 v9, 0
    v_mov_b32 v10, 0
    v_mov_b32 v11, 0
    s_mov_b64 exec, 0xff
    ds_write_b128 v4, v[8:11]
    s_mov_b64 exec, -1
    s_memrealtime s[8:9]
    s_waitcnt lgkmcnt(0)
    ''')
    srd(a, 64, P_DBG, 256)
    a(f'''
    v_mov_b32 v4, 0
    s_or_b32 s5, s8, 1
    s_cmp_lg_u32 s2, 0
    s_cbranch_scc1 .m_nostore
    v_mov_b32 v5, s5
    s_mov_b64 exec, 1
    buffer_store_dword v5, v4, s[64:67], 0 offen
    s_mov_b64 exec, -1
    .m_nostore:
    ''')
    if os.environ.get('TLB', '1') == '1':
        srd(a, 44, P_WS, 32 << 20)
        srd(a, 48, P_OUT, 8 << 20)
        a(f'''
        v_lshlrev_b32 v20, 19, v{lane}
        v_lshlrev_b32 v21, 17, v{lane}
        buffer_load_dword v22, v20, s[44:47], 0 offen sc1
        buffer_load_dword v23, v21, s[48:51], 0 offen sc1
        ''')
    a(f'''
    s_barrier
    s_cmp_eq_u32 s2, 0
    s_cbranch_scc1 .m_got
    s_mov_b32 s6, {SPIN_MAX}
    .m_poll:
    buffer_load_dword v5, v4, s[64:67], 0 offen sc1
    s_waitcnt vmcnt(0)
    v_readfirstlane_b32 s5, v5
    s_cmp_lg_u32 s5, 0
    s_cbranch_scc1 .m_got
    s_sub_u32 s6, s6, 1
    s_cmp_lg_u32 s6, 0
    s_cbranch_scc1 .m_poll
    s_mov_b32 s5, 1
    .m_got:
    v_mov_b32 v6, {CNT+4*C_NONCE}
    v_mov_b32 v5, s5
    ds_write_b32 v6, v5
    ''')
    stamp(a, 1)
    srd(a, 52, P_WR, 2048 * 1026)
    srd(a, 56, P_WI, 2048 * 1026)
    a(f'''
    s_setprio 1
    s_and_b32 s12, s2, 7
    s_lshr_b32 s13, s2, 3
    ''')
    srd(a, 48, P_WS, 16384, WS_CW)
    a(f'''
    v_and_b32 v7, 7, v{lane}
    v_mul_u32_u24 v8, 1026, v7
    v_bfe_u32 v9, v{lane}, 3, 1
    v_lshl_add_u32 v8, v9, 10, v8
    s_mul_i32 s4, s2, 8208
    v_and_b32 v9, 15, v{lane}
    v_lshlrev_b32 v9, 10, v9
    s_lshl_b32 s7, s2, 2
    s_lshl_b32 s14, s2, 4
    s_add_u32 s14, s14, 65536
    s_mov_b64 exec, 0xffff
    buffer_load_ushort v20, v8, s[52:55], s4 offen
    buffer_load_ushort v21, v8, s[56:59], s4 offen
    s_waitcnt vmcnt(0)
    v_lshl_or_b32 v20, v21, 16, v20
    buffer_store_dword v20, v9, s[48:51], s7 offen
    s_mov_b64 exec, -1
    s_waitcnt vmcnt(0)
    s_mov_b32 s69, s5
    ''')
    publish(a, C_S1, 6, 14, 12)
    a('s_mov_b32 s5, s69')
    if os.environ.get('WPF', '0') == '1':
        a(f'''
        v_lshrrev_b32 v7, 3, v{lane}
        v_mul_u32_u24 v7, 8208, v7
        v_and_b32 v8, 7, v{lane}
        v_lshl_add_u32 v7, v8, 7, v7
        s_mul_i32 s4, s13, {8*8208}
        s_mul_i32 s7, s12, 1026
        s_add_u32 s4, s4, s7
        s_and_b32 s4, s4, 0xfffffffc
        ''')
        lds_wait(a, C_PA, 4, 12, slp=2, sreg=7)
        a(f'''
        buffer_load_dword v20, v7, s[52:55], s4 offen
        buffer_load_dword v21, v7, s[56:59], s4 offen
        buffer_load_dword v22, v7, s[52:55], s4 offen offset:124
        buffer_load_dword v23, v7, s[56:59], s4 offen offset:124
        ''')
    a(f'''
    v_lshrrev_b32 v7, 1, v{lane}
    v_lshlrev_b32 v8, 3, v7
    v_add_u32 v8, s12, v8
    v_mul_u32_u24 v8, 1026, v8
    v_and_b32 v9, 1, v{lane}
    v_lshl_add_u32 v8, v9, 4, v8
    s_lshl_b32 s11, s13, 5
    s_cmp_ge_u32 s12, 5
    s_cselect_b32 s7, 2, 0
    s_add_u32 s11, s11, s7
    v_bfe_u32 v15, v{lane}, 3, 2
    v_lshl_add_u32 v15, v9, 1, v15
    v_and_b32 v14, 3, v15
    v_add_u32 v15, 1, v15
    v_and_b32 v15, 3, v15
    v_lshlrev_b32 v7, 6, v7
    v_add_u32 v7, {WB}, v7
    v_lshl_add_u32 v16, v14, 4, v7
    v_lshl_add_u32 v17, v15, 4, v7
    ''')
    lds_wait(a, C_T1, 2, 12, slp=2)
    if os.environ.get('WAFTER', 'p') == 'u': lds_wait(a, C_UL, 4, 12, slp=2)
    lds_wait(a, C_S1, 6, 12, slp=2)
    stamp(a, 2)
    WL = 32
    WBATCH = int(os.environ.get('WBATCH', '2'))
    for q0 in range(0, 8, WBATCH):
        for q in range(q0, q0 + WBATCH):
            a(f'buffer_load_dwordx4 {vr(WL+8*q,4)}, v8, s[52:55], s11 offen')
            a(f'buffer_load_dwordx4 {vr(WL+8*q+4,4)}, v8, s[56:59], s11 offen')
            if q < 7: a(f's_add_u32 s11, s11, {32*8*1026}')
        for q in range(q0, q0 + WBATCH):
            a(f's_waitcnt vmcnt({2*(q0+WBATCH-1-q)})')
            for ar in range(2):
                r = WL + 8 * q + 4 * ar
                a(f'ds_write_b64 v16, {vr(r,2)} offset:{q*2048+ar*8}')
                a(f'ds_write_b64 v17, {vr(r+2,2)} offset:{q*2048+ar*8}')
    lds_arrive(a, C_W, 12)
    stamp(a, 3)
    a(f's_cmp_eq_u32 s2, {M1}')
    a('s_cbranch_scc0 .m_end')
    lds_wait(a, C_S2, 4, 12, slp=2)
    a('s_setprio 3')
    master(a, lane, '1', 131072, 24576)
    a('.m_end:')
    stamp(a, 4)
    stamp_flush(a, 0, 5)
    a('s_endpgm')

def gen_A(a, lane):
    a('.role_a:')
    remap(a)
    KB = 32
    UR = 128
    a(f'''
    s_and_b32 s10, s3, 3
    s_lshl_b32 s9, s2, 2
    s_add_u32 s9, s9, s10           ; channel
    s_mul_i32 s10, s10, {CH_REG}
    s_add_u32 s10, s10, {CH0}
    s_lshl_b32 s68, s9, 8
    s_lshl_b32 s69, s9, 1
    v_lshlrev_b32 v{KB+5}, 3, v{lane}
    v_add_u32 v{KB+5}, s10, v{KB+5}
    v_lshlrev_b32 v{KB+3}, 2, v{lane}
    v_mov_b32 v{KB+4}, 0
    v_lshlrev_b32 v3, 4, v{lane}
    s_mul_i32 s15, s9, {UP}
    s_add_u32 s15, s15, 64
    v_add_u32 v23, s10, v3
    s_lshl_b32 s14, s2, 4
    s_add_u32 s14, s14, 12288
    v_and_b32 v4, 31, v{lane}             ; b
    v_lshrrev_b32 v5, 5, v{lane}          ; h
    v_lshlrev_b32 v6, 4, v4
    s_add_u32 s11, s10, {CV_K}
    v_sub_u32 v6, s11, v6
    v_lshlrev_b32 v7, 3, v5
    v_sub_u32 v20, v6, v7
    v_lshlrev_b32 v7, 9, v5
    v_sub_u32 v21, v6, v7
    v_sub_u32 v22, v21, v7
    v_add_u32 v22, {2*760}, v22
    v_add_u32 v21, {2*1528}, v21
    v_add_u32 v20, {2*1788}, v20
    ''')
    vKA, vKB = 18, 19
    a(f'''
    v_lshlrev_b32 v7, 4, v5
    v_add_u32 v7, s10, v7
    v_add_u32 v6, 28, v4
    v_mul_u32_u24 v6, {KP}, v6
    v_add_u32 v{vKB}, v6, v7
    v_mov_b32 v6, v4
    ''')
    for thr in (11, 15, 19, 23):
        a(f'v_cmp_lt_u32 vcc, {thr}, v4')
        a(f'v_subbrev_co_u32 v6, vcc, 0, v6, vcc')
    vF, vG = 24, 25
    a(f'''
    v_mul_u32_u24 v6, {KP}, v6
    v_add_u32 v{vKA}, v6, v7
    v_and_b32 v7, 1, v4
    v_cmp_eq_u32 s[70:71], 1, v7          ; odd b
    v_and_b32 v26, 15, v{lane}
    v_lshrrev_b32 v27, 4, v{lane}
    v_lshlrev_b32 v28, 4, v27
    v_lshlrev_b32 v29, 3, v26
    v_sub_u32 v{vF}, v28, v29
    s_add_u32 s6, s11, {2*2044-3968}
    v_add_u32 v{vF}, s6, v{vF}
    v_and_b32 v30, 3, v26
    v_mul_u32_u24 v30, {CS}, v30
    v_lshrrev_b32 v31, 2, v26
    v_lshl_add_u32 v30, v31, 7, v30
    v_add3_u32 v{vG}, v30, v28, s10
    s_waitcnt lgkmcnt(0)
    ''')
    srd(a, 44, P_LOGA, 1024 * 256)
    srd(a, 48, P_LOGDT, 2048)
    srd(a, 52, P_AIM, 1024 * 256)
    a(f'buffer_load_dword v8, v{KB+3}, s[44:47], s68 offen')
    a(f'buffer_load_ushort v12, v{KB+4}, s[48:51], s69 offen')
    a(f'buffer_load_dword v9, v{KB+3}, s[52:55], s68 offen')
    srd(a, 44, P_CRE, 1024 * 256)
    srd(a, 48, P_CIM, 1024 * 256)
    srd(a, 52, P_DSKIP, 2048)
    a(f'buffer_load_dword v10, v{KB+3}, s[44:47], s68 offen')
    a(f'buffer_load_dword v11, v{KB+3}, s[48:51], s68 offen')
    a(f'buffer_load_ushort v17, v{KB+4}, s[52:55], s69 offen')
    a('s_barrier')
    a(f"s_setprio {os.environ.get('APRIO', '1')}")
    a('s_waitcnt vmcnt(0)')
    stamp(a, 1)
    for k in range(5): a(f'v_mov_b32 v{KB+8+k}, v{8+k}')
    gen_kgen(a, 0, KB, KB + 5, 's_nop 0', 's_nop 0')
    gen_kgen(a, 1, KB, KB + 5, 's_nop 0', 's_nop 0', skip_setup=True)
    a('s_waitcnt lgkmcnt(0)')
    stamp(a, 2)
    D = 32
    FB = 64
    def rd(kk):
        b = FB + 8 * (kk & 7)
        a(f'ds_read_b128 {vr(b,4)}, v{vKA} offset:{kk*32}')
        a(f'ds_read_b128 {vr(b+4,4)}, v{vKB} offset:{kk*32}')
    for kk in range(6): rd(kk)
    for kk in range(16):
        b = FB + 8 * (kk & 7)
        rem = min(5, 15 - kk)
        a(f's_waitcnt lgkmcnt({2*rem})')
        a(f'v_mfma_f32_32x32x16_bf16 {vr(D,16)}, {vr(b,4)}, {vr(b+4,4)}, ' + ('0' if kk == 0 else vr(D, 16)))
        if kk + 6 < 16: rd(kk + 6)
    a(f'''
    v_mov_b32 v8, 0
    v_mov_b32 v9, 0
    v_mov_b32 v10, 0
    v_mov_b32 v11, 0
    s_mov_b64 exec, 0xffffff
    ''')
    for c in range(4):
        a(f'ds_write_b128 v23, v[8:11] offset:{c*CS}')
    E = 128
    a(f'''
    s_mov_b64 exec, 0xff
    ds_write_b128 v23, v[8:11] offset:{CV_K+4096}
    s_mov_b64 exec, -1
    v_lshlrev_b32 v17, 16, v17
    s_mov_b64 exec, 1
    v_add_f32 v{D}, v{D}, v17
    s_mov_b64 exec, -1
    v_cvt_pk_bf16_f32 v{E}, v{D+3}, v{D+2}
    v_cvt_pk_bf16_f32 v{E+1}, v{D+1}, v{D}
    ds_write_b64 v20, {vr(E,2)} offset:512
    v_cvt_pk_bf16_f32 v{E+2}, v{D+6}, v{D+5}
    v_cvt_pk_bf16_f32 v{E+3}, v{D+4}, v{D+4}
    ds_write_b64 v20, {vr(E+2,2)}
    v_cvt_pk_bf16_f32 v{E+4}, v{D+10}, v{D+10}
    v_cvt_pk_bf16_f32 v{E+5}, v{D+9}, v{D+9}
    v_cvt_pk_bf16_f32 v{E+6}, v{D+9}, v{D+8}
    v_cvt_pk_bf16_f32 v{E+7}, v{D+8}, v{D+8}
    ds_write_b128 v21, {vr(E+4,4)}
    ''')
    for j in range(2):
        x, z, q = D + 12 + 2 * j, D + 13 + 2 * j, E + 8 + 4 * j
        a(f'''
        v_cndmask_b32 v{D+7}, v{x}, v{z}, s[70:71]
        v_cvt_pk_bf16_f32 v{q}, v{z}, v{z}
        v_cvt_pk_bf16_f32 v{q+1}, v{z}, v{D+7}
        v_cvt_pk_bf16_f32 v{q+2}, v{x}, v{x}
        v_cvt_pk_bf16_f32 v{q+3}, v{x}, v{x}
        ds_write_b128 v22, {vr(q,4)} offset:{512*(1-j)}
        ''')
    ACC = 32
    a('s_waitcnt lgkmcnt(0)')
    for k in range(32): a(f'v_mov_b32 v{ACC+k}, 0')
    a(f'v_mov_b32 v{UR}, 0')
    a(f'v_mov_b32 v{UR+1}, 0')
    srd(a, 44, P_WS, 1024 * UP, WS_UT)
    srd(a, 52, P_WS, 4 << 20, WS_YT)
    a('s_lshl_b32 s13, s9, 12')
    stamp(a, 3)
    lds_wait(a, C_G0, 1, 8, slp=1)
    a('s_setprio 3')
    stamp(a, 4)
    for p in range(4):
        a(f'buffer_load_dwordx4 {vr(UR+8*p+2,4)}, v3, s[44:47], s15 offen offset:{p*1024} sc1')
    lds_arrive(a, C_UL, 8)
    dpp = 'row_mask:0xf bank_mask:0xf'
    Q = 64
    for p in range(4):
        r = UR + 8 * p
        q = Q + 12 * p
        a(f's_waitcnt vmcnt({3-p})')
        a(f'ds_write_b128 v23, {vr(r+2,4)} offset:{384 + 3*CS + 1024*p}')
        a(f'v_mov_b32_dpp v{r}, v{r+4} wave_shr:1 {dpp}')
        a(f'v_mov_b32_dpp v{r+1}, v{r+5} wave_shr:1 {dpp}')
        if p < 3:
            a(f'v_mov_b32_dpp v{r+8}, v{r+4} wave_ror:1 {dpp}')
            a(f'v_mov_b32_dpp v{r+9}, v{r+5} wave_ror:1 {dpp}')
        for j in range(4):
            a(f'v_mov_b32 v{q+8+j}, v{r+1+j}')
        a(f'ds_write_b128 v23, {vr(q+8,4)} offset:{384 + 1*CS + 1024*p}')
        for j in range(4):
            a(f'v_alignbit_b32 v{q+j}, v{r+j+1}, v{r+j}, 16')
        a(f'ds_write_b128 v23, {vr(q,4)} offset:{384 + 1024*p}')
        for j in range(3):
            a(f'v_mov_b32 v{q+4+j}, v{q+1+j}')
        a(f'v_alignbit_b32 v{q+7}, v{r+5}, v{r+4}, 16')
        a(f'ds_write_b128 v23, {vr(q+4,4)} offset:{384 + 2*CS + 1024*p}')
    G0, F0 = 64, 96
    def ld(kind, idx, off):
        if kind == 'G':
            return [f'ds_read_b128 {vr(G0+4*idx,4)}, v{vG} offset:{512*idx+off}']
        return [f'ds_read_b64 {vr(F0+4*idx,2)}, v{vF} offset:{512*(7-idx)+off}', f'ds_read_b64 {vr(F0+4*idx+2,2)}, v{vF} offset:{512*(7-idx)+off+8}']
    even = [(i, c) for i in range(8) for c in range(7 - i, -1, -1)]
    odd = [(i, c) for c in range(7, -1, -1) for i in range(8 - c)]
    def plan(seq):
        lastG, lastF = {}, {}
        for n, (i, c) in enumerate(seq): lastG[i] = n; lastF[c] = n
        rel = {}
        for i, n in lastG.items(): rel.setdefault(n, []).append(('G', i))
        for c, n in lastF.items(): rel.setdefault(n, []).append(('F', c))
        return rel
    rel_e, rel_o = plan(even), plan(odd)
    order0 = [x for n in range(36) for x in rel_o.get(n, [])]
    a('s_waitcnt lgkmcnt(0)')
    stamp(a, 5)
    queue = []
    for kind, idx in order0:
        for ins in ld(kind, idx, 0):
            a(ins); queue.append((kind, idx))
    a('s_mov_b32 s12, 0')
    a('s_setprio 1')
    a(f'v_mov_b32 v16, {CNT+4*C_Z}')
    a('.cv_loop:')
    q0 = list(queue)
    PAUSE = os.environ.get('PAUSE', '0') == '1'
    PK = [int(x) for x in os.environ.get('PAUSE_AT', '12,30').split(',')]
    for seq, rel, off in ((even, rel_e, 64), (odd, rel_o, 128)):
        for n, (i, c) in enumerate(seq):
            if PAUSE and n in PK:
                a(f'ds_read_b96 v[8:10], v16'); queue.append(('P', 0))
            want = [('G', i), ('F', c)]
            chk = PAUSE and (n - 4) in PK
            if chk: want.append(('P', 0))
            need = [k for k, x in enumerate(queue) if x in want]
            if need:
                left = len(queue) - 1 - max(need)
                a(f's_waitcnt lgkmcnt({min(left, 15)})')
                queue = queue[max(need) + 1:] if left <= 15 else queue[len(queue) - 15:]
            if chk:
                Lg = a.label('go')
                a(f'''
                v_sub_u32 v8, v8, v10
                v_readfirstlane_b32 s4, v8
                s_cmp_lt_i32 s4, {os.environ.get('PAUSE_TH', '1')}
                s_cbranch_scc1 {Lg}
                ''')
                lds_wait(a, C_O, 4, 12, slp=1)
                a(f'{Lg}:')
            A = i + c
            a(f'v_mfma_f32_16x16x32_bf16 {vr(ACC+4*A,4)}, {vr(G0+4*i,4)}, {vr(F0+4*c,4)}, {vr(ACC+4*A,4)}')
            for kind, idx in rel.get(n, []):
                for ins in ld(kind, idx, off):
                    a(ins); queue.append((kind, idx))
    assert q0[len(q0) - len(queue):] == queue, (q0, queue)
    a(f'''
    v_add_u32 v{vG}, 128, v{vG}
    v_add_u32 v{vF}, 128, v{vF}
    s_add_u32 s12, s12, 1
    s_cmp_lt_u32 s12, 4
    s_cbranch_scc1 .cv_loop
    ''')
    stamp(a, 6)
    a.raw(';PLAIN_ON')
    for P in range(4):
        o = 128 + 4 * P
        for e in range(2):
            A = 2 * P + e
            a(f'v_cvt_pk_bf16_f32 v{o+2*e}, v{ACC+4*A}, v{ACC+4*A+1}')
            a(f'v_cvt_pk_bf16_f32 v{o+2*e+1}, v{ACC+4*A+2}, v{ACC+4*A+3}')
        a(f'buffer_store_dwordx4 {vr(o,4)}, v3, s[52:55], s13 offen offset:{1024*P}')
    a('s_waitcnt vmcnt(0) lgkmcnt(0)')
    publish(a, C_CV, 4, 14, 8)
    a.raw(';PLAIN_OFF')
    stamp(a, 7)
    stamp_flush(a, 0, 8)
    a('s_endpgm')

def build():
    hdr = open(f'cdna_kernels/{NAME}.s.ref').read().split('\n')
    head = [l for l in hdr if l.startswith(';') and '@launch' not in l.lower()]
    out = '\n'.join(head) + '\n'
    out += f'; @launch grid=(256,1,1) block=(768,1,1) lds={LDS_SIZE}\n'
    out += '.amdgcn_target "amdgcn-amd-amdhsa--gfx950"\n.text\n'
    a = Asm()
    KN = NAME + '_kernel'
    a.raw(f'.globl {KN}')
    a.raw(f'.type {KN},@function')
    gen_main(a)
    body = a.render()
    res = []
    plain = False
    for l in body.split('\n'):
        if l.startswith(';PLAIN_ON'): plain = XL2
        if l.startswith(';PLAIN_OFF'): plain = False
        if l.strip().startswith('buffer_store') and not plain:
            l = l + ' sc1'
        res.append(l)
    out += '\n'.join(res)
    out += '.section .rodata,"a"\n'
    out += kd(KN, 168, 102)
    return out

if __name__ == '__main__':
    path = sys.argv[1] if len(sys.argv) > 1 else f'cdna_kernels/{NAME}.s'
    open(path, 'w').write(build())
    print('wrote', path)
```

```python
import sys, os, struct
sys.path.insert(0, 'dev')
from gen import (Asm, NAME, fhex, vr, srd, stamp, stamp_flush, gen_dft8_frags, gen_z_addr, z_soff,
                 gen_transposer, gen_transposer_tail, kd, DIAG,
                 WS_Z1, WS_Z2, WS_UT, UP, WS_YT,
                 P_U, P_LOGA, P_AIM, P_CRE, P_CIM, P_LOGDT, P_DSKIP, P_X, P_WR, P_WI, P_OUT, P_DBG, P_WS)
from gen23 import cmul_sc, cmul_pk
import gen3
from gen3 import gen_kgen, KP, CH_REG, CS, CV_K

ZB = 0
WB = 16384
SCR = 32768
TRB = WB
CNT = 34816
CH0 = CNT + 128
LDS_SIZE = CH0 + 4 * CH_REG
WS_CW = 20 << 20
WS_FLG = 28 << 20
C_PA, C_S1, C_R0, C_S2, C_Z, C_W, C_O, C_R1, C_L3, C_T1, C_G0, C_CV, C_G1, C_NONCE, C_TL, C_UL, C_RL, C_L3L = range(18)
SPIN_MAX = 0x80000
TFIRST = os.environ.get('TFIRST', '0') == '1'

def lds_arrive(a, c, vt):
    a(f'''
    v_mov_b32 v{vt}, {CNT+4*c}
    v_mov_b32 v{vt+1}, 1
    s_waitcnt lgkmcnt(0)
    s_mov_b64 exec, 1
    ds_add_u32 v{vt}, v{vt+1}
    s_mov_b64 exec, -1
    ''')

def lds_wait(a, c, n, vt, slp=0, sreg=4):
    L = a.label('spin'); E = a.label('spun')
    a(f'''
    v_mov_b32 v{vt}, {CNT+4*c}
    {L}:
    ds_read_b32 v{vt+1}, v{vt}
    s_waitcnt lgkmcnt(0)
    v_readfirstlane_b32 s{sreg}, v{vt+1}
    s_cmp_ge_u32 s{sreg}, {n}
    s_cbranch_scc1 {E}
    s_sleep {slp}
    s_branch {L}
    {E}:
    ''')

FR = int(os.environ.get('FR', '16'))
def publish(a, c, n, flag_off_sreg, vt, rep=1):
    E = a.label('pub')
    a(f'''
    v_mov_b32 v{vt}, {CNT+4*c}
    v_mov_b32 v{vt+1}, 1
    s_mov_b64 exec, 1
    ds_add_rtn_u32 v{vt+1}, v{vt}, v{vt+1}
    s_mov_b64 exec, -1
    s_waitcnt lgkmcnt(0)
    v_readfirstlane_b32 s4, v{vt+1}
    s_cmp_lg_u32 s4, {n-1}
    s_cbranch_scc1 {E}
    ''')
    lds_wait(a, C_NONCE, 1, vt, slp=1, sreg=5)
    srd(a, 60, P_WS, 1 << 18, WS_FLG)
    a(f'''
    v_lshlrev_b32 v{vt}, 10, v2
    v_mov_b32 v{vt+1}, s5
    s_mov_b64 exec, {(1 << rep) - 1}
    buffer_store_dword v{vt+1}, v{vt}, s[60:63], s{flag_off_sreg} offen
    s_mov_b64 exec, -1
    {E}:
    ''')

NREP = int(os.environ.get('NREP', '32'))
def poll_release(a, rel_off, c, vt):
    L = a.label('poll'); E = a.label('polled')
    lds_wait(a, C_NONCE, 1, vt, slp=1, sreg=5)
    srd(a, 60, P_WS, 1 << 18, WS_FLG)
    a(f'''
    v_mov_b32 v{vt}, 0
    s_mov_b32 s6, {SPIN_MAX}
    s_and_b32 s7, s2, {NREP-1}
    s_lshl_b32 s7, s7, 7
    s_add_u32 s7, s7, {rel_off}
    {L}:
    buffer_load_dword v{vt+1}, v{vt}, s[60:63], s7 offen sc1
    s_waitcnt vmcnt(0)
    v_readfirstlane_b32 s4, v{vt+1}
    s_cmp_eq_u32 s4, s5
    s_cbranch_scc1 {E}
    s_sleep {os.environ.get('PSLEEP', '0')}
    s_sub_u32 s6, s6, 1
    s_cmp_lg_u32 s6, 0
    s_cbranch_scc1 {L}
    {E}:
    ''')
    lds_arrive(a, c, vt)

def poll_group(a, lane, base_sreg, c, vt):
    L = a.label('poll'); E = a.label('polled')
    lds_wait(a, C_NONCE, 1, vt, slp=1, sreg=5)
    srd(a, 60, P_WS, 16384, WS_FLG)
    a(f'''
    v_and_b32 v{vt}, 15, v{lane}
    v_lshlrev_b32 v{vt}, 4, v{vt}
    s_mov_b32 s6, {SPIN_MAX}
    {L}:
    buffer_load_dword v{vt+1}, v{vt}, s[60:63], s{base_sreg} offen sc1
    s_waitcnt vmcnt(0)
    v_cmp_ne_u32 vcc, s5, v{vt+1}
    s_cmp_eq_u64 vcc, 0
    s_cbranch_scc1 {E}
    s_sub_u32 s6, s6, 1
    s_cmp_lg_u32 s6, 0
    s_cbranch_scc1 {L}
    {E}:
    ''')
    lds_arrive(a, c, vt)

XL2 = os.environ.get('XL2', '0') == '1'
def remap(a):
    if XL2:
        a('''
        s_mov_b32 s43, s2
        s_and_b32 s4, s2, 7
        s_lshl_b32 s4, s4, 5
        s_lshr_b32 s2, s2, 3
        s_or_b32 s2, s2, s4
        ''')

def gen_main(a):
    KN = NAME + '_kernel'
    a.raw('.p2align 8')
    a.raw(f'{KN}:')
    EXIT = '.exit'
    lane = 2
    a(f'''
    s_cmp_ge_u32 s2, 256
    s_cbranch_scc1 {EXIT}
    ''')
    stamp(a, 0)
    a('''
    s_load_dwordx16 s[16:31], s[0:1], 0
    s_load_dwordx8 s[32:39], s[0:1], 64
    s_load_dwordx2 s[40:41], s[0:1], 96
    v_lshrrev_b32 v1, 6, v0
    v_and_b32 v2, 63, v0
    v_readfirstlane_b32 s3, v1
    ''')
    ORDER = os.environ.get('ORDER', 'BTMA')
    if ORDER == 'ATMB':
        a('''
        s_mov_b32 s4, 0x0765ba98
        s_mov_b32 s5, 0x00004321
        s_lshl_b32 s6, s3, 2
        s_lshr_b64 s[4:5], s[4:5], s6
        s_and_b32 s3, s4, 15
        s_lshl_b32 s4, s3, 6
        v_add_u32 v0, s4, v2
        ''')
    a('''
    s_cmp_ge_u32 s3, 8
    s_cbranch_scc1 .role_a
    s_cmp_eq_u32 s3, 7
    s_cbranch_scc1 .role_m
    s_cmp_ge_u32 s3, 5
    s_cbranch_scc1 .role_t
    ''')
    gen_B(a, lane, EXIT)
    gen_T(a, lane)
    gen_M(a, lane)
    gen_A(a, lane)
    a(f'{EXIT}:')
    a('s_endpgm')

def gen_B(a, lane, EXIT):
    a(f'''
    s_setprio 2
    s_mov_b32 s8, s3
    s_and_b32 s15, s3, 3
    s_sub_u32 s9, 8, s8
    s_lshl_b32 s4, s2, 11
    v_lshlrev_b32 v3, 3, v0
    v_add_u32 v7, s4, v3
    ''')
    XL = 16
    F8 = 8
    vC, vS, vnS, vCt, vnSt, tc, ts = 80, 88, 96, 104, 112, 120, 136
    kf, arg, a2, c0, c1, s0, s1_, k5, sg = range(64, 73)
    def tab_init(kf, arg, k5):
        a(f'''
        v_and_b32 v{kf}, 31, v{lane}
        v_cvt_f32_u32 v{kf}, v{kf}
        v_mul_f32 v{kf}, {fhex(1/32)}, v{kf}
        v_lshrrev_b32 v{arg}, 5, v{lane}
        v_cvt_f32_u32 v{arg}, v{arg}
        v_mul_f32 v{arg}, 4.0, v{arg}
        v_mul_f32 v{arg}, v{arg}, v{kf}
        v_mul_f32 v{k5}, {fhex(5.0)}, v{kf}
        ''')
    tab_init(kf, arg, k5)
    a(f'''
    v_and_b32 v{sg}, 16, v{lane}
    v_lshlrev_b32 v{sg}, 11, v{sg}
    v_lshl_or_b32 v{sg}, v{sg}, 16, v{sg}
    ''')
    def tab(ip):
        for e, (cr, sr) in enumerate(((c0, s0), (c1, s1_))):
            i = 2 * ip + e
            a(f'v_cos_f32 v{cr}, v{arg}')
            a(f'v_sin_f32 v{sr}, v{arg}')
            a(f'v_mul_f32 v{a2}, {fhex(1/32)}, v{arg}')
            a(f'v_cos_f32 v{tc+i}, v{a2}')
            a(f'v_sin_f32 v{ts+i}, v{a2}')
            if i != 15:
                a(f'v_add_f32 v{arg}, v{arg}, v{k5 if (i & 3) == 3 else kf}')
        a(f'v_cvt_pk_bf16_f32 v{vC+ip}, v{c0}, v{c1}')
        a(f'v_cvt_pk_bf16_f32 v{vS+ip}, v{s0}, v{s1_}')
        a(f'v_cvt_pk_bf16_f32 v{vnS+ip}, -v{s0}, -v{s1_}')
        a(f'v_xor_b32 v{vCt+ip}, v{sg}, v{vC+ip}')
        a(f'v_xor_b32 v{vnSt+ip}, v{sg}, v{vnS+ip}')
    NPRE = 3
    for ip in range(NPRE): tab(ip)
    a('s_waitcnt lgkmcnt(0)')
    srd(a, 44, P_X, 4 << 20)
    if TFIRST: a('s_barrier')
    a('s_cmp_eq_u32 s3, 4')
    a('s_cbranch_scc1 .b1_noload')
    for s1 in range(8):
        a(f's_mov_b32 s5, {s1*256*2048}')
        a(f'buffer_load_dwordx2 {vr(XL+2*s1,2)}, v7, s[44:47], s5 offen')
    a('.b1_noload:')
    if not TFIRST: a('s_barrier')
    srd(a, 48, P_WS, 4 << 20, WS_Z1)
    gen_dft8_frags(a, lane, F8, 32, True)
    for ip in range(NPRE, 8): tab(ip)
    vlo, vhi, vtr = 164, 165, 154
    gen_z_addr(a, lane, vlo, vhi, 64, 2, 8, 9)
    a(f'''
    v_lshrrev_b32 v64, 5, v{lane}
    v_bfe_u32 v65, v{lane}, 2, 2
    v_lshl_add_u32 v64, v64, 2, v65
    v_lshlrev_b32 v64, 6, v64
    v_bfe_u32 v65, v{lane}, 4, 1
    v_lshl_add_u32 v64, v65, 5, v64
    v_and_b32 v65, 3, v{lane}
    v_lshl_add_u32 v64, v65, 3, v64
    s_lshl_b32 s4, s8, 1
    s_cmp_eq_u32 s8, 4
    s_cselect_b32 s4, 1, s4
    s_lshl_b32 s4, s4, 11
    v_add_u32 v{vtr}, s4, v64
    ''')
    a('s_cmp_eq_u32 s3, 4')
    a('s_cbranch_scc1 .b1_phaseB')
    BO, DD = 32, 48
    a('s_mov_b32 s4, 0x05040100')
    a('s_mov_b32 s5, 0x07060302')
    a('s_waitcnt vmcnt(0)')
    for e in range(4):
        for p in range(4):
            lo, hi = XL + 2 * (2 * p) + (e >> 1), XL + 2 * (2 * p + 1) + (e >> 1)
            a(f'v_perm_b32 v{BO+4*e+p}, v{hi}, v{lo}, s{4 + (e & 1)}')
        for hf in range(2):
            a(f'v_mfma_f32_16x16x32_bf16 {vr(DD+8*e+4*hf,4)}, {vr(F8+4*hf,4)}, {vr(BO+4*e,4)}, 0')
    for q in range(8):
        a(f'v_cvt_pk_bf16_f32 v{XL+2*q}, v{DD+q}, v{DD+8+q}')
        a(f'v_cvt_pk_bf16_f32 v{XL+2*q+1}, v{DD+16+q}, v{DD+24+q}')
        a(f'ds_write_b64 v3, {vr(XL+2*q,2)} offset:{ZB+q*2048}')
    lds_arrive(a, C_PA, 4)
    a('.b1_phaseB:')
    lds_wait(a, C_PA, 4, 4)
    stamp(a, 1)
    AR, AI, DR, DI, T0 = 16, 24, 32, 48, 64
    for c in range(2):
        for jj in range(2):
            a(f'ds_read_b64_tr_b16 {vr(AR+4*c+2*jj,2)}, v{vtr} offset:{c*1024+jj*512}')
    for c in range(2):
        for jj in range(2):
            a(f'ds_read_b64_tr_b16 {vr(AI+4*c+2*jj,2)}, v{vtr} offset:{2048+c*1024+jj*512}')
    a('s_waitcnt lgkmcnt(4)')
    a(f'v_mfma_f32_32x32x16_bf16 {vr(DR,16)}, {vr(AR,4)}, {vr(vC,4)}, 0')
    a(f'v_mfma_f32_32x32x16_bf16 {vr(DI,16)}, {vr(AR,4)}, {vr(vnS,4)}, 0')
    a(f'v_mfma_f32_32x32x16_bf16 {vr(DR,16)}, {vr(AR+4,4)}, {vr(vC+4,4)}, {vr(DR,16)}')
    a(f'v_mfma_f32_32x32x16_bf16 {vr(DI,16)}, {vr(AR+4,4)}, {vr(vnS+4,4)}, {vr(DI,16)}')
    a('s_waitcnt lgkmcnt(0)')
    a('s_cmp_eq_u32 s15, 0')
    a('s_cbranch_scc1 .b1_real1')
    for c in range(2):
        a(f'v_mfma_f32_32x32x16_bf16 {vr(DR,16)}, {vr(AI+4*c,4)}, {vr(vS+4*c,4)}, {vr(DR,16)}')
        a(f'v_mfma_f32_32x32x16_bf16 {vr(DI,16)}, {vr(AI+4*c,4)}, {vr(vC+4*c,4)}, {vr(DI,16)}')
    a('.b1_real1:')
    def tw(ib):
        prs = [2 * ib, 2 * ib + 1]
        for k, ip in enumerate(prs):
            r, i_, c_, s_ = DR + 2 * ip, DI + 2 * ip, tc + 2 * ip, ts + 2 * ip
            a(f'v_pk_mul_f32 {vr(T0+4*(ib&1)+2*k,2)}, {vr(i_,2)}, {vr(s_,2)}')
            a(f'v_pk_mul_f32 {vr(s_,2)}, {vr(r,2)}, {vr(s_,2)}')
        for k, ip in enumerate(prs):
            r, i_, c_, s_ = DR + 2 * ip, DI + 2 * ip, tc + 2 * ip, ts + 2 * ip
            a(f'v_pk_fma_f32 {vr(T0+4*(ib&1)+2*k,2)}, {vr(r,2)}, {vr(c_,2)}, {vr(T0+4*(ib&1)+2*k,2)}')
            a(f'v_pk_fma_f32 {vr(s_,2)}, {vr(i_,2)}, {vr(c_,2)}, {vr(s_,2)} neg_lo:[0,0,1] neg_hi:[0,0,1]')
    def pk(ib):
        for k, ip in enumerate((2 * ib, 2 * ib + 1)):
            t = T0 + 4 * (ib & 1) + 2 * k
            a(f'v_cvt_pk_bf16_f32 v{AR+ip}, v{t}, v{t+1}')
            a(f'v_cvt_pk_bf16_f32 v{AI+ip}, v{ts+2*ip}, v{ts+2*ip+1}')
    tw(0); tw(1); pk(0); pk(1); tw(2); tw(3); pk(2); pk(3)
    for c in range(2):
        z = '0' if c == 0 else None
        a(f'v_mfma_f32_32x32x16_bf16 {vr(DR,16)}, {vr(vC+4*c,4)}, {vr(AR+4*c,4)}, {z or vr(DR,16)}')
        a(f'v_mfma_f32_32x32x16_bf16 {vr(DI,16)}, {vr(vCt+4*c,4)}, {vr(AI+4*c,4)}, {z or vr(DI,16)}')
        a(f'v_mfma_f32_32x32x16_bf16 {vr(DR,16)}, {vr(vS+4*c,4)}, {vr(AI+4*c,4)}, {vr(DR,16)}')
        a(f'v_mfma_f32_32x32x16_bf16 {vr(DI,16)}, {vr(vnSt+4*c,4)}, {vr(AR+4*c,4)}, {vr(DI,16)}')
    a('s_cmp_eq_u32 s15, 0')
    a('s_cbranch_scc0 .b1_cplx2')
    a(f'''
    s_mov_b64 exec, 1
    v_mov_b32 v{DI}, v{DR+8}
    s_mov_b64 exec, -1
    s_branch .b1_lo
    ''')
    O = 64
    a('.b1_cplx2:')
    for i in range(8, 16):
        a(f'v_cvt_pk_bf16_f32 v{O+i}, v{DR+i}, v{DI+i}')
        a(f's_mov_b32 s5, {z_soff(i)}')
        a(f'buffer_store_dword v{O+i}, v{vhi}, s[48:51], s5 offen')
    a('.b1_lo:')
    for i in range(8):
        a(f'v_cvt_pk_bf16_f32 v{O+i}, v{DR+i}, v{DI+i}')
        a(f's_mov_b32 s5, {z_soff(i)}')
        a(f'buffer_store_dword v{O+i}, v{vlo}, s[48:51], s5 offen')
    stamp(a, 2)
    a('s_lshl_b32 s14, s2, 4')
    a('s_add_u32 s14, s14, 65536')
    a('s_cmp_eq_u32 s3, 4')
    a('s_cbranch_scc0 .b2_start')
    a('s_waitcnt vmcnt(0)')
    publish(a, C_S1, 6, 14, 4)
    stamp(a, 3)
    a('s_branch .b3_start')

    a('.b2_start:')
    WL = 144
    WM = 16
    WMr = [16 + k for k in range(16)] + [48 + k for k in range(8)]
    vW0, vW1, vZ, vL = 160, 161, 162, 163
    TM = 8
    a(f'''
    s_and_b32 s12, s2, 7
    s_lshr_b32 s13, s2, 3              ; G
    v_and_b32 v3, 15, v{lane}          ; n
    v_lshrrev_b32 v4, 4, v{lane}       ; g
    ''')
    srd(a, 52, P_WR, 2048 * 1026)
    srd(a, 56, P_WI, 2048 * 1026)
    a('s_waitcnt vmcnt(0)')
    publish(a, C_S1, 6, 14, 10)
    a('s_setprio 1')
    stamp(a, 3)
    a(f'''
    s_lshl_b32 s11, s12, 5
    s_add_u32 s11, s11, s13
    s_lshl_b32 s11, s11, 14
    v_lshlrev_b32 v5, 4, v{lane}
    s_lshl_b32 s4, s3, 12
    s_add_u32 s10, s4, {ZB}
    s_add_u32 s11, s11, s4
    v_add_u32 v{vL}, s10, v5
    v_bfe_u32 v15, v3, 2, 2
    v_add_u32 v15, s3, v15
    v_and_b32 v15, 3, v15
    v_lshlrev_b32 v15, 4, v15
    v_lshl_add_u32 v15, v3, 6, v15
    v_lshl_add_u32 v15, v4, 12, v15
    v_add_u32 v{vZ}, {ZB}, v15
    ''')
    B1R, B1I, A2R, A2I, B3R, B3I, A4R, A4I = 16, 20, 24, 28, 32, 36, 40, 44
    T1C, T1S, T3C, T3S = 48, 52, 56, 60
    nf, idx, q1, p_, c_, s_, p2, c2, s2_, p3, c3, s3_, k1_, k2_ = range(64, 78)
    scale = 2.0 / (2048 * 1024)
    a(f'''
    v_cvt_f32_u32 v{nf}, v3
    v_lshlrev_b32 v{idx}, 2, v4
    v_cvt_f32_u32 v{idx}, v{idx}
    v_cvt_f32_u32 v{k1_}, s12
    v_mul_f32 v{k1_}, {fhex(1/128)}, v{k1_}
    v_mul_f32 v{k2_}, {fhex(1/16)}, v{nf}
    v_add_f32 v{q1}, v{k2_}, v{k1_}
    v_mul_f32 v{k1_}, v{k1_}, v{nf}
    ''')
    for e in range(4):
        a(f'''
        v_mul_f32 v{p_}, v{idx}, v{q1}
        v_mul_f32 v{p2}, v{idx}, v{k2_}
        v_cos_f32 v{c_}, v{p_}
        v_sin_f32 v{s_}, v{p_}
        v_add_f32 v{p3}, v{p2}, v{k1_}
        v_cos_f32 v{c2}, v{p2}
        v_sin_f32 v{s2_}, v{p2}
        v_mul_f32 v{p_}, {fhex(1/16)}, v{p_}
        v_cos_f32 v{c3}, v{p3}
        v_sin_f32 v{s3_}, v{p3}
        v_mul_f32 v{p3}, {fhex(1/16)}, v{p3}
        v_cvt_pk_bf16_f32 v{B1R+e}, v{c_}, v{s_}
        v_cvt_pk_bf16_f32 v{B1I+e}, -v{s_}, v{c_}
        v_cos_f32 v{c_}, v{p_}
        v_sin_f32 v{s_}, v{p_}
        v_cvt_pk_bf16_f32 v{A2R+e}, v{c2}, v{s2_}
        v_cvt_pk_bf16_f32 v{A2I+e}, -v{s2_}, v{c2}
        v_cvt_pk_bf16_f32 v{B3R+e}, v{c2}, -v{s2_}
        v_cvt_pk_bf16_f32 v{B3I+e}, v{s2_}, v{c2}
        v_cos_f32 v{T3C+e}, v{p3}
        v_sin_f32 v{T3S+e}, v{p3}
        v_cvt_pk_bf16_f32 v{A4R+e}, v{c3}, -v{s3_}
        v_cvt_pk_bf16_f32 v{A4I+e}, v{s3_}, v{c3}
        v_mul_f32 v{T1C+e}, {fhex(scale)}, v{c_}
        v_mul_f32 v{T1S+e}, {fhex(scale)}, v{s_}
        v_add_f32 v{idx}, 1.0, v{idx}
        ''')
    X = 64; D = 80; WF = 112
    CWR = 144
    a(f'''
    s_mov_b32 s7, 0xffff0000
    s_mov_b32 s68, 0
    s_cmp_ge_u32 s12, 5
    s_cbranch_scc1 .b2_sp_hi
    s_or_b32 s4, s13, s3
    s_cmp_lg_u32 s4, 0
    s_cbranch_scc1 .b2_sp_done
    s_and_b32 s4, s12, 3
    s_cmp_eq_u32 s4, 0
    s_cselect_b32 s68, 3, 1
    s_branch .b2_sp_done
    .b2_sp_hi:
    s_cmp_lg_u32 s13, 31
    s_cbranch_scc1 .b2_sp_done
    s_cmp_lg_u32 s3, 3
    s_cbranch_scc1 .b2_sp_done
    s_mov_b32 s68, 2
    .b2_sp_done:
    ''')
    srd(a, 44, P_WS, 4 << 20, WS_Z1)
    srd(a, 48, P_WS, 4 << 20, WS_Z2)
    srd(a, 52, P_WS, 16384, WS_CW)
    a('s_mov_b32 m0, s10')
    stamp(a, 4)
    lds_wait(a, C_R0, 1, 10, slp=1)
    a('s_setprio 2')
    stamp(a, 5)
    for p in range(4):
        a(f'buffer_load_dwordx4 v5, s[44:47], s11 offen offset:{p*1024} sc1 lds')
    a('s_cmp_eq_u32 s68, 0')
    a('s_cbranch_scc1 .b2_nocw')
    a(f'''
    v_lshl_add_u32 v64, v4, 6, v3
    s_cmp_eq_u32 s12, 0
    s_cselect_b32 s4, 1, 0
    s_add_u32 s4, s4, 255
    v_sub_u32 v65, s4, v64
    s_sub_u32 s4, 8, s12
    s_and_b32 s4, s4, 7
    s_lshl_b32 s4, s4, 10
    s_add_u32 s5, s4, 8192
    s_cmp_eq_u32 s68, 2
    s_cselect_b32 s4, s5, s4
    s_lshl_b32 s6, s12, 10
    s_add_u32 s6, s6, 8192
    v_lshlrev_b32 v64, 2, v64
    ''')
    for i in range(4):
        a(f'''
        v_subrev_u32 v66, {16*i}, v65
        v_and_b32 v66, 255, v66
        v_lshlrev_b32 v66, 2, v66
        buffer_load_dword v{CWR+i}, v66, s[52:55], s4 offen sc1
        buffer_load_dword v{CWR+4+i}, v64, s[52:55], s6 offen offset:{64*i} sc1
        buffer_load_dword v{CWR+8+i}, v66, s[52:55], s5 offen sc1
        ''')
    a('.b2_nocw:')
    lds_wait(a, C_W, 1, 10)
    WLL = 80
    for i in range(4):
        a(f'ds_read_b128 {vr(WLL+4*i,4)}, v{vZ} offset:{WB-ZB+1024*i}')
    for i in range(4):
        a(f's_waitcnt lgkmcnt({3-i})')
        for part in range(2):
            for cp in range(2):
                src = WLL + 4 * i + 2 * part + cp
                a(f'v_lshlrev_b32 v{WF+8*(2*cp)+4*part+i}, 16, v{src}')
                a(f'v_and_b32 v{WF+8*(2*cp+1)+4*part+i}, s7, v{src}')
    a('s_waitcnt vmcnt(0)')
    lds_arrive(a, C_Z, 10)
    lds_wait(a, C_Z, 4, 10)
    stamp(a, 6)
    for e in range(4):
        a(f'ds_read_b128 {vr(D+4*e,4)}, v{vZ} offset:{1024*e}')
    for e in range(4):
        a(f's_waitcnt lgkmcnt({3-e})')
        for c in range(4):
            a(f'v_mov_b32 v{X+4*c+e}, v{D+4*e+c}')
    def stage(Mr, Mi, data_is_A):
        for c in range(4):
            for M, off in ((Mr, 0), (Mi, 4)):
                if data_is_A:
                    a(f'v_mfma_f32_16x16x32_bf16 {vr(D+8*c+off,4)}, {vr(X+4*c,4)}, {vr(M,4)}, 0')
                else:
                    a(f'v_mfma_f32_16x16x32_bf16 {vr(D+8*c+off,4)}, {vr(M,4)}, {vr(X+4*c,4)}, 0')
    def mulpack(cr_of, ci_of, conj):
        k = 0
        for c in range(4):
            for hp in range(2):
                t = TM + 4 * (k & 1); k += 1
                cmul_sc(a, t, t + 2, D + 8 * c + 2 * hp, D + 8 * c + 4 + 2 * hp, cr_of(c) + 2 * hp, ci_of(c) + 2 * hp, conj)
                a(f'v_cvt_pk_bf16_f32 v{X+4*c+2*hp}, v{t}, v{t+2}')
                a(f'v_cvt_pk_bf16_f32 v{X+4*c+2*hp+1}, v{t+1}, v{t+3}')
    stage(B1R, B1I, True)
    mulpack(lambda c: T1C, lambda c: T1S, True)
    stage(A2R, A2I, False)
    a('s_cmp_eq_u32 s68, 0')
    a('s_cbranch_scc1 .b2_noreal')
    a('s_cmp_eq_u32 s68, 2')
    a('s_cbranch_scc1 .b2_patch_hi')
    def patch(c):
        for i in range(4):
            a(f'v_lshlrev_b32 v{TM}, 16, v{CWR+i}')
            a(f'v_and_b32 v{TM+1}, s7, v{CWR+i}')
            a(f'v_add_f32 v{WF+8*c+i}, v{WF+8*c+i}, v{TM}')
            a(f'v_sub_f32 v{WF+8*c+4+i}, v{WF+8*c+4+i}, v{TM+1}')
        for i in range(8):
            a(f'v_mul_f32 v{WF+8*c+i}, 0.5, v{WF+8*c+i}')
    patch(0)
    a('s_cmp_eq_u32 s68, 1')
    a('s_cbranch_scc1 .b2_noreal')
    ZM, PQ = 16, 24
    QQ = 48
    a(f'''
    v_lshl_add_u32 v{TM}, v4, 6, v3
    s_lshr_b32 s4, s12, 2
    s_sub_u32 s4, 256, s4
    v_sub_u32 v{TM+1}, s4, v{TM}
    v_lshlrev_b32 v{TM}, 2, v{TM}
    v_add_u32 v{TM}, {SCR}, v{TM}
    ''')
    for i in range(4):
        a(f'ds_write_b32 v{TM}, v{D+i} offset:{64*i}')
        a(f'ds_write_b32 v{TM}, v{D+4+i} offset:{1024+64*i}')
    for i in range(4):
        a(f'''
        v_subrev_u32 v{TM+2}, {16*i}, v{TM+1}
        v_and_b32 v{TM+2}, 255, v{TM+2}
        v_lshlrev_b32 v{TM+2}, 2, v{TM+2}
        v_add_u32 v{TM+2}, {SCR}, v{TM+2}
        ds_read_b32 v{ZM+i}, v{TM+2}
        ds_read_b32 v{ZM+4+i}, v{TM+2} offset:1024
        ''')
    for i in range(4):
        a(f'''
        v_lshlrev_b32 v{TM+4}, 16, v{CWR+4+i}
        v_lshlrev_b32 v{TM+5}, 16, v{CWR+8+i}
        v_and_b32 v{TM+6}, s7, v{CWR+4+i}
        v_and_b32 v{TM+7}, s7, v{CWR+8+i}
        v_add_f32 v{TM+4}, v{TM+4}, v{TM+5}
        v_sub_f32 v{TM+6}, v{TM+6}, v{TM+7}
        v_mul_f32 v{TM+4}, {fhex(0.125)}, v{TM+4}
        v_mul_f32 v{TM+6}, {fhex(0.125)}, v{TM+6}
        v_mul_f32 v{WF+i}, {fhex(0.25)}, v{WF+i}
        v_mul_f32 v{WF+4+i}, {fhex(0.25)}, v{WF+4+i}
        v_add_f32 v{PQ+i}, v{WF+i}, v{TM+4}
        v_add_f32 v{PQ+4+i}, v{WF+4+i}, v{TM+6}
        v_sub_f32 v{QQ+i}, v{WF+i}, v{TM+4}
        v_sub_f32 v{QQ+4+i}, v{WF+4+i}, v{TM+6}
        v_mov_b32 v{WF+i}, 1.0
        v_mov_b32 v{WF+4+i}, 0
        ''')
    a('s_waitcnt lgkmcnt(0)')
    for i in range(4):
        zr, zi, mr, mi = D + i, D + 4 + i, ZM + i, ZM + 4 + i
        pr, pi, qr, qi = PQ + i, PQ + 4 + i, QQ + i, QQ + 4 + i
        a(f'''
        v_mul_f32 v{TM}, v{zr}, v{pr}
        v_mul_f32 v{TM+1}, v{zr}, v{pi}
        v_fma_f32 v{TM}, -v{zi}, v{pi}, v{TM}
        v_fmac_f32 v{TM+1}, v{zi}, v{pr}
        v_fmac_f32 v{TM}, v{mr}, v{qr}
        v_fmac_f32 v{TM+1}, v{mr}, v{qi}
        v_fma_f32 v{zr}, v{mi}, v{qi}, v{TM}
        v_fma_f32 v{zi}, -v{mi}, v{qr}, v{TM+1}
        ''')
    a('s_branch .b2_noreal')
    a('.b2_patch_hi:')
    patch(3)
    a('.b2_noreal:')
    mulpack(lambda c: WF + 8 * c, lambda c: WF + 8 * c + 4, False)
    stage(B3R, B3I, True)
    mulpack(lambda c: T3C, lambda c: T3S, False)
    stage(A4R, A4I, False)
    for i in range(4):
        for c in range(4):
            a(f'v_cvt_pk_bf16_f32 v{X+4*i+c}, v{D+8*c+i}, v{D+8*c+4+i}')
        a(f'ds_write_b128 v{vZ}, {vr(X+4*i,4)} offset:{1024*i}')
    lds_arrive(a, C_O, 10)
    lds_wait(a, C_O, 4, 10)
    stamp(a, 7)
    for p in range(4):
        a(f'ds_read_b128 {vr(X+4*p,4)}, v{vL} offset:{1024*p}')
    a(f'''
    v_lshrrev_b32 v8, 2, v{lane}
    v_lshlrev_b32 v8, 14, v8
    v_and_b32 v9, 3, v{lane}
    v_lshl_add_u32 v8, v9, 4, v8
    s_lshl_b32 s4, s12, 5
    s_add_u32 s4, s4, s13
    s_lshl_b32 s4, s4, 6
    s_lshl_b32 s5, s3, 20
    s_add_u32 s4, s4, s5
    ''')
    for p in range(4):
        a(f's_waitcnt lgkmcnt({3-p})')
        a(f'buffer_store_dwordx4 {vr(X+4*p,4)}, v8, s[48:51], s4 offen')
        if p < 3: a(f's_add_u32 s4, s4, {16*16384}')
    a('s_add_u32 s14, s14, 65536')
    a('s_waitcnt vmcnt(0)')
    publish(a, C_S2, 4, 14, 10)
    stamp(a, 8)

    a('.b3_start:')
    a('s_setprio 0')
    X = 16
    G8 = 8
    MR, MI, NR, NI, tc, ts = 80, 96, 112 - 8, 120 - 8, 128, 144
    kf, arg, a2, c0, s0, k5 = range(74, 80)
    tab_init(kf, arg, k5)
    for i in range(16):
        a(f'v_cos_f32 v{c0}, v{arg}')
        a(f'v_sin_f32 v{s0}, v{arg}')
        a(f'v_mul_f32 v{a2}, {fhex(1/32)}, v{arg}')
        a(f'v_cos_f32 v{tc+i}, v{a2}')
        a(f'v_sin_f32 v{ts+i}, v{a2}')
        if i != 15:
            a(f'v_add_f32 v{arg}, v{arg}, v{k5 if (i & 3) == 3 else kf}')
        a(f'v_cvt_pk_bf16_f32 v{MR+i}, v{c0}, -v{s0}')
        a(f'v_cvt_pk_bf16_f32 v{MI+i}, v{s0}, v{c0}')
        if i >= 8:
            a(f'v_cvt_pk_bf16_f32 v{NR+i}, v{c0}, v{s0}')
            a(f'v_cvt_pk_bf16_f32 v{NI+i}, v{s0}, -v{c0}')
    gen_dft8_frags(a, lane, G8, 64, False)
    a(f'''
    v_and_b32 v6, 31, v{lane}
    v_lshlrev_b32 v6, 2, v6
    v_lshrrev_b32 v7, 5, v{lane}
    v_lshl_add_u32 v6, v7, 9, v6
    s_lshl_b32 s4, s8, 12
    s_cmp_eq_u32 s8, 4
    s_cselect_b32 s4, 2, s4
    v_add_u32 v6, s4, v6
    ''')
    srd(a, 44, P_WS, 4 << 20, WS_Z2)
    srd(a, 48, P_OUT, 8 << 20)
    a(f'''
    s_lshl_b32 s10, s8, 12
    s_cmp_eq_u32 s8, 4
    s_cselect_b32 s10, 2048, s10
    s_add_u32 s10, s10, {ZB}
    s_lshl_b32 s4, s2, 14
    s_lshl_b32 s11, s8, 11
    s_add_u32 s11, s11, s4
    s_lshl_b32 s12, s9, 11
    s_add_u32 s12, s12, s4
    v_lshlrev_b32 v3, 4, v{lane}
    s_lshr_b32 s4, s2, 2
    ''')
    for which, dst in ((0, vlo), (1, vhi)):
        a(f'v_and_b32 v64, 31, v{lane}')
        a(f'v_lshrrev_b32 v65, 5, v{lane}')
        if which:
            a('v_sub_u32 v64, 31, v64')
            a('v_sub_u32 v65, 1, v65')
        a(f'''
        v_bfe_u32 v66, v64, 2, 2
        v_add_u32 v66, s4, v66
        v_and_b32 v66, 3, v66
        v_lshlrev_b32 v66, 4, v66
        v_and_b32 v67, 3, v64
        v_lshl_add_u32 v66, v67, 2, v66
        v_lshrrev_b32 v67, 4, v64
        v_lshl_add_u32 v66, v67, 6, v66
        v_lshl_add_u32 v66, v65, 9, v66
        v_add_u32 v{dst}, s10, v66
        ''')
    a(f'v_add_u32 v{vhi}, 2048, v{vhi}')
    a('s_cmp_eq_u32 s3, 4')
    a('s_cbranch_scc0 .b3_wait')
    a('s_setprio 2')
    poll_release(a, 16384, C_R0, 4)
    stamp(a, 4)
    lds_wait(a, C_S2, 4, 4, slp=4)
    poll_release(a, 24576, C_R1, 4)
    a('.b3_wait:')
    stamp(a, 9)
    lds_wait(a, C_R1, 1, 4, slp=1)
    a('s_setprio 2')
    stamp(a, 10)
    a('s_mov_b32 m0, s10')
    a('buffer_load_dwordx4 v3, s[44:47], s11 offen sc1 lds')
    a('buffer_load_dwordx4 v3, s[44:47], s11 offen offset:1024 sc1 lds')
    a('s_cmp_eq_u32 s15, 0')
    a('s_cbranch_scc1 .b3_real_noload')
    a('s_add_u32 s4, s10, 2048')
    a('s_mov_b32 m0, s4')
    a('buffer_load_dwordx4 v3, s[44:47], s12 offen sc1 lds')
    a('buffer_load_dwordx4 v3, s[44:47], s12 offen offset:1024 sc1 lds')
    a('.b3_real_noload:')
    lds_arrive(a, C_L3L, 4)
    DR, DI, T0 = 32, 48, 64
    a('s_waitcnt vmcnt(0)')
    for i in range(16):
        a(f'ds_read_b32 v{X+i}, v{vlo if i < 8 else vhi} offset:{z_soff(i) >> 8}')
    a('s_waitcnt lgkmcnt(0)')
    stamp(a, 11)
    a('s_cmp_eq_u32 s15, 0')
    a('s_cbranch_scc0 .b3_cplx1')
    for i in range(8, 16): a(f'v_mov_b32 v{X+i}, 0')
    a(f'''
    s_mov_b64 exec, 1
    v_lshrrev_b32 v{X+8}, 16, v{X}
    s_mov_b64 exec, -1
    ''')
    lds_arrive(a, C_RL, 4)
    a('.b3_cplx1:')
    for c in range(4):
        br, bi = (MR + 4 * c, MI + 4 * c) if c < 2 else (NR + 4 * c, NI + 4 * c)
        a(f'v_mfma_f32_32x32x16_bf16 {vr(DR,16)}, {vr(X+4*c,4)}, {vr(br,4)}, ' + ('0' if c == 0 else vr(DR, 16)))
        a(f'v_mfma_f32_32x32x16_bf16 {vr(DI,16)}, {vr(X+4*c,4)}, {vr(bi,4)}, ' + ('0' if c == 0 else vr(DI, 16)))
    for ib in range(4):
        for k in range(2):
            ip = 2 * ib + k; t = T0 + 8 * (ib & 1) + 4 * k
            a(f'v_pk_mul_f32 {vr(t,2)}, {vr(DI+2*ip,2)}, {vr(ts+2*ip,2)}')
            a(f'v_pk_mul_f32 {vr(t+2,2)}, {vr(DR+2*ip,2)}, {vr(ts+2*ip,2)}')
        for k in range(2):
            ip = 2 * ib + k; t = T0 + 8 * (ib & 1) + 4 * k
            a(f'v_pk_fma_f32 {vr(t,2)}, {vr(DR+2*ip,2)}, {vr(tc+2*ip,2)}, {vr(t,2)} neg_lo:[0,0,1] neg_hi:[0,0,1]')
            a(f'v_pk_fma_f32 {vr(t+2,2)}, {vr(DI+2*ip,2)}, {vr(tc+2*ip,2)}, {vr(t+2,2)}')
        for k in range(2):
            ip = 2 * ib + k; t = T0 + 8 * (ib & 1) + 4 * k
            a(f'v_cvt_pk_bf16_f32 v{X+2*ip}, v{t}, v{t+2}')
            a(f'v_cvt_pk_bf16_f32 v{X+2*ip+1}, v{t+1}, v{t+3}')
    for c in range(4):
        a(f'v_mfma_f32_32x32x16_bf16 {vr(DR,16)}, {vr(MR+4*c,4)}, {vr(X+4*c,4)}, ' + ('0' if c == 0 else vr(DR, 16)))
    a('s_cmp_eq_u32 s15, 0')
    a('s_cbranch_scc1 .b3_real2')
    for c in range(4):
        a(f'v_mfma_f32_32x32x16_bf16 {vr(DI,16)}, {vr(MI+4*c,4)}, {vr(X+4*c,4)}, ' + ('0' if c == 0 else vr(DI, 16)))
    for i in range(16):
        a(f'v_cvt_pk_bf16_f32 v{T0+i}, v{DR+i}, v{DI+i}')
        a(f'ds_write_b32 v6, v{T0+i} offset:{ZB+(8*(i>>2)+(i&3))*128}')
    a('s_branch .b3_join')
    a('.b3_real2:')
    lds_wait(a, C_RL, 2, 4)
    for ip in range(8):
        i = 2 * ip
        a(f'v_cvt_pk_bf16_f32 v{T0+ip}, v{DR+i}, v{DR+i+1}')
        a(f'ds_write_b16 v6, v{T0+ip} offset:{ZB+(8*(i>>2)+(i&3))*128}')
        a(f'ds_write_b16_d16_hi v6, v{T0+ip} offset:{ZB+(8*(i>>2)+(i&3)+1)*128}')
    a('.b3_join:')
    lds_arrive(a, C_L3, 4)
    a('s_cmp_eq_u32 s3, 4')
    a(f's_cbranch_scc1 .b3_end')
    lds_wait(a, C_L3, 5, 4)
    a('v_lshlrev_b32 v6, 4, v0')
    DD = 32
    for p in range(4):
        a(f'ds_read_b128 {vr(64+4*p,4)}, v6 offset:{ZB+4096*p}')
    a(f'''
    s_lshl_b32 s4, s2, 12
    s_add_u32 s4, s4, 2048
    v_lshlrev_b32 v7, 3, v0
    v_add_u32 v7, s4, v7
    ''')
    for p in range(4):
        a(f's_waitcnt lgkmcnt({3-p})')
        for e in range(4):
            a(f'v_mov_b32 v{X+4*e+p}, v{64+4*p+e}')
    for e in range(4):
        for hf in range(2):
            a(f'v_mfma_f32_16x16x32_bf16 {vr(DD+8*e+4*hf,4)}, {vr(G8+4*hf,4)}, {vr(X+4*e,4)}, 0')
    for s1 in range(8):
        a(f'v_cvt_pk_bf16_f32 v{64+2*s1}, v{DD+s1}, v{DD+8+s1}')
        a(f'v_cvt_pk_bf16_f32 v{65+2*s1}, v{DD+16+s1}, v{DD+24+s1}')
        a(f's_mov_b32 s5, {s1*256*4096}')
        a(f'buffer_store_dwordx2 {vr(64+2*s1,2)}, v7, s[48:51], s5 offen')
    a('.b3_end:')
    stamp(a, 12)
    stamp_flush(a, 0, 13)
    a('s_endpgm')

def gen_T(a, lane):
    a('.role_t:')
    remap(a)
    a(f'''
    s_setprio 2
    s_sub_u32 s8, s3, 5
    s_and_b32 s9, s2, 15
    s_lshl_b32 s9, s9, 1
    s_add_u32 s9, s9, s8
    s_lshl_b32 s9, s9, 4
    s_lshr_b32 s11, s2, 4
    s_add_u32 s9, s9, s11
    s_mul_i32 s10, s8, {64*144}
    s_add_u32 s10, s10, {TRB}
    s_lshl_b32 s14, s2, 4
    s_add_u32 s14, s14, 8192
    s_lshl_b32 s15, s11, 8
    s_add_u32 s15, s15, 8192
    s_waitcnt lgkmcnt(0)
    ''')
    if not TFIRST: a('s_barrier')
    srd(a, 44, P_U, 4 << 20)
    srd(a, 48, P_WS, 1024 * UP, WS_UT)
    TP = gen_transposer(a, lane, 9, 44, 48, 10, 2048, UP, 'u')
    if TFIRST: a('s_barrier')
    a.raw(';PLAIN_ON')
    gen_transposer_tail(a, lane, 48, 10, UP, 64, TP)
    stamp(a, 1)
    a('s_waitcnt vmcnt(0)')
    publish(a, C_T1, 2, 14, 10)
    a.raw(';PLAIN_OFF')
    stamp(a, 2)
    a('s_cmp_eq_u32 s8, 0')
    a('s_cbranch_scc0 .t_second')
    poll_group(a, lane, 15, C_G0, 10)
    stamp(a, 3)
    lds_wait(a, C_CV, 4, 10, slp=4)
    a('s_add_u32 s15, s15, 4096')
    poll_group(a, lane, 15, C_G1, 10)
    a('s_branch .t_third')
    a('.t_second:')
    a(f's_cmp_eq_u32 s2, {M0}')
    a('s_cbranch_scc0 .t_third')
    lds_wait(a, C_NONCE, 1, 10, slp=1, sreg=5)
    lds_wait(a, C_S1, 6, 10, slp=1)
    master(a, lane, '0', 65536, 16384)
    a('.t_third:')
    lds_wait(a, C_G1, 1, 10, slp=2)
    lds_wait(a, C_O, 4, 10, slp=1)
    if os.environ.get('T3WAIT', '0') == '1':
        lds_wait(a, C_L3L, 5, 10, slp=1)
    stamp(a, 4)
    srd(a, 44, P_WS, 4 << 20, WS_YT)
    srd(a, 48, P_OUT, 8 << 20)
    n0 = len(a.items)
    TP = gen_transposer(a, lane, 9, 44, 48, 10, 4096, 4096, 'y')
    from asmlib import Ins
    for k in range(n0, len(a.items)):
        kind, it = a.items[k]
        if kind == 'i' and it.op.startswith('buffer_load'):
            a.items[k] = ('i', Ins(it.text + ' sc1'))
    gen_transposer_tail(a, lane, 48, 10, 4096, 0, TP, ymode=True)
    stamp(a, 5)
    stamp_flush(a, 0, 6)
    a('s_endpgm')

def master(a, lane, tag, flag_off, rel_off):
    srd(a, 60, P_WS, 1 << 18, WS_FLG)
    a(f'v_lshlrev_b32 v6, 4, v{lane}')
    a(f'v_lshlrev_b32 v4, 7, v{lane}')
    a(f's_mov_b32 s6, {SPIN_MAX}')
    a(f's_mov_b32 s7, {flag_off}')
    a(f'.m_loop{tag}:')
    for i in range(4):
        a(f'buffer_load_dword v{8+i}, v6, s[60:63], s7 offen offset:{1024*i} sc1')
    a(f'''
    s_waitcnt vmcnt(0)
    v_xor_b32 v8, s5, v8
    v_xor_b32 v9, s5, v9
    v_xor_b32 v10, s5, v10
    v_xor_b32 v11, s5, v11
    v_or_b32 v8, v8, v9
    v_or3_b32 v8, v8, v10, v11
    v_cmp_ne_u32 vcc, 0, v8
    s_cmp_eq_u64 vcc, 0
    s_cbranch_scc1 .m_rel{tag}
    s_sub_u32 s6, s6, 1
    s_cmp_lg_u32 s6, 0
    s_cbranch_scc1 .m_loop{tag}
    .m_rel{tag}:
    v_mov_b32 v8, s5
    s_mov_b32 s7, {rel_off}
    s_mov_b64 exec, {(1 << NREP) - 1 if NREP < 64 else -1}
    buffer_store_dword v8, v4, s[60:63], s7 offen
    s_mov_b64 exec, -1
    ''')

M0, M1 = 74, 139

def gen_M(a, lane):
    a('.role_m:')
    a(f'''
    s_setprio 3
    v_lshlrev_b32 v4, 4, v{lane}
    v_add_u32 v4, {CNT}, v4
    v_mov_b32 v8, 0
    v_mov_b32 v9, 0
    v_mov_b32 v10, 0
    v_mov_b32 v11, 0
    s_mov_b64 exec, 0xff
    ds_write_b128 v4, v[8:11]
    s_mov_b64 exec, -1
    s_memrealtime s[8:9]
    s_waitcnt lgkmcnt(0)
    ''')
    srd(a, 64, P_DBG, 256)
    a(f'''
    v_mov_b32 v4, 0
    s_or_b32 s5, s8, 1
    s_cmp_lg_u32 s2, 0
    s_cbranch_scc1 .m_nostore
    v_mov_b32 v5, s5
    s_mov_b64 exec, 1
    buffer_store_dword v5, v4, s[64:67], 0 offen
    s_mov_b64 exec, -1
    .m_nostore:
    ''')
    if os.environ.get('CODEPF', '0') == '1':
        KN = NAME + '_kernel'
        a(f'''
        s_getpc_b64 s[6:7]
        .m_pc:
        s_sub_u32 s6, s6, .m_pc-{KN}
        s_subb_u32 s7, s7, 0
        v_lshlrev_b32 v24, 7, v{lane}
        v_mov_b32 v25, s7
        v_add_co_u32 v24, vcc, s6, v24
        v_addc_co_u32 v25, vcc, 0, v25, vcc
        global_load_dword v26, v[24:25], off
        v_add_co_u32 v24, vcc, 0x2000, v24
        v_addc_co_u32 v25, vcc, 0, v25, vcc
        global_load_dword v27, v[24:25], off
        ''')
    if os.environ.get('TLB', '1') == '1':
        srd(a, 44, P_WS, 32 << 20)
        srd(a, 48, P_OUT, 8 << 20)
        a(f'''
        v_lshlrev_b32 v20, 19, v{lane}
        v_lshlrev_b32 v21, 17, v{lane}
        buffer_load_dword v22, v20, s[44:47], 0 offen sc1
        buffer_load_dword v23, v21, s[48:51], 0 offen sc1
        ''')
    a(f'''
    s_barrier
    s_cmp_eq_u32 s2, 0
    s_cbranch_scc1 .m_got
    s_mov_b32 s6, {SPIN_MAX}
    .m_poll:
    buffer_load_dword v5, v4, s[64:67], 0 offen sc1
    s_waitcnt vmcnt(0)
    v_readfirstlane_b32 s5, v5
    s_cmp_lg_u32 s5, 0
    s_cbranch_scc1 .m_got
    s_sub_u32 s6, s6, 1
    s_cmp_lg_u32 s6, 0
    s_cbranch_scc1 .m_poll
    s_mov_b32 s5, 1
    .m_got:
    v_mov_b32 v6, {CNT+4*C_NONCE}
    v_mov_b32 v5, s5
    ds_write_b32 v6, v5
    ''')
    stamp(a, 1)
    srd(a, 52, P_WR, 2048 * 1026)
    srd(a, 56, P_WI, 2048 * 1026)
    a(f'''
    s_setprio 1
    s_and_b32 s12, s2, 7
    s_lshr_b32 s13, s2, 3
    ''')
    srd(a, 48, P_WS, 16384, WS_CW)
    a(f'''
    v_and_b32 v7, 7, v{lane}
    v_mul_u32_u24 v8, 1026, v7
    v_bfe_u32 v9, v{lane}, 3, 1
    v_lshl_add_u32 v8, v9, 10, v8
    s_mul_i32 s4, s2, 8208
    v_and_b32 v9, 15, v{lane}
    v_lshlrev_b32 v9, 10, v9
    s_lshl_b32 s7, s2, 2
    s_lshl_b32 s14, s2, 4
    s_add_u32 s14, s14, 65536
    s_mov_b64 exec, 0xffff
    buffer_load_ushort v20, v8, s[52:55], s4 offen
    buffer_load_ushort v21, v8, s[56:59], s4 offen
    s_waitcnt vmcnt(0)
    v_lshl_or_b32 v20, v21, 16, v20
    buffer_store_dword v20, v9, s[48:51], s7 offen
    s_mov_b64 exec, -1
    s_waitcnt vmcnt(0)
    s_mov_b32 s69, s5
    ''')
    publish(a, C_S1, 6, 14, 12)
    a('s_mov_b32 s5, s69')
    if os.environ.get('WPF', '0') == '1':
        a(f'''
        v_lshrrev_b32 v7, 3, v{lane}
        v_mul_u32_u24 v7, 8208, v7
        v_and_b32 v8, 7, v{lane}
        v_lshl_add_u32 v7, v8, 7, v7
        s_mul_i32 s4, s13, {8*8208}
        s_mul_i32 s7, s12, 1026
        s_add_u32 s4, s4, s7
        s_and_b32 s4, s4, 0xfffffffc
        ''')
        lds_wait(a, C_PA, 4, 12, slp=2, sreg=7)
        a(f'''
        buffer_load_dword v20, v7, s[52:55], s4 offen
        buffer_load_dword v21, v7, s[56:59], s4 offen
        buffer_load_dword v22, v7, s[52:55], s4 offen offset:124
        buffer_load_dword v23, v7, s[56:59], s4 offen offset:124
        ''')
    a(f'''
    v_lshrrev_b32 v7, 1, v{lane}
    v_lshlrev_b32 v8, 3, v7
    v_add_u32 v8, s12, v8
    v_mul_u32_u24 v8, 1026, v8
    v_and_b32 v9, 1, v{lane}
    v_lshl_add_u32 v8, v9, 4, v8
    s_lshl_b32 s11, s13, 5
    s_cmp_ge_u32 s12, 5
    s_cselect_b32 s7, 2, 0
    s_add_u32 s11, s11, s7
    v_bfe_u32 v15, v{lane}, 3, 2
    v_lshl_add_u32 v15, v9, 1, v15
    v_and_b32 v14, 3, v15
    v_add_u32 v15, 1, v15
    v_and_b32 v15, 3, v15
    v_lshlrev_b32 v7, 6, v7
    v_add_u32 v7, {WB}, v7
    v_lshl_add_u32 v16, v14, 4, v7
    v_lshl_add_u32 v17, v15, 4, v7
    ''')
    WL = 32
    WBATCH = int(os.environ.get('WBATCH', '2'))
    WEARLY = int(os.environ.get('WEARLY', '0'))
    def wload(q):
        a(f'buffer_load_dwordx4 {vr(WL+8*q,4)}, v8, s[52:55], s11 offen')
        a(f'buffer_load_dwordx4 {vr(WL+8*q+4,4)}, v8, s[56:59], s11 offen')
        if q < 7: a(f's_add_u32 s11, s11, {32*8*1026}')
    def wstage(q):
        for ar in range(2):
            r = WL + 8 * q + 4 * ar
            a(f'ds_write_b64 v16, {vr(r,2)} offset:{q*2048+ar*8}')
            a(f'ds_write_b64 v17, {vr(r+2,2)} offset:{q*2048+ar*8}')
    for q in range(WEARLY):
        wload(q)
        a('s_waitcnt vmcnt(0)')
    lds_wait(a, C_T1, 2, 12, slp=2)
    lds_wait(a, C_S1, 6, 12, slp=2)
    stamp(a, 2)
    first = True
    for q0 in range(WEARLY, 8, WBATCH):
        qs = list(range(q0, min(8, q0 + WBATCH)))
        for q in qs: wload(q)
        if first:
            for q in range(WEARLY): wstage(q)
            first = False
        for q in qs:
            a(f's_waitcnt vmcnt({2*(qs[-1]-q)})')
            wstage(q)
    lds_arrive(a, C_W, 12)
    stamp(a, 3)
    a(f's_cmp_eq_u32 s2, {M1}')
    a('s_cbranch_scc0 .m_end')
    lds_wait(a, C_S2, 4, 12, slp=2)
    a('s_setprio 3')
    master(a, lane, '1', 131072, 24576)
    a('.m_end:')
    stamp(a, 4)
    stamp_flush(a, 0, 5)
    a('s_endpgm')

def gen_A(a, lane):
    a('.role_a:')
    remap(a)
    KB = 32
    UR = 128
    a(f'''
    s_and_b32 s10, s3, 3
    s_lshl_b32 s9, s2, 2
    s_add_u32 s9, s9, s10           ; channel
    s_mul_i32 s10, s10, {CH_REG}
    s_add_u32 s10, s10, {CH0}
    s_lshl_b32 s68, s9, 8
    s_lshl_b32 s69, s9, 1
    v_lshlrev_b32 v{KB+5}, 3, v{lane}
    v_add_u32 v{KB+5}, s10, v{KB+5}
    v_lshlrev_b32 v{KB+3}, 2, v{lane}
    v_mov_b32 v{KB+4}, 0
    v_lshlrev_b32 v3, 4, v{lane}
    s_mul_i32 s15, s9, {UP}
    s_add_u32 s15, s15, 64
    v_add_u32 v23, s10, v3
    s_lshl_b32 s14, s2, 4
    s_add_u32 s14, s14, 12288
    v_and_b32 v4, 31, v{lane}             ; b
    v_lshrrev_b32 v5, 5, v{lane}          ; h
    v_lshlrev_b32 v6, 4, v4
    s_add_u32 s11, s10, {CV_K}
    v_sub_u32 v6, s11, v6
    v_lshlrev_b32 v7, 3, v5
    v_sub_u32 v20, v6, v7
    v_lshlrev_b32 v7, 9, v5
    v_sub_u32 v21, v6, v7
    v_sub_u32 v22, v21, v7
    v_add_u32 v22, {2*760}, v22
    v_add_u32 v21, {2*1528}, v21
    v_add_u32 v20, {2*1788}, v20
    ''')
    vKA, vKB = 18, 19
    a(f'''
    v_lshlrev_b32 v7, 4, v5
    v_add_u32 v7, s10, v7
    v_add_u32 v6, 28, v4
    v_mul_u32_u24 v6, {KP}, v6
    v_add_u32 v{vKB}, v6, v7
    v_mov_b32 v6, v4
    ''')
    for thr in (11, 15, 19, 23):
        a(f'v_cmp_lt_u32 vcc, {thr}, v4')
        a(f'v_subbrev_co_u32 v6, vcc, 0, v6, vcc')
    vF, vG = 24, 25
    a(f'''
    v_mul_u32_u24 v6, {KP}, v6
    v_add_u32 v{vKA}, v6, v7
    v_and_b32 v7, 1, v4
    v_cmp_eq_u32 s[70:71], 1, v7          ; odd b
    v_and_b32 v26, 15, v{lane}
    v_lshrrev_b32 v27, 4, v{lane}
    v_lshlrev_b32 v28, 4, v27
    v_lshlrev_b32 v29, 3, v26
    v_sub_u32 v{vF}, v28, v29
    s_add_u32 s6, s11, {2*2044-3968}
    v_add_u32 v{vF}, s6, v{vF}
    v_and_b32 v30, 3, v26
    v_mul_u32_u24 v30, {CS}, v30
    v_lshrrev_b32 v31, 2, v26
    v_lshl_add_u32 v30, v31, 7, v30
    v_add3_u32 v{vG}, v30, v28, s10
    s_waitcnt lgkmcnt(0)
    ''')
    srd(a, 44, P_LOGA, 1024 * 256)
    srd(a, 48, P_LOGDT, 2048)
    srd(a, 52, P_AIM, 1024 * 256)
    a(f'buffer_load_dword v{KB+8}, v{KB+3}, s[44:47], s68 offen')
    a(f'buffer_load_ushort v{KB+12}, v{KB+4}, s[48:51], s69 offen')
    a(f'buffer_load_dword v{KB+9}, v{KB+3}, s[52:55], s68 offen')
    srd(a, 44, P_CRE, 1024 * 256)
    srd(a, 48, P_CIM, 1024 * 256)
    srd(a, 52, P_DSKIP, 2048)
    a(f'buffer_load_dword v{KB+10}, v{KB+3}, s[44:47], s68 offen')
    a(f'buffer_load_dword v{KB+11}, v{KB+3}, s[48:51], s68 offen')
    a(f'buffer_load_ushort v17, v{KB+4}, s[52:55], s69 offen')
    a('s_barrier')
    a(f"s_setprio {os.environ.get('APRIO', '1')}")
    stamp(a, 8)
    a('s_waitcnt vmcnt(3)')
    stamp(a, 1)
    gen_kgen(a, 0, KB, KB + 5, 's_nop 0', 's_nop 0')
    stamp(a, 9)
    gen_kgen(a, 1, KB, KB + 5, 's_nop 0', 's_waitcnt vmcnt(0)', skip_setup=True)
    a('s_waitcnt lgkmcnt(0)')
    stamp(a, 2)
    D = 32
    FB = 64
    def rd(kk):
        b = FB + 8 * (kk & 7)
        a(f'ds_read_b128 {vr(b,4)}, v{vKA} offset:{kk*32}')
        a(f'ds_read_b128 {vr(b+4,4)}, v{vKB} offset:{kk*32}')
    for kk in range(6): rd(kk)
    for kk in range(16):
        b = FB + 8 * (kk & 7)
        rem = min(5, 15 - kk)
        a(f's_waitcnt lgkmcnt({2*rem})')
        a(f'v_mfma_f32_32x32x16_bf16 {vr(D,16)}, {vr(b,4)}, {vr(b+4,4)}, ' + ('0' if kk == 0 else vr(D, 16)))
        if kk + 6 < 16: rd(kk + 6)
    a(f'''
    v_mov_b32 v8, 0
    v_mov_b32 v9, 0
    v_mov_b32 v10, 0
    v_mov_b32 v11, 0
    s_mov_b64 exec, 0xffffff
    ''')
    for c in range(4):
        a(f'ds_write_b128 v23, v[8:11] offset:{c*CS}')
    E = 128
    a(f'''
    s_mov_b64 exec, 0xff
    ds_write_b128 v23, v[8:11] offset:{CV_K+4096}
    s_mov_b64 exec, -1
    v_lshlrev_b32 v17, 16, v17
    s_mov_b64 exec, 1
    v_add_f32 v{D}, v{D}, v17
    s_mov_b64 exec, -1
    v_cvt_pk_bf16_f32 v{E}, v{D+3}, v{D+2}
    v_cvt_pk_bf16_f32 v{E+1}, v{D+1}, v{D}
    ds_write_b64 v20, {vr(E,2)} offset:512
    v_cvt_pk_bf16_f32 v{E+2}, v{D+6}, v{D+5}
    v_cvt_pk_bf16_f32 v{E+3}, v{D+4}, v{D+4}
    ds_write_b64 v20, {vr(E+2,2)}
    v_cvt_pk_bf16_f32 v{E+4}, v{D+10}, v{D+10}
    v_cvt_pk_bf16_f32 v{E+5}, v{D+9}, v{D+9}
    v_cvt_pk_bf16_f32 v{E+6}, v{D+9}, v{D+8}
    v_cvt_pk_bf16_f32 v{E+7}, v{D+8}, v{D+8}
    ds_write_b128 v21, {vr(E+4,4)}
    ''')
    for j in range(2):
        x, z, q = D + 12 + 2 * j, D + 13 + 2 * j, E + 8 + 4 * j
        a(f'''
        v_cndmask_b32 v{D+7}, v{x}, v{z}, s[70:71]
        v_cvt_pk_bf16_f32 v{q}, v{z}, v{z}
        v_cvt_pk_bf16_f32 v{q+1}, v{z}, v{D+7}
        v_cvt_pk_bf16_f32 v{q+2}, v{x}, v{x}
        v_cvt_pk_bf16_f32 v{q+3}, v{x}, v{x}
        ds_write_b128 v22, {vr(q,4)} offset:{512*(1-j)}
        ''')
    ACC = 32
    a('s_waitcnt lgkmcnt(0)')
    for k in range(32): a(f'v_mov_b32 v{ACC+k}, 0')
    a(f'v_mov_b32 v{UR}, 0')
    a(f'v_mov_b32 v{UR+1}, 0')
    srd(a, 44, P_WS, 1024 * UP, WS_UT)
    srd(a, 52, P_WS, 4 << 20, WS_YT)
    a('s_lshl_b32 s13, s9, 12')
    stamp(a, 3)
    lds_wait(a, C_G0, 1, 8, slp=1)
    a('s_setprio 3')
    stamp(a, 4)
    for p in range(4):
        a(f'buffer_load_dwordx4 {vr(UR+8*p+2,4)}, v3, s[44:47], s15 offen offset:{p*1024} sc1')
    lds_arrive(a, C_UL, 8)
    dpp = 'row_mask:0xf bank_mask:0xf'
    Q = 64
    for p in range(4):
        r = UR + 8 * p
        q = Q + 12 * p
        a(f's_waitcnt vmcnt({3-p})')
        a(f'ds_write_b128 v23, {vr(r+2,4)} offset:{384 + 3*CS + 1024*p}')
        a(f'v_mov_b32_dpp v{r}, v{r+4} wave_shr:1 {dpp}')
        a(f'v_mov_b32_dpp v{r+1}, v{r+5} wave_shr:1 {dpp}')
        if p < 3:
            a(f'v_mov_b32_dpp v{r+8}, v{r+4} wave_ror:1 {dpp}')
            a(f'v_mov_b32_dpp v{r+9}, v{r+5} wave_ror:1 {dpp}')
        for j in range(4):
            a(f'v_mov_b32 v{q+8+j}, v{r+1+j}')
        a(f'ds_write_b128 v23, {vr(q+8,4)} offset:{384 + 1*CS + 1024*p}')
        for j in range(4):
            a(f'v_alignbit_b32 v{q+j}, v{r+j+1}, v{r+j}, 16')
        a(f'ds_write_b128 v23, {vr(q,4)} offset:{384 + 1024*p}')
        for j in range(3):
            a(f'v_mov_b32 v{q+4+j}, v{q+1+j}')
        a(f'v_alignbit_b32 v{q+7}, v{r+5}, v{r+4}, 16')
        a(f'ds_write_b128 v23, {vr(q+4,4)} offset:{384 + 2*CS + 1024*p}')
    G0, F0 = 64, 96
    def ld(kind, idx, off):
        if kind == 'G':
            return [f'ds_read_b128 {vr(G0+4*idx,4)}, v{vG} offset:{512*idx+off}']
        return [f'ds_read_b64 {vr(F0+4*idx,2)}, v{vF} offset:{512*(7-idx)+off}', f'ds_read_b64 {vr(F0+4*idx+2,2)}, v{vF} offset:{512*(7-idx)+off+8}']
    even = [(i, c) for i in range(8) for c in range(7 - i, -1, -1)]
    odd = [(i, c) for c in range(7, -1, -1) for i in range(8 - c)]
    def plan(seq):
        lastG, lastF = {}, {}
        for n, (i, c) in enumerate(seq): lastG[i] = n; lastF[c] = n
        rel = {}
        for i, n in lastG.items(): rel.setdefault(n, []).append(('G', i))
        for c, n in lastF.items(): rel.setdefault(n, []).append(('F', c))
        return rel
    rel_e, rel_o = plan(even), plan(odd)
    order0 = [x for n in range(36) for x in rel_o.get(n, [])]
    a('s_waitcnt lgkmcnt(0)')
    stamp(a, 5)
    queue = []
    for kind, idx in order0:
        for ins in ld(kind, idx, 0):
            a(ins); queue.append((kind, idx))
    a('s_mov_b32 s12, 0')
    a('s_setprio 1')
    a(f'v_mov_b32 v16, {CNT+4*C_Z}')
    a('.cv_loop:')
    q0 = list(queue)
    PAUSE = os.environ.get('PAUSE', '0') == '1'
    PK = [int(x) for x in os.environ.get('PAUSE_AT', '12,30').split(',')]
    for seq, rel, off in ((even, rel_e, 64), (odd, rel_o, 128)):
        for n, (i, c) in enumerate(seq):
            if PAUSE and n in PK:
                a(f'ds_read_b96 v[8:10], v16'); queue.append(('P', 0))
            want = [('G', i), ('F', c)]
            chk = PAUSE and (n - 4) in PK
            if chk: want.append(('P', 0))
            need = [k for k, x in enumerate(queue) if x in want]
            if need:
                left = len(queue) - 1 - max(need)
                a(f's_waitcnt lgkmcnt({min(left, 15)})')
                queue = queue[max(need) + 1:] if left <= 15 else queue[len(queue) - 15:]
            if chk:
                Lg = a.label('go')
                a(f'''
                v_sub_u32 v8, v8, v10
                v_readfirstlane_b32 s4, v8
                s_cmp_lt_i32 s4, {os.environ.get('PAUSE_TH', '1')}
                s_cbranch_scc1 {Lg}
                ''')
                lds_wait(a, C_O, 4, 12, slp=1)
                a(f'{Lg}:')
            A = i + c
            a(f'v_mfma_f32_16x16x32_bf16 {vr(ACC+4*A,4)}, {vr(G0+4*i,4)}, {vr(F0+4*c,4)}, {vr(ACC+4*A,4)}')
            for kind, idx in rel.get(n, []):
                for ins in ld(kind, idx, off):
                    a(ins); queue.append((kind, idx))
    assert q0[len(q0) - len(queue):] == queue, (q0, queue)
    a(f'''
    v_add_u32 v{vG}, 128, v{vG}
    v_add_u32 v{vF}, 128, v{vF}
    s_add_u32 s12, s12, 1
    s_cmp_lt_u32 s12, 4
    s_cbranch_scc1 .cv_loop
    ''')
    stamp(a, 6)
    a.raw(';PLAIN_ON')
    for P in range(4):
        o = 128 + 4 * P
        for e in range(2):
            A = 2 * P + e
            a(f'v_cvt_pk_bf16_f32 v{o+2*e}, v{ACC+4*A}, v{ACC+4*A+1}')
            a(f'v_cvt_pk_bf16_f32 v{o+2*e+1}, v{ACC+4*A+2}, v{ACC+4*A+3}')
        a(f'buffer_store_dwordx4 {vr(o,4)}, v3, s[52:55], s13 offen offset:{1024*P}')
    a('s_waitcnt vmcnt(0) lgkmcnt(0)')
    publish(a, C_CV, 4, 14, 8)
    a.raw(';PLAIN_OFF')
    stamp(a, 7)
    stamp_flush(a, 0, 10)
    a('s_endpgm')

def build():
    hdr = open(f'cdna_kernels/{NAME}.s.ref').read().split('\n')
    head = [l for l in hdr if l.startswith(';') and '@launch' not in l.lower()]
    out = '\n'.join(head) + '\n'
    out += f'; @launch grid=(256,1,1) block=(768,1,1) lds={LDS_SIZE}\n'
    out += '.amdgcn_target "amdgcn-amd-amdhsa--gfx950"\n.text\n'
    a = Asm()
    KN = NAME + '_kernel'
    a.raw(f'.globl {KN}')
    a.raw(f'.type {KN},@function')
    gen_main(a)
    body = a.render()
    res = []
    plain = False
    for l in body.split('\n'):
        if l.startswith(';PLAIN_ON'): plain = XL2
        if l.startswith(';PLAIN_OFF'): plain = False
        if l.strip().startswith('buffer_store') and not plain:
            l = l + ' sc1'
        res.append(l)
    out += '\n'.join(res)
    out += '.section .rodata,"a"\n'
    out += kd(KN, 168, 102)
    return out

if __name__ == '__main__':
    path = sys.argv[1] if len(sys.argv) > 1 else f'cdna_kernels/{NAME}.s'
    open(path, 'w').write(build())
    print('wrote', path)
```

```python
import sys, os, struct
sys.path.insert(0, 'dev')
from gen import (Asm, NAME, fhex, vr, srd, stamp, stamp_flush, gen_dft8_frags, gen_z_addr, z_soff,
                 gen_transposer, gen_transposer_tail, kd, DIAG,
                 WS_Z1, WS_Z2, WS_UT, UP, WS_YT,
                 P_U, P_LOGA, P_AIM, P_CRE, P_CIM, P_LOGDT, P_DSKIP, P_X, P_WR, P_WI, P_OUT, P_DBG, P_WS)
from gen23 import cmul_sc, cmul_pk
import gen3
from gen3 import gen_kgen, KP, CH_REG, CS, CV_K

ZB = 0
WB = 16384
SCR = 32768
TRB = WB
CNT = 34816
CH0 = CNT + 128
LDS_SIZE = CH0 + 4 * CH_REG
WS_CW = 20 << 20
WS_FLG = 28 << 20
C_PA, C_S1, C_R0, C_S2, C_Z, C_W, C_O, C_R1, C_L3, C_T1, C_G0, C_CV, C_G1, C_NONCE, C_TL, C_UL, C_RL, C_L3L = range(18)
SPIN_MAX = 0x80000
TFIRST = os.environ.get('TFIRST', '0') == '1'

def lds_arrive(a, c, vt):
    a(f'''
    v_mov_b32 v{vt}, {CNT+4*c}
    v_mov_b32 v{vt+1}, 1
    s_waitcnt lgkmcnt(0)
    s_mov_b64 exec, 1
    ds_add_u32 v{vt}, v{vt+1}
    s_mov_b64 exec, -1
    ''')

def lds_wait(a, c, n, vt, slp=0, sreg=4):
    L = a.label('spin'); E = a.label('spun')
    a(f'''
    v_mov_b32 v{vt}, {CNT+4*c}
    {L}:
    ds_read_b32 v{vt+1}, v{vt}
    s_waitcnt lgkmcnt(0)
    v_readfirstlane_b32 s{sreg}, v{vt+1}
    s_cmp_ge_u32 s{sreg}, {n}
    s_cbranch_scc1 {E}
    s_sleep {slp}
    s_branch {L}
    {E}:
    ''')

FR = int(os.environ.get('FR', '16'))
def publish(a, c, n, flag_off_sreg, vt, rep=1):
    E = a.label('pub')
    a(f'''
    v_mov_b32 v{vt}, {CNT+4*c}
    v_mov_b32 v{vt+1}, 1
    s_mov_b64 exec, 1
    ds_add_rtn_u32 v{vt+1}, v{vt}, v{vt+1}
    s_mov_b64 exec, -1
    s_waitcnt lgkmcnt(0)
    v_readfirstlane_b32 s4, v{vt+1}
    s_cmp_lg_u32 s4, {n-1}
    s_cbranch_scc1 {E}
    ''')
    lds_wait(a, C_NONCE, 1, vt, slp=1, sreg=5)
    srd(a, 60, P_WS, 1 << 18, WS_FLG)
    a(f'''
    v_lshlrev_b32 v{vt}, 10, v2
    v_mov_b32 v{vt+1}, s5
    s_mov_b64 exec, {(1 << rep) - 1}
    buffer_store_dword v{vt+1}, v{vt}, s[60:63], s{flag_off_sreg} offen
    s_mov_b64 exec, -1
    {E}:
    ''')

NREP = int(os.environ.get('NREP', '32'))
PD = int(os.environ.get('PD', '1'))
def poll_release(a, rel_off, c, vt):
    L = a.label('poll'); E = a.label('polled')
    lds_wait(a, C_NONCE, 1, vt, slp=1, sreg=5)
    srd(a, 60, P_WS, 1 << 18, WS_FLG)
    a(f'''
    v_mov_b32 v{vt}, 0
    s_mov_b32 s6, {SPIN_MAX}
    s_and_b32 s7, s2, {NREP-1}
    s_lshl_b32 s7, s7, 7
    s_add_u32 s7, s7, {rel_off}
    ''')
    for k in range(PD - 1):
        a(f'buffer_load_dword v{64+k}, v{vt}, s[60:63], s7 offen sc1')
        a(f"s_sleep {os.environ.get('PGAP', '4')}")
    a(f'{L}:')
    for k in range(PD):
        a(f'''
        buffer_load_dword v{64+(k+PD-1)%PD}, v{vt}, s[60:63], s7 offen sc1
        s_waitcnt vmcnt({PD-1})
        v_readfirstlane_b32 s4, v{64+k}
        s_cmp_eq_u32 s4, s5
        s_cbranch_scc1 {E}
        ''')
    a(f'''
    s_sub_u32 s6, s6, 1
    s_cmp_lg_u32 s6, 0
    s_cbranch_scc1 {L}
    {E}:
    ''')
    lds_arrive(a, c, vt)
    a('s_waitcnt vmcnt(0)')

def poll_group(a, lane, base_sreg, c, vt):
    L = a.label('poll'); E = a.label('polled')
    lds_wait(a, C_NONCE, 1, vt, slp=1, sreg=5)
    srd(a, 60, P_WS, 1 << 18, WS_FLG)
    a(f'''
    v_and_b32 v{vt}, 15, v{lane}
    v_lshlrev_b32 v{vt}, 4, v{vt}
    s_mov_b32 s6, {SPIN_MAX}
    ''')
    for k in range(PD - 1):
        a(f'buffer_load_dword v{64+k}, v{vt}, s[60:63], s{base_sreg} offen sc1')
        a(f"s_sleep {os.environ.get('PGAP', '4')}")
    a(f'{L}:')
    for k in range(PD):
        a(f'''
        buffer_load_dword v{64+(k+PD-1)%PD}, v{vt}, s[60:63], s{base_sreg} offen sc1
        s_waitcnt vmcnt({PD-1})
        v_cmp_ne_u32 vcc, s5, v{64+k}
        s_cmp_eq_u64 vcc, 0
        s_cbranch_scc1 {E}
        ''')
    a(f'''
    s_sub_u32 s6, s6, 1
    s_cmp_lg_u32 s6, 0
    s_cbranch_scc1 {L}
    {E}:
    ''')
    lds_arrive(a, c, vt)
    a('s_waitcnt vmcnt(0)')

XL2 = os.environ.get('XL2', '0') == '1'
def remap(a):
    if XL2:
        a('''
        s_mov_b32 s43, s2
        s_and_b32 s4, s2, 7
        s_lshl_b32 s4, s4, 5
        s_lshr_b32 s2, s2, 3
        s_or_b32 s2, s2, s4
        ''')

def gen_main(a):
    KN = NAME + '_kernel'
    a.raw('.p2align 8')
    a.raw(f'{KN}:')
    EXIT = '.exit'
    lane = 2
    a(f'''
    s_cmp_ge_u32 s2, 256
    s_cbranch_scc1 {EXIT}
    ''')
    stamp(a, 0)
    a('''
    s_load_dwordx16 s[16:31], s[0:1], 0
    s_load_dwordx8 s[32:39], s[0:1], 64
    s_load_dwordx2 s[40:41], s[0:1], 96
    v_lshrrev_b32 v1, 6, v0
    v_and_b32 v2, 63, v0
    v_readfirstlane_b32 s3, v1
    ''')
    ORDER = os.environ.get('ORDER', 'BTMA')
    if ORDER == 'ATMB':
        a('''
        s_mov_b32 s4, 0x0765ba98
        s_mov_b32 s5, 0x00004321
        s_lshl_b32 s6, s3, 2
        s_lshr_b64 s[4:5], s[4:5], s6
        s_and_b32 s3, s4, 15
        s_lshl_b32 s4, s3, 6
        v_add_u32 v0, s4, v2
        ''')
    a('''
    s_cmp_ge_u32 s3, 8
    s_cbranch_scc1 .role_a
    s_cmp_eq_u32 s3, 7
    s_cbranch_scc1 .role_m
    s_cmp_ge_u32 s3, 5
    s_cbranch_scc1 .role_t
    ''')
    gen_B(a, lane, EXIT)
    gen_T(a, lane)
    gen_M(a, lane)
    gen_A(a, lane)
    a(f'{EXIT}:')
    a('s_endpgm')

def gen_B(a, lane, EXIT):
    a(f'''
    s_setprio 2
    s_mov_b32 s8, s3
    s_and_b32 s15, s3, 3
    s_sub_u32 s9, 8, s8
    s_lshl_b32 s4, s2, 11
    v_lshlrev_b32 v3, 3, v0
    v_add_u32 v7, s4, v3
    ''')
    XL = 16
    F8 = 8
    vC, vS, vnS, vCt, vnSt, tc, ts = 80, 88, 96, 104, 112, 120, 136
    kf, arg, a2, c0, c1, s0, s1_, k5, sg = range(64, 73)
    def tab_init(kf, arg, k5):
        a(f'''
        v_and_b32 v{kf}, 31, v{lane}
        v_cvt_f32_u32 v{kf}, v{kf}
        v_mul_f32 v{kf}, {fhex(1/32)}, v{kf}
        v_lshrrev_b32 v{arg}, 5, v{lane}
        v_cvt_f32_u32 v{arg}, v{arg}
        v_mul_f32 v{arg}, 4.0, v{arg}
        v_mul_f32 v{arg}, v{arg}, v{kf}
        v_mul_f32 v{k5}, {fhex(5.0)}, v{kf}
        ''')
    tab_init(kf, arg, k5)
    a(f'''
    v_and_b32 v{sg}, 16, v{lane}
    v_lshlrev_b32 v{sg}, 11, v{sg}
    v_lshl_or_b32 v{sg}, v{sg}, 16, v{sg}
    ''')
    def tab(ip):
        for e, (cr, sr) in enumerate(((c0, s0), (c1, s1_))):
            i = 2 * ip + e
            a(f'v_cos_f32 v{cr}, v{arg}')
            a(f'v_sin_f32 v{sr}, v{arg}')
            a(f'v_mul_f32 v{a2}, {fhex(1/32)}, v{arg}')
            a(f'v_cos_f32 v{tc+i}, v{a2}')
            a(f'v_sin_f32 v{ts+i}, v{a2}')
            if i != 15:
                a(f'v_add_f32 v{arg}, v{arg}, v{k5 if (i & 3) == 3 else kf}')
        a(f'v_cvt_pk_bf16_f32 v{vC+ip}, v{c0}, v{c1}')
        a(f'v_cvt_pk_bf16_f32 v{vS+ip}, v{s0}, v{s1_}')
        a(f'v_cvt_pk_bf16_f32 v{vnS+ip}, -v{s0}, -v{s1_}')
        a(f'v_xor_b32 v{vCt+ip}, v{sg}, v{vC+ip}')
        a(f'v_xor_b32 v{vnSt+ip}, v{sg}, v{vnS+ip}')
    NPRE = 3
    for ip in range(NPRE): tab(ip)
    a('s_waitcnt lgkmcnt(0)')
    srd(a, 44, P_X, 4 << 20)
    if TFIRST: a('s_barrier')
    a('s_cmp_eq_u32 s3, 4')
    a('s_cbranch_scc1 .b1_noload')
    for s1 in range(8):
        a(f's_mov_b32 s5, {s1*256*2048}')
        a(f'buffer_load_dwordx2 {vr(XL+2*s1,2)}, v7, s[44:47], s5 offen')
    a('.b1_noload:')
    if not TFIRST: a('s_barrier')
    srd(a, 48, P_WS, 4 << 20, WS_Z1)
    gen_dft8_frags(a, lane, F8, 32, True)
    for ip in range(NPRE, 8): tab(ip)
    vlo, vhi, vtr = 164, 165, 154
    gen_z_addr(a, lane, vlo, vhi, 64, 2, 8, 9)
    a(f'''
    v_lshrrev_b32 v64, 5, v{lane}
    v_bfe_u32 v65, v{lane}, 2, 2
    v_lshl_add_u32 v64, v64, 2, v65
    v_lshlrev_b32 v64, 6, v64
    v_bfe_u32 v65, v{lane}, 4, 1
    v_lshl_add_u32 v64, v65, 5, v64
    v_and_b32 v65, 3, v{lane}
    v_lshl_add_u32 v64, v65, 3, v64
    s_lshl_b32 s4, s8, 1
    s_cmp_eq_u32 s8, 4
    s_cselect_b32 s4, 1, s4
    s_lshl_b32 s4, s4, 11
    v_add_u32 v{vtr}, s4, v64
    ''')
    a('s_cmp_eq_u32 s3, 4')
    a('s_cbranch_scc1 .b1_phaseB')
    BO, DD = 32, 48
    a('s_mov_b32 s4, 0x05040100')
    a('s_mov_b32 s5, 0x07060302')
    a('s_waitcnt vmcnt(0)')
    for e in range(4):
        for p in range(4):
            lo, hi = XL + 2 * (2 * p) + (e >> 1), XL + 2 * (2 * p + 1) + (e >> 1)
            a(f'v_perm_b32 v{BO+4*e+p}, v{hi}, v{lo}, s{4 + (e & 1)}')
        for hf in range(2):
            a(f'v_mfma_f32_16x16x32_bf16 {vr(DD+8*e+4*hf,4)}, {vr(F8+4*hf,4)}, {vr(BO+4*e,4)}, 0')
    for q in range(8):
        a(f'v_cvt_pk_bf16_f32 v{XL+2*q}, v{DD+q}, v{DD+8+q}')
        a(f'v_cvt_pk_bf16_f32 v{XL+2*q+1}, v{DD+16+q}, v{DD+24+q}')
        a(f'ds_write_b64 v3, {vr(XL+2*q,2)} offset:{ZB+q*2048}')
    lds_arrive(a, C_PA, 4)
    a('.b1_phaseB:')
    lds_wait(a, C_PA, 4, 4)
    stamp(a, 1)
    AR, AI, DR, DI, T0 = 16, 24, 32, 48, 64
    for c in range(2):
        for jj in range(2):
            a(f'ds_read_b64_tr_b16 {vr(AR+4*c+2*jj,2)}, v{vtr} offset:{c*1024+jj*512}')
    for c in range(2):
        for jj in range(2):
            a(f'ds_read_b64_tr_b16 {vr(AI+4*c+2*jj,2)}, v{vtr} offset:{2048+c*1024+jj*512}')
    a('s_waitcnt lgkmcnt(4)')
    a(f'v_mfma_f32_32x32x16_bf16 {vr(DR,16)}, {vr(AR,4)}, {vr(vC,4)}, 0')
    a(f'v_mfma_f32_32x32x16_bf16 {vr(DI,16)}, {vr(AR,4)}, {vr(vnS,4)}, 0')
    a(f'v_mfma_f32_32x32x16_bf16 {vr(DR,16)}, {vr(AR+4,4)}, {vr(vC+4,4)}, {vr(DR,16)}')
    a(f'v_mfma_f32_32x32x16_bf16 {vr(DI,16)}, {vr(AR+4,4)}, {vr(vnS+4,4)}, {vr(DI,16)}')
    a('s_waitcnt lgkmcnt(0)')
    a('s_cmp_eq_u32 s15, 0')
    a('s_cbranch_scc1 .b1_real1')
    for c in range(2):
        a(f'v_mfma_f32_32x32x16_bf16 {vr(DR,16)}, {vr(AI+4*c,4)}, {vr(vS+4*c,4)}, {vr(DR,16)}')
        a(f'v_mfma_f32_32x32x16_bf16 {vr(DI,16)}, {vr(AI+4*c,4)}, {vr(vC+4*c,4)}, {vr(DI,16)}')
    a('.b1_real1:')
    def tw(ib):
        prs = [2 * ib, 2 * ib + 1]
        for k, ip in enumerate(prs):
            r, i_, c_, s_ = DR + 2 * ip, DI + 2 * ip, tc + 2 * ip, ts + 2 * ip
            a(f'v_pk_mul_f32 {vr(T0+4*(ib&1)+2*k,2)}, {vr(i_,2)}, {vr(s_,2)}')
            a(f'v_pk_mul_f32 {vr(s_,2)}, {vr(r,2)}, {vr(s_,2)}')
        for k, ip in enumerate(prs):
            r, i_, c_, s_ = DR + 2 * ip, DI + 2 * ip, tc + 2 * ip, ts + 2 * ip
            a(f'v_pk_fma_f32 {vr(T0+4*(ib&1)+2*k,2)}, {vr(r,2)}, {vr(c_,2)}, {vr(T0+4*(ib&1)+2*k,2)}')
            a(f'v_pk_fma_f32 {vr(s_,2)}, {vr(i_,2)}, {vr(c_,2)}, {vr(s_,2)} neg_lo:[0,0,1] neg_hi:[0,0,1]')
    def pk(ib):
        for k, ip in enumerate((2 * ib, 2 * ib + 1)):
            t = T0 + 4 * (ib & 1) + 2 * k
            a(f'v_cvt_pk_bf16_f32 v{AR+ip}, v{t}, v{t+1}')
            a(f'v_cvt_pk_bf16_f32 v{AI+ip}, v{ts+2*ip}, v{ts+2*ip+1}')
    tw(0); tw(1); pk(0); pk(1); tw(2); tw(3); pk(2); pk(3)
    for c in range(2):
        z = '0' if c == 0 else None
        a(f'v_mfma_f32_32x32x16_bf16 {vr(DR,16)}, {vr(vC+4*c,4)}, {vr(AR+4*c,4)}, {z or vr(DR,16)}')
        a(f'v_mfma_f32_32x32x16_bf16 {vr(DI,16)}, {vr(vCt+4*c,4)}, {vr(AI+4*c,4)}, {z or vr(DI,16)}')
        a(f'v_mfma_f32_32x32x16_bf16 {vr(DR,16)}, {vr(vS+4*c,4)}, {vr(AI+4*c,4)}, {vr(DR,16)}')
        a(f'v_mfma_f32_32x32x16_bf16 {vr(DI,16)}, {vr(vnSt+4*c,4)}, {vr(AR+4*c,4)}, {vr(DI,16)}')
    a('s_cmp_eq_u32 s15, 0')
    a('s_cbranch_scc0 .b1_cplx2')
    a(f'''
    s_mov_b64 exec, 1
    v_mov_b32 v{DI}, v{DR+8}
    s_mov_b64 exec, -1
    s_branch .b1_lo
    ''')
    O = 64
    a('.b1_cplx2:')
    for i in range(8, 16):
        a(f'v_cvt_pk_bf16_f32 v{O+i}, v{DR+i}, v{DI+i}')
        a(f's_mov_b32 s5, {z_soff(i)}')
        a(f'buffer_store_dword v{O+i}, v{vhi}, s[48:51], s5 offen')
    a('.b1_lo:')
    for i in range(8):
        a(f'v_cvt_pk_bf16_f32 v{O+i}, v{DR+i}, v{DI+i}')
        a(f's_mov_b32 s5, {z_soff(i)}')
        a(f'buffer_store_dword v{O+i}, v{vlo}, s[48:51], s5 offen')
    stamp(a, 2)
    a('s_lshl_b32 s14, s2, 4')
    a('s_add_u32 s14, s14, 65536')
    a('s_cmp_eq_u32 s3, 4')
    a('s_cbranch_scc0 .b2_start')
    a('s_waitcnt vmcnt(0)')
    publish(a, C_S1, 6, 14, 4)
    stamp(a, 3)
    a('s_branch .b3_start')

    a('.b2_start:')
    WL = 144
    WM = 16
    WMr = [16 + k for k in range(16)] + [48 + k for k in range(8)]
    vW0, vW1, vZ, vL = 160, 161, 162, 163
    TM = 8
    a(f'''
    s_and_b32 s12, s2, 7
    s_lshr_b32 s13, s2, 3              ; G
    v_and_b32 v3, 15, v{lane}          ; n
    v_lshrrev_b32 v4, 4, v{lane}       ; g
    ''')
    srd(a, 52, P_WR, 2048 * 1026)
    srd(a, 56, P_WI, 2048 * 1026)
    a('s_waitcnt vmcnt(0)')
    publish(a, C_S1, 6, 14, 10)
    a('s_setprio 1')
    stamp(a, 3)
    a(f'''
    s_lshl_b32 s11, s12, 5
    s_add_u32 s11, s11, s13
    s_lshl_b32 s11, s11, 14
    v_lshlrev_b32 v5, 4, v{lane}
    s_lshl_b32 s4, s3, 12
    s_add_u32 s10, s4, {ZB}
    s_add_u32 s11, s11, s4
    v_add_u32 v{vL}, s10, v5
    v_bfe_u32 v15, v3, 2, 2
    v_add_u32 v15, s3, v15
    v_and_b32 v15, 3, v15
    v_lshlrev_b32 v15, 4, v15
    v_lshl_add_u32 v15, v3, 6, v15
    v_lshl_add_u32 v15, v4, 12, v15
    v_add_u32 v{vZ}, {ZB}, v15
    ''')
    B1R, B1I, A2R, A2I, B3R, B3I, A4R, A4I = 16, 20, 24, 28, 32, 36, 40, 44
    T1C, T1S, T3C, T3S = 48, 52, 56, 60
    nf, idx, q1, p_, c_, s_, p2, c2, s2_, p3, c3, s3_, k1_, k2_ = range(64, 78)
    scale = 2.0 / (2048 * 1024)
    a(f'''
    v_cvt_f32_u32 v{nf}, v3
    v_lshlrev_b32 v{idx}, 2, v4
    v_cvt_f32_u32 v{idx}, v{idx}
    v_cvt_f32_u32 v{k1_}, s12
    v_mul_f32 v{k1_}, {fhex(1/128)}, v{k1_}
    v_mul_f32 v{k2_}, {fhex(1/16)}, v{nf}
    v_add_f32 v{q1}, v{k2_}, v{k1_}
    v_mul_f32 v{k1_}, v{k1_}, v{nf}
    ''')
    for e in range(4):
        a(f'''
        v_mul_f32 v{p_}, v{idx}, v{q1}
        v_mul_f32 v{p2}, v{idx}, v{k2_}
        v_cos_f32 v{c_}, v{p_}
        v_sin_f32 v{s_}, v{p_}
        v_add_f32 v{p3}, v{p2}, v{k1_}
        v_cos_f32 v{c2}, v{p2}
        v_sin_f32 v{s2_}, v{p2}
        v_mul_f32 v{p_}, {fhex(1/16)}, v{p_}
        v_cos_f32 v{c3}, v{p3}
        v_sin_f32 v{s3_}, v{p3}
        v_mul_f32 v{p3}, {fhex(1/16)}, v{p3}
        v_cvt_pk_bf16_f32 v{B1R+e}, v{c_}, v{s_}
        v_cvt_pk_bf16_f32 v{B1I+e}, -v{s_}, v{c_}
        v_cos_f32 v{c_}, v{p_}
        v_sin_f32 v{s_}, v{p_}
        v_cvt_pk_bf16_f32 v{A2R+e}, v{c2}, v{s2_}
        v_cvt_pk_bf16_f32 v{A2I+e}, -v{s2_}, v{c2}
        v_cvt_pk_bf16_f32 v{B3R+e}, v{c2}, -v{s2_}
        v_cvt_pk_bf16_f32 v{B3I+e}, v{s2_}, v{c2}
        v_cos_f32 v{T3C+e}, v{p3}
        v_sin_f32 v{T3S+e}, v{p3}
        v_cvt_pk_bf16_f32 v{A4R+e}, v{c3}, -v{s3_}
        v_cvt_pk_bf16_f32 v{A4I+e}, v{s3_}, v{c3}
        v_mul_f32 v{T1C+e}, {fhex(scale)}, v{c_}
        v_mul_f32 v{T1S+e}, {fhex(scale)}, v{s_}
        v_add_f32 v{idx}, 1.0, v{idx}
        ''')
    X = 64; D = 80; WF = 112
    CWR = 144
    a(f'''
    s_mov_b32 s7, 0xffff0000
    s_mov_b32 s68, 0
    s_cmp_ge_u32 s12, 5
    s_cbranch_scc1 .b2_sp_hi
    s_or_b32 s4, s13, s3
    s_cmp_lg_u32 s4, 0
    s_cbranch_scc1 .b2_sp_done
    s_and_b32 s4, s12, 3
    s_cmp_eq_u32 s4, 0
    s_cselect_b32 s68, 3, 1
    s_branch .b2_sp_done
    .b2_sp_hi:
    s_cmp_lg_u32 s13, 31
    s_cbranch_scc1 .b2_sp_done
    s_cmp_lg_u32 s3, 3
    s_cbranch_scc1 .b2_sp_done
    s_mov_b32 s68, 2
    .b2_sp_done:
    ''')
    srd(a, 44, P_WS, 4 << 20, WS_Z1)
    srd(a, 48, P_WS, 4 << 20, WS_Z2)
    srd(a, 52, P_WS, 16384, WS_CW)
    a('s_mov_b32 m0, s10')
    stamp(a, 4)
    lds_wait(a, C_R0, 1, 10, slp=1)
    a('s_setprio 2')
    stamp(a, 5)
    for p in range(4):
        a(f'buffer_load_dwordx4 v5, s[44:47], s11 offen offset:{p*1024} sc1 lds')
    a('s_cmp_eq_u32 s68, 0')
    a('s_cbranch_scc1 .b2_nocw')
    a(f'''
    v_lshl_add_u32 v64, v4, 6, v3
    s_cmp_eq_u32 s12, 0
    s_cselect_b32 s4, 1, 0
    s_add_u32 s4, s4, 255
    v_sub_u32 v65, s4, v64
    s_sub_u32 s4, 8, s12
    s_and_b32 s4, s4, 7
    s_lshl_b32 s4, s4, 10
    s_add_u32 s5, s4, 8192
    s_cmp_eq_u32 s68, 2
    s_cselect_b32 s4, s5, s4
    s_lshl_b32 s6, s12, 10
    s_add_u32 s6, s6, 8192
    v_lshlrev_b32 v64, 2, v64
    ''')
    for i in range(4):
        a(f'''
        v_subrev_u32 v66, {16*i}, v65
        v_and_b32 v66, 255, v66
        v_lshlrev_b32 v66, 2, v66
        buffer_load_dword v{CWR+i}, v66, s[52:55], s4 offen sc1
        buffer_load_dword v{CWR+4+i}, v64, s[52:55], s6 offen offset:{64*i} sc1
        buffer_load_dword v{CWR+8+i}, v66, s[52:55], s5 offen sc1
        ''')
    a('.b2_nocw:')
    lds_wait(a, C_W, 1, 10)
    WLL = 80
    for i in range(4):
        a(f'ds_read_b128 {vr(WLL+4*i,4)}, v{vZ} offset:{WB-ZB+1024*i}')
    for i in range(4):
        a(f's_waitcnt lgkmcnt({3-i})')
        for part in range(2):
            for cp in range(2):
                src = WLL + 4 * i + 2 * part + cp
                a(f'v_lshlrev_b32 v{WF+8*(2*cp)+4*part+i}, 16, v{src}')
                a(f'v_and_b32 v{WF+8*(2*cp+1)+4*part+i}, s7, v{src}')
    a('s_waitcnt vmcnt(0)')
    lds_arrive(a, C_Z, 10)
    lds_wait(a, C_Z, 4, 10)
    stamp(a, 6)
    for e in range(4):
        a(f'ds_read_b128 {vr(D+4*e,4)}, v{vZ} offset:{1024*e}')
    for e in range(4):
        a(f's_waitcnt lgkmcnt({3-e})')
        for c in range(4):
            a(f'v_mov_b32 v{X+4*c+e}, v{D+4*e+c}')
    def stage(Mr, Mi, data_is_A):
        for c in range(4):
            for M, off in ((Mr, 0), (Mi, 4)):
                if data_is_A:
                    a(f'v_mfma_f32_16x16x32_bf16 {vr(D+8*c+off,4)}, {vr(X+4*c,4)}, {vr(M,4)}, 0')
                else:
                    a(f'v_mfma_f32_16x16x32_bf16 {vr(D+8*c+off,4)}, {vr(M,4)}, {vr(X+4*c,4)}, 0')
    def mulpack(cr_of, ci_of, conj):
        k = 0
        for c in range(4):
            for hp in range(2):
                t = TM + 4 * (k & 1); k += 1
                cmul_sc(a, t, t + 2, D + 8 * c + 2 * hp, D + 8 * c + 4 + 2 * hp, cr_of(c) + 2 * hp, ci_of(c) + 2 * hp, conj)
                a(f'v_cvt_pk_bf16_f32 v{X+4*c+2*hp}, v{t}, v{t+2}')
                a(f'v_cvt_pk_bf16_f32 v{X+4*c+2*hp+1}, v{t+1}, v{t+3}')
    stage(B1R, B1I, True)
    mulpack(lambda c: T1C, lambda c: T1S, True)
    stage(A2R, A2I, False)
    a('s_cmp_eq_u32 s68, 0')
    a('s_cbranch_scc1 .b2_noreal')
    a('s_cmp_eq_u32 s68, 2')
    a('s_cbranch_scc1 .b2_patch_hi')
    def patch(c):
        for i in range(4):
            a(f'v_lshlrev_b32 v{TM}, 16, v{CWR+i}')
            a(f'v_and_b32 v{TM+1}, s7, v{CWR+i}')
            a(f'v_add_f32 v{WF+8*c+i}, v{WF+8*c+i}, v{TM}')
            a(f'v_sub_f32 v{WF+8*c+4+i}, v{WF+8*c+4+i}, v{TM+1}')
        for i in range(8):
            a(f'v_mul_f32 v{WF+8*c+i}, 0.5, v{WF+8*c+i}')
    patch(0)
    a('s_cmp_eq_u32 s68, 1')
    a('s_cbranch_scc1 .b2_noreal')
    ZM, PQ = 16, 24
    QQ = 48
    a(f'''
    v_lshl_add_u32 v{TM}, v4, 6, v3
    s_lshr_b32 s4, s12, 2
    s_sub_u32 s4, 256, s4
    v_sub_u32 v{TM+1}, s4, v{TM}
    v_lshlrev_b32 v{TM}, 2, v{TM}
    v_add_u32 v{TM}, {SCR}, v{TM}
    ''')
    for i in range(4):
        a(f'ds_write_b32 v{TM}, v{D+i} offset:{64*i}')
        a(f'ds_write_b32 v{TM}, v{D+4+i} offset:{1024+64*i}')
    for i in range(4):
        a(f'''
        v_subrev_u32 v{TM+2}, {16*i}, v{TM+1}
        v_and_b32 v{TM+2}, 255, v{TM+2}
        v_lshlrev_b32 v{TM+2}, 2, v{TM+2}
        v_add_u32 v{TM+2}, {SCR}, v{TM+2}
        ds_read_b32 v{ZM+i}, v{TM+2}
        ds_read_b32 v{ZM+4+i}, v{TM+2} offset:1024
        ''')
    for i in range(4):
        a(f'''
        v_lshlrev_b32 v{TM+4}, 16, v{CWR+4+i}
        v_lshlrev_b32 v{TM+5}, 16, v{CWR+8+i}
        v_and_b32 v{TM+6}, s7, v{CWR+4+i}
        v_and_b32 v{TM+7}, s7, v{CWR+8+i}
        v_add_f32 v{TM+4}, v{TM+4}, v{TM+5}
        v_sub_f32 v{TM+6}, v{TM+6}, v{TM+7}
        v_mul_f32 v{TM+4}, {fhex(0.125)}, v{TM+4}
        v_mul_f32 v{TM+6}, {fhex(0.125)}, v{TM+6}
        v_mul_f32 v{WF+i}, {fhex(0.25)}, v{WF+i}
        v_mul_f32 v{WF+4+i}, {fhex(0.25)}, v{WF+4+i}
        v_add_f32 v{PQ+i}, v{WF+i}, v{TM+4}
        v_add_f32 v{PQ+4+i}, v{WF+4+i}, v{TM+6}
        v_sub_f32 v{QQ+i}, v{WF+i}, v{TM+4}
        v_sub_f32 v{QQ+4+i}, v{WF+4+i}, v{TM+6}
        v_mov_b32 v{WF+i}, 1.0
        v_mov_b32 v{WF+4+i}, 0
        ''')
    a('s_waitcnt lgkmcnt(0)')
    for i in range(4):
        zr, zi, mr, mi = D + i, D + 4 + i, ZM + i, ZM + 4 + i
        pr, pi, qr, qi = PQ + i, PQ + 4 + i, QQ + i, QQ + 4 + i
        a(f'''
        v_mul_f32 v{TM}, v{zr}, v{pr}
        v_mul_f32 v{TM+1}, v{zr}, v{pi}
        v_fma_f32 v{TM}, -v{zi}, v{pi}, v{TM}
        v_fmac_f32 v{TM+1}, v{zi}, v{pr}
        v_fmac_f32 v{TM}, v{mr}, v{qr}
        v_fmac_f32 v{TM+1}, v{mr}, v{qi}
        v_fma_f32 v{zr}, v{mi}, v{qi}, v{TM}
        v_fma_f32 v{zi}, -v{mi}, v{qr}, v{TM+1}
        ''')
    a('s_branch .b2_noreal')
    a('.b2_patch_hi:')
    patch(3)
    a('.b2_noreal:')
    mulpack(lambda c: WF + 8 * c, lambda c: WF + 8 * c + 4, False)
    stage(B3R, B3I, True)
    mulpack(lambda c: T3C, lambda c: T3S, False)
    stage(A4R, A4I, False)
    for i in range(4):
        for c in range(4):
            a(f'v_cvt_pk_bf16_f32 v{X+4*i+c}, v{D+8*c+i}, v{D+8*c+4+i}')
        a(f'ds_write_b128 v{vZ}, {vr(X+4*i,4)} offset:{1024*i}')
    lds_arrive(a, C_O, 10)
    lds_wait(a, C_O, 4, 10)
    stamp(a, 7)
    for p in range(4):
        a(f'ds_read_b128 {vr(X+4*p,4)}, v{vL} offset:{1024*p}')
    a(f'''
    v_lshrrev_b32 v8, 2, v{lane}
    v_lshlrev_b32 v8, 14, v8
    v_and_b32 v9, 3, v{lane}
    v_lshl_add_u32 v8, v9, 4, v8
    s_lshl_b32 s4, s12, 5
    s_add_u32 s4, s4, s13
    s_lshl_b32 s4, s4, 6
    s_lshl_b32 s5, s3, 20
    s_add_u32 s4, s4, s5
    ''')
    for p in range(4):
        a(f's_waitcnt lgkmcnt({3-p})')
        a(f'buffer_store_dwordx4 {vr(X+4*p,4)}, v8, s[48:51], s4 offen')
        if p < 3: a(f's_add_u32 s4, s4, {16*16384}')
    a('s_add_u32 s14, s14, 65536')
    a('s_waitcnt vmcnt(0)')
    publish(a, C_S2, 4, 14, 10)
    stamp(a, 8)

    a('.b3_start:')
    a('s_setprio 0')
    X = 16
    G8 = 8
    MR, MI, NR, NI, tc, ts = 80, 96, 112 - 8, 120 - 8, 128, 144
    kf, arg, a2, c0, s0, k5 = range(74, 80)
    tab_init(kf, arg, k5)
    for i in range(16):
        a(f'v_cos_f32 v{c0}, v{arg}')
        a(f'v_sin_f32 v{s0}, v{arg}')
        a(f'v_mul_f32 v{a2}, {fhex(1/32)}, v{arg}')
        a(f'v_cos_f32 v{tc+i}, v{a2}')
        a(f'v_sin_f32 v{ts+i}, v{a2}')
        if i != 15:
            a(f'v_add_f32 v{arg}, v{arg}, v{k5 if (i & 3) == 3 else kf}')
        a(f'v_cvt_pk_bf16_f32 v{MR+i}, v{c0}, -v{s0}')
        a(f'v_cvt_pk_bf16_f32 v{MI+i}, v{s0}, v{c0}')
        if i >= 8:
            a(f'v_cvt_pk_bf16_f32 v{NR+i}, v{c0}, v{s0}')
            a(f'v_cvt_pk_bf16_f32 v{NI+i}, v{s0}, -v{c0}')
    gen_dft8_frags(a, lane, G8, 64, False)
    a(f'''
    v_and_b32 v6, 31, v{lane}
    v_lshlrev_b32 v6, 2, v6
    v_lshrrev_b32 v7, 5, v{lane}
    v_lshl_add_u32 v6, v7, 9, v6
    s_lshl_b32 s4, s8, 12
    s_cmp_eq_u32 s8, 4
    s_cselect_b32 s4, 2, s4
    v_add_u32 v6, s4, v6
    ''')
    srd(a, 44, P_WS, 4 << 20, WS_Z2)
    srd(a, 48, P_OUT, 8 << 20)
    a(f'''
    s_lshl_b32 s10, s8, 12
    s_cmp_eq_u32 s8, 4
    s_cselect_b32 s10, 2048, s10
    s_add_u32 s10, s10, {ZB}
    s_lshl_b32 s4, s2, 14
    s_lshl_b32 s11, s8, 11
    s_add_u32 s11, s11, s4
    s_lshl_b32 s12, s9, 11
    s_add_u32 s12, s12, s4
    v_lshlrev_b32 v3, 4, v{lane}
    s_lshr_b32 s4, s2, 2
    ''')
    for which, dst in ((0, vlo), (1, vhi)):
        a(f'v_and_b32 v64, 31, v{lane}')
        a(f'v_lshrrev_b32 v65, 5, v{lane}')
        if which:
            a('v_sub_u32 v64, 31, v64')
            a('v_sub_u32 v65, 1, v65')
        a(f'''
        v_bfe_u32 v66, v64, 2, 2
        v_add_u32 v66, s4, v66
        v_and_b32 v66, 3, v66
        v_lshlrev_b32 v66, 4, v66
        v_and_b32 v67, 3, v64
        v_lshl_add_u32 v66, v67, 2, v66
        v_lshrrev_b32 v67, 4, v64
        v_lshl_add_u32 v66, v67, 6, v66
        v_lshl_add_u32 v66, v65, 9, v66
        v_add_u32 v{dst}, s10, v66
        ''')
    a(f'v_add_u32 v{vhi}, 2048, v{vhi}')
    a('s_cmp_eq_u32 s3, 4')
    a('s_cbranch_scc0 .b3_wait')
    a('s_setprio 2')
    poll_release(a, 16384, C_R0, 4)
    stamp(a, 4)
    lds_wait(a, C_S2, 4, 4, slp=4)
    poll_release(a, 24576, C_R1, 4)
    a('.b3_wait:')
    stamp(a, 9)
    lds_wait(a, C_R1, 1, 4, slp=1)
    a('s_setprio 2')
    stamp(a, 10)
    a('s_mov_b32 m0, s10')
    a('buffer_load_dwordx4 v3, s[44:47], s11 offen sc1 lds')
    a('buffer_load_dwordx4 v3, s[44:47], s11 offen offset:1024 sc1 lds')
    a('s_cmp_eq_u32 s15, 0')
    a('s_cbranch_scc1 .b3_real_noload')
    a('s_add_u32 s4, s10, 2048')
    a('s_mov_b32 m0, s4')
    a('buffer_load_dwordx4 v3, s[44:47], s12 offen sc1 lds')
    a('buffer_load_dwordx4 v3, s[44:47], s12 offen offset:1024 sc1 lds')
    a('.b3_real_noload:')
    lds_arrive(a, C_L3L, 4)
    DR, DI, T0 = 32, 48, 64
    a('s_waitcnt vmcnt(0)')
    for i in range(16):
        a(f'ds_read_b32 v{X+i}, v{vlo if i < 8 else vhi} offset:{z_soff(i) >> 8}')
    a('s_waitcnt lgkmcnt(0)')
    stamp(a, 11)
    a('s_cmp_eq_u32 s15, 0')
    a('s_cbranch_scc0 .b3_cplx1')
    for i in range(8, 16): a(f'v_mov_b32 v{X+i}, 0')
    a(f'''
    s_mov_b64 exec, 1
    v_lshrrev_b32 v{X+8}, 16, v{X}
    s_mov_b64 exec, -1
    ''')
    lds_arrive(a, C_RL, 4)
    a('.b3_cplx1:')
    for c in range(4):
        br, bi = (MR + 4 * c, MI + 4 * c) if c < 2 else (NR + 4 * c, NI + 4 * c)
        a(f'v_mfma_f32_32x32x16_bf16 {vr(DR,16)}, {vr(X+4*c,4)}, {vr(br,4)}, ' + ('0' if c == 0 else vr(DR, 16)))
        a(f'v_mfma_f32_32x32x16_bf16 {vr(DI,16)}, {vr(X+4*c,4)}, {vr(bi,4)}, ' + ('0' if c == 0 else vr(DI, 16)))
    for ib in range(4):
        for k in range(2):
            ip = 2 * ib + k; t = T0 + 8 * (ib & 1) + 4 * k
            a(f'v_pk_mul_f32 {vr(t,2)}, {vr(DI+2*ip,2)}, {vr(ts+2*ip,2)}')
            a(f'v_pk_mul_f32 {vr(t+2,2)}, {vr(DR+2*ip,2)}, {vr(ts+2*ip,2)}')
        for k in range(2):
            ip = 2 * ib + k; t = T0 + 8 * (ib & 1) + 4 * k
            a(f'v_pk_fma_f32 {vr(t,2)}, {vr(DR+2*ip,2)}, {vr(tc+2*ip,2)}, {vr(t,2)} neg_lo:[0,0,1] neg_hi:[0,0,1]')
            a(f'v_pk_fma_f32 {vr(t+2,2)}, {vr(DI+2*ip,2)}, {vr(tc+2*ip,2)}, {vr(t+2,2)}')
        for k in range(2):
            ip = 2 * ib + k; t = T0 + 8 * (ib & 1) + 4 * k
            a(f'v_cvt_pk_bf16_f32 v{X+2*ip}, v{t}, v{t+2}')
            a(f'v_cvt_pk_bf16_f32 v{X+2*ip+1}, v{t+1}, v{t+3}')
    for c in range(4):
        a(f'v_mfma_f32_32x32x16_bf16 {vr(DR,16)}, {vr(MR+4*c,4)}, {vr(X+4*c,4)}, ' + ('0' if c == 0 else vr(DR, 16)))
    a('s_cmp_eq_u32 s15, 0')
    a('s_cbranch_scc1 .b3_real2')
    for c in range(4):
        a(f'v_mfma_f32_32x32x16_bf16 {vr(DI,16)}, {vr(MI+4*c,4)}, {vr(X+4*c,4)}, ' + ('0' if c == 0 else vr(DI, 16)))
    for i in range(16):
        a(f'v_cvt_pk_bf16_f32 v{T0+i}, v{DR+i}, v{DI+i}')
        a(f'ds_write_b32 v6, v{T0+i} offset:{ZB+(8*(i>>2)+(i&3))*128}')
    a('s_branch .b3_join')
    a('.b3_real2:')
    lds_wait(a, C_RL, 2, 4)
    for ip in range(8):
        i = 2 * ip
        a(f'v_cvt_pk_bf16_f32 v{T0+ip}, v{DR+i}, v{DR+i+1}')
        a(f'ds_write_b16 v6, v{T0+ip} offset:{ZB+(8*(i>>2)+(i&3))*128}')
        a(f'ds_write_b16_d16_hi v6, v{T0+ip} offset:{ZB+(8*(i>>2)+(i&3)+1)*128}')
    a('.b3_join:')
    lds_arrive(a, C_L3, 4)
    a('s_cmp_eq_u32 s3, 4')
    a(f's_cbranch_scc1 .b3_end')
    lds_wait(a, C_L3, 5, 4)
    a('v_lshlrev_b32 v6, 4, v0')
    DD = 32
    for p in range(4):
        a(f'ds_read_b128 {vr(64+4*p,4)}, v6 offset:{ZB+4096*p}')
    a(f'''
    s_lshl_b32 s4, s2, 12
    s_add_u32 s4, s4, 2048
    v_lshlrev_b32 v7, 3, v0
    v_add_u32 v7, s4, v7
    ''')
    for p in range(4):
        a(f's_waitcnt lgkmcnt({3-p})')
        for e in range(4):
            a(f'v_mov_b32 v{X+4*e+p}, v{64+4*p+e}')
    for e in range(4):
        for hf in range(2):
            a(f'v_mfma_f32_16x16x32_bf16 {vr(DD+8*e+4*hf,4)}, {vr(G8+4*hf,4)}, {vr(X+4*e,4)}, 0')
    a.raw(';OUT_ON')
    for s1 in range(8):
        a(f'v_cvt_pk_bf16_f32 v{64+2*s1}, v{DD+s1}, v{DD+8+s1}')
        a(f'v_cvt_pk_bf16_f32 v{65+2*s1}, v{DD+16+s1}, v{DD+24+s1}')
        a(f's_mov_b32 s5, {s1*256*4096}')
        a(f'buffer_store_dwordx2 {vr(64+2*s1,2)}, v7, s[48:51], s5 offen')
    a.raw(';PLAIN_OFF')
    a('.b3_end:')
    stamp(a, 12)
    stamp_flush(a, 0, 13)
    a('s_endpgm')

def gen_T(a, lane):
    a('.role_t:')
    remap(a)
    a(f'''
    s_setprio 2
    s_sub_u32 s8, s3, 5
    s_and_b32 s9, s2, 15
    s_lshl_b32 s9, s9, 1
    s_add_u32 s9, s9, s8
    s_lshl_b32 s9, s9, 4
    s_lshr_b32 s11, s2, 4
    s_add_u32 s9, s9, s11
    s_mul_i32 s10, s8, {64*144}
    s_add_u32 s10, s10, {TRB}
    s_lshl_b32 s14, s2, 4
    s_add_u32 s14, s14, 8192
    s_lshl_b32 s15, s11, 8
    s_add_u32 s15, s15, 8192
    s_waitcnt lgkmcnt(0)
    ''')
    if not TFIRST: a('s_barrier')
    srd(a, 44, P_U, 4 << 20)
    srd(a, 48, P_WS, 1024 * UP, WS_UT)
    TP = gen_transposer(a, lane, 9, 44, 48, 10, 2048, UP, 'u')
    if TFIRST: a('s_barrier')
    a.raw(';PLAIN_ON')
    gen_transposer_tail(a, lane, 48, 10, UP, 64, TP)
    stamp(a, 1)
    a('s_waitcnt vmcnt(0)')
    publish(a, C_T1, 2, 14, 10)
    a.raw(';PLAIN_OFF')
    stamp(a, 2)
    a('s_cmp_eq_u32 s8, 0')
    a('s_cbranch_scc0 .t_second')
    poll_group(a, lane, 15, C_G0, 10)
    stamp(a, 3)
    lds_wait(a, C_CV, 4, 10, slp=4)
    a('s_add_u32 s15, s15, 4096')
    poll_group(a, lane, 15, C_G1, 10)
    a('s_branch .t_third')
    a('.t_second:')
    a(f's_cmp_eq_u32 s2, {M0}')
    a('s_cbranch_scc0 .t_third')
    lds_wait(a, C_NONCE, 1, 10, slp=1, sreg=5)
    lds_wait(a, C_S1, 6, 10, slp=1)
    master(a, lane, '0', 65536, 16384)
    a('.t_third:')
    lds_wait(a, C_G1, 1, 10, slp=2)
    lds_wait(a, C_O, 4, 10, slp=1)
    if os.environ.get('T3WAIT', '0') == '1':
        lds_wait(a, C_L3L, 5, 10, slp=1)
    stamp(a, 4)
    srd(a, 44, P_WS, 4 << 20, WS_YT)
    srd(a, 48, P_OUT, 8 << 20)
    n0 = len(a.items)
    TP = gen_transposer(a, lane, 9, 44, 48, 10, 4096, 4096, 'y')
    from asmlib import Ins
    for k in range(n0, len(a.items)):
        kind, it = a.items[k]
        if kind == 'i' and it.op.startswith('buffer_load'):
            a.items[k] = ('i', Ins(it.text + ' sc1'))
    gen_transposer_tail(a, lane, 48, 10, 4096, 0, TP, ymode=True)
    stamp(a, 5)
    stamp_flush(a, 0, 6)
    a('s_endpgm')

def master(a, lane, tag, flag_off, rel_off):
    srd(a, 60, P_WS, 1 << 18, WS_FLG)
    a(f'v_lshlrev_b32 v6, 4, v{lane}')
    a(f'v_lshlrev_b32 v4, 7, v{lane}')
    a(f's_mov_b32 s6, {SPIN_MAX}')
    a(f's_mov_b32 s7, {flag_off}')
    def pl(k):
        for i in range(4):
            a(f'buffer_load_dword v{64+4*k+i}, v6, s[60:63], s7 offen offset:{1024*i} sc1')
    for k in range(PD - 1):
        pl(k)
        a(f"s_sleep {os.environ.get('PGAP', '4')}")
    a(f'.m_loop{tag}:')
    for k in range(PD):
        pl((k + PD - 1) % PD)
        b = 64 + 4 * k
        a(f'''
        s_waitcnt vmcnt({4*(PD-1)})
        v_xor_b32 v8, s5, v{b}
        v_xor_b32 v9, s5, v{b+1}
        v_xor_b32 v10, s5, v{b+2}
        v_xor_b32 v11, s5, v{b+3}
        v_or_b32 v8, v8, v9
        v_or3_b32 v8, v8, v10, v11
        v_cmp_ne_u32 vcc, 0, v8
        s_cmp_eq_u64 vcc, 0
        s_cbranch_scc1 .m_rel{tag}
        ''')
    a(f'''
    s_sub_u32 s6, s6, 1
    s_cmp_lg_u32 s6, 0
    s_cbranch_scc1 .m_loop{tag}
    .m_rel{tag}:
    v_mov_b32 v8, s5
    s_mov_b32 s7, {rel_off}
    s_mov_b64 exec, {(1 << NREP) - 1 if NREP < 64 else -1}
    buffer_store_dword v8, v4, s[60:63], s7 offen
    s_mov_b64 exec, -1
    s_waitcnt vmcnt(0)
    ''')

M0, M1 = 74, 139

def gen_M(a, lane):
    a('.role_m:')
    if os.environ.get('CODEPF', '1') == '1':
        KN = NAME + '_kernel'
        a(f'''
        s_getpc_b64 s[6:7]
        .m_pc:
        s_sub_u32 s6, s6, .m_pc-{KN}
        s_subb_u32 s7, s7, 0
        v_lshlrev_b32 v24, {os.environ.get('CPSH', '7')}, v{lane}
        v_mov_b32 v25, s7
        v_add_co_u32 v24, vcc, s6, v24
        v_addc_co_u32 v25, vcc, 0, v25, vcc
        ''')
        step = 64 << int(os.environ.get('CPSH', '7'))
        n = (0x5e00 + step - 1) // step
        for k in range(n):
            if k == n - 1:
                rem = (0x5d00 - k * step) // (step // 64)
                if rem < 64: a(f's_lshr_b64 exec, -1, {64 - rem}')
            a(f'global_load_dword v{26+k}, v[24:25], off')
            if k < n - 1:
                a(f'v_add_co_u32 v24, vcc, {step:#x}, v24')
                a('v_addc_co_u32 v25, vcc, 0, v25, vcc')
        a('s_mov_b64 exec, -1')
    a(f'''
    s_setprio 3
    v_lshlrev_b32 v4, 4, v{lane}
    v_add_u32 v4, {CNT}, v4
    v_mov_b32 v8, 0
    v_mov_b32 v9, 0
    v_mov_b32 v10, 0
    v_mov_b32 v11, 0
    s_mov_b64 exec, 0xff
    ds_write_b128 v4, v[8:11]
    s_mov_b64 exec, -1
    s_memrealtime s[8:9]
    s_waitcnt lgkmcnt(0)
    ''')
    srd(a, 64, P_DBG, 256)
    a(f'''
    v_mov_b32 v4, 0
    s_or_b32 s5, s8, 1
    s_cmp_lg_u32 s2, 0
    s_cbranch_scc1 .m_nostore
    v_mov_b32 v5, s5
    s_mov_b64 exec, 1
    buffer_store_dword v5, v4, s[64:67], 0 offen
    s_mov_b64 exec, -1
    .m_nostore:
    ''')
    if os.environ.get('TLB', '1') == '1':
        srd(a, 44, P_WS, 32 << 20)
        srd(a, 48, P_OUT, 8 << 20)
        a(f'''
        v_lshlrev_b32 v20, 19, v{lane}
        v_lshlrev_b32 v21, 17, v{lane}
        buffer_load_dword v22, v20, s[44:47], 0 offen sc1
        buffer_load_dword v23, v21, s[48:51], 0 offen sc1
        ''')
        if os.environ.get('TLBW', '1') == '1':
            srd(a, 52, P_WR, 2048 * 1026)
            srd(a, 56, P_WI, 2048 * 1026)
            a('''
            s_mov_b64 exec, 0xffff
            buffer_load_dword v18, v21, s[52:55], 0 offen
            buffer_load_dword v19, v21, s[56:59], 0 offen
            s_mov_b64 exec, -1
            ''')
    a(f'''
    s_barrier
    s_cmp_eq_u32 s2, 0
    s_cbranch_scc1 .m_got
    s_mov_b32 s6, {SPIN_MAX}
    .m_poll:
    buffer_load_dword v5, v4, s[64:67], 0 offen sc1
    s_waitcnt vmcnt(0)
    v_readfirstlane_b32 s5, v5
    s_cmp_lg_u32 s5, 0
    s_cbranch_scc1 .m_got
    s_sub_u32 s6, s6, 1
    s_cmp_lg_u32 s6, 0
    s_cbranch_scc1 .m_poll
    s_mov_b32 s5, 1
    .m_got:
    v_mov_b32 v6, {CNT+4*C_NONCE}
    v_mov_b32 v5, s5
    ds_write_b32 v6, v5
    ''')
    stamp(a, 1)
    srd(a, 52, P_WR, 2048 * 1026)
    srd(a, 56, P_WI, 2048 * 1026)
    a(f'''
    s_setprio 1
    s_and_b32 s12, s2, 7
    s_lshr_b32 s13, s2, 3
    ''')
    srd(a, 48, P_WS, 16384, WS_CW)
    a(f'''
    v_and_b32 v7, 7, v{lane}
    v_mul_u32_u24 v8, 1026, v7
    v_bfe_u32 v9, v{lane}, 3, 1
    v_lshl_add_u32 v8, v9, 10, v8
    s_mul_i32 s4, s2, 8208
    v_and_b32 v9, 15, v{lane}
    v_lshlrev_b32 v9, 10, v9
    s_lshl_b32 s7, s2, 2
    s_lshl_b32 s14, s2, 4
    s_add_u32 s14, s14, 65536
    s_mov_b64 exec, 0xffff
    buffer_load_ushort v20, v8, s[52:55], s4 offen
    buffer_load_ushort v21, v8, s[56:59], s4 offen
    s_waitcnt vmcnt(0)
    v_lshl_or_b32 v20, v21, 16, v20
    buffer_store_dword v20, v9, s[48:51], s7 offen
    s_mov_b64 exec, -1
    s_waitcnt vmcnt(0)
    s_mov_b32 s69, s5
    ''')
    publish(a, C_S1, 6, 14, 12)
    a('s_mov_b32 s5, s69')
    if os.environ.get('WPF', '0') == '1':
        a(f'''
        v_lshrrev_b32 v7, 3, v{lane}
        v_mul_u32_u24 v7, 8208, v7
        v_and_b32 v8, 7, v{lane}
        v_lshl_add_u32 v7, v8, 7, v7
        s_mul_i32 s4, s13, {8*8208}
        s_mul_i32 s7, s12, 1026
        s_add_u32 s4, s4, s7
        s_and_b32 s4, s4, 0xfffffffc
        ''')
        lds_wait(a, C_PA, 4, 12, slp=2, sreg=7)
        a(f'''
        buffer_load_dword v20, v7, s[52:55], s4 offen
        buffer_load_dword v21, v7, s[56:59], s4 offen
        buffer_load_dword v22, v7, s[52:55], s4 offen offset:124
        buffer_load_dword v23, v7, s[56:59], s4 offen offset:124
        ''')
    a(f'''
    v_lshrrev_b32 v7, 1, v{lane}
    v_lshlrev_b32 v8, 3, v7
    v_add_u32 v8, s12, v8
    v_mul_u32_u24 v8, 1026, v8
    v_and_b32 v9, 1, v{lane}
    v_lshl_add_u32 v8, v9, 4, v8
    s_lshl_b32 s11, s13, 5
    s_cmp_ge_u32 s12, 5
    s_cselect_b32 s7, 2, 0
    s_add_u32 s11, s11, s7
    v_bfe_u32 v15, v{lane}, 3, 2
    v_lshl_add_u32 v15, v9, 1, v15
    v_and_b32 v14, 3, v15
    v_add_u32 v15, 1, v15
    v_and_b32 v15, 3, v15
    v_lshlrev_b32 v7, 6, v7
    v_add_u32 v7, {WB}, v7
    v_lshl_add_u32 v16, v14, 4, v7
    v_lshl_add_u32 v17, v15, 4, v7
    ''')
    WL = 32
    WBATCH = int(os.environ.get('WBATCH', '2'))
    WEARLY = int(os.environ.get('WEARLY', '0'))
    def wload(q):
        a(f'buffer_load_dwordx4 {vr(WL+8*q,4)}, v8, s[52:55], s11 offen')
        a(f'buffer_load_dwordx4 {vr(WL+8*q+4,4)}, v8, s[56:59], s11 offen')
        if q < 7: a(f's_add_u32 s11, s11, {32*8*1026}')
    def wstage(q):
        for ar in range(2):
            r = WL + 8 * q + 4 * ar
            a(f'ds_write_b64 v16, {vr(r,2)} offset:{q*2048+ar*8}')
            a(f'ds_write_b64 v17, {vr(r+2,2)} offset:{q*2048+ar*8}')
    for q in range(WEARLY):
        wload(q)
        a('s_waitcnt vmcnt(0)')
    lds_wait(a, C_T1, 2, 12, slp=2)
    lds_wait(a, C_S1, 6, 12, slp=2)
    stamp(a, 2)
    first = True
    for q0 in range(WEARLY, 8, WBATCH):
        qs = list(range(q0, min(8, q0 + WBATCH)))
        for q in qs: wload(q)
        if first:
            for q in range(WEARLY): wstage(q)
            first = False
        for q in qs:
            a(f's_waitcnt vmcnt({2*(qs[-1]-q)})')
            wstage(q)
    lds_arrive(a, C_W, 12)
    stamp(a, 3)
    a(f's_cmp_eq_u32 s2, {M1}')
    a('s_cbranch_scc0 .m_end')
    lds_wait(a, C_S2, 4, 12, slp=2)
    a('s_setprio 3')
    master(a, lane, '1', 131072, 24576)
    a('.m_end:')
    stamp(a, 4)
    stamp_flush(a, 0, 5)
    a('s_endpgm')

def gen_A(a, lane):
    a('.role_a:')
    remap(a)
    KB = 32
    UR = 128
    a(f'''
    s_and_b32 s10, s3, 3
    s_lshl_b32 s9, s2, 2
    s_add_u32 s9, s9, s10           ; channel
    s_mul_i32 s10, s10, {CH_REG}
    s_add_u32 s10, s10, {CH0}
    s_lshl_b32 s68, s9, 8
    s_lshl_b32 s69, s9, 1
    v_lshlrev_b32 v{KB+5}, 3, v{lane}
    v_add_u32 v{KB+5}, s10, v{KB+5}
    v_lshlrev_b32 v{KB+3}, 2, v{lane}
    v_mov_b32 v{KB+4}, 0
    v_lshlrev_b32 v3, 4, v{lane}
    s_mul_i32 s15, s9, {UP}
    s_add_u32 s15, s15, 64
    v_add_u32 v23, s10, v3
    s_lshl_b32 s14, s2, 4
    s_add_u32 s14, s14, 12288
    v_and_b32 v4, 31, v{lane}             ; b
    v_lshrrev_b32 v5, 5, v{lane}          ; h
    v_lshlrev_b32 v6, 4, v4
    s_add_u32 s11, s10, {CV_K}
    v_sub_u32 v6, s11, v6
    v_lshlrev_b32 v7, 3, v5
    v_sub_u32 v20, v6, v7
    v_lshlrev_b32 v7, 9, v5
    v_sub_u32 v21, v6, v7
    v_sub_u32 v22, v21, v7
    v_add_u32 v22, {2*760}, v22
    v_add_u32 v21, {2*1528}, v21
    v_add_u32 v20, {2*1788}, v20
    ''')
    vKA, vKB = 18, 19
    a(f'''
    v_lshlrev_b32 v7, 4, v5
    v_add_u32 v7, s10, v7
    v_add_u32 v6, 28, v4
    v_mul_u32_u24 v6, {KP}, v6
    v_add_u32 v{vKB}, v6, v7
    v_mov_b32 v6, v4
    ''')
    for thr in (11, 15, 19, 23):
        a(f'v_cmp_lt_u32 vcc, {thr}, v4')
        a(f'v_subbrev_co_u32 v6, vcc, 0, v6, vcc')
    vF, vG = 24, 25
    a(f'''
    v_mul_u32_u24 v6, {KP}, v6
    v_add_u32 v{vKA}, v6, v7
    v_and_b32 v7, 1, v4
    v_cmp_eq_u32 s[70:71], 1, v7          ; odd b
    v_and_b32 v26, 15, v{lane}
    v_lshrrev_b32 v27, 4, v{lane}
    v_lshlrev_b32 v28, 4, v27
    v_lshlrev_b32 v29, 3, v26
    v_sub_u32 v{vF}, v28, v29
    s_add_u32 s6, s11, {2*2044-3968}
    v_add_u32 v{vF}, s6, v{vF}
    v_and_b32 v30, 3, v26
    v_mul_u32_u24 v30, {CS}, v30
    v_lshrrev_b32 v31, 2, v26
    v_lshl_add_u32 v30, v31, 7, v30
    v_add3_u32 v{vG}, v30, v28, s10
    s_waitcnt lgkmcnt(0)
    ''')
    srd(a, 44, P_LOGA, 1024 * 256)
    srd(a, 48, P_LOGDT, 2048)
    srd(a, 52, P_AIM, 1024 * 256)
    a(f'buffer_load_dword v{KB+8}, v{KB+3}, s[44:47], s68 offen')
    a(f'buffer_load_ushort v{KB+12}, v{KB+4}, s[48:51], s69 offen')
    a(f'buffer_load_dword v{KB+9}, v{KB+3}, s[52:55], s68 offen')
    srd(a, 44, P_CRE, 1024 * 256)
    srd(a, 48, P_CIM, 1024 * 256)
    srd(a, 52, P_DSKIP, 2048)
    a(f'buffer_load_dword v{KB+10}, v{KB+3}, s[44:47], s68 offen')
    a(f'buffer_load_dword v{KB+11}, v{KB+3}, s[48:51], s68 offen')
    a(f'buffer_load_ushort v17, v{KB+4}, s[52:55], s69 offen')
    a('s_barrier')
    a(f"s_setprio {os.environ.get('APRIO', '1')}")
    stamp(a, 8)
    a('s_waitcnt vmcnt(3)')
    stamp(a, 1)
    gen_kgen(a, 0, KB, KB + 5, 's_nop 0', 's_nop 0')
    stamp(a, 9)
    gen_kgen(a, 1, KB, KB + 5, 's_nop 0', 's_waitcnt vmcnt(0)', skip_setup=True)
    a('s_waitcnt lgkmcnt(0)')
    stamp(a, 2)
    D = 32
    FB = 64
    def rd(kk):
        b = FB + 8 * (kk & 7)
        a(f'ds_read_b128 {vr(b,4)}, v{vKA} offset:{kk*32}')
        a(f'ds_read_b128 {vr(b+4,4)}, v{vKB} offset:{kk*32}')
    for kk in range(6): rd(kk)
    for kk in range(16):
        b = FB + 8 * (kk & 7)
        rem = min(5, 15 - kk)
        a(f's_waitcnt lgkmcnt({2*rem})')
        a(f'v_mfma_f32_32x32x16_bf16 {vr(D,16)}, {vr(b,4)}, {vr(b+4,4)}, ' + ('0' if kk == 0 else vr(D, 16)))
        if kk + 6 < 16: rd(kk + 6)
    a(f'''
    v_mov_b32 v8, 0
    v_mov_b32 v9, 0
    v_mov_b32 v10, 0
    v_mov_b32 v11, 0
    s_mov_b64 exec, 0xffffff
    ''')
    for c in range(4):
        a(f'ds_write_b128 v23, v[8:11] offset:{c*CS}')
    E = 128
    a(f'''
    s_mov_b64 exec, 0xff
    ds_write_b128 v23, v[8:11] offset:{CV_K+4096}
    s_mov_b64 exec, -1
    v_lshlrev_b32 v17, 16, v17
    s_mov_b64 exec, 1
    v_add_f32 v{D}, v{D}, v17
    s_mov_b64 exec, -1
    v_cvt_pk_bf16_f32 v{E}, v{D+3}, v{D+2}
    v_cvt_pk_bf16_f32 v{E+1}, v{D+1}, v{D}
    ds_write_b64 v20, {vr(E,2)} offset:512
    v_cvt_pk_bf16_f32 v{E+2}, v{D+6}, v{D+5}
    v_cvt_pk_bf16_f32 v{E+3}, v{D+4}, v{D+4}
    ds_write_b64 v20, {vr(E+2,2)}
    v_cvt_pk_bf16_f32 v{E+4}, v{D+10}, v{D+10}
    v_cvt_pk_bf16_f32 v{E+5}, v{D+9}, v{D+9}
    v_cvt_pk_bf16_f32 v{E+6}, v{D+9}, v{D+8}
    v_cvt_pk_bf16_f32 v{E+7}, v{D+8}, v{D+8}
    ds_write_b128 v21, {vr(E+4,4)}
    ''')
    for j in range(2):
        x, z, q = D + 12 + 2 * j, D + 13 + 2 * j, E + 8 + 4 * j
        a(f'''
        v_cndmask_b32 v{D+7}, v{x}, v{z}, s[70:71]
        v_cvt_pk_bf16_f32 v{q}, v{z}, v{z}
        v_cvt_pk_bf16_f32 v{q+1}, v{z}, v{D+7}
        v_cvt_pk_bf16_f32 v{q+2}, v{x}, v{x}
        v_cvt_pk_bf16_f32 v{q+3}, v{x}, v{x}
        ds_write_b128 v22, {vr(q,4)} offset:{512*(1-j)}
        ''')
    ACC = 32
    a('s_waitcnt lgkmcnt(0)')
    for k in range(32): a(f'v_mov_b32 v{ACC+k}, 0')
    a(f'v_mov_b32 v{UR}, 0')
    a(f'v_mov_b32 v{UR+1}, 0')
    srd(a, 44, P_WS, 1024 * UP, WS_UT)
    srd(a, 52, P_WS, 4 << 20, WS_YT)
    a('s_lshl_b32 s13, s9, 12')
    stamp(a, 3)
    lds_wait(a, C_G0, 1, 8, slp=1)
    a('s_setprio 3')
    stamp(a, 4)
    for p in range(4):
        a(f'buffer_load_dwordx4 {vr(UR+8*p+2,4)}, v3, s[44:47], s15 offen offset:{p*1024} sc1')
    lds_arrive(a, C_UL, 8)
    dpp = 'row_mask:0xf bank_mask:0xf'
    Q = 64
    for p in range(4):
        r = UR + 8 * p
        q = Q + 12 * p
        a(f's_waitcnt vmcnt({3-p})')
        a(f'ds_write_b128 v23, {vr(r+2,4)} offset:{384 + 3*CS + 1024*p}')
        a(f'v_mov_b32_dpp v{r}, v{r+4} wave_shr:1 {dpp}')
        a(f'v_mov_b32_dpp v{r+1}, v{r+5} wave_shr:1 {dpp}')
        if p < 3:
            a(f'v_mov_b32_dpp v{r+8}, v{r+4} wave_ror:1 {dpp}')
            a(f'v_mov_b32_dpp v{r+9}, v{r+5} wave_ror:1 {dpp}')
        for j in range(4):
            a(f'v_mov_b32 v{q+8+j}, v{r+1+j}')
        a(f'ds_write_b128 v23, {vr(q+8,4)} offset:{384 + 1*CS + 1024*p}')
        for j in range(4):
            a(f'v_alignbit_b32 v{q+j}, v{r+j+1}, v{r+j}, 16')
        a(f'ds_write_b128 v23, {vr(q,4)} offset:{384 + 1024*p}')
        for j in range(3):
            a(f'v_mov_b32 v{q+4+j}, v{q+1+j}')
        a(f'v_alignbit_b32 v{q+7}, v{r+5}, v{r+4}, 16')
        a(f'ds_write_b128 v23, {vr(q+4,4)} offset:{384 + 2*CS + 1024*p}')
    G0, F0 = 64, 96
    def ld(kind, idx, off):
        if kind == 'G':
            return [f'ds_read_b128 {vr(G0+4*idx,4)}, v{vG} offset:{512*idx+off}']
        return [f'ds_read_b64 {vr(F0+4*idx,2)}, v{vF} offset:{512*(7-idx)+off}', f'ds_read_b64 {vr(F0+4*idx+2,2)}, v{vF} offset:{512*(7-idx)+off+8}']
    even = [(i, c) for i in range(8) for c in range(7 - i, -1, -1)]
    odd = [(i, c) for c in range(7, -1, -1) for i in range(8 - c)]
    def plan(seq):
        lastG, lastF = {}, {}
        for n, (i, c) in enumerate(seq): lastG[i] = n; lastF[c] = n
        rel = {}
        for i, n in lastG.items(): rel.setdefault(n, []).append(('G', i))
        for c, n in lastF.items(): rel.setdefault(n, []).append(('F', c))
        return rel
    rel_e, rel_o = plan(even), plan(odd)
    order0 = [x for n in range(36) for x in rel_o.get(n, [])]
    a('s_waitcnt lgkmcnt(0)')
    stamp(a, 5)
    queue = []
    for kind, idx in order0:
        for ins in ld(kind, idx, 0):
            a(ins); queue.append((kind, idx))
    a('s_mov_b32 s12, 0')
    a('s_setprio 1')
    a(f'v_mov_b32 v16, {CNT+4*C_Z}')
    a('.cv_loop:')
    q0 = list(queue)
    PAUSE = os.environ.get('PAUSE', '0') == '1'
    PK = [int(x) for x in os.environ.get('PAUSE_AT', '12,30').split(',')]
    for seq, rel, off in ((even, rel_e, 64), (odd, rel_o, 128)):
        for n, (i, c) in enumerate(seq):
            if PAUSE and n in PK:
                a(f'ds_read_b96 v[8:10], v16'); queue.append(('P', 0))
            want = [('G', i), ('F', c)]
            chk = PAUSE and (n - 4) in PK
            if chk: want.append(('P', 0))
            need = [k for k, x in enumerate(queue) if x in want]
            if need:
                left = len(queue) - 1 - max(need)
                a(f's_waitcnt lgkmcnt({min(left, 15)})')
                queue = queue[max(need) + 1:] if left <= 15 else queue[len(queue) - 15:]
            if chk:
                Lg = a.label('go')
                a(f'''
                v_sub_u32 v8, v8, v10
                v_readfirstlane_b32 s4, v8
                s_cmp_lt_i32 s4, {os.environ.get('PAUSE_TH', '1')}
                s_cbranch_scc1 {Lg}
                ''')
                lds_wait(a, C_O, 4, 12, slp=1)
                a(f'{Lg}:')
            A = i + c
            a(f'v_mfma_f32_16x16x32_bf16 {vr(ACC+4*A,4)}, {vr(G0+4*i,4)}, {vr(F0+4*c,4)}, {vr(ACC+4*A,4)}')
            for kind, idx in rel.get(n, []):
                for ins in ld(kind, idx, off):
                    a(ins); queue.append((kind, idx))
    assert q0[len(q0) - len(queue):] == queue, (q0, queue)
    a(f'''
    v_add_u32 v{vG}, 128, v{vG}
    v_add_u32 v{vF}, 128, v{vF}
    s_add_u32 s12, s12, 1
    s_cmp_lt_u32 s12, 4
    s_cbranch_scc1 .cv_loop
    ''')
    stamp(a, 6)
    a.raw(';PLAIN_ON')
    for P in range(4):
        o = 128 + 4 * P
        for e in range(2):
            A = 2 * P + e
            a(f'v_cvt_pk_bf16_f32 v{o+2*e}, v{ACC+4*A}, v{ACC+4*A+1}')
            a(f'v_cvt_pk_bf16_f32 v{o+2*e+1}, v{ACC+4*A+2}, v{ACC+4*A+3}')
        a(f'buffer_store_dwordx4 {vr(o,4)}, v3, s[52:55], s13 offen offset:{1024*P}')
    a('s_waitcnt vmcnt(0) lgkmcnt(0)')
    publish(a, C_CV, 4, 14, 8)
    a.raw(';PLAIN_OFF')
    stamp(a, 7)
    stamp_flush(a, 0, 10)
    a('s_endpgm')

def build():
    hdr = open(f'cdna_kernels/{NAME}.s.ref').read().split('\n')
    head = [l for l in hdr if l.startswith(';') and '@launch' not in l.lower()]
    out = '\n'.join(head) + '\n'
    out += f'; @launch grid=(256,1,1) block=(768,1,1) lds={LDS_SIZE}\n'
    out += '.amdgcn_target "amdgcn-amd-amdhsa--gfx950"\n.text\n'
    a = Asm()
    KN = NAME + '_kernel'
    a.raw(f'.globl {KN}')
    a.raw(f'.type {KN},@function')
    gen_main(a)
    body = a.render()
    res = []
    plain = False
    for l in body.split('\n'):
        if l.startswith(';PLAIN_ON'): plain = XL2
        if l.startswith(';OUT_ON'): plain = os.environ.get('OUTPLAIN', '0') == '1'
        if l.startswith(';PLAIN_OFF'): plain = False
        if l.strip().startswith('buffer_store') and not plain:
            l = l + ' sc1'
        res.append(l)
    out += '\n'.join(res)
    out += '.section .rodata,"a"\n'
    out += kd(KN, 168, 102)
    return out

if __name__ == '__main__':
    path = sys.argv[1] if len(sys.argv) > 1 else f'cdna_kernels/{NAME}.s'
    open(path, 'w').write(build())
    print('wrote', path)
```

```python
import sys, os, struct
sys.path.insert(0, 'dev')
from gen import (Asm, NAME, fhex, vr, srd, stamp, stamp_flush, gen_dft8_frags, gen_z_addr, z_soff,
                 gen_transposer, gen_transposer_tail, kd, DIAG,
                 WS_Z1, WS_Z2, WS_UT, UP, WS_YT,
                 P_U, P_LOGA, P_AIM, P_CRE, P_CIM, P_LOGDT, P_DSKIP, P_X, P_WR, P_WI, P_OUT, P_DBG, P_WS)
from gen23 import cmul_sc, cmul_pk
import gen3
from gen3 import gen_kgen, KP, CH_REG, CS, CV_K

ZB = 0
WB = 16384
SCR = 32768
TRB = WB
CNT = 34816
CH0 = CNT + 128
LDS_SIZE = CH0 + 4 * CH_REG
WS_CW = 20 << 20
WS_FLG = 28 << 20
C_PA, C_S1, C_R0, C_S2, C_Z, C_W, C_O, C_R1, C_L3, C_T1, C_G0, C_CV, C_G1, C_NONCE, C_TL, C_UL, C_RL, C_L3L = range(18)
SPIN_MAX = 0x80000
TFIRST = os.environ.get('TFIRST', '0') == '1'

def lds_arrive(a, c, vt):
    a(f'''
    v_mov_b32 v{vt}, {CNT+4*c}
    v_mov_b32 v{vt+1}, 1
    s_waitcnt lgkmcnt(0)
    s_mov_b64 exec, 1
    ds_add_u32 v{vt}, v{vt+1}
    s_mov_b64 exec, -1
    ''')

def lds_wait(a, c, n, vt, slp=0, sreg=4):
    L = a.label('spin'); E = a.label('spun')
    a(f'''
    v_mov_b32 v{vt}, {CNT+4*c}
    {L}:
    ds_read_b32 v{vt+1}, v{vt}
    s_waitcnt lgkmcnt(0)
    v_readfirstlane_b32 s{sreg}, v{vt+1}
    s_cmp_ge_u32 s{sreg}, {n}
    s_cbranch_scc1 {E}
    s_sleep {slp}
    s_branch {L}
    {E}:
    ''')

FR = int(os.environ.get('FR', '16'))
def publish(a, c, n, flag_off_sreg, vt, rep=1):
    E = a.label('pub')
    a(f'''
    v_mov_b32 v{vt}, {CNT+4*c}
    v_mov_b32 v{vt+1}, 1
    s_mov_b64 exec, 1
    ds_add_rtn_u32 v{vt+1}, v{vt}, v{vt+1}
    s_mov_b64 exec, -1
    s_waitcnt lgkmcnt(0)
    v_readfirstlane_b32 s4, v{vt+1}
    s_cmp_lg_u32 s4, {n-1}
    s_cbranch_scc1 {E}
    ''')
    lds_wait(a, C_NONCE, 1, vt, slp=1, sreg=5)
    srd(a, 60, P_WS, 1 << 18, WS_FLG)
    a(f'''
    v_lshlrev_b32 v{vt}, 10, v2
    v_mov_b32 v{vt+1}, s5
    s_mov_b64 exec, {(1 << rep) - 1}
    buffer_store_dword v{vt+1}, v{vt}, s[60:63], s{flag_off_sreg} offen
    s_mov_b64 exec, -1
    {E}:
    ''')

NREP = int(os.environ.get('NREP', '32'))
PD = int(os.environ.get('PD', '1'))
def poll_release(a, rel_off, c, vt):
    L = a.label('poll'); E = a.label('polled')
    lds_wait(a, C_NONCE, 1, vt, slp=1, sreg=5)
    srd(a, 60, P_WS, 1 << 18, WS_FLG)
    a(f'''
    v_mov_b32 v{vt}, 0
    s_mov_b32 s6, {SPIN_MAX}
    s_and_b32 s7, s2, {NREP-1}
    s_lshl_b32 s7, s7, 7
    s_add_u32 s7, s7, {rel_off}
    ''')
    for k in range(PD - 1):
        a(f'buffer_load_dword v{64+k}, v{vt}, s[60:63], s7 offen sc1')
        a(f"s_sleep {os.environ.get('PGAP', '4')}")
    a(f'{L}:')
    for k in range(PD):
        a(f'''
        buffer_load_dword v{64+(k+PD-1)%PD}, v{vt}, s[60:63], s7 offen sc1
        s_waitcnt vmcnt({PD-1})
        v_readfirstlane_b32 s4, v{64+k}
        s_cmp_eq_u32 s4, s5
        s_cbranch_scc1 {E}
        ''')
    a(f'''
    s_sub_u32 s6, s6, 1
    s_cmp_lg_u32 s6, 0
    s_cbranch_scc1 {L}
    {E}:
    ''')
    lds_arrive(a, c, vt)
    a('s_waitcnt vmcnt(0)')

def poll_group(a, lane, base_sreg, c, vt):
    L = a.label('poll'); E = a.label('polled')
    lds_wait(a, C_NONCE, 1, vt, slp=1, sreg=5)
    srd(a, 60, P_WS, 1 << 18, WS_FLG)
    a(f'''
    v_and_b32 v{vt}, 15, v{lane}
    v_lshlrev_b32 v{vt}, 4, v{vt}
    s_mov_b32 s6, {SPIN_MAX}
    ''')
    for k in range(PD - 1):
        a(f'buffer_load_dword v{64+k}, v{vt}, s[60:63], s{base_sreg} offen sc1')
        a(f"s_sleep {os.environ.get('PGAP', '4')}")
    a(f'{L}:')
    for k in range(PD):
        a(f'''
        buffer_load_dword v{64+(k+PD-1)%PD}, v{vt}, s[60:63], s{base_sreg} offen sc1
        s_waitcnt vmcnt({PD-1})
        v_cmp_ne_u32 vcc, s5, v{64+k}
        s_cmp_eq_u64 vcc, 0
        s_cbranch_scc1 {E}
        ''')
    a(f'''
    s_sub_u32 s6, s6, 1
    s_cmp_lg_u32 s6, 0
    s_cbranch_scc1 {L}
    {E}:
    ''')
    lds_arrive(a, c, vt)
    a('s_waitcnt vmcnt(0)')

XL2 = os.environ.get('XL2', '0') == '1'
def remap(a):
    if XL2:
        a('''
        s_mov_b32 s43, s2
        s_and_b32 s4, s2, 7
        s_lshl_b32 s4, s4, 5
        s_lshr_b32 s2, s2, 3
        s_or_b32 s2, s2, s4
        ''')

def gen_main(a):
    KN = NAME + '_kernel'
    a.raw('.p2align 8')
    a.raw(f'{KN}:')
    EXIT = '.exit'
    lane = 2
    a(f'''
    s_cmp_ge_u32 s2, 256
    s_cbranch_scc1 {EXIT}
    ''')
    stamp(a, 0)
    a('''
    s_load_dwordx16 s[16:31], s[0:1], 0
    s_load_dwordx8 s[32:39], s[0:1], 64
    s_load_dwordx2 s[40:41], s[0:1], 96
    v_lshrrev_b32 v1, 6, v0
    v_and_b32 v2, 63, v0
    v_readfirstlane_b32 s3, v1
    ''')
    ORDER = os.environ.get('ORDER', 'BTMA')
    if ORDER == 'ATMB':
        a('''
        s_mov_b32 s4, 0x0765ba98
        s_mov_b32 s5, 0x00004321
        s_lshl_b32 s6, s3, 2
        s_lshr_b64 s[4:5], s[4:5], s6
        s_and_b32 s3, s4, 15
        s_lshl_b32 s4, s3, 6
        v_add_u32 v0, s4, v2
        ''')
    a('''
    s_cmp_ge_u32 s3, 8
    s_cbranch_scc1 .role_a
    s_cmp_eq_u32 s3, 7
    s_cbranch_scc1 .role_m
    s_cmp_ge_u32 s3, 5
    s_cbranch_scc1 .role_t
    ''')
    gen_B(a, lane, EXIT)
    gen_T(a, lane)
    gen_M(a, lane)
    gen_A(a, lane)
    a(f'{EXIT}:')
    a('s_endpgm')

def gen_B(a, lane, EXIT):
    a(f'''
    s_setprio 2
    s_mov_b32 s8, s3
    s_and_b32 s15, s3, 3
    s_sub_u32 s9, 8, s8
    s_lshl_b32 s4, s2, 11
    v_lshlrev_b32 v3, 3, v0
    v_add_u32 v7, s4, v3
    ''')
    XL = 16
    F8 = 8
    vC, vS, vnS, vCt, vnSt, tc, ts = 80, 88, 96, 104, 112, 120, 136
    kf, arg, a2, c0, c1, s0, s1_, k5, sg = range(64, 73)
    def tab_init(kf, arg, k5):
        a(f'''
        v_and_b32 v{kf}, 31, v{lane}
        v_cvt_f32_u32 v{kf}, v{kf}
        v_mul_f32 v{kf}, {fhex(1/32)}, v{kf}
        v_lshrrev_b32 v{arg}, 5, v{lane}
        v_cvt_f32_u32 v{arg}, v{arg}
        v_mul_f32 v{arg}, 4.0, v{arg}
        v_mul_f32 v{arg}, v{arg}, v{kf}
        v_mul_f32 v{k5}, {fhex(5.0)}, v{kf}
        ''')
    tab_init(kf, arg, k5)
    a(f'''
    v_and_b32 v{sg}, 16, v{lane}
    v_lshlrev_b32 v{sg}, 11, v{sg}
    v_lshl_or_b32 v{sg}, v{sg}, 16, v{sg}
    ''')
    def tab(ip):
        for e, (cr, sr) in enumerate(((c0, s0), (c1, s1_))):
            i = 2 * ip + e
            a(f'v_cos_f32 v{cr}, v{arg}')
            a(f'v_sin_f32 v{sr}, v{arg}')
            a(f'v_mul_f32 v{a2}, {fhex(1/32)}, v{arg}')
            a(f'v_cos_f32 v{tc+i}, v{a2}')
            a(f'v_sin_f32 v{ts+i}, v{a2}')
            if i != 15:
                a(f'v_add_f32 v{arg}, v{arg}, v{k5 if (i & 3) == 3 else kf}')
        a(f'v_cvt_pk_bf16_f32 v{vC+ip}, v{c0}, v{c1}')
        a(f'v_cvt_pk_bf16_f32 v{vS+ip}, v{s0}, v{s1_}')
        a(f'v_cvt_pk_bf16_f32 v{vnS+ip}, -v{s0}, -v{s1_}')
        a(f'v_xor_b32 v{vCt+ip}, v{sg}, v{vC+ip}')
        a(f'v_xor_b32 v{vnSt+ip}, v{sg}, v{vnS+ip}')
    NPRE = 3
    for ip in range(NPRE): tab(ip)
    a('s_waitcnt lgkmcnt(0)')
    srd(a, 44, P_X, 4 << 20)
    if TFIRST: a('s_barrier')
    a('s_cmp_eq_u32 s3, 4')
    a('s_cbranch_scc1 .b1_noload')
    for s1 in range(8):
        a(f's_mov_b32 s5, {s1*256*2048}')
        a(f'buffer_load_dwordx2 {vr(XL+2*s1,2)}, v7, s[44:47], s5 offen')
    a('.b1_noload:')
    if not TFIRST: a('s_barrier')
    srd(a, 48, P_WS, 4 << 20, WS_Z1)
    gen_dft8_frags(a, lane, F8, 32, True)
    for ip in range(NPRE, 8): tab(ip)
    vlo, vhi, vtr = 164, 165, 154
    gen_z_addr(a, lane, vlo, vhi, 64, 2, 8, 9)
    a(f'''
    v_lshrrev_b32 v64, 5, v{lane}
    v_bfe_u32 v65, v{lane}, 2, 2
    v_lshl_add_u32 v64, v64, 2, v65
    v_lshlrev_b32 v64, 6, v64
    v_bfe_u32 v65, v{lane}, 4, 1
    v_lshl_add_u32 v64, v65, 5, v64
    v_and_b32 v65, 3, v{lane}
    v_lshl_add_u32 v64, v65, 3, v64
    s_lshl_b32 s4, s8, 1
    s_cmp_eq_u32 s8, 4
    s_cselect_b32 s4, 1, s4
    s_lshl_b32 s4, s4, 11
    v_add_u32 v{vtr}, s4, v64
    ''')
    a('s_cmp_eq_u32 s3, 4')
    a('s_cbranch_scc1 .b1_phaseB')
    BO, DD = 32, 48
    a('s_mov_b32 s4, 0x05040100')
    a('s_mov_b32 s5, 0x07060302')
    a('s_waitcnt vmcnt(0)')
    for e in range(4):
        for p in range(4):
            lo, hi = XL + 2 * (2 * p) + (e >> 1), XL + 2 * (2 * p + 1) + (e >> 1)
            a(f'v_perm_b32 v{BO+4*e+p}, v{hi}, v{lo}, s{4 + (e & 1)}')
        for hf in range(2):
            a(f'v_mfma_f32_16x16x32_bf16 {vr(DD+8*e+4*hf,4)}, {vr(F8+4*hf,4)}, {vr(BO+4*e,4)}, 0')
    for q in range(8):
        a(f'v_cvt_pk_bf16_f32 v{XL+2*q}, v{DD+q}, v{DD+8+q}')
        a(f'v_cvt_pk_bf16_f32 v{XL+2*q+1}, v{DD+16+q}, v{DD+24+q}')
        a(f'ds_write_b64 v3, {vr(XL+2*q,2)} offset:{ZB+q*2048}')
    lds_arrive(a, C_PA, 4)
    a('.b1_phaseB:')
    lds_wait(a, C_PA, 4, 4)
    stamp(a, 1)
    AR, AI, DR, DI, T0 = 16, 24, 32, 48, 64
    for c in range(2):
        for jj in range(2):
            a(f'ds_read_b64_tr_b16 {vr(AR+4*c+2*jj,2)}, v{vtr} offset:{c*1024+jj*512}')
    for c in range(2):
        for jj in range(2):
            a(f'ds_read_b64_tr_b16 {vr(AI+4*c+2*jj,2)}, v{vtr} offset:{2048+c*1024+jj*512}')
    a('s_waitcnt lgkmcnt(4)')
    a(f'v_mfma_f32_32x32x16_bf16 {vr(DR,16)}, {vr(AR,4)}, {vr(vC,4)}, 0')
    a(f'v_mfma_f32_32x32x16_bf16 {vr(DI,16)}, {vr(AR,4)}, {vr(vnS,4)}, 0')
    a(f'v_mfma_f32_32x32x16_bf16 {vr(DR,16)}, {vr(AR+4,4)}, {vr(vC+4,4)}, {vr(DR,16)}')
    a(f'v_mfma_f32_32x32x16_bf16 {vr(DI,16)}, {vr(AR+4,4)}, {vr(vnS+4,4)}, {vr(DI,16)}')
    a('s_waitcnt lgkmcnt(0)')
    a('s_cmp_eq_u32 s15, 0')
    a('s_cbranch_scc1 .b1_real1')
    for c in range(2):
        a(f'v_mfma_f32_32x32x16_bf16 {vr(DR,16)}, {vr(AI+4*c,4)}, {vr(vS+4*c,4)}, {vr(DR,16)}')
        a(f'v_mfma_f32_32x32x16_bf16 {vr(DI,16)}, {vr(AI+4*c,4)}, {vr(vC+4*c,4)}, {vr(DI,16)}')
    a('.b1_real1:')
    def tw(ib):
        prs = [2 * ib, 2 * ib + 1]
        for k, ip in enumerate(prs):
            r, i_, c_, s_ = DR + 2 * ip, DI + 2 * ip, tc + 2 * ip, ts + 2 * ip
            a(f'v_pk_mul_f32 {vr(T0+4*(ib&1)+2*k,2)}, {vr(i_,2)}, {vr(s_,2)}')
            a(f'v_pk_mul_f32 {vr(s_,2)}, {vr(r,2)}, {vr(s_,2)}')
        for k, ip in enumerate(prs):
            r, i_, c_, s_ = DR + 2 * ip, DI + 2 * ip, tc + 2 * ip, ts + 2 * ip
            a(f'v_pk_fma_f32 {vr(T0+4*(ib&1)+2*k,2)}, {vr(r,2)}, {vr(c_,2)}, {vr(T0+4*(ib&1)+2*k,2)}')
            a(f'v_pk_fma_f32 {vr(s_,2)}, {vr(i_,2)}, {vr(c_,2)}, {vr(s_,2)} neg_lo:[0,0,1] neg_hi:[0,0,1]')
    def pk(ib):
        for k, ip in enumerate((2 * ib, 2 * ib + 1)):
            t = T0 + 4 * (ib & 1) + 2 * k
            a(f'v_cvt_pk_bf16_f32 v{AR+ip}, v{t}, v{t+1}')
            a(f'v_cvt_pk_bf16_f32 v{AI+ip}, v{ts+2*ip}, v{ts+2*ip+1}')
    tw(0); tw(1); pk(0); pk(1); tw(2); tw(3); pk(2); pk(3)
    for c in range(2):
        z = '0' if c == 0 else None
        a(f'v_mfma_f32_32x32x16_bf16 {vr(DR,16)}, {vr(vC+4*c,4)}, {vr(AR+4*c,4)}, {z or vr(DR,16)}')
        a(f'v_mfma_f32_32x32x16_bf16 {vr(DI,16)}, {vr(vCt+4*c,4)}, {vr(AI+4*c,4)}, {z or vr(DI,16)}')
        a(f'v_mfma_f32_32x32x16_bf16 {vr(DR,16)}, {vr(vS+4*c,4)}, {vr(AI+4*c,4)}, {vr(DR,16)}')
        a(f'v_mfma_f32_32x32x16_bf16 {vr(DI,16)}, {vr(vnSt+4*c,4)}, {vr(AR+4*c,4)}, {vr(DI,16)}')
    a('s_cmp_eq_u32 s15, 0')
    a('s_cbranch_scc0 .b1_cplx2')
    a(f'''
    s_mov_b64 exec, 1
    v_mov_b32 v{DI}, v{DR+8}
    s_mov_b64 exec, -1
    s_branch .b1_lo
    ''')
    O = 64
    a('.b1_cplx2:')
    for i in range(8, 16):
        a(f'v_cvt_pk_bf16_f32 v{O+i}, v{DR+i}, v{DI+i}')
        a(f's_mov_b32 s5, {z_soff(i)}')
        a(f'buffer_store_dword v{O+i}, v{vhi}, s[48:51], s5 offen')
    a('.b1_lo:')
    for i in range(8):
        a(f'v_cvt_pk_bf16_f32 v{O+i}, v{DR+i}, v{DI+i}')
        a(f's_mov_b32 s5, {z_soff(i)}')
        a(f'buffer_store_dword v{O+i}, v{vlo}, s[48:51], s5 offen')
    stamp(a, 2)
    a('s_lshl_b32 s14, s2, 4')
    a('s_add_u32 s14, s14, 65536')
    a('s_cmp_eq_u32 s3, 4')
    a('s_cbranch_scc0 .b2_start')
    a('s_waitcnt vmcnt(0)')
    publish(a, C_S1, 6, 14, 4)
    stamp(a, 3)
    a('s_branch .b3_start')

    a('.b2_start:')
    WL = 144
    WM = 16
    WMr = [16 + k for k in range(16)] + [48 + k for k in range(8)]
    vW0, vW1, vZ, vL = 160, 161, 162, 163
    TM = 8
    a(f'''
    s_and_b32 s12, s2, 7
    s_lshr_b32 s13, s2, 3              ; G
    v_and_b32 v3, 15, v{lane}          ; n
    v_lshrrev_b32 v4, 4, v{lane}       ; g
    ''')
    srd(a, 52, P_WR, 2048 * 1026)
    srd(a, 56, P_WI, 2048 * 1026)
    a('s_waitcnt vmcnt(0)')
    publish(a, C_S1, 6, 14, 10)
    a('s_setprio 1')
    stamp(a, 3)
    a(f'''
    s_lshl_b32 s11, s12, 5
    s_add_u32 s11, s11, s13
    s_lshl_b32 s11, s11, 14
    v_lshlrev_b32 v5, 4, v{lane}
    s_lshl_b32 s4, s3, 12
    s_add_u32 s10, s4, {ZB}
    s_add_u32 s11, s11, s4
    v_add_u32 v{vL}, s10, v5
    v_bfe_u32 v15, v3, 2, 2
    v_add_u32 v15, s3, v15
    v_and_b32 v15, 3, v15
    v_lshlrev_b32 v15, 4, v15
    v_lshl_add_u32 v15, v3, 6, v15
    v_lshl_add_u32 v15, v4, 12, v15
    v_add_u32 v{vZ}, {ZB}, v15
    ''')
    B1R, B1I, A2R, A2I, B3R, B3I, A4R, A4I = 16, 20, 24, 28, 32, 36, 40, 44
    T1C, T1S, T3C, T3S = 48, 52, 56, 60
    nf, idx, q1, p_, c_, s_, p2, c2, s2_, p3, c3, s3_, k1_, k2_ = range(64, 78)
    scale = 2.0 / (2048 * 1024)
    a(f'''
    v_cvt_f32_u32 v{nf}, v3
    v_lshlrev_b32 v{idx}, 2, v4
    v_cvt_f32_u32 v{idx}, v{idx}
    v_cvt_f32_u32 v{k1_}, s12
    v_mul_f32 v{k1_}, {fhex(1/128)}, v{k1_}
    v_mul_f32 v{k2_}, {fhex(1/16)}, v{nf}
    v_add_f32 v{q1}, v{k2_}, v{k1_}
    v_mul_f32 v{k1_}, v{k1_}, v{nf}
    ''')
    for e in range(4):
        a(f'''
        v_mul_f32 v{p_}, v{idx}, v{q1}
        v_mul_f32 v{p2}, v{idx}, v{k2_}
        v_cos_f32 v{c_}, v{p_}
        v_sin_f32 v{s_}, v{p_}
        v_add_f32 v{p3}, v{p2}, v{k1_}
        v_cos_f32 v{c2}, v{p2}
        v_sin_f32 v{s2_}, v{p2}
        v_mul_f32 v{p_}, {fhex(1/16)}, v{p_}
        v_cos_f32 v{c3}, v{p3}
        v_sin_f32 v{s3_}, v{p3}
        v_mul_f32 v{p3}, {fhex(1/16)}, v{p3}
        v_cvt_pk_bf16_f32 v{B1R+e}, v{c_}, v{s_}
        v_cvt_pk_bf16_f32 v{B1I+e}, -v{s_}, v{c_}
        v_cos_f32 v{c_}, v{p_}
        v_sin_f32 v{s_}, v{p_}
        v_cvt_pk_bf16_f32 v{A2R+e}, v{c2}, v{s2_}
        v_cvt_pk_bf16_f32 v{A2I+e}, -v{s2_}, v{c2}
        v_cvt_pk_bf16_f32 v{B3R+e}, v{c2}, -v{s2_}
        v_cvt_pk_bf16_f32 v{B3I+e}, v{s2_}, v{c2}
        v_cos_f32 v{T3C+e}, v{p3}
        v_sin_f32 v{T3S+e}, v{p3}
        v_cvt_pk_bf16_f32 v{A4R+e}, v{c3}, -v{s3_}
        v_cvt_pk_bf16_f32 v{A4I+e}, v{s3_}, v{c3}
        v_mul_f32 v{T1C+e}, {fhex(scale)}, v{c_}
        v_mul_f32 v{T1S+e}, {fhex(scale)}, v{s_}
        v_add_f32 v{idx}, 1.0, v{idx}
        ''')
    X = 64; D = 80; WF = 112
    CWR = 144
    a(f'''
    s_mov_b32 s7, 0xffff0000
    s_mov_b32 s68, 0
    s_cmp_ge_u32 s12, 5
    s_cbranch_scc1 .b2_sp_hi
    s_or_b32 s4, s13, s3
    s_cmp_lg_u32 s4, 0
    s_cbranch_scc1 .b2_sp_done
    s_and_b32 s4, s12, 3
    s_cmp_eq_u32 s4, 0
    s_cselect_b32 s68, 3, 1
    s_branch .b2_sp_done
    .b2_sp_hi:
    s_cmp_lg_u32 s13, 31
    s_cbranch_scc1 .b2_sp_done
    s_cmp_lg_u32 s3, 3
    s_cbranch_scc1 .b2_sp_done
    s_mov_b32 s68, 2
    .b2_sp_done:
    ''')
    srd(a, 44, P_WS, 4 << 20, WS_Z1)
    srd(a, 48, P_WS, 4 << 20, WS_Z2)
    srd(a, 52, P_WS, 16384, WS_CW)
    a('s_mov_b32 m0, s10')
    stamp(a, 4)
    lds_wait(a, C_R0, 1, 10, slp=1)
    a('s_setprio 2')
    stamp(a, 5)
    for p in range(4):
        a(f'buffer_load_dwordx4 v5, s[44:47], s11 offen offset:{p*1024} sc1 lds')
    a('s_cmp_eq_u32 s68, 0')
    a('s_cbranch_scc1 .b2_nocw')
    a(f'''
    v_lshl_add_u32 v64, v4, 6, v3
    s_cmp_eq_u32 s12, 0
    s_cselect_b32 s4, 1, 0
    s_add_u32 s4, s4, 255
    v_sub_u32 v65, s4, v64
    s_sub_u32 s4, 8, s12
    s_and_b32 s4, s4, 7
    s_lshl_b32 s4, s4, 10
    s_add_u32 s5, s4, 8192
    s_cmp_eq_u32 s68, 2
    s_cselect_b32 s4, s5, s4
    s_lshl_b32 s6, s12, 10
    s_add_u32 s6, s6, 8192
    v_lshlrev_b32 v64, 2, v64
    ''')
    for i in range(4):
        a(f'''
        v_subrev_u32 v66, {16*i}, v65
        v_and_b32 v66, 255, v66
        v_lshlrev_b32 v66, 2, v66
        buffer_load_dword v{CWR+i}, v66, s[52:55], s4 offen sc1
        buffer_load_dword v{CWR+4+i}, v64, s[52:55], s6 offen offset:{64*i} sc1
        buffer_load_dword v{CWR+8+i}, v66, s[52:55], s5 offen sc1
        ''')
    a('.b2_nocw:')
    lds_wait(a, C_W, 1, 10)
    WLL = 80
    for i in range(4):
        a(f'ds_read_b128 {vr(WLL+4*i,4)}, v{vZ} offset:{WB-ZB+1024*i}')
    for i in range(4):
        a(f's_waitcnt lgkmcnt({3-i})')
        for part in range(2):
            for cp in range(2):
                src = WLL + 4 * i + 2 * part + cp
                a(f'v_lshlrev_b32 v{WF+8*(2*cp)+4*part+i}, 16, v{src}')
                a(f'v_and_b32 v{WF+8*(2*cp+1)+4*part+i}, s7, v{src}')
    a('s_waitcnt vmcnt(0)')
    lds_arrive(a, C_Z, 10)
    lds_wait(a, C_Z, 4, 10)
    stamp(a, 6)
    for e in range(4):
        a(f'ds_read_b128 {vr(D+4*e,4)}, v{vZ} offset:{1024*e}')
    for e in range(4):
        a(f's_waitcnt lgkmcnt({3-e})')
        for c in range(4):
            a(f'v_mov_b32 v{X+4*c+e}, v{D+4*e+c}')
    def stage(Mr, Mi, data_is_A):
        for c in range(4):
            for M, off in ((Mr, 0), (Mi, 4)):
                if data_is_A:
                    a(f'v_mfma_f32_16x16x32_bf16 {vr(D+8*c+off,4)}, {vr(X+4*c,4)}, {vr(M,4)}, 0')
                else:
                    a(f'v_mfma_f32_16x16x32_bf16 {vr(D+8*c+off,4)}, {vr(M,4)}, {vr(X+4*c,4)}, 0')
    def mulpack(cr_of, ci_of, conj):
        k = 0
        for c in range(4):
            for hp in range(2):
                t = TM + 4 * (k & 1); k += 1
                cmul_sc(a, t, t + 2, D + 8 * c + 2 * hp, D + 8 * c + 4 + 2 * hp, cr_of(c) + 2 * hp, ci_of(c) + 2 * hp, conj)
                a(f'v_cvt_pk_bf16_f32 v{X+4*c+2*hp}, v{t}, v{t+2}')
                a(f'v_cvt_pk_bf16_f32 v{X+4*c+2*hp+1}, v{t+1}, v{t+3}')
    stage(B1R, B1I, True)
    mulpack(lambda c: T1C, lambda c: T1S, True)
    stage(A2R, A2I, False)
    a('s_cmp_eq_u32 s68, 0')
    a('s_cbranch_scc1 .b2_noreal')
    a('s_cmp_eq_u32 s68, 2')
    a('s_cbranch_scc1 .b2_patch_hi')
    def patch(c):
        for i in range(4):
            a(f'v_lshlrev_b32 v{TM}, 16, v{CWR+i}')
            a(f'v_and_b32 v{TM+1}, s7, v{CWR+i}')
            a(f'v_add_f32 v{WF+8*c+i}, v{WF+8*c+i}, v{TM}')
            a(f'v_sub_f32 v{WF+8*c+4+i}, v{WF+8*c+4+i}, v{TM+1}')
        for i in range(8):
            a(f'v_mul_f32 v{WF+8*c+i}, 0.5, v{WF+8*c+i}')
    patch(0)
    a('s_cmp_eq_u32 s68, 1')
    a('s_cbranch_scc1 .b2_noreal')
    ZM, PQ = 16, 24
    QQ = 48
    a(f'''
    v_lshl_add_u32 v{TM}, v4, 6, v3
    s_lshr_b32 s4, s12, 2
    s_sub_u32 s4, 256, s4
    v_sub_u32 v{TM+1}, s4, v{TM}
    v_lshlrev_b32 v{TM}, 2, v{TM}
    v_add_u32 v{TM}, {SCR}, v{TM}
    ''')
    for i in range(4):
        a(f'ds_write_b32 v{TM}, v{D+i} offset:{64*i}')
        a(f'ds_write_b32 v{TM}, v{D+4+i} offset:{1024+64*i}')
    for i in range(4):
        a(f'''
        v_subrev_u32 v{TM+2}, {16*i}, v{TM+1}
        v_and_b32 v{TM+2}, 255, v{TM+2}
        v_lshlrev_b32 v{TM+2}, 2, v{TM+2}
        v_add_u32 v{TM+2}, {SCR}, v{TM+2}
        ds_read_b32 v{ZM+i}, v{TM+2}
        ds_read_b32 v{ZM+4+i}, v{TM+2} offset:1024
        ''')
    for i in range(4):
        a(f'''
        v_lshlrev_b32 v{TM+4}, 16, v{CWR+4+i}
        v_lshlrev_b32 v{TM+5}, 16, v{CWR+8+i}
        v_and_b32 v{TM+6}, s7, v{CWR+4+i}
        v_and_b32 v{TM+7}, s7, v{CWR+8+i}
        v_add_f32 v{TM+4}, v{TM+4}, v{TM+5}
        v_sub_f32 v{TM+6}, v{TM+6}, v{TM+7}
        v_mul_f32 v{TM+4}, {fhex(0.125)}, v{TM+4}
        v_mul_f32 v{TM+6}, {fhex(0.125)}, v{TM+6}
        v_mul_f32 v{WF+i}, {fhex(0.25)}, v{WF+i}
        v_mul_f32 v{WF+4+i}, {fhex(0.25)}, v{WF+4+i}
        v_add_f32 v{PQ+i}, v{WF+i}, v{TM+4}
        v_add_f32 v{PQ+4+i}, v{WF+4+i}, v{TM+6}
        v_sub_f32 v{QQ+i}, v{WF+i}, v{TM+4}
        v_sub_f32 v{QQ+4+i}, v{WF+4+i}, v{TM+6}
        v_mov_b32 v{WF+i}, 1.0
        v_mov_b32 v{WF+4+i}, 0
        ''')
    a('s_waitcnt lgkmcnt(0)')
    for i in range(4):
        zr, zi, mr, mi = D + i, D + 4 + i, ZM + i, ZM + 4 + i
        pr, pi, qr, qi = PQ + i, PQ + 4 + i, QQ + i, QQ + 4 + i
        a(f'''
        v_mul_f32 v{TM}, v{zr}, v{pr}
        v_mul_f32 v{TM+1}, v{zr}, v{pi}
        v_fma_f32 v{TM}, -v{zi}, v{pi}, v{TM}
        v_fmac_f32 v{TM+1}, v{zi}, v{pr}
        v_fmac_f32 v{TM}, v{mr}, v{qr}
        v_fmac_f32 v{TM+1}, v{mr}, v{qi}
        v_fma_f32 v{zr}, v{mi}, v{qi}, v{TM}
        v_fma_f32 v{zi}, -v{mi}, v{qr}, v{TM+1}
        ''')
    a('s_branch .b2_noreal')
    a('.b2_patch_hi:')
    patch(3)
    a('.b2_noreal:')
    mulpack(lambda c: WF + 8 * c, lambda c: WF + 8 * c + 4, False)
    stage(B3R, B3I, True)
    mulpack(lambda c: T3C, lambda c: T3S, False)
    stage(A4R, A4I, False)
    for i in range(4):
        for c in range(4):
            a(f'v_cvt_pk_bf16_f32 v{X+4*i+c}, v{D+8*c+i}, v{D+8*c+4+i}')
        a(f'ds_write_b128 v{vZ}, {vr(X+4*i,4)} offset:{1024*i}')
    lds_arrive(a, C_O, 10)
    lds_wait(a, C_O, 4, 10)
    stamp(a, 7)
    for p in range(4):
        a(f'ds_read_b128 {vr(X+4*p,4)}, v{vL} offset:{1024*p}')
    a(f'''
    v_lshrrev_b32 v8, 2, v{lane}
    v_lshlrev_b32 v8, 14, v8
    v_and_b32 v9, 3, v{lane}
    v_lshl_add_u32 v8, v9, 4, v8
    s_lshl_b32 s4, s12, 5
    s_add_u32 s4, s4, s13
    s_lshl_b32 s4, s4, 6
    s_lshl_b32 s5, s3, 20
    s_add_u32 s4, s4, s5
    ''')
    for p in range(4):
        a(f's_waitcnt lgkmcnt({3-p})')
        a(f'buffer_store_dwordx4 {vr(X+4*p,4)}, v8, s[48:51], s4 offen')
        if p < 3: a(f's_add_u32 s4, s4, {16*16384}')
    a('s_add_u32 s14, s14, 65536')
    a('s_waitcnt vmcnt(0)')
    publish(a, C_S2, 4, 14, 10)
    stamp(a, 8)

    a('.b3_start:')
    a('s_setprio 0')
    X = 16
    G8 = 8
    MR, MI, NR, NI, tc, ts = 80, 96, 112 - 8, 120 - 8, 128, 144
    kf, arg, a2, c0, s0, k5 = range(74, 80)
    tab_init(kf, arg, k5)
    for i in range(16):
        a(f'v_cos_f32 v{c0}, v{arg}')
        a(f'v_sin_f32 v{s0}, v{arg}')
        a(f'v_mul_f32 v{a2}, {fhex(1/32)}, v{arg}')
        a(f'v_cos_f32 v{tc+i}, v{a2}')
        a(f'v_sin_f32 v{ts+i}, v{a2}')
        if i != 15:
            a(f'v_add_f32 v{arg}, v{arg}, v{k5 if (i & 3) == 3 else kf}')
        a(f'v_cvt_pk_bf16_f32 v{MR+i}, v{c0}, -v{s0}')
        a(f'v_cvt_pk_bf16_f32 v{MI+i}, v{s0}, v{c0}')
        if i >= 8:
            a(f'v_cvt_pk_bf16_f32 v{NR+i}, v{c0}, v{s0}')
            a(f'v_cvt_pk_bf16_f32 v{NI+i}, v{s0}, -v{c0}')
    gen_dft8_frags(a, lane, G8, 64, False)
    a(f'''
    v_and_b32 v6, 31, v{lane}
    v_lshlrev_b32 v6, 2, v6
    v_lshrrev_b32 v7, 5, v{lane}
    v_lshl_add_u32 v6, v7, 9, v6
    s_lshl_b32 s4, s8, 12
    s_cmp_eq_u32 s8, 4
    s_cselect_b32 s4, 2, s4
    v_add_u32 v6, s4, v6
    ''')
    srd(a, 44, P_WS, 4 << 20, WS_Z2)
    srd(a, 48, P_OUT, 8 << 20)
    a(f'''
    s_lshl_b32 s10, s8, 12
    s_cmp_eq_u32 s8, 4
    s_cselect_b32 s10, 2048, s10
    s_add_u32 s10, s10, {ZB}
    s_lshl_b32 s4, s2, 14
    s_lshl_b32 s11, s8, 11
    s_add_u32 s11, s11, s4
    s_lshl_b32 s12, s9, 11
    s_add_u32 s12, s12, s4
    v_lshlrev_b32 v3, 4, v{lane}
    s_lshr_b32 s4, s2, 2
    ''')
    for which, dst in ((0, vlo), (1, vhi)):
        a(f'v_and_b32 v64, 31, v{lane}')
        a(f'v_lshrrev_b32 v65, 5, v{lane}')
        if which:
            a('v_sub_u32 v64, 31, v64')
            a('v_sub_u32 v65, 1, v65')
        a(f'''
        v_bfe_u32 v66, v64, 2, 2
        v_add_u32 v66, s4, v66
        v_and_b32 v66, 3, v66
        v_lshlrev_b32 v66, 4, v66
        v_and_b32 v67, 3, v64
        v_lshl_add_u32 v66, v67, 2, v66
        v_lshrrev_b32 v67, 4, v64
        v_lshl_add_u32 v66, v67, 6, v66
        v_lshl_add_u32 v66, v65, 9, v66
        v_add_u32 v{dst}, s10, v66
        ''')
    a(f'v_add_u32 v{vhi}, 2048, v{vhi}')
    a('s_cmp_eq_u32 s3, 4')
    a('s_cbranch_scc0 .b3_wait')
    a('s_setprio 2')
    poll_release(a, 16384, C_R0, 4)
    stamp(a, 4)
    lds_wait(a, C_S2, 4, 4, slp=4)
    poll_release(a, 24576, C_R1, 4)
    a('.b3_wait:')
    stamp(a, 9)
    lds_wait(a, C_R1, 1, 4, slp=1)
    a('s_setprio 2')
    stamp(a, 10)
    a('s_mov_b32 m0, s10')
    a('buffer_load_dwordx4 v3, s[44:47], s11 offen sc1 lds')
    a('buffer_load_dwordx4 v3, s[44:47], s11 offen offset:1024 sc1 lds')
    a('s_cmp_eq_u32 s15, 0')
    a('s_cbranch_scc1 .b3_real_noload')
    a('s_add_u32 s4, s10, 2048')
    a('s_mov_b32 m0, s4')
    a('buffer_load_dwordx4 v3, s[44:47], s12 offen sc1 lds')
    a('buffer_load_dwordx4 v3, s[44:47], s12 offen offset:1024 sc1 lds')
    a('.b3_real_noload:')
    lds_arrive(a, C_L3L, 4)
    DR, DI, T0 = 32, 48, 64
    a('s_waitcnt vmcnt(0)')
    for i in range(16):
        a(f'ds_read_b32 v{X+i}, v{vlo if i < 8 else vhi} offset:{z_soff(i) >> 8}')
    a('s_waitcnt lgkmcnt(0)')
    stamp(a, 11)
    a('s_cmp_eq_u32 s15, 0')
    a('s_cbranch_scc0 .b3_cplx1')
    for i in range(8, 16): a(f'v_mov_b32 v{X+i}, 0')
    a(f'''
    s_mov_b64 exec, 1
    v_lshrrev_b32 v{X+8}, 16, v{X}
    s_mov_b64 exec, -1
    ''')
    lds_arrive(a, C_RL, 4)
    a('.b3_cplx1:')
    for c in range(4):
        br, bi = (MR + 4 * c, MI + 4 * c) if c < 2 else (NR + 4 * c, NI + 4 * c)
        a(f'v_mfma_f32_32x32x16_bf16 {vr(DR,16)}, {vr(X+4*c,4)}, {vr(br,4)}, ' + ('0' if c == 0 else vr(DR, 16)))
        a(f'v_mfma_f32_32x32x16_bf16 {vr(DI,16)}, {vr(X+4*c,4)}, {vr(bi,4)}, ' + ('0' if c == 0 else vr(DI, 16)))
    for ib in range(4):
        for k in range(2):
            ip = 2 * ib + k; t = T0 + 8 * (ib & 1) + 4 * k
            a(f'v_pk_mul_f32 {vr(t,2)}, {vr(DI+2*ip,2)}, {vr(ts+2*ip,2)}')
            a(f'v_pk_mul_f32 {vr(t+2,2)}, {vr(DR+2*ip,2)}, {vr(ts+2*ip,2)}')
        for k in range(2):
            ip = 2 * ib + k; t = T0 + 8 * (ib & 1) + 4 * k
            a(f'v_pk_fma_f32 {vr(t,2)}, {vr(DR+2*ip,2)}, {vr(tc+2*ip,2)}, {vr(t,2)} neg_lo:[0,0,1] neg_hi:[0,0,1]')
            a(f'v_pk_fma_f32 {vr(t+2,2)}, {vr(DI+2*ip,2)}, {vr(tc+2*ip,2)}, {vr(t+2,2)}')
        for k in range(2):
            ip = 2 * ib + k; t = T0 + 8 * (ib & 1) + 4 * k
            a(f'v_cvt_pk_bf16_f32 v{X+2*ip}, v{t}, v{t+2}')
            a(f'v_cvt_pk_bf16_f32 v{X+2*ip+1}, v{t+1}, v{t+3}')
    for c in range(4):
        a(f'v_mfma_f32_32x32x16_bf16 {vr(DR,16)}, {vr(MR+4*c,4)}, {vr(X+4*c,4)}, ' + ('0' if c == 0 else vr(DR, 16)))
    a('s_cmp_eq_u32 s15, 0')
    a('s_cbranch_scc1 .b3_real2')
    for c in range(4):
        a(f'v_mfma_f32_32x32x16_bf16 {vr(DI,16)}, {vr(MI+4*c,4)}, {vr(X+4*c,4)}, ' + ('0' if c == 0 else vr(DI, 16)))
    for i in range(16):
        a(f'v_cvt_pk_bf16_f32 v{T0+i}, v{DR+i}, v{DI+i}')
        a(f'ds_write_b32 v6, v{T0+i} offset:{ZB+(8*(i>>2)+(i&3))*128}')
    a('s_branch .b3_join')
    a('.b3_real2:')
    lds_wait(a, C_RL, 2, 4)
    for ip in range(8):
        i = 2 * ip
        a(f'v_cvt_pk_bf16_f32 v{T0+ip}, v{DR+i}, v{DR+i+1}')
        a(f'ds_write_b16 v6, v{T0+ip} offset:{ZB+(8*(i>>2)+(i&3))*128}')
        a(f'ds_write_b16_d16_hi v6, v{T0+ip} offset:{ZB+(8*(i>>2)+(i&3)+1)*128}')
    a('.b3_join:')
    lds_arrive(a, C_L3, 4)
    a('s_cmp_eq_u32 s3, 4')
    a(f's_cbranch_scc1 .b3_end')
    lds_wait(a, C_L3, 5, 4)
    a('v_lshlrev_b32 v6, 4, v0')
    DD = 32
    for p in range(4):
        a(f'ds_read_b128 {vr(64+4*p,4)}, v6 offset:{ZB+4096*p}')
    a(f'''
    s_lshl_b32 s4, s2, 12
    s_add_u32 s4, s4, 2048
    v_lshlrev_b32 v7, 3, v0
    v_add_u32 v7, s4, v7
    ''')
    for p in range(4):
        a(f's_waitcnt lgkmcnt({3-p})')
        for e in range(4):
            a(f'v_mov_b32 v{X+4*e+p}, v{64+4*p+e}')
    for e in range(4):
        for hf in range(2):
            a(f'v_mfma_f32_16x16x32_bf16 {vr(DD+8*e+4*hf,4)}, {vr(G8+4*hf,4)}, {vr(X+4*e,4)}, 0')
    a.raw(';OUT_ON')
    for s1 in range(8):
        a(f'v_cvt_pk_bf16_f32 v{64+2*s1}, v{DD+s1}, v{DD+8+s1}')
        a(f'v_cvt_pk_bf16_f32 v{65+2*s1}, v{DD+16+s1}, v{DD+24+s1}')
        a(f's_mov_b32 s5, {s1*256*4096}')
        a(f'buffer_store_dwordx2 {vr(64+2*s1,2)}, v7, s[48:51], s5 offen')
    a.raw(';PLAIN_OFF')
    a('.b3_end:')
    stamp(a, 12)
    stamp_flush(a, 0, 13)
    if DIAG and os.environ.get('ENC'):
        k = int(os.environ['ENC'])
        a(f'''
        s_cmp_lg_u32 s2, {os.environ.get('ENCWG', '37')}
        s_cbranch_scc1 .enc_end
        s_cmp_lg_u32 s3, 1
        s_cbranch_scc1 .enc_end
        s_sub_u32 s4, s{72+2*k}, s72
        s_lshl_b32 s4, s4, 3
        s_and_b32 s4, s4, 0xffff
        s_memrealtime s[6:7]
        s_waitcnt lgkmcnt(0)
        .enc_loop:
        s_memrealtime s[8:9]
        s_waitcnt lgkmcnt(0)
        s_sub_u32 s5, s8, s6
        s_cmp_lt_u32 s5, s4
        s_cbranch_scc1 .enc_loop
        .enc_end:
        ''')
    a('s_endpgm')

def gen_T(a, lane):
    a('.role_t:')
    remap(a)
    a(f'''
    s_setprio 2
    s_sub_u32 s8, s3, 5
    s_and_b32 s9, s2, 15
    s_lshl_b32 s9, s9, 1
    s_add_u32 s9, s9, s8
    s_lshl_b32 s9, s9, 4
    s_lshr_b32 s11, s2, 4
    s_add_u32 s9, s9, s11
    s_mul_i32 s10, s8, {64*144}
    s_add_u32 s10, s10, {TRB}
    s_lshl_b32 s14, s2, 4
    s_add_u32 s14, s14, 8192
    s_lshl_b32 s15, s11, 8
    s_add_u32 s15, s15, 8192
    s_waitcnt lgkmcnt(0)
    ''')
    if not TFIRST: a('s_barrier')
    srd(a, 44, P_U, 4 << 20)
    srd(a, 48, P_WS, 1024 * UP, WS_UT)
    TP = gen_transposer(a, lane, 9, 44, 48, 10, 2048, UP, 'u')
    if TFIRST: a('s_barrier')
    a.raw(';PLAIN_ON')
    gen_transposer_tail(a, lane, 48, 10, UP, 64, TP)
    stamp(a, 1)
    a('s_waitcnt vmcnt(0)')
    publish(a, C_T1, 2, 14, 10)
    a.raw(';PLAIN_OFF')
    stamp(a, 2)
    a('s_cmp_eq_u32 s8, 0')
    a('s_cbranch_scc0 .t_second')
    poll_group(a, lane, 15, C_G0, 10)
    stamp(a, 3)
    lds_wait(a, C_CV, 4, 10, slp=4)
    a('s_add_u32 s15, s15, 4096')
    poll_group(a, lane, 15, C_G1, 10)
    a('s_branch .t_third')
    a('.t_second:')
    a(f's_cmp_eq_u32 s2, {M0}')
    a('s_cbranch_scc0 .t_third')
    lds_wait(a, C_NONCE, 1, 10, slp=1, sreg=5)
    lds_wait(a, C_S1, 6, 10, slp=1)
    master(a, lane, '0', 65536, 16384)
    a('.t_third:')
    lds_wait(a, C_G1, 1, 10, slp=2)
    lds_wait(a, C_O, 4, 10, slp=1)
    if os.environ.get('T3WAIT', '0') == '1':
        lds_wait(a, C_L3L, 5, 10, slp=1)
    stamp(a, 4)
    srd(a, 44, P_WS, 4 << 20, WS_YT)
    srd(a, 48, P_OUT, 8 << 20)
    n0 = len(a.items)
    TP = gen_transposer(a, lane, 9, 44, 48, 10, 4096, 4096, 'y')
    from asmlib import Ins
    for k in range(n0, len(a.items)):
        kind, it = a.items[k]
        if kind == 'i' and it.op.startswith('buffer_load'):
            a.items[k] = ('i', Ins(it.text + ' sc1'))
    gen_transposer_tail(a, lane, 48, 10, 4096, 0, TP, ymode=True)
    stamp(a, 5)
    stamp_flush(a, 0, 6)
    a('s_endpgm')

def master(a, lane, tag, flag_off, rel_off):
    srd(a, 60, P_WS, 1 << 18, WS_FLG)
    a(f'v_lshlrev_b32 v6, 4, v{lane}')
    a(f'v_lshlrev_b32 v4, 7, v{lane}')
    a(f's_mov_b32 s6, {SPIN_MAX}')
    a(f's_mov_b32 s7, {flag_off}')
    def pl(k):
        for i in range(4):
            a(f'buffer_load_dword v{64+4*k+i}, v6, s[60:63], s7 offen offset:{1024*i} sc1')
    for k in range(PD - 1):
        pl(k)
        a(f"s_sleep {os.environ.get('PGAP', '4')}")
    a(f'.m_loop{tag}:')
    for k in range(PD):
        pl((k + PD - 1) % PD)
        b = 64 + 4 * k
        a(f'''
        s_waitcnt vmcnt({4*(PD-1)})
        v_xor_b32 v8, s5, v{b}
        v_xor_b32 v9, s5, v{b+1}
        v_xor_b32 v10, s5, v{b+2}
        v_xor_b32 v11, s5, v{b+3}
        v_or_b32 v8, v8, v9
        v_or3_b32 v8, v8, v10, v11
        v_cmp_ne_u32 vcc, 0, v8
        s_cmp_eq_u64 vcc, 0
        s_cbranch_scc1 .m_rel{tag}
        ''')
    a(f'''
    s_sub_u32 s6, s6, 1
    s_cmp_lg_u32 s6, 0
    s_cbranch_scc1 .m_loop{tag}
    .m_rel{tag}:
    v_mov_b32 v8, s5
    s_mov_b32 s7, {rel_off}
    s_mov_b64 exec, {(1 << NREP) - 1 if NREP < 64 else -1}
    buffer_store_dword v8, v4, s[60:63], s7 offen
    s_mov_b64 exec, -1
    s_waitcnt vmcnt(0)
    ''')

M0, M1 = 74, 139

def gen_M(a, lane):
    a('.role_m:')
    if os.environ.get('CODEPF', '1') == '1':
        KN = NAME + '_kernel'
        a(f'''
        s_getpc_b64 s[6:7]
        .m_pc:
        s_sub_u32 s6, s6, .m_pc-{KN}
        s_subb_u32 s7, s7, 0
        v_lshlrev_b32 v24, {os.environ.get('CPSH', '7')}, v{lane}
        v_mov_b32 v25, s7
        v_add_co_u32 v24, vcc, s6, v24
        v_addc_co_u32 v25, vcc, 0, v25, vcc
        ''')
        step = 64 << int(os.environ.get('CPSH', '7'))
        n = (0x5e00 + step - 1) // step
        for k in range(n):
            if k == n - 1:
                rem = (0x5d00 - k * step) // (step // 64)
                if rem < 64: a(f's_lshr_b64 exec, -1, {64 - rem}')
            a(f'global_load_dword v{26+k}, v[24:25], off')
            if k < n - 1:
                a(f'v_add_co_u32 v24, vcc, {step:#x}, v24')
                a('v_addc_co_u32 v25, vcc, 0, v25, vcc')
        a('s_mov_b64 exec, -1')
    a(f'''
    s_setprio 3
    v_lshlrev_b32 v4, 4, v{lane}
    v_add_u32 v4, {CNT}, v4
    v_mov_b32 v8, 0
    v_mov_b32 v9, 0
    v_mov_b32 v10, 0
    v_mov_b32 v11, 0
    s_mov_b64 exec, 0xff
    ds_write_b128 v4, v[8:11]
    s_mov_b64 exec, -1
    s_memrealtime s[8:9]
    s_waitcnt lgkmcnt(0)
    ''')
    srd(a, 64, P_DBG, 256)
    a(f'''
    v_mov_b32 v4, 0
    s_or_b32 s5, s8, 1
    s_cmp_lg_u32 s2, 0
    s_cbranch_scc1 .m_nostore
    v_mov_b32 v5, s5
    s_mov_b64 exec, 1
    buffer_store_dword v5, v4, s[64:67], 0 offen
    s_mov_b64 exec, -1
    .m_nostore:
    ''')
    if os.environ.get('TLB', '1') == '1':
        srd(a, 44, P_WS, 32 << 20)
        srd(a, 48, P_OUT, 8 << 20)
        a(f'''
        v_lshlrev_b32 v20, 19, v{lane}
        v_lshlrev_b32 v21, 17, v{lane}
        buffer_load_dword v22, v20, s[44:47], 0 offen sc1
        buffer_load_dword v23, v21, s[48:51], 0 offen sc1
        ''')
        if os.environ.get('TLBW', '1') == '1':
            srd(a, 52, P_WR, 2048 * 1026)
            srd(a, 56, P_WI, 2048 * 1026)
            a('''
            s_mov_b64 exec, 0xffff
            buffer_load_dword v18, v21, s[52:55], 0 offen
            buffer_load_dword v19, v21, s[56:59], 0 offen
            s_mov_b64 exec, -1
            ''')
    a(f'''
    s_barrier
    s_cmp_eq_u32 s2, 0
    s_cbranch_scc1 .m_got
    s_mov_b32 s6, {SPIN_MAX}
    .m_poll:
    buffer_load_dword v5, v4, s[64:67], 0 offen sc1
    s_waitcnt vmcnt(0)
    v_readfirstlane_b32 s5, v5
    s_cmp_lg_u32 s5, 0
    s_cbranch_scc1 .m_got
    s_sub_u32 s6, s6, 1
    s_cmp_lg_u32 s6, 0
    s_cbranch_scc1 .m_poll
    s_mov_b32 s5, 1
    .m_got:
    v_mov_b32 v6, {CNT+4*C_NONCE}
    v_mov_b32 v5, s5
    ds_write_b32 v6, v5
    ''')
    stamp(a, 1)
    srd(a, 52, P_WR, 2048 * 1026)
    srd(a, 56, P_WI, 2048 * 1026)
    a(f'''
    s_setprio 1
    s_and_b32 s12, s2, 7
    s_lshr_b32 s13, s2, 3
    ''')
    srd(a, 48, P_WS, 16384, WS_CW)
    a(f'''
    v_and_b32 v7, 7, v{lane}
    v_mul_u32_u24 v8, 1026, v7
    v_bfe_u32 v9, v{lane}, 3, 1
    v_lshl_add_u32 v8, v9, 10, v8
    s_mul_i32 s4, s2, 8208
    v_and_b32 v9, 15, v{lane}
    v_lshlrev_b32 v9, 10, v9
    s_lshl_b32 s7, s2, 2
    s_lshl_b32 s14, s2, 4
    s_add_u32 s14, s14, 65536
    s_mov_b64 exec, 0xffff
    buffer_load_ushort v20, v8, s[52:55], s4 offen
    buffer_load_ushort v21, v8, s[56:59], s4 offen
    s_waitcnt vmcnt(0)
    v_lshl_or_b32 v20, v21, 16, v20
    buffer_store_dword v20, v9, s[48:51], s7 offen
    s_mov_b64 exec, -1
    s_waitcnt vmcnt(0)
    s_mov_b32 s69, s5
    ''')
    publish(a, C_S1, 6, 14, 12)
    a('s_mov_b32 s5, s69')
    if os.environ.get('WPF', '0') == '1':
        a(f'''
        v_lshrrev_b32 v7, 3, v{lane}
        v_mul_u32_u24 v7, 8208, v7
        v_and_b32 v8, 7, v{lane}
        v_lshl_add_u32 v7, v8, 7, v7
        s_mul_i32 s4, s13, {8*8208}
        s_mul_i32 s7, s12, 1026
        s_add_u32 s4, s4, s7
        s_and_b32 s4, s4, 0xfffffffc
        ''')
        lds_wait(a, C_PA, 4, 12, slp=2, sreg=7)
        a(f'''
        buffer_load_dword v20, v7, s[52:55], s4 offen
        buffer_load_dword v21, v7, s[56:59], s4 offen
        buffer_load_dword v22, v7, s[52:55], s4 offen offset:124
        buffer_load_dword v23, v7, s[56:59], s4 offen offset:124
        ''')
    a(f'''
    v_lshrrev_b32 v7, 1, v{lane}
    v_lshlrev_b32 v8, 3, v7
    v_add_u32 v8, s12, v8
    v_mul_u32_u24 v8, 1026, v8
    v_and_b32 v9, 1, v{lane}
    v_lshl_add_u32 v8, v9, 4, v8
    s_lshl_b32 s11, s13, 5
    s_cmp_ge_u32 s12, 5
    s_cselect_b32 s7, 2, 0
    s_add_u32 s11, s11, s7
    v_bfe_u32 v15, v{lane}, 3, 2
    v_lshl_add_u32 v15, v9, 1, v15
    v_and_b32 v14, 3, v15
    v_add_u32 v15, 1, v15
    v_and_b32 v15, 3, v15
    v_lshlrev_b32 v7, 6, v7
    v_add_u32 v7, {WB}, v7
    v_lshl_add_u32 v16, v14, 4, v7
    v_lshl_add_u32 v17, v15, 4, v7
    ''')
    WL = 32
    WBATCH = int(os.environ.get('WBATCH', '2'))
    WEARLY = int(os.environ.get('WEARLY', '0'))
    def wload(q):
        a(f'buffer_load_dwordx4 {vr(WL+8*q,4)}, v8, s[52:55], s11 offen')
        a(f'buffer_load_dwordx4 {vr(WL+8*q+4,4)}, v8, s[56:59], s11 offen')
        if q < 7: a(f's_add_u32 s11, s11, {32*8*1026}')
    def wstage(q):
        for ar in range(2):
            r = WL + 8 * q + 4 * ar
            a(f'ds_write_b64 v16, {vr(r,2)} offset:{q*2048+ar*8}')
            a(f'ds_write_b64 v17, {vr(r+2,2)} offset:{q*2048+ar*8}')
    for q in range(WEARLY):
        wload(q)
        a('s_waitcnt vmcnt(0)')
    lds_wait(a, C_T1, 2, 12, slp=2)
    lds_wait(a, C_S1, 6, 12, slp=2)
    stamp(a, 2)
    first = True
    for q0 in range(WEARLY, 8, WBATCH):
        qs = list(range(q0, min(8, q0 + WBATCH)))
        for q in qs: wload(q)
        if first:
            for q in range(WEARLY): wstage(q)
            first = False
        for q in qs:
            a(f's_waitcnt vmcnt({2*(qs[-1]-q)})')
            wstage(q)
    lds_arrive(a, C_W, 12)
    stamp(a, 3)
    a(f's_cmp_eq_u32 s2, {M1}')
    a('s_cbranch_scc0 .m_end')
    lds_wait(a, C_S2, 4, 12, slp=2)
    a('s_setprio 3')
    master(a, lane, '1', 131072, 24576)
    a('.m_end:')
    stamp(a, 4)
    stamp_flush(a, 0, 5)
    a('s_endpgm')

def gen_A(a, lane):
    a('.role_a:')
    remap(a)
    KB = 32
    UR = 128
    a(f'''
    s_and_b32 s10, s3, 3
    s_lshl_b32 s9, s2, 2
    s_add_u32 s9, s9, s10           ; channel
    s_mul_i32 s10, s10, {CH_REG}
    s_add_u32 s10, s10, {CH0}
    s_lshl_b32 s68, s9, 8
    s_lshl_b32 s69, s9, 1
    v_lshlrev_b32 v{KB+5}, 3, v{lane}
    v_add_u32 v{KB+5}, s10, v{KB+5}
    v_lshlrev_b32 v{KB+3}, 2, v{lane}
    v_mov_b32 v{KB+4}, 0
    v_lshlrev_b32 v3, 4, v{lane}
    s_mul_i32 s15, s9, {UP}
    s_add_u32 s15, s15, 64
    v_add_u32 v23, s10, v3
    s_lshl_b32 s14, s2, 4
    s_add_u32 s14, s14, 12288
    v_and_b32 v4, 31, v{lane}             ; b
    v_lshrrev_b32 v5, 5, v{lane}          ; h
    v_lshlrev_b32 v6, 4, v4
    s_add_u32 s11, s10, {CV_K}
    v_sub_u32 v6, s11, v6
    v_lshlrev_b32 v7, 3, v5
    v_sub_u32 v20, v6, v7
    v_lshlrev_b32 v7, 9, v5
    v_sub_u32 v21, v6, v7
    v_sub_u32 v22, v21, v7
    v_add_u32 v22, {2*760}, v22
    v_add_u32 v21, {2*1528}, v21
    v_add_u32 v20, {2*1788}, v20
    ''')
    vKA, vKB = 18, 19
    a(f'''
    v_lshlrev_b32 v7, 4, v5
    v_add_u32 v7, s10, v7
    v_add_u32 v6, 28, v4
    v_mul_u32_u24 v6, {KP}, v6
    v_add_u32 v{vKB}, v6, v7
    v_mov_b32 v6, v4
    ''')
    for thr in (11, 15, 19, 23):
        a(f'v_cmp_lt_u32 vcc, {thr}, v4')
        a(f'v_subbrev_co_u32 v6, vcc, 0, v6, vcc')
    vF, vG = 24, 25
    a(f'''
    v_mul_u32_u24 v6, {KP}, v6
    v_add_u32 v{vKA}, v6, v7
    v_and_b32 v7, 1, v4
    v_cmp_eq_u32 s[70:71], 1, v7          ; odd b
    v_and_b32 v26, 15, v{lane}
    v_lshrrev_b32 v27, 4, v{lane}
    v_lshlrev_b32 v28, 4, v27
    v_lshlrev_b32 v29, 3, v26
    v_sub_u32 v{vF}, v28, v29
    s_add_u32 s6, s11, {2*2044-3968}
    v_add_u32 v{vF}, s6, v{vF}
    v_and_b32 v30, 3, v26
    v_mul_u32_u24 v30, {CS}, v30
    v_lshrrev_b32 v31, 2, v26
    v_lshl_add_u32 v30, v31, 7, v30
    v_add3_u32 v{vG}, v30, v28, s10
    s_waitcnt lgkmcnt(0)
    ''')
    srd(a, 44, P_LOGA, 1024 * 256)
    srd(a, 48, P_LOGDT, 2048)
    srd(a, 52, P_AIM, 1024 * 256)
    a(f'buffer_load_dword v{KB+8}, v{KB+3}, s[44:47], s68 offen')
    a(f'buffer_load_ushort v{KB+12}, v{KB+4}, s[48:51], s69 offen')
    a(f'buffer_load_dword v{KB+9}, v{KB+3}, s[52:55], s68 offen')
    srd(a, 44, P_CRE, 1024 * 256)
    srd(a, 48, P_CIM, 1024 * 256)
    srd(a, 52, P_DSKIP, 2048)
    a(f'buffer_load_dword v{KB+10}, v{KB+3}, s[44:47], s68 offen')
    a(f'buffer_load_dword v{KB+11}, v{KB+3}, s[48:51], s68 offen')
    a(f'buffer_load_ushort v17, v{KB+4}, s[52:55], s69 offen')
    a('s_barrier')
    a(f"s_setprio {os.environ.get('APRIO', '1')}")
    stamp(a, 8)
    a('s_waitcnt vmcnt(3)')
    stamp(a, 1)
    gen_kgen(a, 0, KB, KB + 5, 's_nop 0', 's_nop 0')
    stamp(a, 9)
    gen_kgen(a, 1, KB, KB + 5, 's_nop 0', 's_waitcnt vmcnt(0)', skip_setup=True)
    a('s_waitcnt lgkmcnt(0)')
    stamp(a, 2)
    D = 32
    FB = 64
    def rd(kk):
        b = FB + 8 * (kk & 7)
        a(f'ds_read_b128 {vr(b,4)}, v{vKA} offset:{kk*32}')
        a(f'ds_read_b128 {vr(b+4,4)}, v{vKB} offset:{kk*32}')
    for kk in range(6): rd(kk)
    for kk in range(16):
        b = FB + 8 * (kk & 7)
        rem = min(5, 15 - kk)
        a(f's_waitcnt lgkmcnt({2*rem})')
        a(f'v_mfma_f32_32x32x16_bf16 {vr(D,16)}, {vr(b,4)}, {vr(b+4,4)}, ' + ('0' if kk == 0 else vr(D, 16)))
        if kk + 6 < 16: rd(kk + 6)
    a(f'''
    v_mov_b32 v8, 0
    v_mov_b32 v9, 0
    v_mov_b32 v10, 0
    v_mov_b32 v11, 0
    s_mov_b64 exec, 0xffffff
    ''')
    for c in range(4):
        a(f'ds_write_b128 v23, v[8:11] offset:{c*CS}')
    E = 128
    a(f'''
    s_mov_b64 exec, 0xff
    ds_write_b128 v23, v[8:11] offset:{CV_K+4096}
    s_mov_b64 exec, -1
    v_lshlrev_b32 v17, 16, v17
    s_mov_b64 exec, 1
    v_add_f32 v{D}, v{D}, v17
    s_mov_b64 exec, -1
    v_cvt_pk_bf16_f32 v{E}, v{D+3}, v{D+2}
    v_cvt_pk_bf16_f32 v{E+1}, v{D+1}, v{D}
    ds_write_b64 v20, {vr(E,2)} offset:512
    v_cvt_pk_bf16_f32 v{E+2}, v{D+6}, v{D+5}
    v_cvt_pk_bf16_f32 v{E+3}, v{D+4}, v{D+4}
    ds_write_b64 v20, {vr(E+2,2)}
    v_cvt_pk_bf16_f32 v{E+4}, v{D+10}, v{D+10}
    v_cvt_pk_bf16_f32 v{E+5}, v{D+9}, v{D+9}
    v_cvt_pk_bf16_f32 v{E+6}, v{D+9}, v{D+8}
    v_cvt_pk_bf16_f32 v{E+7}, v{D+8}, v{D+8}
    ds_write_b128 v21, {vr(E+4,4)}
    ''')
    for j in range(2):
        x, z, q = D + 12 + 2 * j, D + 13 + 2 * j, E + 8 + 4 * j
        a(f'''
        v_cndmask_b32 v{D+7}, v{x}, v{z}, s[70:71]
        v_cvt_pk_bf16_f32 v{q}, v{z}, v{z}
        v_cvt_pk_bf16_f32 v{q+1}, v{z}, v{D+7}
        v_cvt_pk_bf16_f32 v{q+2}, v{x}, v{x}
        v_cvt_pk_bf16_f32 v{q+3}, v{x}, v{x}
        ds_write_b128 v22, {vr(q,4)} offset:{512*(1-j)}
        ''')
    ACC = 32
    a('s_waitcnt lgkmcnt(0)')
    for k in range(32): a(f'v_mov_b32 v{ACC+k}, 0')
    a(f'v_mov_b32 v{UR}, 0')
    a(f'v_mov_b32 v{UR+1}, 0')
    srd(a, 44, P_WS, 1024 * UP, WS_UT)
    srd(a, 52, P_WS, 4 << 20, WS_YT)
    a('s_lshl_b32 s13, s9, 12')
    stamp(a, 3)
    lds_wait(a, C_G0, 1, 8, slp=1)
    a('s_setprio 3')
    stamp(a, 4)
    for p in range(4):
        a(f'buffer_load_dwordx4 {vr(UR+8*p+2,4)}, v3, s[44:47], s15 offen offset:{p*1024} sc1')
    lds_arrive(a, C_UL, 8)
    dpp = 'row_mask:0xf bank_mask:0xf'
    Q = 64
    for p in range(4):
        r = UR + 8 * p
        q = Q + 12 * p
        a(f's_waitcnt vmcnt({3-p})')
        a(f'ds_write_b128 v23, {vr(r+2,4)} offset:{384 + 3*CS + 1024*p}')
        a(f'v_mov_b32_dpp v{r}, v{r+4} wave_shr:1 {dpp}')
        a(f'v_mov_b32_dpp v{r+1}, v{r+5} wave_shr:1 {dpp}')
        if p < 3:
            a(f'v_mov_b32_dpp v{r+8}, v{r+4} wave_ror:1 {dpp}')
            a(f'v_mov_b32_dpp v{r+9}, v{r+5} wave_ror:1 {dpp}')
        for j in range(4):
            a(f'v_mov_b32 v{q+8+j}, v{r+1+j}')
        a(f'ds_write_b128 v23, {vr(q+8,4)} offset:{384 + 1*CS + 1024*p}')
        for j in range(4):
            a(f'v_alignbit_b32 v{q+j}, v{r+j+1}, v{r+j}, 16')
        a(f'ds_write_b128 v23, {vr(q,4)} offset:{384 + 1024*p}')
        for j in range(3):
            a(f'v_mov_b32 v{q+4+j}, v{q+1+j}')
        a(f'v_alignbit_b32 v{q+7}, v{r+5}, v{r+4}, 16')
        a(f'ds_write_b128 v23, {vr(q+4,4)} offset:{384 + 2*CS + 1024*p}')
    G0, F0 = 64, 96
    def ld(kind, idx, off):
        if kind == 'G':
            return [f'ds_read_b128 {vr(G0+4*idx,4)}, v{vG} offset:{512*idx+off}']
        return [f'ds_read_b64 {vr(F0+4*idx,2)}, v{vF} offset:{512*(7-idx)+off}', f'ds_read_b64 {vr(F0+4*idx+2,2)}, v{vF} offset:{512*(7-idx)+off+8}']
    even = [(i, c) for i in range(8) for c in range(7 - i, -1, -1)]
    odd = [(i, c) for c in range(7, -1, -1) for i in range(8 - c)]
    def plan(seq):
        lastG, lastF = {}, {}
        for n, (i, c) in enumerate(seq): lastG[i] = n; lastF[c] = n
        rel = {}
        for i, n in lastG.items(): rel.setdefault(n, []).append(('G', i))
        for c, n in lastF.items(): rel.setdefault(n, []).append(('F', c))
        return rel
    rel_e, rel_o = plan(even), plan(odd)
    order0 = [x for n in range(36) for x in rel_o.get(n, [])]
    a('s_waitcnt lgkmcnt(0)')
    stamp(a, 5)
    queue = []
    for kind, idx in order0:
        for ins in ld(kind, idx, 0):
            a(ins); queue.append((kind, idx))
    a('s_mov_b32 s12, 0')
    a('s_setprio 1')
    a(f'v_mov_b32 v16, {CNT+4*C_Z}')
    a('.cv_loop:')
    q0 = list(queue)
    PAUSE = os.environ.get('PAUSE', '0') == '1'
    PK = [int(x) for x in os.environ.get('PAUSE_AT', '12,30').split(',')]
    for seq, rel, off in ((even, rel_e, 64), (odd, rel_o, 128)):
        for n, (i, c) in enumerate(seq):
            if PAUSE and n in PK:
                a(f'ds_read_b96 v[8:10], v16'); queue.append(('P', 0))
            want = [('G', i), ('F', c)]
            chk = PAUSE and (n - 4) in PK
            if chk: want.append(('P', 0))
            need = [k for k, x in enumerate(queue) if x in want]
            if need:
                left = len(queue) - 1 - max(need)
                a(f's_waitcnt lgkmcnt({min(left, 15)})')
                queue = queue[max(need) + 1:] if left <= 15 else queue[len(queue) - 15:]
            if chk:
                Lg = a.label('go')
                a(f'''
                v_sub_u32 v8, v8, v10
                v_readfirstlane_b32 s4, v8
                s_cmp_lt_i32 s4, {os.environ.get('PAUSE_TH', '1')}
                s_cbranch_scc1 {Lg}
                ''')
                lds_wait(a, C_O, 4, 12, slp=1)
                a(f'{Lg}:')
            A = i + c
            a(f'v_mfma_f32_16x16x32_bf16 {vr(ACC+4*A,4)}, {vr(G0+4*i,4)}, {vr(F0+4*c,4)}, {vr(ACC+4*A,4)}')
            for kind, idx in rel.get(n, []):
                for ins in ld(kind, idx, off):
                    a(ins); queue.append((kind, idx))
    assert q0[len(q0) - len(queue):] == queue, (q0, queue)
    a(f'''
    v_add_u32 v{vG}, 128, v{vG}
    v_add_u32 v{vF}, 128, v{vF}
    s_add_u32 s12, s12, 1
    s_cmp_lt_u32 s12, 4
    s_cbranch_scc1 .cv_loop
    ''')
    stamp(a, 6)
    a.raw(';PLAIN_ON')
    for P in range(4):
        o = 128 + 4 * P
        for e in range(2):
            A = 2 * P + e
            a(f'v_cvt_pk_bf16_f32 v{o+2*e}, v{ACC+4*A}, v{ACC+4*A+1}')
            a(f'v_cvt_pk_bf16_f32 v{o+2*e+1}, v{ACC+4*A+2}, v{ACC+4*A+3}')
        a(f'buffer_store_dwordx4 {vr(o,4)}, v3, s[52:55], s13 offen offset:{1024*P}')
    a('s_waitcnt vmcnt(0) lgkmcnt(0)')
    publish(a, C_CV, 4, 14, 8)
    a.raw(';PLAIN_OFF')
    stamp(a, 7)
    stamp_flush(a, 0, 10)
    a('s_endpgm')

def build():
    hdr = open(f'cdna_kernels/{NAME}.s.ref').read().split('\n')
    head = [l for l in hdr if l.startswith(';') and '@launch' not in l.lower()]
    out = '\n'.join(head) + '\n'
    out += f'; @launch grid=(256,1,1) block=(768,1,1) lds={LDS_SIZE}\n'
    out += '.amdgcn_target "amdgcn-amd-amdhsa--gfx950"\n.text\n'
    a = Asm()
    KN = NAME + '_kernel'
    a.raw(f'.globl {KN}')
    a.raw(f'.type {KN},@function')
    gen_main(a)
    body = a.render()
    res = []
    plain = False
    for l in body.split('\n'):
        if l.startswith(';PLAIN_ON'): plain = XL2
        if l.startswith(';OUT_ON'): plain = os.environ.get('OUTPLAIN', '0') == '1'
        if l.startswith(';PLAIN_OFF'): plain = False
        if l.strip().startswith('buffer_store') and not plain:
            l = l + ' sc1'
        res.append(l)
    out += '\n'.join(res)
    out += '.section .rodata,"a"\n'
    out += kd(KN, 168, 102)
    return out

if __name__ == '__main__':
    path = sys.argv[1] if len(sys.argv) > 1 else f'cdna_kernels/{NAME}.s'
    open(path, 'w').write(build())
    print('wrote', path)
```

```python
import sys, os, struct
sys.path.insert(0, 'dev')
from gen import (Asm, NAME, fhex, vr, srd, stamp, stamp_flush, gen_dft8_frags, gen_z_addr, z_soff,
                 gen_transposer, gen_transposer_tail, kd, DIAG,
                 WS_Z1, WS_Z2, WS_UT, UP, WS_YT,
                 P_U, P_LOGA, P_AIM, P_CRE, P_CIM, P_LOGDT, P_DSKIP, P_X, P_WR, P_WI, P_OUT, P_DBG, P_WS)
from gen23 import cmul_sc, cmul_pk
import gen3
from gen3 import gen_kgen, KP, CH_REG, CS, CV_K

ZB = 0
WB = 16384
SCR = 32768
TRB = WB
CNT = 34816
CH0 = CNT + 128
LDS_SIZE = CH0 + 4 * CH_REG
WS_CW = 20 << 20
WS_FLG = 28 << 20
C_PA, C_S1, C_R0, C_S2, C_Z, C_W, C_O, C_R1, C_L3, C_T1, C_G0, C_CV, C_G1, C_NONCE, C_TL, C_UL, C_RL, C_L3L = range(18)
SPIN_MAX = 0x80000
EPOCH = os.environ.get('EPOCH', '1') == '1'
ROT = int(os.environ.get('ROT', '8'))
FLAGROT = os.environ.get('FLAGROT', '0') == '1'
WS_EP = 30 << 20
P_WR_ = 42
P_D = P_WR_ if ROT > 1 else P_WS
P_F = P_WR_ if (ROT > 1 and FLAGROT) else P_WS
def rotws(a):
    if ROT > 1:
        a(f'''
        s_lshl_b32 s42, s5, 24
        s_and_b32 s42, s42, {(ROT - 1) << 25:#x}
        s_add_u32 s42, s40, s42
        s_addc_u32 s43, s41, 0
        ''')
def getws(a, vt):
    if ROT > 1:
        lds_wait(a, C_NONCE, 1, vt, slp=1, sreg=5)
        rotws(a)
TFIRST = os.environ.get('TFIRST', '0') == '1'

def lds_arrive(a, c, vt):
    a(f'''
    v_mov_b32 v{vt}, {CNT+4*c}
    v_mov_b32 v{vt+1}, 1
    s_waitcnt lgkmcnt(0)
    s_mov_b64 exec, 1
    ds_add_u32 v{vt}, v{vt+1}
    s_mov_b64 exec, -1
    ''')

def lds_wait(a, c, n, vt, slp=0, sreg=4):
    L = a.label('spin'); E = a.label('spun')
    a(f'''
    v_mov_b32 v{vt}, {CNT+4*c}
    {L}:
    ds_read_b32 v{vt+1}, v{vt}
    s_waitcnt lgkmcnt(0)
    v_readfirstlane_b32 s{sreg}, v{vt+1}
    s_cmp_ge_u32 s{sreg}, {n}
    s_cbranch_scc1 {E}
    s_sleep {slp}
    s_branch {L}
    {E}:
    ''')

FR = int(os.environ.get('FR', '16'))
def publish(a, c, n, flag_off_sreg, vt, rep=1):
    E = a.label('pub')
    a(f'''
    v_mov_b32 v{vt}, {CNT+4*c}
    v_mov_b32 v{vt+1}, 1
    s_mov_b64 exec, 1
    ds_add_rtn_u32 v{vt+1}, v{vt}, v{vt+1}
    s_mov_b64 exec, -1
    s_waitcnt lgkmcnt(0)
    v_readfirstlane_b32 s4, v{vt+1}
    s_cmp_lg_u32 s4, {n-1}
    s_cbranch_scc1 {E}
    ''')
    lds_wait(a, C_NONCE, 1, vt, slp=1, sreg=5)
    srd(a, 60, P_F, 1 << 18, WS_FLG)
    a(f'''
    v_lshlrev_b32 v{vt}, 10, v2
    v_mov_b32 v{vt+1}, s5
    s_mov_b64 exec, {(1 << rep) - 1}
    buffer_store_dword v{vt+1}, v{vt}, s[60:63], s{flag_off_sreg} offen
    s_mov_b64 exec, -1
    {E}:
    ''')

NREP = int(os.environ.get('NREP', '32'))
PD = int(os.environ.get('PD', '1'))
def poll_release(a, rel_off, c, vt):
    L = a.label('poll'); E = a.label('polled')
    lds_wait(a, C_NONCE, 1, vt, slp=1, sreg=5)
    srd(a, 60, P_F, 1 << 18, WS_FLG)
    a(f'''
    v_mov_b32 v{vt}, 0
    s_mov_b32 s6, {SPIN_MAX}
    s_and_b32 s7, s2, {NREP-1}
    s_lshl_b32 s7, s7, 7
    s_add_u32 s7, s7, {rel_off}
    ''')
    for k in range(PD - 1):
        a(f'buffer_load_dword v{64+k}, v{vt}, s[60:63], s7 offen sc1')
        a(f"s_sleep {os.environ.get('PGAP', '4')}")
    a(f'{L}:')
    for k in range(PD):
        a(f'''
        buffer_load_dword v{64+(k+PD-1)%PD}, v{vt}, s[60:63], s7 offen sc1
        s_waitcnt vmcnt({PD-1})
        v_readfirstlane_b32 s4, v{64+k}
        s_cmp_eq_u32 s4, s5
        s_cbranch_scc1 {E}
        ''')
    a(f'''
    s_sub_u32 s6, s6, 1
    s_cmp_lg_u32 s6, 0
    s_cbranch_scc1 {L}
    {E}:
    ''')
    lds_arrive(a, c, vt)
    a('s_waitcnt vmcnt(0)')

def poll_group(a, lane, base_sreg, c, vt):
    L = a.label('poll'); E = a.label('polled')
    lds_wait(a, C_NONCE, 1, vt, slp=1, sreg=5)
    srd(a, 60, P_F, 1 << 18, WS_FLG)
    a(f'''
    v_and_b32 v{vt}, 15, v{lane}
    v_lshlrev_b32 v{vt}, 4, v{vt}
    s_mov_b32 s6, {SPIN_MAX}
    ''')
    for k in range(PD - 1):
        a(f'buffer_load_dword v{64+k}, v{vt}, s[60:63], s{base_sreg} offen sc1')
        a(f"s_sleep {os.environ.get('PGAP', '4')}")
    a(f'{L}:')
    for k in range(PD):
        a(f'''
        buffer_load_dword v{64+(k+PD-1)%PD}, v{vt}, s[60:63], s{base_sreg} offen sc1
        s_waitcnt vmcnt({PD-1})
        v_cmp_ne_u32 vcc, s5, v{64+k}
        s_cmp_eq_u64 vcc, 0
        s_cbranch_scc1 {E}
        ''')
    a(f'''
    s_sub_u32 s6, s6, 1
    s_cmp_lg_u32 s6, 0
    s_cbranch_scc1 {L}
    {E}:
    ''')
    lds_arrive(a, c, vt)
    a('s_waitcnt vmcnt(0)')

XL2 = os.environ.get('XL2', '0') == '1'
def remap(a):
    if XL2:
        a('''
        s_mov_b32 s43, s2
        s_and_b32 s4, s2, 7
        s_lshl_b32 s4, s4, 5
        s_lshr_b32 s2, s2, 3
        s_or_b32 s2, s2, s4
        ''')

def gen_main(a):
    KN = NAME + '_kernel'
    a.raw('.p2align 8')
    a.raw(f'{KN}:')
    EXIT = '.exit'
    lane = 2
    a(f'''
    s_cmp_ge_u32 s2, 256
    s_cbranch_scc1 {EXIT}
    ''')
    stamp(a, 0)
    a('''
    s_load_dwordx16 s[16:31], s[0:1], 0
    s_load_dwordx8 s[32:39], s[0:1], 64
    s_load_dwordx2 s[40:41], s[0:1], 96
    v_lshrrev_b32 v1, 6, v0
    v_and_b32 v2, 63, v0
    v_readfirstlane_b32 s3, v1
    ''')
    ORDER = os.environ.get('ORDER', 'BTMA')
    if ORDER == 'ATMB':
        a('''
        s_mov_b32 s4, 0x0765ba98
        s_mov_b32 s5, 0x00004321
        s_lshl_b32 s6, s3, 2
        s_lshr_b64 s[4:5], s[4:5], s6
        s_and_b32 s3, s4, 15
        s_lshl_b32 s4, s3, 6
        v_add_u32 v0, s4, v2
        ''')
    a('''
    s_cmp_ge_u32 s3, 8
    s_cbranch_scc1 .role_a
    s_cmp_eq_u32 s3, 7
    s_cbranch_scc1 .role_m
    s_cmp_ge_u32 s3, 5
    s_cbranch_scc1 .role_t
    ''')
    gen_B(a, lane, EXIT)
    gen_T(a, lane)
    gen_M(a, lane)
    gen_A(a, lane)
    a(f'{EXIT}:')
    a('s_endpgm')

def gen_B(a, lane, EXIT):
    a(f'''
    s_setprio 2
    s_mov_b32 s8, s3
    s_and_b32 s15, s3, 3
    s_sub_u32 s9, 8, s8
    s_lshl_b32 s4, s2, 11
    v_lshlrev_b32 v3, 3, v0
    v_add_u32 v7, s4, v3
    ''')
    XL = 16
    F8 = 8
    vC, vS, vnS, vCt, vnSt, tc, ts = 80, 88, 96, 104, 112, 120, 136
    kf, arg, a2, c0, c1, s0, s1_, k5, sg = range(64, 73)
    def tab_init(kf, arg, k5):
        a(f'''
        v_and_b32 v{kf}, 31, v{lane}
        v_cvt_f32_u32 v{kf}, v{kf}
        v_mul_f32 v{kf}, {fhex(1/32)}, v{kf}
        v_lshrrev_b32 v{arg}, 5, v{lane}
        v_cvt_f32_u32 v{arg}, v{arg}
        v_mul_f32 v{arg}, 4.0, v{arg}
        v_mul_f32 v{arg}, v{arg}, v{kf}
        v_mul_f32 v{k5}, {fhex(5.0)}, v{kf}
        ''')
    tab_init(kf, arg, k5)
    a(f'''
    v_and_b32 v{sg}, 16, v{lane}
    v_lshlrev_b32 v{sg}, 11, v{sg}
    v_lshl_or_b32 v{sg}, v{sg}, 16, v{sg}
    ''')
    def tab(ip):
        for e, (cr, sr) in enumerate(((c0, s0), (c1, s1_))):
            i = 2 * ip + e
            a(f'v_cos_f32 v{cr}, v{arg}')
            a(f'v_sin_f32 v{sr}, v{arg}')
            a(f'v_mul_f32 v{a2}, {fhex(1/32)}, v{arg}')
            a(f'v_cos_f32 v{tc+i}, v{a2}')
            a(f'v_sin_f32 v{ts+i}, v{a2}')
            if i != 15:
                a(f'v_add_f32 v{arg}, v{arg}, v{k5 if (i & 3) == 3 else kf}')
        a(f'v_cvt_pk_bf16_f32 v{vC+ip}, v{c0}, v{c1}')
        a(f'v_cvt_pk_bf16_f32 v{vS+ip}, v{s0}, v{s1_}')
        a(f'v_cvt_pk_bf16_f32 v{vnS+ip}, -v{s0}, -v{s1_}')
        a(f'v_xor_b32 v{vCt+ip}, v{sg}, v{vC+ip}')
        a(f'v_xor_b32 v{vnSt+ip}, v{sg}, v{vnS+ip}')
    NPRE = 3
    for ip in range(NPRE): tab(ip)
    a('s_waitcnt lgkmcnt(0)')
    srd(a, 44, P_X, 4 << 20)
    if TFIRST: a('s_barrier')
    a('s_cmp_eq_u32 s3, 4')
    a('s_cbranch_scc1 .b1_noload')
    for s1 in range(8):
        a(f's_mov_b32 s5, {s1*256*2048}')
        a(f'buffer_load_dwordx2 {vr(XL+2*s1,2)}, v7, s[44:47], s5 offen')
    a('.b1_noload:')
    if not TFIRST: a('s_barrier')
    gen_dft8_frags(a, lane, F8, 32, True)
    for ip in range(NPRE, 8): tab(ip)
    vlo, vhi, vtr = 164, 165, 154
    gen_z_addr(a, lane, vlo, vhi, 64, 2, 8, 9)
    a(f'''
    v_lshrrev_b32 v64, 5, v{lane}
    v_bfe_u32 v65, v{lane}, 2, 2
    v_lshl_add_u32 v64, v64, 2, v65
    v_lshlrev_b32 v64, 6, v64
    v_bfe_u32 v65, v{lane}, 4, 1
    v_lshl_add_u32 v64, v65, 5, v64
    v_and_b32 v65, 3, v{lane}
    v_lshl_add_u32 v64, v65, 3, v64
    s_lshl_b32 s4, s8, 1
    s_cmp_eq_u32 s8, 4
    s_cselect_b32 s4, 1, s4
    s_lshl_b32 s4, s4, 11
    v_add_u32 v{vtr}, s4, v64
    ''')
    a('s_cmp_eq_u32 s3, 4')
    a('s_cbranch_scc1 .b1_phaseB')
    BO, DD = 32, 48
    a('s_mov_b32 s4, 0x05040100')
    a('s_mov_b32 s5, 0x07060302')
    a('s_waitcnt vmcnt(0)')
    for e in range(4):
        for p in range(4):
            lo, hi = XL + 2 * (2 * p) + (e >> 1), XL + 2 * (2 * p + 1) + (e >> 1)
            a(f'v_perm_b32 v{BO+4*e+p}, v{hi}, v{lo}, s{4 + (e & 1)}')
        for hf in range(2):
            a(f'v_mfma_f32_16x16x32_bf16 {vr(DD+8*e+4*hf,4)}, {vr(F8+4*hf,4)}, {vr(BO+4*e,4)}, 0')
    for q in range(8):
        a(f'v_cvt_pk_bf16_f32 v{XL+2*q}, v{DD+q}, v{DD+8+q}')
        a(f'v_cvt_pk_bf16_f32 v{XL+2*q+1}, v{DD+16+q}, v{DD+24+q}')
        a(f'ds_write_b64 v3, {vr(XL+2*q,2)} offset:{ZB+q*2048}')
    lds_arrive(a, C_PA, 4)
    a('.b1_phaseB:')
    getws(a, 4)
    srd(a, 48, P_D, 4 << 20, WS_Z1)
    lds_wait(a, C_PA, 4, 4)
    stamp(a, 1)
    AR, AI, DR, DI, T0 = 16, 24, 32, 48, 64
    for c in range(2):
        for jj in range(2):
            a(f'ds_read_b64_tr_b16 {vr(AR+4*c+2*jj,2)}, v{vtr} offset:{c*1024+jj*512}')
    for c in range(2):
        for jj in range(2):
            a(f'ds_read_b64_tr_b16 {vr(AI+4*c+2*jj,2)}, v{vtr} offset:{2048+c*1024+jj*512}')
    a('s_waitcnt lgkmcnt(4)')
    a(f'v_mfma_f32_32x32x16_bf16 {vr(DR,16)}, {vr(AR,4)}, {vr(vC,4)}, 0')
    a(f'v_mfma_f32_32x32x16_bf16 {vr(DI,16)}, {vr(AR,4)}, {vr(vnS,4)}, 0')
    a(f'v_mfma_f32_32x32x16_bf16 {vr(DR,16)}, {vr(AR+4,4)}, {vr(vC+4,4)}, {vr(DR,16)}')
    a(f'v_mfma_f32_32x32x16_bf16 {vr(DI,16)}, {vr(AR+4,4)}, {vr(vnS+4,4)}, {vr(DI,16)}')
    a('s_waitcnt lgkmcnt(0)')
    a('s_cmp_eq_u32 s15, 0')
    a('s_cbranch_scc1 .b1_real1')
    for c in range(2):
        a(f'v_mfma_f32_32x32x16_bf16 {vr(DR,16)}, {vr(AI+4*c,4)}, {vr(vS+4*c,4)}, {vr(DR,16)}')
        a(f'v_mfma_f32_32x32x16_bf16 {vr(DI,16)}, {vr(AI+4*c,4)}, {vr(vC+4*c,4)}, {vr(DI,16)}')
    a('.b1_real1:')
    def tw(ib):
        prs = [2 * ib, 2 * ib + 1]
        for k, ip in enumerate(prs):
            r, i_, c_, s_ = DR + 2 * ip, DI + 2 * ip, tc + 2 * ip, ts + 2 * ip
            a(f'v_pk_mul_f32 {vr(T0+4*(ib&1)+2*k,2)}, {vr(i_,2)}, {vr(s_,2)}')
            a(f'v_pk_mul_f32 {vr(s_,2)}, {vr(r,2)}, {vr(s_,2)}')
        for k, ip in enumerate(prs):
            r, i_, c_, s_ = DR + 2 * ip, DI + 2 * ip, tc + 2 * ip, ts + 2 * ip
            a(f'v_pk_fma_f32 {vr(T0+4*(ib&1)+2*k,2)}, {vr(r,2)}, {vr(c_,2)}, {vr(T0+4*(ib&1)+2*k,2)}')
            a(f'v_pk_fma_f32 {vr(s_,2)}, {vr(i_,2)}, {vr(c_,2)}, {vr(s_,2)} neg_lo:[0,0,1] neg_hi:[0,0,1]')
    def pk(ib):
        for k, ip in enumerate((2 * ib, 2 * ib + 1)):
            t = T0 + 4 * (ib & 1) + 2 * k
            a(f'v_cvt_pk_bf16_f32 v{AR+ip}, v{t}, v{t+1}')
            a(f'v_cvt_pk_bf16_f32 v{AI+ip}, v{ts+2*ip}, v{ts+2*ip+1}')
    tw(0); tw(1); pk(0); pk(1); tw(2); tw(3); pk(2); pk(3)
    for c in range(2):
        z = '0' if c == 0 else None
        a(f'v_mfma_f32_32x32x16_bf16 {vr(DR,16)}, {vr(vC+4*c,4)}, {vr(AR+4*c,4)}, {z or vr(DR,16)}')
        a(f'v_mfma_f32_32x32x16_bf16 {vr(DI,16)}, {vr(vCt+4*c,4)}, {vr(AI+4*c,4)}, {z or vr(DI,16)}')
        a(f'v_mfma_f32_32x32x16_bf16 {vr(DR,16)}, {vr(vS+4*c,4)}, {vr(AI+4*c,4)}, {vr(DR,16)}')
        a(f'v_mfma_f32_32x32x16_bf16 {vr(DI,16)}, {vr(vnSt+4*c,4)}, {vr(AR+4*c,4)}, {vr(DI,16)}')
    a('s_cmp_eq_u32 s15, 0')
    a('s_cbranch_scc0 .b1_cplx2')
    a(f'''
    s_mov_b64 exec, 1
    v_mov_b32 v{DI}, v{DR+8}
    s_mov_b64 exec, -1
    s_branch .b1_lo
    ''')
    O = 64
    a('.b1_cplx2:')
    for i in range(8, 16):
        a(f'v_cvt_pk_bf16_f32 v{O+i}, v{DR+i}, v{DI+i}')
        a(f's_mov_b32 s5, {z_soff(i)}')
        a(f'buffer_store_dword v{O+i}, v{vhi}, s[48:51], s5 offen')
    a('.b1_lo:')
    for i in range(8):
        a(f'v_cvt_pk_bf16_f32 v{O+i}, v{DR+i}, v{DI+i}')
        a(f's_mov_b32 s5, {z_soff(i)}')
        a(f'buffer_store_dword v{O+i}, v{vlo}, s[48:51], s5 offen')
    stamp(a, 2)
    a('s_lshl_b32 s14, s2, 4')
    a('s_add_u32 s14, s14, 65536')
    a('s_cmp_eq_u32 s3, 4')
    a('s_cbranch_scc0 .b2_start')
    a('s_waitcnt vmcnt(0)')
    publish(a, C_S1, 6, 14, 4)
    stamp(a, 3)
    a('s_branch .b3_start')

    a('.b2_start:')
    WL = 144
    WM = 16
    WMr = [16 + k for k in range(16)] + [48 + k for k in range(8)]
    vW0, vW1, vZ, vL = 160, 161, 162, 163
    TM = 8
    a(f'''
    s_and_b32 s12, s2, 7
    s_lshr_b32 s13, s2, 3              ; G
    v_and_b32 v3, 15, v{lane}          ; n
    v_lshrrev_b32 v4, 4, v{lane}       ; g
    ''')
    srd(a, 52, P_WR, 2048 * 1026)
    srd(a, 56, P_WI, 2048 * 1026)
    a('s_waitcnt vmcnt(0)')
    publish(a, C_S1, 6, 14, 10)
    a('s_setprio 1')
    stamp(a, 3)
    a(f'''
    s_lshl_b32 s11, s12, 5
    s_add_u32 s11, s11, s13
    s_lshl_b32 s11, s11, 14
    v_lshlrev_b32 v5, 4, v{lane}
    s_lshl_b32 s4, s3, 12
    s_add_u32 s10, s4, {ZB}
    s_add_u32 s11, s11, s4
    v_add_u32 v{vL}, s10, v5
    v_bfe_u32 v15, v3, 2, 2
    v_add_u32 v15, s3, v15
    v_and_b32 v15, 3, v15
    v_lshlrev_b32 v15, 4, v15
    v_lshl_add_u32 v15, v3, 6, v15
    v_lshl_add_u32 v15, v4, 12, v15
    v_add_u32 v{vZ}, {ZB}, v15
    ''')
    B1R, B1I, A2R, A2I, B3R, B3I, A4R, A4I = 16, 20, 24, 28, 32, 36, 40, 44
    T1C, T1S, T3C, T3S = 48, 52, 56, 60
    nf, idx, q1, p_, c_, s_, p2, c2, s2_, p3, c3, s3_, k1_, k2_ = range(64, 78)
    scale = 2.0 / (2048 * 1024)
    a(f'''
    v_cvt_f32_u32 v{nf}, v3
    v_lshlrev_b32 v{idx}, 2, v4
    v_cvt_f32_u32 v{idx}, v{idx}
    v_cvt_f32_u32 v{k1_}, s12
    v_mul_f32 v{k1_}, {fhex(1/128)}, v{k1_}
    v_mul_f32 v{k2_}, {fhex(1/16)}, v{nf}
    v_add_f32 v{q1}, v{k2_}, v{k1_}
    v_mul_f32 v{k1_}, v{k1_}, v{nf}
    ''')
    for e in range(4):
        a(f'''
        v_mul_f32 v{p_}, v{idx}, v{q1}
        v_mul_f32 v{p2}, v{idx}, v{k2_}
        v_cos_f32 v{c_}, v{p_}
        v_sin_f32 v{s_}, v{p_}
        v_add_f32 v{p3}, v{p2}, v{k1_}
        v_cos_f32 v{c2}, v{p2}
        v_sin_f32 v{s2_}, v{p2}
        v_mul_f32 v{p_}, {fhex(1/16)}, v{p_}
        v_cos_f32 v{c3}, v{p3}
        v_sin_f32 v{s3_}, v{p3}
        v_mul_f32 v{p3}, {fhex(1/16)}, v{p3}
        v_cvt_pk_bf16_f32 v{B1R+e}, v{c_}, v{s_}
        v_cvt_pk_bf16_f32 v{B1I+e}, -v{s_}, v{c_}
        v_cos_f32 v{c_}, v{p_}
        v_sin_f32 v{s_}, v{p_}
        v_cvt_pk_bf16_f32 v{A2R+e}, v{c2}, v{s2_}
        v_cvt_pk_bf16_f32 v{A2I+e}, -v{s2_}, v{c2}
        v_cvt_pk_bf16_f32 v{B3R+e}, v{c2}, -v{s2_}
        v_cvt_pk_bf16_f32 v{B3I+e}, v{s2_}, v{c2}
        v_cos_f32 v{T3C+e}, v{p3}
        v_sin_f32 v{T3S+e}, v{p3}
        v_cvt_pk_bf16_f32 v{A4R+e}, v{c3}, -v{s3_}
        v_cvt_pk_bf16_f32 v{A4I+e}, v{s3_}, v{c3}
        v_mul_f32 v{T1C+e}, {fhex(scale)}, v{c_}
        v_mul_f32 v{T1S+e}, {fhex(scale)}, v{s_}
        v_add_f32 v{idx}, 1.0, v{idx}
        ''')
    X = 64; D = 80; WF = 112
    CWR = 144
    a(f'''
    s_mov_b32 s7, 0xffff0000
    s_mov_b32 s68, 0
    s_cmp_ge_u32 s12, 5
    s_cbranch_scc1 .b2_sp_hi
    s_or_b32 s4, s13, s3
    s_cmp_lg_u32 s4, 0
    s_cbranch_scc1 .b2_sp_done
    s_and_b32 s4, s12, 3
    s_cmp_eq_u32 s4, 0
    s_cselect_b32 s68, 3, 1
    s_branch .b2_sp_done
    .b2_sp_hi:
    s_cmp_lg_u32 s13, 31
    s_cbranch_scc1 .b2_sp_done
    s_cmp_lg_u32 s3, 3
    s_cbranch_scc1 .b2_sp_done
    s_mov_b32 s68, 2
    .b2_sp_done:
    ''')
    srd(a, 44, P_D, 4 << 20, WS_Z1)
    srd(a, 48, P_D, 4 << 20, WS_Z2)
    srd(a, 52, P_D, 16384, WS_CW)
    a('s_mov_b32 m0, s10')
    stamp(a, 4)
    lds_wait(a, C_R0, 1, 10, slp=1)
    a('s_setprio 2')
    stamp(a, 5)
    for p in range(4):
        a(f'buffer_load_dwordx4 v5, s[44:47], s11 offen offset:{p*1024} sc1 lds')
    a('s_cmp_eq_u32 s68, 0')
    a('s_cbranch_scc1 .b2_nocw')
    a(f'''
    v_lshl_add_u32 v64, v4, 6, v3
    s_cmp_eq_u32 s12, 0
    s_cselect_b32 s4, 1, 0
    s_add_u32 s4, s4, 255
    v_sub_u32 v65, s4, v64
    s_sub_u32 s4, 8, s12
    s_and_b32 s4, s4, 7
    s_lshl_b32 s4, s4, 10
    s_add_u32 s5, s4, 8192
    s_cmp_eq_u32 s68, 2
    s_cselect_b32 s4, s5, s4
    s_lshl_b32 s6, s12, 10
    s_add_u32 s6, s6, 8192
    v_lshlrev_b32 v64, 2, v64
    ''')
    for i in range(4):
        a(f'''
        v_subrev_u32 v66, {16*i}, v65
        v_and_b32 v66, 255, v66
        v_lshlrev_b32 v66, 2, v66
        buffer_load_dword v{CWR+i}, v66, s[52:55], s4 offen sc1
        buffer_load_dword v{CWR+4+i}, v64, s[52:55], s6 offen offset:{64*i} sc1
        buffer_load_dword v{CWR+8+i}, v66, s[52:55], s5 offen sc1
        ''')
    a('.b2_nocw:')
    lds_wait(a, C_W, 1, 10)
    WLL = 80
    for i in range(4):
        a(f'ds_read_b128 {vr(WLL+4*i,4)}, v{vZ} offset:{WB-ZB+1024*i}')
    for i in range(4):
        a(f's_waitcnt lgkmcnt({3-i})')
        for part in range(2):
            for cp in range(2):
                src = WLL + 4 * i + 2 * part + cp
                a(f'v_lshlrev_b32 v{WF+8*(2*cp)+4*part+i}, 16, v{src}')
                a(f'v_and_b32 v{WF+8*(2*cp+1)+4*part+i}, s7, v{src}')
    a('s_waitcnt vmcnt(0)')
    lds_arrive(a, C_Z, 10)
    lds_wait(a, C_Z, 4, 10)
    stamp(a, 6)
    for e in range(4):
        a(f'ds_read_b128 {vr(D+4*e,4)}, v{vZ} offset:{1024*e}')
    for e in range(4):
        a(f's_waitcnt lgkmcnt({3-e})')
        for c in range(4):
            a(f'v_mov_b32 v{X+4*c+e}, v{D+4*e+c}')
    def stage(Mr, Mi, data_is_A):
        for c in range(4):
            for M, off in ((Mr, 0), (Mi, 4)):
                if data_is_A:
                    a(f'v_mfma_f32_16x16x32_bf16 {vr(D+8*c+off,4)}, {vr(X+4*c,4)}, {vr(M,4)}, 0')
                else:
                    a(f'v_mfma_f32_16x16x32_bf16 {vr(D+8*c+off,4)}, {vr(M,4)}, {vr(X+4*c,4)}, 0')
    def mulpack(cr_of, ci_of, conj):
        k = 0
        for c in range(4):
            for hp in range(2):
                t = TM + 4 * (k & 1); k += 1
                cmul_sc(a, t, t + 2, D + 8 * c + 2 * hp, D + 8 * c + 4 + 2 * hp, cr_of(c) + 2 * hp, ci_of(c) + 2 * hp, conj)
                a(f'v_cvt_pk_bf16_f32 v{X+4*c+2*hp}, v{t}, v{t+2}')
                a(f'v_cvt_pk_bf16_f32 v{X+4*c+2*hp+1}, v{t+1}, v{t+3}')
    stage(B1R, B1I, True)
    mulpack(lambda c: T1C, lambda c: T1S, True)
    stage(A2R, A2I, False)
    a('s_cmp_eq_u32 s68, 0')
    a('s_cbranch_scc1 .b2_noreal')
    a('s_cmp_eq_u32 s68, 2')
    a('s_cbranch_scc1 .b2_patch_hi')
    def patch(c):
        for i in range(4):
            a(f'v_lshlrev_b32 v{TM}, 16, v{CWR+i}')
            a(f'v_and_b32 v{TM+1}, s7, v{CWR+i}')
            a(f'v_add_f32 v{WF+8*c+i}, v{WF+8*c+i}, v{TM}')
            a(f'v_sub_f32 v{WF+8*c+4+i}, v{WF+8*c+4+i}, v{TM+1}')
        for i in range(8):
            a(f'v_mul_f32 v{WF+8*c+i}, 0.5, v{WF+8*c+i}')
    patch(0)
    a('s_cmp_eq_u32 s68, 1')
    a('s_cbranch_scc1 .b2_noreal')
    ZM, PQ = 16, 24
    QQ = 48
    a(f'''
    v_lshl_add_u32 v{TM}, v4, 6, v3
    s_lshr_b32 s4, s12, 2
    s_sub_u32 s4, 256, s4
    v_sub_u32 v{TM+1}, s4, v{TM}
    v_lshlrev_b32 v{TM}, 2, v{TM}
    v_add_u32 v{TM}, {SCR}, v{TM}
    ''')
    for i in range(4):
        a(f'ds_write_b32 v{TM}, v{D+i} offset:{64*i}')
        a(f'ds_write_b32 v{TM}, v{D+4+i} offset:{1024+64*i}')
    for i in range(4):
        a(f'''
        v_subrev_u32 v{TM+2}, {16*i}, v{TM+1}
        v_and_b32 v{TM+2}, 255, v{TM+2}
        v_lshlrev_b32 v{TM+2}, 2, v{TM+2}
        v_add_u32 v{TM+2}, {SCR}, v{TM+2}
        ds_read_b32 v{ZM+i}, v{TM+2}
        ds_read_b32 v{ZM+4+i}, v{TM+2} offset:1024
        ''')
    for i in range(4):
        a(f'''
        v_lshlrev_b32 v{TM+4}, 16, v{CWR+4+i}
        v_lshlrev_b32 v{TM+5}, 16, v{CWR+8+i}
        v_and_b32 v{TM+6}, s7, v{CWR+4+i}
        v_and_b32 v{TM+7}, s7, v{CWR+8+i}
        v_add_f32 v{TM+4}, v{TM+4}, v{TM+5}
        v_sub_f32 v{TM+6}, v{TM+6}, v{TM+7}
        v_mul_f32 v{TM+4}, {fhex(0.125)}, v{TM+4}
        v_mul_f32 v{TM+6}, {fhex(0.125)}, v{TM+6}
        v_mul_f32 v{WF+i}, {fhex(0.25)}, v{WF+i}
        v_mul_f32 v{WF+4+i}, {fhex(0.25)}, v{WF+4+i}
        v_add_f32 v{PQ+i}, v{WF+i}, v{TM+4}
        v_add_f32 v{PQ+4+i}, v{WF+4+i}, v{TM+6}
        v_sub_f32 v{QQ+i}, v{WF+i}, v{TM+4}
        v_sub_f32 v{QQ+4+i}, v{WF+4+i}, v{TM+6}
        v_mov_b32 v{WF+i}, 1.0
        v_mov_b32 v{WF+4+i}, 0
        ''')
    a('s_waitcnt lgkmcnt(0)')
    for i in range(4):
        zr, zi, mr, mi = D + i, D + 4 + i, ZM + i, ZM + 4 + i
        pr, pi, qr, qi = PQ + i, PQ + 4 + i, QQ + i, QQ + 4 + i
        a(f'''
        v_mul_f32 v{TM}, v{zr}, v{pr}
        v_mul_f32 v{TM+1}, v{zr}, v{pi}
        v_fma_f32 v{TM}, -v{zi}, v{pi}, v{TM}
        v_fmac_f32 v{TM+1}, v{zi}, v{pr}
        v_fmac_f32 v{TM}, v{mr}, v{qr}
        v_fmac_f32 v{TM+1}, v{mr}, v{qi}
        v_fma_f32 v{zr}, v{mi}, v{qi}, v{TM}
        v_fma_f32 v{zi}, -v{mi}, v{qr}, v{TM+1}
        ''')
    a('s_branch .b2_noreal')
    a('.b2_patch_hi:')
    patch(3)
    a('.b2_noreal:')
    mulpack(lambda c: WF + 8 * c, lambda c: WF + 8 * c + 4, False)
    stage(B3R, B3I, True)
    mulpack(lambda c: T3C, lambda c: T3S, False)
    stage(A4R, A4I, False)
    for i in range(4):
        for c in range(4):
            a(f'v_cvt_pk_bf16_f32 v{X+4*i+c}, v{D+8*c+i}, v{D+8*c+4+i}')
        a(f'ds_write_b128 v{vZ}, {vr(X+4*i,4)} offset:{1024*i}')
    lds_arrive(a, C_O, 10)
    lds_wait(a, C_O, 4, 10)
    stamp(a, 7)
    for p in range(4):
        a(f'ds_read_b128 {vr(X+4*p,4)}, v{vL} offset:{1024*p}')
    a(f'''
    v_lshrrev_b32 v8, 2, v{lane}
    v_lshlrev_b32 v8, 14, v8
    v_and_b32 v9, 3, v{lane}
    v_lshl_add_u32 v8, v9, 4, v8
    s_lshl_b32 s4, s12, 5
    s_add_u32 s4, s4, s13
    s_lshl_b32 s4, s4, 6
    s_lshl_b32 s5, s3, 20
    s_add_u32 s4, s4, s5
    ''')
    for p in range(4):
        a(f's_waitcnt lgkmcnt({3-p})')
        a(f'buffer_store_dwordx4 {vr(X+4*p,4)}, v8, s[48:51], s4 offen')
        if p < 3: a(f's_add_u32 s4, s4, {16*16384}')
    a('s_add_u32 s14, s14, 65536')
    a('s_waitcnt vmcnt(0)')
    publish(a, C_S2, 4, 14, 10)
    stamp(a, 8)

    a('.b3_start:')
    a('s_setprio 0')
    X = 16
    G8 = 8
    MR, MI, NR, NI, tc, ts = 80, 96, 112 - 8, 120 - 8, 128, 144
    kf, arg, a2, c0, s0, k5 = range(74, 80)
    tab_init(kf, arg, k5)
    for i in range(16):
        a(f'v_cos_f32 v{c0}, v{arg}')
        a(f'v_sin_f32 v{s0}, v{arg}')
        a(f'v_mul_f32 v{a2}, {fhex(1/32)}, v{arg}')
        a(f'v_cos_f32 v{tc+i}, v{a2}')
        a(f'v_sin_f32 v{ts+i}, v{a2}')
        if i != 15:
            a(f'v_add_f32 v{arg}, v{arg}, v{k5 if (i & 3) == 3 else kf}')
        a(f'v_cvt_pk_bf16_f32 v{MR+i}, v{c0}, -v{s0}')
        a(f'v_cvt_pk_bf16_f32 v{MI+i}, v{s0}, v{c0}')
        if i >= 8:
            a(f'v_cvt_pk_bf16_f32 v{NR+i}, v{c0}, v{s0}')
            a(f'v_cvt_pk_bf16_f32 v{NI+i}, v{s0}, -v{c0}')
    gen_dft8_frags(a, lane, G8, 64, False)
    a(f'''
    v_and_b32 v6, 31, v{lane}
    v_lshlrev_b32 v6, 2, v6
    v_lshrrev_b32 v7, 5, v{lane}
    v_lshl_add_u32 v6, v7, 9, v6
    s_lshl_b32 s4, s8, 12
    s_cmp_eq_u32 s8, 4
    s_cselect_b32 s4, 2, s4
    v_add_u32 v6, s4, v6
    ''')
    srd(a, 44, P_D, 4 << 20, WS_Z2)
    srd(a, 48, P_OUT, 8 << 20)
    a(f'''
    s_lshl_b32 s10, s8, 12
    s_cmp_eq_u32 s8, 4
    s_cselect_b32 s10, 2048, s10
    s_add_u32 s10, s10, {ZB}
    s_lshl_b32 s4, s2, 14
    s_lshl_b32 s11, s8, 11
    s_add_u32 s11, s11, s4
    s_lshl_b32 s12, s9, 11
    s_add_u32 s12, s12, s4
    v_lshlrev_b32 v3, 4, v{lane}
    s_lshr_b32 s4, s2, 2
    ''')
    for which, dst in ((0, vlo), (1, vhi)):
        a(f'v_and_b32 v64, 31, v{lane}')
        a(f'v_lshrrev_b32 v65, 5, v{lane}')
        if which:
            a('v_sub_u32 v64, 31, v64')
            a('v_sub_u32 v65, 1, v65')
        a(f'''
        v_bfe_u32 v66, v64, 2, 2
        v_add_u32 v66, s4, v66
        v_and_b32 v66, 3, v66
        v_lshlrev_b32 v66, 4, v66
        v_and_b32 v67, 3, v64
        v_lshl_add_u32 v66, v67, 2, v66
        v_lshrrev_b32 v67, 4, v64
        v_lshl_add_u32 v66, v67, 6, v66
        v_lshl_add_u32 v66, v65, 9, v66
        v_add_u32 v{dst}, s10, v66
        ''')
    a(f'v_add_u32 v{vhi}, 2048, v{vhi}')
    a('s_cmp_eq_u32 s3, 4')
    a('s_cbranch_scc0 .b3_wait')
    a('s_setprio 2')
    poll_release(a, 16384, C_R0, 4)
    stamp(a, 4)
    lds_wait(a, C_S2, 4, 4, slp=4)
    poll_release(a, 24576, C_R1, 4)
    a('.b3_wait:')
    stamp(a, 9)
    lds_wait(a, C_R1, 1, 4, slp=1)
    a('s_setprio 2')
    stamp(a, 10)
    a('s_mov_b32 m0, s10')
    a('buffer_load_dwordx4 v3, s[44:47], s11 offen sc1 lds')
    a('buffer_load_dwordx4 v3, s[44:47], s11 offen offset:1024 sc1 lds')
    a('s_cmp_eq_u32 s15, 0')
    a('s_cbranch_scc1 .b3_real_noload')
    a('s_add_u32 s4, s10, 2048')
    a('s_mov_b32 m0, s4')
    a('buffer_load_dwordx4 v3, s[44:47], s12 offen sc1 lds')
    a('buffer_load_dwordx4 v3, s[44:47], s12 offen offset:1024 sc1 lds')
    a('.b3_real_noload:')
    lds_arrive(a, C_L3L, 4)
    DR, DI, T0 = 32, 48, 64
    a('s_waitcnt vmcnt(0)')
    for i in range(16):
        a(f'ds_read_b32 v{X+i}, v{vlo if i < 8 else vhi} offset:{z_soff(i) >> 8}')
    a('s_waitcnt lgkmcnt(0)')
    stamp(a, 11)
    a('s_cmp_eq_u32 s15, 0')
    a('s_cbranch_scc0 .b3_cplx1')
    for i in range(8, 16): a(f'v_mov_b32 v{X+i}, 0')
    a(f'''
    s_mov_b64 exec, 1
    v_lshrrev_b32 v{X+8}, 16, v{X}
    s_mov_b64 exec, -1
    ''')
    lds_arrive(a, C_RL, 4)
    a('.b3_cplx1:')
    for c in range(4):
        br, bi = (MR + 4 * c, MI + 4 * c) if c < 2 else (NR + 4 * c, NI + 4 * c)
        a(f'v_mfma_f32_32x32x16_bf16 {vr(DR,16)}, {vr(X+4*c,4)}, {vr(br,4)}, ' + ('0' if c == 0 else vr(DR, 16)))
        a(f'v_mfma_f32_32x32x16_bf16 {vr(DI,16)}, {vr(X+4*c,4)}, {vr(bi,4)}, ' + ('0' if c == 0 else vr(DI, 16)))
    for ib in range(4):
        for k in range(2):
            ip = 2 * ib + k; t = T0 + 8 * (ib & 1) + 4 * k
            a(f'v_pk_mul_f32 {vr(t,2)}, {vr(DI+2*ip,2)}, {vr(ts+2*ip,2)}')
            a(f'v_pk_mul_f32 {vr(t+2,2)}, {vr(DR+2*ip,2)}, {vr(ts+2*ip,2)}')
        for k in range(2):
            ip = 2 * ib + k; t = T0 + 8 * (ib & 1) + 4 * k
            a(f'v_pk_fma_f32 {vr(t,2)}, {vr(DR+2*ip,2)}, {vr(tc+2*ip,2)}, {vr(t,2)} neg_lo:[0,0,1] neg_hi:[0,0,1]')
            a(f'v_pk_fma_f32 {vr(t+2,2)}, {vr(DI+2*ip,2)}, {vr(tc+2*ip,2)}, {vr(t+2,2)}')
        for k in range(2):
            ip = 2 * ib + k; t = T0 + 8 * (ib & 1) + 4 * k
            a(f'v_cvt_pk_bf16_f32 v{X+2*ip}, v{t}, v{t+2}')
            a(f'v_cvt_pk_bf16_f32 v{X+2*ip+1}, v{t+1}, v{t+3}')
    for c in range(4):
        a(f'v_mfma_f32_32x32x16_bf16 {vr(DR,16)}, {vr(MR+4*c,4)}, {vr(X+4*c,4)}, ' + ('0' if c == 0 else vr(DR, 16)))
    a('s_cmp_eq_u32 s15, 0')
    a('s_cbranch_scc1 .b3_real2')
    for c in range(4):
        a(f'v_mfma_f32_32x32x16_bf16 {vr(DI,16)}, {vr(MI+4*c,4)}, {vr(X+4*c,4)}, ' + ('0' if c == 0 else vr(DI, 16)))
    for i in range(16):
        a(f'v_cvt_pk_bf16_f32 v{T0+i}, v{DR+i}, v{DI+i}')
        a(f'ds_write_b32 v6, v{T0+i} offset:{ZB+(8*(i>>2)+(i&3))*128}')
    a('s_branch .b3_join')
    a('.b3_real2:')
    lds_wait(a, C_RL, 2, 4)
    for ip in range(8):
        i = 2 * ip
        a(f'v_cvt_pk_bf16_f32 v{T0+ip}, v{DR+i}, v{DR+i+1}')
        a(f'ds_write_b16 v6, v{T0+ip} offset:{ZB+(8*(i>>2)+(i&3))*128}')
        a(f'ds_write_b16_d16_hi v6, v{T0+ip} offset:{ZB+(8*(i>>2)+(i&3)+1)*128}')
    a('.b3_join:')
    lds_arrive(a, C_L3, 4)
    a('s_cmp_eq_u32 s3, 4')
    a(f's_cbranch_scc1 .b3_end')
    lds_wait(a, C_L3, 5, 4)
    a('v_lshlrev_b32 v6, 4, v0')
    DD = 32
    for p in range(4):
        a(f'ds_read_b128 {vr(64+4*p,4)}, v6 offset:{ZB+4096*p}')
    a(f'''
    s_lshl_b32 s4, s2, 12
    s_add_u32 s4, s4, 2048
    v_lshlrev_b32 v7, 3, v0
    v_add_u32 v7, s4, v7
    ''')
    for p in range(4):
        a(f's_waitcnt lgkmcnt({3-p})')
        for e in range(4):
            a(f'v_mov_b32 v{X+4*e+p}, v{64+4*p+e}')
    for e in range(4):
        for hf in range(2):
            a(f'v_mfma_f32_16x16x32_bf16 {vr(DD+8*e+4*hf,4)}, {vr(G8+4*hf,4)}, {vr(X+4*e,4)}, 0')
    a.raw(';OUT_ON')
    for s1 in range(8):
        a(f'v_cvt_pk_bf16_f32 v{64+2*s1}, v{DD+s1}, v{DD+8+s1}')
        a(f'v_cvt_pk_bf16_f32 v{65+2*s1}, v{DD+16+s1}, v{DD+24+s1}')
        a(f's_mov_b32 s5, {s1*256*4096}')
        a(f'buffer_store_dwordx2 {vr(64+2*s1,2)}, v7, s[48:51], s5 offen')
    a.raw(';PLAIN_OFF')
    a('.b3_end:')
    stamp(a, 12)
    stamp_flush(a, 0, 13)
    if DIAG and os.environ.get('ENC'):
        k = int(os.environ['ENC'])
        a(f'''
        s_cmp_lg_u32 s2, {os.environ.get('ENCWG', '37')}
        s_cbranch_scc1 .enc_end
        s_cmp_lg_u32 s3, 1
        s_cbranch_scc1 .enc_end
        s_sub_u32 s4, s{72+2*k}, s72
        s_lshl_b32 s4, s4, 3
        s_and_b32 s4, s4, 0xffff
        s_memrealtime s[6:7]
        s_waitcnt lgkmcnt(0)
        .enc_loop:
        s_memrealtime s[8:9]
        s_waitcnt lgkmcnt(0)
        s_sub_u32 s5, s8, s6
        s_cmp_lt_u32 s5, s4
        s_cbranch_scc1 .enc_loop
        .enc_end:
        ''')
    a('s_endpgm')

def gen_T(a, lane):
    a('.role_t:')
    remap(a)
    a(f'''
    s_setprio 2
    s_sub_u32 s8, s3, 5
    s_and_b32 s9, s2, 15
    s_lshl_b32 s9, s9, 1
    s_add_u32 s9, s9, s8
    s_lshl_b32 s9, s9, 4
    s_lshr_b32 s11, s2, 4
    s_add_u32 s9, s9, s11
    s_mul_i32 s10, s8, {64*144}
    s_add_u32 s10, s10, {TRB}
    s_lshl_b32 s14, s2, 4
    s_add_u32 s14, s14, 8192
    s_lshl_b32 s15, s11, 8
    s_add_u32 s15, s15, 8192
    s_waitcnt lgkmcnt(0)
    ''')
    if not TFIRST: a('s_barrier')
    srd(a, 44, P_U, 4 << 20)
    TP = gen_transposer(a, lane, 9, 44, 48, 10, 2048, UP, 'u')
    if TFIRST: a('s_barrier')
    a('s_mov_b32 s12, s5')
    getws(a, 10)
    a('s_mov_b32 s5, s12')
    srd(a, 48, P_D, 1024 * UP, WS_UT)
    a.raw(';PLAIN_ON')
    gen_transposer_tail(a, lane, 48, 10, UP, 64, TP)
    stamp(a, 1)
    a('s_waitcnt vmcnt(0)')
    publish(a, C_T1, 2, 14, 10)
    a.raw(';PLAIN_OFF')
    stamp(a, 2)
    a('s_cmp_eq_u32 s8, 0')
    a('s_cbranch_scc0 .t_second')
    poll_group(a, lane, 15, C_G0, 10)
    stamp(a, 3)
    lds_wait(a, C_CV, 4, 10, slp=4)
    a('s_add_u32 s15, s15, 4096')
    poll_group(a, lane, 15, C_G1, 10)
    a('s_branch .t_third')
    a('.t_second:')
    a(f's_cmp_eq_u32 s2, {M0}')
    a('s_cbranch_scc0 .t_third')
    lds_wait(a, C_NONCE, 1, 10, slp=1, sreg=5)
    lds_wait(a, C_S1, 6, 10, slp=1)
    master(a, lane, '0', 65536, 16384)
    a('.t_third:')
    lds_wait(a, C_G1, 1, 10, slp=2)
    lds_wait(a, C_O, 4, 10, slp=1)
    if os.environ.get('T3WAIT', '0') == '1':
        lds_wait(a, C_L3L, 5, 10, slp=1)
    stamp(a, 4)
    srd(a, 44, P_D, 4 << 20, WS_YT)
    srd(a, 48, P_OUT, 8 << 20)
    n0 = len(a.items)
    TP = gen_transposer(a, lane, 9, 44, 48, 10, 4096, 4096, 'y')
    from asmlib import Ins
    for k in range(n0, len(a.items)):
        kind, it = a.items[k]
        if kind == 'i' and it.op.startswith('buffer_load'):
            a.items[k] = ('i', Ins(it.text + ' sc1'))
    gen_transposer_tail(a, lane, 48, 10, 4096, 0, TP, ymode=True)
    stamp(a, 5)
    stamp_flush(a, 0, 6)
    a('s_endpgm')

def master(a, lane, tag, flag_off, rel_off):
    srd(a, 60, P_F, 1 << 18, WS_FLG)
    a(f'v_lshlrev_b32 v6, 4, v{lane}')
    a(f'v_lshlrev_b32 v4, 7, v{lane}')
    a(f's_mov_b32 s6, {SPIN_MAX}')
    a(f's_mov_b32 s7, {flag_off}')
    def pl(k):
        for i in range(4):
            a(f'buffer_load_dword v{64+4*k+i}, v6, s[60:63], s7 offen offset:{1024*i} sc1')
    for k in range(PD - 1):
        pl(k)
        a(f"s_sleep {os.environ.get('PGAP', '4')}")
    a(f'.m_loop{tag}:')
    for k in range(PD):
        pl((k + PD - 1) % PD)
        b = 64 + 4 * k
        a(f'''
        s_waitcnt vmcnt({4*(PD-1)})
        v_xor_b32 v8, s5, v{b}
        v_xor_b32 v9, s5, v{b+1}
        v_xor_b32 v10, s5, v{b+2}
        v_xor_b32 v11, s5, v{b+3}
        v_or_b32 v8, v8, v9
        v_or3_b32 v8, v8, v10, v11
        v_cmp_ne_u32 vcc, 0, v8
        s_cmp_eq_u64 vcc, 0
        s_cbranch_scc1 .m_rel{tag}
        ''')
    a(f'''
    s_sub_u32 s6, s6, 1
    s_cmp_lg_u32 s6, 0
    s_cbranch_scc1 .m_loop{tag}
    .m_rel{tag}:
    v_mov_b32 v8, s5
    s_mov_b32 s7, {rel_off}
    s_mov_b64 exec, {(1 << NREP) - 1 if NREP < 64 else -1}
    buffer_store_dword v8, v4, s[60:63], s7 offen
    s_mov_b64 exec, -1
    ''')
    if EPOCH and tag == '0':
        srd(a, 64, P_WS, 256, WS_EP)
        a('''
        s_mov_b64 exec, 1
        buffer_store_dword v8, v4, s[64:67], 0 offen
        s_mov_b64 exec, -1
        ''')
    a('s_waitcnt vmcnt(0)')

M0, M1 = 74, 139

def gen_M(a, lane):
    a('.role_m:')
    if os.environ.get('CODEPF', '1') == '1':
        KN = NAME + '_kernel'
        a(f'''
        s_getpc_b64 s[6:7]
        .m_pc:
        s_sub_u32 s6, s6, .m_pc-{KN}
        s_subb_u32 s7, s7, 0
        v_lshlrev_b32 v24, {os.environ.get('CPSH', '7')}, v{lane}
        v_mov_b32 v25, s7
        v_add_co_u32 v24, vcc, s6, v24
        v_addc_co_u32 v25, vcc, 0, v25, vcc
        ''')
        step = 64 << int(os.environ.get('CPSH', '7'))
        n = (0x5e00 + step - 1) // step
        for k in range(n):
            if k == n - 1:
                rem = (0x5d00 - k * step) // (step // 64)
                if rem < 64: a(f's_lshr_b64 exec, -1, {64 - rem}')
            a(f'global_load_dword v{26+k}, v[24:25], off')
            if k < n - 1:
                a(f'v_add_co_u32 v24, vcc, {step:#x}, v24')
                a('v_addc_co_u32 v25, vcc, 0, v25, vcc')
        a('s_mov_b64 exec, -1')
    a(f'''
    s_setprio 3
    v_lshlrev_b32 v4, 4, v{lane}
    v_add_u32 v4, {CNT}, v4
    v_mov_b32 v8, 0
    v_mov_b32 v9, 0
    v_mov_b32 v10, 0
    v_mov_b32 v11, 0
    s_mov_b64 exec, 0xff
    ds_write_b128 v4, v[8:11]
    s_mov_b64 exec, -1
    s_memrealtime s[8:9]
    s_waitcnt lgkmcnt(0)
    ''')
    if not EPOCH:
        srd(a, 64, P_DBG, 256)
        a(f'''
        v_mov_b32 v4, 0
        s_or_b32 s5, s8, 1
        s_cmp_lg_u32 s2, 0
        s_cbranch_scc1 .m_nostore
        v_mov_b32 v5, s5
        s_mov_b64 exec, 1
        buffer_store_dword v5, v4, s[64:67], 0 offen
        s_mov_b64 exec, -1
        .m_nostore:
        ''')
        if os.environ.get('TLB', '1') == '1':
            srd(a, 44, P_WS, 32 << 20)
            srd(a, 48, P_OUT, 8 << 20)
            a(f'''
            v_lshlrev_b32 v20, 19, v{lane}
            v_lshlrev_b32 v21, 17, v{lane}
            buffer_load_dword v22, v20, s[44:47], 0 offen sc1
            buffer_load_dword v23, v21, s[48:51], 0 offen sc1
            ''')
            if os.environ.get('TLBW', '1') == '1':
                srd(a, 52, P_WR, 2048 * 1026)
                srd(a, 56, P_WI, 2048 * 1026)
                a('''
                s_mov_b64 exec, 0xffff
                buffer_load_dword v18, v21, s[52:55], 0 offen
                buffer_load_dword v19, v21, s[56:59], 0 offen
                s_mov_b64 exec, -1
                ''')
        a(f'''
        s_barrier
        s_cmp_eq_u32 s2, 0
        s_cbranch_scc1 .m_got
        s_mov_b32 s6, {SPIN_MAX}
        .m_poll:
        buffer_load_dword v5, v4, s[64:67], 0 offen sc1
        s_waitcnt vmcnt(0)
        v_readfirstlane_b32 s5, v5
        s_cmp_lg_u32 s5, 0
        s_cbranch_scc1 .m_got
        s_sub_u32 s6, s6, 1
        s_cmp_lg_u32 s6, 0
        s_cbranch_scc1 .m_poll
        s_mov_b32 s5, 1
        .m_got:
        v_mov_b32 v6, {CNT+4*C_NONCE}
        v_mov_b32 v5, s5
        ds_write_b32 v6, v5
        ''')
        stamp(a, 1)
        rotws(a)
        srd(a, 52, P_WR, 2048 * 1026)
        srd(a, 56, P_WI, 2048 * 1026)
        a(f'''
        s_setprio 1
        s_and_b32 s12, s2, 7
        s_lshr_b32 s13, s2, 3
        ''')
        srd(a, 48, P_D, 16384, WS_CW)
        a(f'''
        v_and_b32 v7, 7, v{lane}
        v_mul_u32_u24 v8, 1026, v7
        v_bfe_u32 v9, v{lane}, 3, 1
        v_lshl_add_u32 v8, v9, 10, v8
        s_mul_i32 s4, s2, 8208
        v_and_b32 v9, 15, v{lane}
        v_lshlrev_b32 v9, 10, v9
        s_lshl_b32 s7, s2, 2
        s_lshl_b32 s14, s2, 4
        s_add_u32 s14, s14, 65536
        s_mov_b64 exec, 0xffff
        buffer_load_ushort v20, v8, s[52:55], s4 offen
        buffer_load_ushort v21, v8, s[56:59], s4 offen
        s_waitcnt vmcnt(0)
        v_lshl_or_b32 v20, v21, 16, v20
        buffer_store_dword v20, v9, s[48:51], s7 offen
        s_mov_b64 exec, -1
        s_waitcnt vmcnt(0)
        s_mov_b32 s69, s5
        ''')
    else:
        srd(a, 64, P_WS, 256, WS_EP)
        srd(a, 52, P_WR, 2048 * 1026)
        srd(a, 56, P_WI, 2048 * 1026)
        a(f'''
        v_mov_b32 v4, 0
        buffer_load_dword v5, v4, s[64:67], 0 offen sc1
        v_and_b32 v7, 7, v{lane}
        v_mul_u32_u24 v8, 1026, v7
        v_bfe_u32 v9, v{lane}, 3, 1
        v_lshl_add_u32 v8, v9, 10, v8
        s_mul_i32 s4, s2, 8208
        s_mov_b64 exec, 0xffff
        buffer_load_ushort v20, v8, s[52:55], s4 offen
        buffer_load_ushort v21, v8, s[56:59], s4 offen
        s_mov_b64 exec, -1
        ''')
        TLB = os.environ.get('TLB', '1')
        if TLB != '0':
            srd(a, 48, P_OUT, 8 << 20)
            a(f'''
            v_lshlrev_b32 v25, 17, v{lane}
            buffer_load_dword v23, v25, s[48:51], 0 offen sc1
            ''')
        a(f'''
        s_barrier
        s_and_b32 s12, s2, 7
        s_lshr_b32 s13, s2, 3
        v_and_b32 v9, 15, v{lane}
        v_lshlrev_b32 v9, 10, v9
        s_lshl_b32 s7, s2, 2
        s_lshl_b32 s14, s2, 4
        s_add_u32 s14, s14, 65536
        v_mov_b32 v6, {CNT+4*C_NONCE}
        s_waitcnt vmcnt({2 if TLB == '0' else 3})
        v_readfirstlane_b32 s5, v5
        s_add_u32 s5, s5, 0x9e3779ba
        s_or_b32 s5, s5, 1
        v_mov_b32 v5, s5
        ds_write_b32 v6, v5
        ''')
        stamp(a, 1)
        rotws(a)
        if TLB != '0':
            srd(a, 44, P_D, 32 << 20)
            a(f'''
            v_lshlrev_b32 v24, 19, v{lane}
            buffer_load_dword v22, v24, s[44:47], 0 offen sc1
            ''')
        srd(a, 48, P_D, 16384, WS_CW)
        a(f'''
        s_setprio 1
        s_mov_b64 exec, 0xffff
        s_waitcnt vmcnt({0 if TLB == '0' else 2})
        v_lshl_or_b32 v20, v21, 16, v20
        buffer_store_dword v20, v9, s[48:51], s7 offen
        s_mov_b64 exec, -1
        s_waitcnt vmcnt(0)
        s_mov_b32 s69, s5
        ''')
    publish(a, C_S1, 6, 14, 12)
    a('s_mov_b32 s5, s69')
    if os.environ.get('WPF', '0') == '1':
        a(f'''
        v_lshrrev_b32 v7, 3, v{lane}
        v_mul_u32_u24 v7, 8208, v7
        v_and_b32 v8, 7, v{lane}
        v_lshl_add_u32 v7, v8, 7, v7
        s_mul_i32 s4, s13, {8*8208}
        s_mul_i32 s7, s12, 1026
        s_add_u32 s4, s4, s7
        s_and_b32 s4, s4, 0xfffffffc
        ''')
        lds_wait(a, C_PA, 4, 12, slp=2, sreg=7)
        a(f'''
        buffer_load_dword v20, v7, s[52:55], s4 offen
        buffer_load_dword v21, v7, s[56:59], s4 offen
        buffer_load_dword v22, v7, s[52:55], s4 offen offset:124
        buffer_load_dword v23, v7, s[56:59], s4 offen offset:124
        ''')
    a(f'''
    v_lshrrev_b32 v7, 1, v{lane}
    v_lshlrev_b32 v8, 3, v7
    v_add_u32 v8, s12, v8
    v_mul_u32_u24 v8, 1026, v8
    v_and_b32 v9, 1, v{lane}
    v_lshl_add_u32 v8, v9, 4, v8
    s_lshl_b32 s11, s13, 5
    s_cmp_ge_u32 s12, 5
    s_cselect_b32 s7, 2, 0
    s_add_u32 s11, s11, s7
    v_bfe_u32 v15, v{lane}, 3, 2
    v_lshl_add_u32 v15, v9, 1, v15
    v_and_b32 v14, 3, v15
    v_add_u32 v15, 1, v15
    v_and_b32 v15, 3, v15
    v_lshlrev_b32 v7, 6, v7
    v_add_u32 v7, {WB}, v7
    v_lshl_add_u32 v16, v14, 4, v7
    v_lshl_add_u32 v17, v15, 4, v7
    ''')
    WL = 32
    WBATCH = int(os.environ.get('WBATCH', '2'))
    WEARLY = int(os.environ.get('WEARLY', '0'))
    def wload(q):
        a(f'buffer_load_dwordx4 {vr(WL+8*q,4)}, v8, s[52:55], s11 offen')
        a(f'buffer_load_dwordx4 {vr(WL+8*q+4,4)}, v8, s[56:59], s11 offen')
        if q < 7: a(f's_add_u32 s11, s11, {32*8*1026}')
    def wstage(q):
        for ar in range(2):
            r = WL + 8 * q + 4 * ar
            a(f'ds_write_b64 v16, {vr(r,2)} offset:{q*2048+ar*8}')
            a(f'ds_write_b64 v17, {vr(r+2,2)} offset:{q*2048+ar*8}')
    for q in range(WEARLY):
        wload(q)
        a('s_waitcnt vmcnt(0)')
    lds_wait(a, C_T1, 2, 12, slp=2)
    lds_wait(a, C_S1, 6, 12, slp=2)
    stamp(a, 2)
    first = True
    for q0 in range(WEARLY, 8, WBATCH):
        qs = list(range(q0, min(8, q0 + WBATCH)))
        for q in qs: wload(q)
        if first:
            for q in range(WEARLY): wstage(q)
            first = False
        for q in qs:
            a(f's_waitcnt vmcnt({2*(qs[-1]-q)})')
            wstage(q)
    lds_arrive(a, C_W, 12)
    stamp(a, 3)
    a(f's_cmp_eq_u32 s2, {M1}')
    a('s_cbranch_scc0 .m_end')
    lds_wait(a, C_S2, 4, 12, slp=2)
    a('s_setprio 3')
    master(a, lane, '1', 131072, 24576)
    a('.m_end:')
    stamp(a, 4)
    stamp_flush(a, 0, 5)
    a('s_endpgm')

def gen_A(a, lane):
    a('.role_a:')
    remap(a)
    KB = 32
    UR = 128
    a(f'''
    s_and_b32 s10, s3, 3
    s_lshl_b32 s9, s2, 2
    s_add_u32 s9, s9, s10           ; channel
    s_mul_i32 s10, s10, {CH_REG}
    s_add_u32 s10, s10, {CH0}
    s_lshl_b32 s68, s9, 8
    s_lshl_b32 s69, s9, 1
    v_lshlrev_b32 v{KB+5}, 3, v{lane}
    v_add_u32 v{KB+5}, s10, v{KB+5}
    v_lshlrev_b32 v{KB+3}, 2, v{lane}
    v_mov_b32 v{KB+4}, 0
    v_lshlrev_b32 v3, 4, v{lane}
    s_mul_i32 s15, s9, {UP}
    s_add_u32 s15, s15, 64
    v_add_u32 v23, s10, v3
    s_lshl_b32 s14, s2, 4
    s_add_u32 s14, s14, 12288
    v_and_b32 v4, 31, v{lane}             ; b
    v_lshrrev_b32 v5, 5, v{lane}          ; h
    v_lshlrev_b32 v6, 4, v4
    s_add_u32 s11, s10, {CV_K}
    v_sub_u32 v6, s11, v6
    v_lshlrev_b32 v7, 3, v5
    v_sub_u32 v20, v6, v7
    v_lshlrev_b32 v7, 9, v5
    v_sub_u32 v21, v6, v7
    v_sub_u32 v22, v21, v7
    v_add_u32 v22, {2*760}, v22
    v_add_u32 v21, {2*1528}, v21
    v_add_u32 v20, {2*1788}, v20
    ''')
    vKA, vKB = 18, 19
    a(f'''
    v_lshlrev_b32 v7, 4, v5
    v_add_u32 v7, s10, v7
    v_add_u32 v6, 28, v4
    v_mul_u32_u24 v6, {KP}, v6
    v_add_u32 v{vKB}, v6, v7
    v_mov_b32 v6, v4
    ''')
    for thr in (11, 15, 19, 23):
        a(f'v_cmp_lt_u32 vcc, {thr}, v4')
        a(f'v_subbrev_co_u32 v6, vcc, 0, v6, vcc')
    vF, vG = 24, 25
    a(f'''
    v_mul_u32_u24 v6, {KP}, v6
    v_add_u32 v{vKA}, v6, v7
    v_and_b32 v7, 1, v4
    v_cmp_eq_u32 s[70:71], 1, v7          ; odd b
    v_and_b32 v26, 15, v{lane}
    v_lshrrev_b32 v27, 4, v{lane}
    v_lshlrev_b32 v28, 4, v27
    v_lshlrev_b32 v29, 3, v26
    v_sub_u32 v{vF}, v28, v29
    s_add_u32 s6, s11, {2*2044-3968}
    v_add_u32 v{vF}, s6, v{vF}
    v_and_b32 v30, 3, v26
    v_mul_u32_u24 v30, {CS}, v30
    v_lshrrev_b32 v31, 2, v26
    v_lshl_add_u32 v30, v31, 7, v30
    v_add3_u32 v{vG}, v30, v28, s10
    s_waitcnt lgkmcnt(0)
    ''')
    srd(a, 44, P_LOGA, 1024 * 256)
    srd(a, 48, P_LOGDT, 2048)
    srd(a, 52, P_AIM, 1024 * 256)
    a(f'buffer_load_dword v{KB+8}, v{KB+3}, s[44:47], s68 offen')
    a(f'buffer_load_ushort v{KB+12}, v{KB+4}, s[48:51], s69 offen')
    a(f'buffer_load_dword v{KB+9}, v{KB+3}, s[52:55], s68 offen')
    srd(a, 44, P_CRE, 1024 * 256)
    srd(a, 48, P_CIM, 1024 * 256)
    srd(a, 52, P_DSKIP, 2048)
    a(f'buffer_load_dword v{KB+10}, v{KB+3}, s[44:47], s68 offen')
    a(f'buffer_load_dword v{KB+11}, v{KB+3}, s[48:51], s68 offen')
    a(f'buffer_load_ushort v17, v{KB+4}, s[52:55], s69 offen')
    a('s_barrier')
    a(f"s_setprio {os.environ.get('APRIO', '1')}")
    stamp(a, 8)
    a('s_waitcnt vmcnt(3)')
    stamp(a, 1)
    gen_kgen(a, 0, KB, KB + 5, 's_nop 0', 's_nop 0')
    stamp(a, 9)
    gen_kgen(a, 1, KB, KB + 5, 's_nop 0', 's_waitcnt vmcnt(0)', skip_setup=True)
    a('s_waitcnt lgkmcnt(0)')
    stamp(a, 2)
    D = 32
    FB = 64
    def rd(kk):
        b = FB + 8 * (kk & 7)
        a(f'ds_read_b128 {vr(b,4)}, v{vKA} offset:{kk*32}')
        a(f'ds_read_b128 {vr(b+4,4)}, v{vKB} offset:{kk*32}')
    for kk in range(6): rd(kk)
    for kk in range(16):
        b = FB + 8 * (kk & 7)
        rem = min(5, 15 - kk)
        a(f's_waitcnt lgkmcnt({2*rem})')
        a(f'v_mfma_f32_32x32x16_bf16 {vr(D,16)}, {vr(b,4)}, {vr(b+4,4)}, ' + ('0' if kk == 0 else vr(D, 16)))
        if kk + 6 < 16: rd(kk + 6)
    a(f'''
    v_mov_b32 v8, 0
    v_mov_b32 v9, 0
    v_mov_b32 v10, 0
    v_mov_b32 v11, 0
    s_mov_b64 exec, 0xffffff
    ''')
    for c in range(4):
        a(f'ds_write_b128 v23, v[8:11] offset:{c*CS}')
    E = 128
    a(f'''
    s_mov_b64 exec, 0xff
    ds_write_b128 v23, v[8:11] offset:{CV_K+4096}
    s_mov_b64 exec, -1
    v_lshlrev_b32 v17, 16, v17
    s_mov_b64 exec, 1
    v_add_f32 v{D}, v{D}, v17
    s_mov_b64 exec, -1
    v_cvt_pk_bf16_f32 v{E}, v{D+3}, v{D+2}
    v_cvt_pk_bf16_f32 v{E+1}, v{D+1}, v{D}
    ds_write_b64 v20, {vr(E,2)} offset:512
    v_cvt_pk_bf16_f32 v{E+2}, v{D+6}, v{D+5}
    v_cvt_pk_bf16_f32 v{E+3}, v{D+4}, v{D+4}
    ds_write_b64 v20, {vr(E+2,2)}
    v_cvt_pk_bf16_f32 v{E+4}, v{D+10}, v{D+10}
    v_cvt_pk_bf16_f32 v{E+5}, v{D+9}, v{D+9}
    v_cvt_pk_bf16_f32 v{E+6}, v{D+9}, v{D+8}
    v_cvt_pk_bf16_f32 v{E+7}, v{D+8}, v{D+8}
    ds_write_b128 v21, {vr(E+4,4)}
    ''')
    for j in range(2):
        x, z, q = D + 12 + 2 * j, D + 13 + 2 * j, E + 8 + 4 * j
        a(f'''
        v_cndmask_b32 v{D+7}, v{x}, v{z}, s[70:71]
        v_cvt_pk_bf16_f32 v{q}, v{z}, v{z}
        v_cvt_pk_bf16_f32 v{q+1}, v{z}, v{D+7}
        v_cvt_pk_bf16_f32 v{q+2}, v{x}, v{x}
        v_cvt_pk_bf16_f32 v{q+3}, v{x}, v{x}
        ds_write_b128 v22, {vr(q,4)} offset:{512*(1-j)}
        ''')
    ACC = 32
    a('s_waitcnt lgkmcnt(0)')
    for k in range(32): a(f'v_mov_b32 v{ACC+k}, 0')
    a(f'v_mov_b32 v{UR}, 0')
    a(f'v_mov_b32 v{UR+1}, 0')
    getws(a, 8)
    srd(a, 44, P_D, 1024 * UP, WS_UT)
    srd(a, 52, P_D, 4 << 20, WS_YT)
    a('s_lshl_b32 s13, s9, 12')
    stamp(a, 3)
    lds_wait(a, C_G0, 1, 8, slp=1)
    a('s_setprio 3')
    stamp(a, 4)
    for p in range(4):
        a(f'buffer_load_dwordx4 {vr(UR+8*p+2,4)}, v3, s[44:47], s15 offen offset:{p*1024} sc1')
    lds_arrive(a, C_UL, 8)
    dpp = 'row_mask:0xf bank_mask:0xf'
    Q = 64
    for p in range(4):
        r = UR + 8 * p
        q = Q + 12 * p
        a(f's_waitcnt vmcnt({3-p})')
        a(f'ds_write_b128 v23, {vr(r+2,4)} offset:{384 + 3*CS + 1024*p}')
        a(f'v_mov_b32_dpp v{r}, v{r+4} wave_shr:1 {dpp}')
        a(f'v_mov_b32_dpp v{r+1}, v{r+5} wave_shr:1 {dpp}')
        if p < 3:
            a(f'v_mov_b32_dpp v{r+8}, v{r+4} wave_ror:1 {dpp}')
            a(f'v_mov_b32_dpp v{r+9}, v{r+5} wave_ror:1 {dpp}')
        for j in range(4):
            a(f'v_mov_b32 v{q+8+j}, v{r+1+j}')
        a(f'ds_write_b128 v23, {vr(q+8,4)} offset:{384 + 1*CS + 1024*p}')
        for j in range(4):
            a(f'v_alignbit_b32 v{q+j}, v{r+j+1}, v{r+j}, 16')
        a(f'ds_write_b128 v23, {vr(q,4)} offset:{384 + 1024*p}')
        for j in range(3):
            a(f'v_mov_b32 v{q+4+j}, v{q+1+j}')
        a(f'v_alignbit_b32 v{q+7}, v{r+5}, v{r+4}, 16')
        a(f'ds_write_b128 v23, {vr(q+4,4)} offset:{384 + 2*CS + 1024*p}')
    G0, F0 = 64, 96
    def ld(kind, idx, off):
        if kind == 'G':
            return [f'ds_read_b128 {vr(G0+4*idx,4)}, v{vG} offset:{512*idx+off}']
        return [f'ds_read_b64 {vr(F0+4*idx,2)}, v{vF} offset:{512*(7-idx)+off}', f'ds_read_b64 {vr(F0+4*idx+2,2)}, v{vF} offset:{512*(7-idx)+off+8}']
    even = [(i, c) for i in range(8) for c in range(7 - i, -1, -1)]
    odd = [(i, c) for c in range(7, -1, -1) for i in range(8 - c)]
    def plan(seq):
        lastG, lastF = {}, {}
        for n, (i, c) in enumerate(seq): lastG[i] = n; lastF[c] = n
        rel = {}
        for i, n in lastG.items(): rel.setdefault(n, []).append(('G', i))
        for c, n in lastF.items(): rel.setdefault(n, []).append(('F', c))
        return rel
    rel_e, rel_o = plan(even), plan(odd)
    order0 = [x for n in range(36) for x in rel_o.get(n, [])]
    a('s_waitcnt lgkmcnt(0)')
    stamp(a, 5)
    queue = []
    for kind, idx in order0:
        for ins in ld(kind, idx, 0):
            a(ins); queue.append((kind, idx))
    a('s_mov_b32 s12, 0')
    a('s_setprio 1')
    a(f'v_mov_b32 v16, {CNT+4*C_Z}')
    a('.cv_loop:')
    q0 = list(queue)
    PAUSE = os.environ.get('PAUSE', '0') == '1'
    PK = [int(x) for x in os.environ.get('PAUSE_AT', '12,30').split(',')]
    for seq, rel, off in ((even, rel_e, 64), (odd, rel_o, 128)):
        for n, (i, c) in enumerate(seq):
            if PAUSE and n in PK:
                a(f'ds_read_b96 v[8:10], v16'); queue.append(('P', 0))
            want = [('G', i), ('F', c)]
            chk = PAUSE and (n - 4) in PK
            if chk: want.append(('P', 0))
            need = [k for k, x in enumerate(queue) if x in want]
            if need:
                left = len(queue) - 1 - max(need)
                a(f's_waitcnt lgkmcnt({min(left, 15)})')
                queue = queue[max(need) + 1:] if left <= 15 else queue[len(queue) - 15:]
            if chk:
                Lg = a.label('go')
                a(f'''
                v_sub_u32 v8, v8, v10
                v_readfirstlane_b32 s4, v8
                s_cmp_lt_i32 s4, {os.environ.get('PAUSE_TH', '1')}
                s_cbranch_scc1 {Lg}
                ''')
                lds_wait(a, C_O, 4, 12, slp=1)
                a(f'{Lg}:')
            A = i + c
            a(f'v_mfma_f32_16x16x32_bf16 {vr(ACC+4*A,4)}, {vr(G0+4*i,4)}, {vr(F0+4*c,4)}, {vr(ACC+4*A,4)}')
            for kind, idx in rel.get(n, []):
                for ins in ld(kind, idx, off):
                    a(ins); queue.append((kind, idx))
    assert q0[len(q0) - len(queue):] == queue, (q0, queue)
    a(f'''
    v_add_u32 v{vG}, 128, v{vG}
    v_add_u32 v{vF}, 128, v{vF}
    s_add_u32 s12, s12, 1
    s_cmp_lt_u32 s12, 4
    s_cbranch_scc1 .cv_loop
    ''')
    stamp(a, 6)
    a.raw(';PLAIN_ON')
    for P in range(4):
        o = 128 + 4 * P
        for e in range(2):
            A = 2 * P + e
            a(f'v_cvt_pk_bf16_f32 v{o+2*e}, v{ACC+4*A}, v{ACC+4*A+1}')
            a(f'v_cvt_pk_bf16_f32 v{o+2*e+1}, v{ACC+4*A+2}, v{ACC+4*A+3}')
        a(f'buffer_store_dwordx4 {vr(o,4)}, v3, s[52:55], s13 offen offset:{1024*P}')
    a('s_waitcnt vmcnt(0) lgkmcnt(0)')
    publish(a, C_CV, 4, 14, 8)
    a.raw(';PLAIN_OFF')
    stamp(a, 7)
    stamp_flush(a, 0, 10)
    a('s_endpgm')

def build():
    hdr = open(f'cdna_kernels/{NAME}.s.ref').read().split('\n')
    head = [l for l in hdr if l.startswith(';') and '@launch' not in l.lower()]
    out = '\n'.join(head) + '\n'
    out += f'; @launch grid=(256,1,1) block=(768,1,1) lds={LDS_SIZE}\n'
    out += '.amdgcn_target "amdgcn-amd-amdhsa--gfx950"\n.text\n'
    a = Asm()
    KN = NAME + '_kernel'
    a.raw(f'.globl {KN}')
    a.raw(f'.type {KN},@function')
    gen_main(a)
    body = a.render()
    res = []
    plain = False
    for l in body.split('\n'):
        if l.startswith(';PLAIN_ON'): plain = XL2
        if l.startswith(';OUT_ON'): plain = os.environ.get('OUTPLAIN', '0') == '1'
        if l.startswith(';PLAIN_OFF'): plain = False
        if l.strip().startswith('buffer_store') and not plain:
            flag = 's[60:63]' in l or 's[64:67]' in l
            l = l + ' ' + (os.environ.get('FSPOL', 'sc1') if flag else os.environ.get('STPOL', 'sc1'))
        if l.strip().startswith('buffer_load_dwordx4') and ' sc1' in l:
            l = l.replace(' sc1', ' ' + os.environ.get('LDPOL', 'sc1'))
        elif l.strip().startswith('buffer_load') and ' sc1' in l and ('s[60:63]' in l or 's[64:67]' in l):
            l = l.replace(' sc1', ' ' + os.environ.get('FLPOL', 'sc1'))
        res.append(l)
    out += '\n'.join(res)
    out += '.section .rodata,"a"\n'
    out += kd(KN, 168, 102)
    return out

if __name__ == '__main__':
    path = sys.argv[1] if len(sys.argv) > 1 else f'cdna_kernels/{NAME}.s'
    open(path, 'w').write(build())
    print('wrote', path)
```

```python
import sys, os, struct
sys.path.insert(0, 'dev')
from gen import (Asm, NAME, fhex, vr, srd, stamp, stamp_flush, gen_dft8_frags, gen_z_addr, z_soff,
                 gen_transposer, gen_transposer_tail, kd, DIAG,
                 WS_Z1, WS_Z2, WS_UT, UP, WS_YT,
                 P_U, P_LOGA, P_AIM, P_CRE, P_CIM, P_LOGDT, P_DSKIP, P_X, P_WR, P_WI, P_OUT, P_DBG, P_WS)
from gen23 import cmul_sc, cmul_pk
import gen3
from gen3 import gen_kgen, KP, CH_REG, CS, CV_K

ZB = 0
WB = 16384
SCR = 32768
TRB = WB
CNT = 34816
CH0 = CNT + 128
LDS_SIZE = CH0 + 4 * CH_REG
WS_CW = 20 << 20
WS_FLG = 28 << 20
C_PA, C_S1, C_R0, C_S2, C_Z, C_W, C_O, C_R1, C_L3, C_T1, C_G0, C_CV, C_G1, C_NONCE, C_TL, C_UL, C_RL, C_L3L = range(18)
SPIN_MAX = 0x80000
EPOCH = os.environ.get('EPOCH', '1') == '1'
ROT = int(os.environ.get('ROT', '8'))
FLAGROT = os.environ.get('FLAGROT', '0') == '1'
WS_EP = 30 << 20
P_WR_ = 42
P_D = P_WR_ if ROT > 1 else P_WS
P_F = P_WR_ if (ROT > 1 and FLAGROT) else P_WS
def rotws(a):
    if ROT > 1:
        a(f'''
        s_lshl_b32 s42, s5, 24
        s_and_b32 s42, s42, {(ROT - 1) << 25:#x}
        s_add_u32 s42, s40, s42
        s_addc_u32 s43, s41, 0
        ''')
def getws(a, vt):
    if ROT > 1:
        lds_wait(a, C_NONCE, 1, vt, slp=1, sreg=5)
        rotws(a)
TFIRST = os.environ.get('TFIRST', '0') == '1'

def lds_arrive(a, c, vt):
    a(f'''
    v_mov_b32 v{vt}, {CNT+4*c}
    v_mov_b32 v{vt+1}, 1
    s_waitcnt lgkmcnt(0)
    s_mov_b64 exec, 1
    ds_add_u32 v{vt}, v{vt+1}
    s_mov_b64 exec, -1
    ''')

def lds_wait(a, c, n, vt, slp=0, sreg=4):
    L = a.label('spin'); E = a.label('spun')
    a(f'''
    v_mov_b32 v{vt}, {CNT+4*c}
    {L}:
    ds_read_b32 v{vt+1}, v{vt}
    s_waitcnt lgkmcnt(0)
    v_readfirstlane_b32 s{sreg}, v{vt+1}
    s_cmp_ge_u32 s{sreg}, {n}
    s_cbranch_scc1 {E}
    s_sleep {slp}
    s_branch {L}
    {E}:
    ''')

FR = int(os.environ.get('FR', '16'))
def publish(a, c, n, flag_off_sreg, vt, rep=1):
    E = a.label('pub')
    a(f'''
    v_mov_b32 v{vt}, {CNT+4*c}
    v_mov_b32 v{vt+1}, 1
    s_mov_b64 exec, 1
    ds_add_rtn_u32 v{vt+1}, v{vt}, v{vt+1}
    s_mov_b64 exec, -1
    s_waitcnt lgkmcnt(0)
    v_readfirstlane_b32 s4, v{vt+1}
    s_cmp_lg_u32 s4, {n-1}
    s_cbranch_scc1 {E}
    ''')
    lds_wait(a, C_NONCE, 1, vt, slp=1, sreg=5)
    srd(a, 60, P_F, 1 << 18, WS_FLG)
    a(f'''
    v_lshlrev_b32 v{vt}, 10, v2
    v_mov_b32 v{vt+1}, s5
    s_mov_b64 exec, {(1 << rep) - 1}
    buffer_store_dword v{vt+1}, v{vt}, s[60:63], s{flag_off_sreg} offen
    s_mov_b64 exec, -1
    {E}:
    ''')

NREP = int(os.environ.get('NREP', '32'))
PD = int(os.environ.get('PD', '1'))
def poll_release(a, rel_off, c, vt):
    L = a.label('poll'); E = a.label('polled')
    lds_wait(a, C_NONCE, 1, vt, slp=1, sreg=5)
    srd(a, 60, P_F, 1 << 18, WS_FLG)
    a(f'''
    v_mov_b32 v{vt}, 0
    s_mov_b32 s6, {SPIN_MAX}
    s_and_b32 s7, s2, {NREP-1}
    s_lshl_b32 s7, s7, 7
    s_add_u32 s7, s7, {rel_off}
    ''')
    for k in range(PD - 1):
        a(f'buffer_load_dword v{64+k}, v{vt}, s[60:63], s7 offen sc1')
        a(f"s_sleep {os.environ.get('PGAP', '4')}")
    a(f'{L}:')
    for k in range(PD):
        a(f'''
        buffer_load_dword v{64+(k+PD-1)%PD}, v{vt}, s[60:63], s7 offen sc1
        s_waitcnt vmcnt({PD-1})
        v_readfirstlane_b32 s4, v{64+k}
        s_cmp_eq_u32 s4, s5
        s_cbranch_scc1 {E}
        ''')
    a(f'''
    s_sub_u32 s6, s6, 1
    s_cmp_lg_u32 s6, 0
    s_cbranch_scc1 {L}
    {E}:
    ''')
    lds_arrive(a, c, vt)
    a('s_waitcnt vmcnt(0)')

def poll_group(a, lane, base_sreg, c, vt):
    L = a.label('poll'); E = a.label('polled')
    lds_wait(a, C_NONCE, 1, vt, slp=1, sreg=5)
    srd(a, 60, P_F, 1 << 18, WS_FLG)
    a(f'''
    v_and_b32 v{vt}, 15, v{lane}
    v_lshlrev_b32 v{vt}, 4, v{vt}
    s_mov_b32 s6, {SPIN_MAX}
    ''')
    for k in range(PD - 1):
        a(f'buffer_load_dword v{64+k}, v{vt}, s[60:63], s{base_sreg} offen sc1')
        a(f"s_sleep {os.environ.get('PGAP', '4')}")
    a(f'{L}:')
    for k in range(PD):
        a(f'''
        buffer_load_dword v{64+(k+PD-1)%PD}, v{vt}, s[60:63], s{base_sreg} offen sc1
        s_waitcnt vmcnt({PD-1})
        v_cmp_ne_u32 vcc, s5, v{64+k}
        s_cmp_eq_u64 vcc, 0
        s_cbranch_scc1 {E}
        ''')
    a(f'''
    s_sub_u32 s6, s6, 1
    s_cmp_lg_u32 s6, 0
    s_cbranch_scc1 {L}
    {E}:
    ''')
    lds_arrive(a, c, vt)
    a('s_waitcnt vmcnt(0)')

XL2 = os.environ.get('XL2', '0') == '1'
def remap(a):
    if XL2:
        a('''
        s_mov_b32 s43, s2
        s_and_b32 s4, s2, 7
        s_lshl_b32 s4, s4, 5
        s_lshr_b32 s2, s2, 3
        s_or_b32 s2, s2, s4
        ''')

def gen_main(a):
    KN = NAME + '_kernel'
    a.raw('.p2align 8')
    a.raw(f'{KN}:')
    EXIT = '.exit'
    lane = 2
    a(f'''
    s_cmp_ge_u32 s2, 256
    s_cbranch_scc1 {EXIT}
    ''')
    stamp(a, 0)
    a('''
    s_load_dwordx16 s[16:31], s[0:1], 0
    s_load_dwordx8 s[32:39], s[0:1], 64
    s_load_dwordx2 s[40:41], s[0:1], 96
    v_lshrrev_b32 v1, 6, v0
    v_and_b32 v2, 63, v0
    v_readfirstlane_b32 s3, v1
    ''')
    ORDER = os.environ.get('ORDER', 'BTMA')
    if ORDER == 'ATMB':
        a('''
        s_mov_b32 s4, 0x0765ba98
        s_mov_b32 s5, 0x00004321
        s_lshl_b32 s6, s3, 2
        s_lshr_b64 s[4:5], s[4:5], s6
        s_and_b32 s3, s4, 15
        s_lshl_b32 s4, s3, 6
        v_add_u32 v0, s4, v2
        ''')
    a('''
    s_cmp_ge_u32 s3, 8
    s_cbranch_scc1 .role_a
    s_cmp_eq_u32 s3, 7
    s_cbranch_scc1 .role_m
    s_cmp_ge_u32 s3, 5
    s_cbranch_scc1 .role_t
    ''')
    gen_B(a, lane, EXIT)
    gen_T(a, lane)
    gen_M(a, lane)
    gen_A(a, lane)
    a(f'{EXIT}:')
    a('s_endpgm')

def gen_B(a, lane, EXIT):
    a(f'''
    s_setprio 2
    s_mov_b32 s8, s3
    s_and_b32 s15, s3, 3
    s_sub_u32 s9, 8, s8
    s_lshl_b32 s4, s2, 11
    v_lshlrev_b32 v3, 3, v0
    v_add_u32 v7, s4, v3
    ''')
    XL = 16
    F8 = 8
    vC, vS, vnS, vCt, vnSt, tc, ts = 80, 88, 96, 104, 112, 120, 136
    kf, arg, a2, c0, c1, s0, s1_, k5, sg = range(64, 73)
    def tab_init(kf, arg, k5):
        a(f'''
        v_and_b32 v{kf}, 31, v{lane}
        v_cvt_f32_u32 v{kf}, v{kf}
        v_mul_f32 v{kf}, {fhex(1/32)}, v{kf}
        v_lshrrev_b32 v{arg}, 5, v{lane}
        v_cvt_f32_u32 v{arg}, v{arg}
        v_mul_f32 v{arg}, 4.0, v{arg}
        v_mul_f32 v{arg}, v{arg}, v{kf}
        v_mul_f32 v{k5}, {fhex(5.0)}, v{kf}
        ''')
    tab_init(kf, arg, k5)
    a(f'''
    v_and_b32 v{sg}, 16, v{lane}
    v_lshlrev_b32 v{sg}, 11, v{sg}
    v_lshl_or_b32 v{sg}, v{sg}, 16, v{sg}
    ''')
    def tab(ip):
        for e, (cr, sr) in enumerate(((c0, s0), (c1, s1_))):
            i = 2 * ip + e
            a(f'v_cos_f32 v{cr}, v{arg}')
            a(f'v_sin_f32 v{sr}, v{arg}')
            a(f'v_mul_f32 v{a2}, {fhex(1/32)}, v{arg}')
            a(f'v_cos_f32 v{tc+i}, v{a2}')
            a(f'v_sin_f32 v{ts+i}, v{a2}')
            if i != 15:
                a(f'v_add_f32 v{arg}, v{arg}, v{k5 if (i & 3) == 3 else kf}')
        a(f'v_cvt_pk_bf16_f32 v{vC+ip}, v{c0}, v{c1}')
        a(f'v_cvt_pk_bf16_f32 v{vS+ip}, v{s0}, v{s1_}')
        a(f'v_cvt_pk_bf16_f32 v{vnS+ip}, -v{s0}, -v{s1_}')
        a(f'v_xor_b32 v{vCt+ip}, v{sg}, v{vC+ip}')
        a(f'v_xor_b32 v{vnSt+ip}, v{sg}, v{vnS+ip}')
    NPRE = 3
    for ip in range(NPRE): tab(ip)
    a('s_waitcnt lgkmcnt(0)')
    srd(a, 44, P_X, 4 << 20)
    if TFIRST: a('s_barrier')
    a('s_cmp_eq_u32 s3, 4')
    a('s_cbranch_scc1 .b1_noload')
    for s1 in range(8):
        a(f's_mov_b32 s5, {s1*256*2048}')
        a(f'buffer_load_dwordx2 {vr(XL+2*s1,2)}, v7, s[44:47], s5 offen')
    a('.b1_noload:')
    if not TFIRST: a('s_barrier')
    gen_dft8_frags(a, lane, F8, 32, True)
    for ip in range(NPRE, 8): tab(ip)
    vlo, vhi, vtr = 164, 165, 154
    gen_z_addr(a, lane, vlo, vhi, 64, 2, 8, 9)
    a(f'''
    v_lshrrev_b32 v64, 5, v{lane}
    v_bfe_u32 v65, v{lane}, 2, 2
    v_lshl_add_u32 v64, v64, 2, v65
    v_lshlrev_b32 v64, 6, v64
    v_bfe_u32 v65, v{lane}, 4, 1
    v_lshl_add_u32 v64, v65, 5, v64
    v_and_b32 v65, 3, v{lane}
    v_lshl_add_u32 v64, v65, 3, v64
    s_lshl_b32 s4, s8, 1
    s_cmp_eq_u32 s8, 4
    s_cselect_b32 s4, 1, s4
    s_lshl_b32 s4, s4, 11
    v_add_u32 v{vtr}, s4, v64
    ''')
    a('s_cmp_eq_u32 s3, 4')
    a('s_cbranch_scc1 .b1_phaseB')
    BO, DD = 32, 48
    a('s_mov_b32 s4, 0x05040100')
    a('s_mov_b32 s5, 0x07060302')
    a('s_waitcnt vmcnt(0)')
    for e in range(4):
        for p in range(4):
            lo, hi = XL + 2 * (2 * p) + (e >> 1), XL + 2 * (2 * p + 1) + (e >> 1)
            a(f'v_perm_b32 v{BO+4*e+p}, v{hi}, v{lo}, s{4 + (e & 1)}')
        for hf in range(2):
            a(f'v_mfma_f32_16x16x32_bf16 {vr(DD+8*e+4*hf,4)}, {vr(F8+4*hf,4)}, {vr(BO+4*e,4)}, 0')
    for q in range(8):
        a(f'v_cvt_pk_bf16_f32 v{XL+2*q}, v{DD+q}, v{DD+8+q}')
        a(f'v_cvt_pk_bf16_f32 v{XL+2*q+1}, v{DD+16+q}, v{DD+24+q}')
        a(f'ds_write_b64 v3, {vr(XL+2*q,2)} offset:{ZB+q*2048}')
    lds_arrive(a, C_PA, 4)
    a('.b1_phaseB:')
    getws(a, 4)
    srd(a, 48, P_D, 4 << 20, WS_Z1)
    lds_wait(a, C_PA, 4, 4)
    stamp(a, 1)
    AR, AI, DR, DI, T0 = 16, 24, 32, 48, 64
    for c in range(2):
        for jj in range(2):
            a(f'ds_read_b64_tr_b16 {vr(AR+4*c+2*jj,2)}, v{vtr} offset:{c*1024+jj*512}')
    for c in range(2):
        for jj in range(2):
            a(f'ds_read_b64_tr_b16 {vr(AI+4*c+2*jj,2)}, v{vtr} offset:{2048+c*1024+jj*512}')
    a('s_waitcnt lgkmcnt(4)')
    a(f'v_mfma_f32_32x32x16_bf16 {vr(DR,16)}, {vr(AR,4)}, {vr(vC,4)}, 0')
    a(f'v_mfma_f32_32x32x16_bf16 {vr(DI,16)}, {vr(AR,4)}, {vr(vnS,4)}, 0')
    a(f'v_mfma_f32_32x32x16_bf16 {vr(DR,16)}, {vr(AR+4,4)}, {vr(vC+4,4)}, {vr(DR,16)}')
    a(f'v_mfma_f32_32x32x16_bf16 {vr(DI,16)}, {vr(AR+4,4)}, {vr(vnS+4,4)}, {vr(DI,16)}')
    a('s_waitcnt lgkmcnt(0)')
    a('s_cmp_eq_u32 s15, 0')
    a('s_cbranch_scc1 .b1_real1')
    for c in range(2):
        a(f'v_mfma_f32_32x32x16_bf16 {vr(DR,16)}, {vr(AI+4*c,4)}, {vr(vS+4*c,4)}, {vr(DR,16)}')
        a(f'v_mfma_f32_32x32x16_bf16 {vr(DI,16)}, {vr(AI+4*c,4)}, {vr(vC+4*c,4)}, {vr(DI,16)}')
    a('.b1_real1:')
    def tw(ib):
        prs = [2 * ib, 2 * ib + 1]
        for k, ip in enumerate(prs):
            r, i_, c_, s_ = DR + 2 * ip, DI + 2 * ip, tc + 2 * ip, ts + 2 * ip
            a(f'v_pk_mul_f32 {vr(T0+4*(ib&1)+2*k,2)}, {vr(i_,2)}, {vr(s_,2)}')
            a(f'v_pk_mul_f32 {vr(s_,2)}, {vr(r,2)}, {vr(s_,2)}')
        for k, ip in enumerate(prs):
            r, i_, c_, s_ = DR + 2 * ip, DI + 2 * ip, tc + 2 * ip, ts + 2 * ip
            a(f'v_pk_fma_f32 {vr(T0+4*(ib&1)+2*k,2)}, {vr(r,2)}, {vr(c_,2)}, {vr(T0+4*(ib&1)+2*k,2)}')
            a(f'v_pk_fma_f32 {vr(s_,2)}, {vr(i_,2)}, {vr(c_,2)}, {vr(s_,2)} neg_lo:[0,0,1] neg_hi:[0,0,1]')
    def pk(ib):
        for k, ip in enumerate((2 * ib, 2 * ib + 1)):
            t = T0 + 4 * (ib & 1) + 2 * k
            a(f'v_cvt_pk_bf16_f32 v{AR+ip}, v{t}, v{t+1}')
            a(f'v_cvt_pk_bf16_f32 v{AI+ip}, v{ts+2*ip}, v{ts+2*ip+1}')
    tw(0); tw(1); pk(0); pk(1); tw(2); tw(3); pk(2); pk(3)
    for c in range(2):
        z = '0' if c == 0 else None
        a(f'v_mfma_f32_32x32x16_bf16 {vr(DR,16)}, {vr(vC+4*c,4)}, {vr(AR+4*c,4)}, {z or vr(DR,16)}')
        a(f'v_mfma_f32_32x32x16_bf16 {vr(DI,16)}, {vr(vCt+4*c,4)}, {vr(AI+4*c,4)}, {z or vr(DI,16)}')
        a(f'v_mfma_f32_32x32x16_bf16 {vr(DR,16)}, {vr(vS+4*c,4)}, {vr(AI+4*c,4)}, {vr(DR,16)}')
        a(f'v_mfma_f32_32x32x16_bf16 {vr(DI,16)}, {vr(vnSt+4*c,4)}, {vr(AR+4*c,4)}, {vr(DI,16)}')
    a('s_cmp_eq_u32 s15, 0')
    a('s_cbranch_scc0 .b1_cplx2')
    a(f'''
    s_mov_b64 exec, 1
    v_mov_b32 v{DI}, v{DR+8}
    s_mov_b64 exec, -1
    s_branch .b1_lo
    ''')
    O = 64
    a('.b1_cplx2:')
    for i in range(8, 16):
        a(f'v_cvt_pk_bf16_f32 v{O+i}, v{DR+i}, v{DI+i}')
        a(f's_mov_b32 s5, {z_soff(i)}')
        a(f'buffer_store_dword v{O+i}, v{vhi}, s[48:51], s5 offen')
    a('.b1_lo:')
    for i in range(8):
        a(f'v_cvt_pk_bf16_f32 v{O+i}, v{DR+i}, v{DI+i}')
        a(f's_mov_b32 s5, {z_soff(i)}')
        a(f'buffer_store_dword v{O+i}, v{vlo}, s[48:51], s5 offen')
    stamp(a, 2)
    a('s_lshl_b32 s14, s2, 4')
    a('s_add_u32 s14, s14, 65536')
    a('s_cmp_eq_u32 s3, 4')
    a('s_cbranch_scc0 .b2_start')
    a('s_waitcnt vmcnt(0)')
    publish(a, C_S1, 6, 14, 4)
    stamp(a, 3)
    a('s_branch .b3_start')

    a('.b2_start:')
    WL = 144
    WM = 16
    WMr = [16 + k for k in range(16)] + [48 + k for k in range(8)]
    vW0, vW1, vZ, vL = 160, 161, 162, 163
    TM = 8
    a(f'''
    s_and_b32 s12, s2, 7
    s_lshr_b32 s13, s2, 3              ; G
    v_and_b32 v3, 15, v{lane}          ; n
    v_lshrrev_b32 v4, 4, v{lane}       ; g
    ''')
    srd(a, 52, P_WR, 2048 * 1026)
    srd(a, 56, P_WI, 2048 * 1026)
    a('s_waitcnt vmcnt(0)')
    publish(a, C_S1, 6, 14, 10)
    a('s_setprio 1')
    stamp(a, 3)
    a(f'''
    s_lshl_b32 s11, s12, 5
    s_add_u32 s11, s11, s13
    s_lshl_b32 s11, s11, 14
    v_lshlrev_b32 v5, 4, v{lane}
    s_lshl_b32 s4, s3, 12
    s_add_u32 s10, s4, {ZB}
    s_add_u32 s11, s11, s4
    v_add_u32 v{vL}, s10, v5
    v_bfe_u32 v15, v3, 2, 2
    v_add_u32 v15, s3, v15
    v_and_b32 v15, 3, v15
    v_lshlrev_b32 v15, 4, v15
    v_lshl_add_u32 v15, v3, 6, v15
    v_lshl_add_u32 v15, v4, 12, v15
    v_add_u32 v{vZ}, {ZB}, v15
    ''')
    B1R, B1I, A2R, A2I, B3R, B3I, A4R, A4I = 16, 20, 24, 28, 32, 36, 40, 44
    T1C, T1S, T3C, T3S = 48, 52, 56, 60
    nf, idx, q1, p_, c_, s_, p2, c2, s2_, p3, c3, s3_, k1_, k2_ = range(64, 78)
    scale = 2.0 / (2048 * 1024)
    a(f'''
    v_cvt_f32_u32 v{nf}, v3
    v_lshlrev_b32 v{idx}, 2, v4
    v_cvt_f32_u32 v{idx}, v{idx}
    v_cvt_f32_u32 v{k1_}, s12
    v_mul_f32 v{k1_}, {fhex(1/128)}, v{k1_}
    v_mul_f32 v{k2_}, {fhex(1/16)}, v{nf}
    v_add_f32 v{q1}, v{k2_}, v{k1_}
    v_mul_f32 v{k1_}, v{k1_}, v{nf}
    ''')
    for e in range(4):
        a(f'''
        v_mul_f32 v{p_}, v{idx}, v{q1}
        v_mul_f32 v{p2}, v{idx}, v{k2_}
        v_cos_f32 v{c_}, v{p_}
        v_sin_f32 v{s_}, v{p_}
        v_add_f32 v{p3}, v{p2}, v{k1_}
        v_cos_f32 v{c2}, v{p2}
        v_sin_f32 v{s2_}, v{p2}
        v_mul_f32 v{p_}, {fhex(1/16)}, v{p_}
        v_cos_f32 v{c3}, v{p3}
        v_sin_f32 v{s3_}, v{p3}
        v_mul_f32 v{p3}, {fhex(1/16)}, v{p3}
        v_cvt_pk_bf16_f32 v{B1R+e}, v{c_}, v{s_}
        v_cvt_pk_bf16_f32 v{B1I+e}, -v{s_}, v{c_}
        v_cos_f32 v{c_}, v{p_}
        v_sin_f32 v{s_}, v{p_}
        v_cvt_pk_bf16_f32 v{A2R+e}, v{c2}, v{s2_}
        v_cvt_pk_bf16_f32 v{A2I+e}, -v{s2_}, v{c2}
        v_cvt_pk_bf16_f32 v{B3R+e}, v{c2}, -v{s2_}
        v_cvt_pk_bf16_f32 v{B3I+e}, v{s2_}, v{c2}
        v_cos_f32 v{T3C+e}, v{p3}
        v_sin_f32 v{T3S+e}, v{p3}
        v_cvt_pk_bf16_f32 v{A4R+e}, v{c3}, -v{s3_}
        v_cvt_pk_bf16_f32 v{A4I+e}, v{s3_}, v{c3}
        v_mul_f32 v{T1C+e}, {fhex(scale)}, v{c_}
        v_mul_f32 v{T1S+e}, {fhex(scale)}, v{s_}
        v_add_f32 v{idx}, 1.0, v{idx}
        ''')
    X = 64; D = 80; WF = 112
    CWR = 144
    a(f'''
    s_mov_b32 s7, 0xffff0000
    s_mov_b32 s68, 0
    s_cmp_ge_u32 s12, 5
    s_cbranch_scc1 .b2_sp_hi
    s_or_b32 s4, s13, s3
    s_cmp_lg_u32 s4, 0
    s_cbranch_scc1 .b2_sp_done
    s_and_b32 s4, s12, 3
    s_cmp_eq_u32 s4, 0
    s_cselect_b32 s68, 3, 1
    s_branch .b2_sp_done
    .b2_sp_hi:
    s_cmp_lg_u32 s13, 31
    s_cbranch_scc1 .b2_sp_done
    s_cmp_lg_u32 s3, 3
    s_cbranch_scc1 .b2_sp_done
    s_mov_b32 s68, 2
    .b2_sp_done:
    ''')
    srd(a, 44, P_D, 4 << 20, WS_Z1)
    srd(a, 48, P_D, 4 << 20, WS_Z2)
    srd(a, 52, P_D, 16384, WS_CW)
    a('s_mov_b32 m0, s10')
    stamp(a, 4)
    lds_wait(a, C_R0, 1, 10, slp=1)
    a('s_setprio 2')
    stamp(a, 5)
    for p in range(4):
        a(f'buffer_load_dwordx4 v5, s[44:47], s11 offen offset:{p*1024} sc1 lds')
    a('s_cmp_eq_u32 s68, 0')
    a('s_cbranch_scc1 .b2_nocw')
    a(f'''
    v_lshl_add_u32 v64, v4, 6, v3
    s_cmp_eq_u32 s12, 0
    s_cselect_b32 s4, 1, 0
    s_add_u32 s4, s4, 255
    v_sub_u32 v65, s4, v64
    s_sub_u32 s4, 8, s12
    s_and_b32 s4, s4, 7
    s_lshl_b32 s4, s4, 10
    s_add_u32 s5, s4, 8192
    s_cmp_eq_u32 s68, 2
    s_cselect_b32 s4, s5, s4
    s_lshl_b32 s6, s12, 10
    s_add_u32 s6, s6, 8192
    v_lshlrev_b32 v64, 2, v64
    ''')
    for i in range(4):
        a(f'''
        v_subrev_u32 v66, {16*i}, v65
        v_and_b32 v66, 255, v66
        v_lshlrev_b32 v66, 2, v66
        buffer_load_dword v{CWR+i}, v66, s[52:55], s4 offen sc1
        buffer_load_dword v{CWR+4+i}, v64, s[52:55], s6 offen offset:{64*i} sc1
        buffer_load_dword v{CWR+8+i}, v66, s[52:55], s5 offen sc1
        ''')
    a('.b2_nocw:')
    lds_wait(a, C_W, 1, 10)
    WLL = 80
    for i in range(4):
        a(f'ds_read_b128 {vr(WLL+4*i,4)}, v{vZ} offset:{WB-ZB+1024*i}')
    for i in range(4):
        a(f's_waitcnt lgkmcnt({3-i})')
        for part in range(2):
            for cp in range(2):
                src = WLL + 4 * i + 2 * part + cp
                a(f'v_lshlrev_b32 v{WF+8*(2*cp)+4*part+i}, 16, v{src}')
                a(f'v_and_b32 v{WF+8*(2*cp+1)+4*part+i}, s7, v{src}')
    a('s_waitcnt vmcnt(0)')
    lds_arrive(a, C_Z, 10)
    lds_wait(a, C_Z, 4, 10)
    stamp(a, 6)
    for e in range(4):
        a(f'ds_read_b128 {vr(D+4*e,4)}, v{vZ} offset:{1024*e}')
    for e in range(4):
        a(f's_waitcnt lgkmcnt({3-e})')
        for c in range(4):
            a(f'v_mov_b32 v{X+4*c+e}, v{D+4*e+c}')
    def stage(Mr, Mi, data_is_A):
        for c in range(4):
            for M, off in ((Mr, 0), (Mi, 4)):
                if data_is_A:
                    a(f'v_mfma_f32_16x16x32_bf16 {vr(D+8*c+off,4)}, {vr(X+4*c,4)}, {vr(M,4)}, 0')
                else:
                    a(f'v_mfma_f32_16x16x32_bf16 {vr(D+8*c+off,4)}, {vr(M,4)}, {vr(X+4*c,4)}, 0')
    def mulpack(cr_of, ci_of, conj):
        k = 0
        for c in range(4):
            for hp in range(2):
                t = TM + 4 * (k & 1); k += 1
                cmul_sc(a, t, t + 2, D + 8 * c + 2 * hp, D + 8 * c + 4 + 2 * hp, cr_of(c) + 2 * hp, ci_of(c) + 2 * hp, conj)
                a(f'v_cvt_pk_bf16_f32 v{X+4*c+2*hp}, v{t}, v{t+2}')
                a(f'v_cvt_pk_bf16_f32 v{X+4*c+2*hp+1}, v{t+1}, v{t+3}')
    stage(B1R, B1I, True)
    mulpack(lambda c: T1C, lambda c: T1S, True)
    stage(A2R, A2I, False)
    a('s_cmp_eq_u32 s68, 0')
    a('s_cbranch_scc1 .b2_noreal')
    a('s_cmp_eq_u32 s68, 2')
    a('s_cbranch_scc1 .b2_patch_hi')
    def patch(c):
        for i in range(4):
            a(f'v_lshlrev_b32 v{TM}, 16, v{CWR+i}')
            a(f'v_and_b32 v{TM+1}, s7, v{CWR+i}')
            a(f'v_add_f32 v{WF+8*c+i}, v{WF+8*c+i}, v{TM}')
            a(f'v_sub_f32 v{WF+8*c+4+i}, v{WF+8*c+4+i}, v{TM+1}')
        for i in range(8):
            a(f'v_mul_f32 v{WF+8*c+i}, 0.5, v{WF+8*c+i}')
    patch(0)
    a('s_cmp_eq_u32 s68, 1')
    a('s_cbranch_scc1 .b2_noreal')
    ZM, PQ = 16, 24
    QQ = 48
    a(f'''
    v_lshl_add_u32 v{TM}, v4, 6, v3
    s_lshr_b32 s4, s12, 2
    s_sub_u32 s4, 256, s4
    v_sub_u32 v{TM+1}, s4, v{TM}
    v_lshlrev_b32 v{TM}, 2, v{TM}
    v_add_u32 v{TM}, {SCR}, v{TM}
    ''')
    for i in range(4):
        a(f'ds_write_b32 v{TM}, v{D+i} offset:{64*i}')
        a(f'ds_write_b32 v{TM}, v{D+4+i} offset:{1024+64*i}')
    for i in range(4):
        a(f'''
        v_subrev_u32 v{TM+2}, {16*i}, v{TM+1}
        v_and_b32 v{TM+2}, 255, v{TM+2}
        v_lshlrev_b32 v{TM+2}, 2, v{TM+2}
        v_add_u32 v{TM+2}, {SCR}, v{TM+2}
        ds_read_b32 v{ZM+i}, v{TM+2}
        ds_read_b32 v{ZM+4+i}, v{TM+2} offset:1024
        ''')
    for i in range(4):
        a(f'''
        v_lshlrev_b32 v{TM+4}, 16, v{CWR+4+i}
        v_lshlrev_b32 v{TM+5}, 16, v{CWR+8+i}
        v_and_b32 v{TM+6}, s7, v{CWR+4+i}
        v_and_b32 v{TM+7}, s7, v{CWR+8+i}
        v_add_f32 v{TM+4}, v{TM+4}, v{TM+5}
        v_sub_f32 v{TM+6}, v{TM+6}, v{TM+7}
        v_mul_f32 v{TM+4}, {fhex(0.125)}, v{TM+4}
        v_mul_f32 v{TM+6}, {fhex(0.125)}, v{TM+6}
        v_mul_f32 v{WF+i}, {fhex(0.25)}, v{WF+i}
        v_mul_f32 v{WF+4+i}, {fhex(0.25)}, v{WF+4+i}
        v_add_f32 v{PQ+i}, v{WF+i}, v{TM+4}
        v_add_f32 v{PQ+4+i}, v{WF+4+i}, v{TM+6}
        v_sub_f32 v{QQ+i}, v{WF+i}, v{TM+4}
        v_sub_f32 v{QQ+4+i}, v{WF+4+i}, v{TM+6}
        v_mov_b32 v{WF+i}, 1.0
        v_mov_b32 v{WF+4+i}, 0
        ''')
    a('s_waitcnt lgkmcnt(0)')
    for i in range(4):
        zr, zi, mr, mi = D + i, D + 4 + i, ZM + i, ZM + 4 + i
        pr, pi, qr, qi = PQ + i, PQ + 4 + i, QQ + i, QQ + 4 + i
        a(f'''
        v_mul_f32 v{TM}, v{zr}, v{pr}
        v_mul_f32 v{TM+1}, v{zr}, v{pi}
        v_fma_f32 v{TM}, -v{zi}, v{pi}, v{TM}
        v_fmac_f32 v{TM+1}, v{zi}, v{pr}
        v_fmac_f32 v{TM}, v{mr}, v{qr}
        v_fmac_f32 v{TM+1}, v{mr}, v{qi}
        v_fma_f32 v{zr}, v{mi}, v{qi}, v{TM}
        v_fma_f32 v{zi}, -v{mi}, v{qr}, v{TM+1}
        ''')
    a('s_branch .b2_noreal')
    a('.b2_patch_hi:')
    patch(3)
    a('.b2_noreal:')
    mulpack(lambda c: WF + 8 * c, lambda c: WF + 8 * c + 4, False)
    stage(B3R, B3I, True)
    mulpack(lambda c: T3C, lambda c: T3S, False)
    stage(A4R, A4I, False)
    for i in range(4):
        for c in range(4):
            a(f'v_cvt_pk_bf16_f32 v{X+4*i+c}, v{D+8*c+i}, v{D+8*c+4+i}')
        a(f'ds_write_b128 v{vZ}, {vr(X+4*i,4)} offset:{1024*i}')
    lds_arrive(a, C_O, 10)
    lds_wait(a, C_O, 4, 10)
    stamp(a, 7)
    for p in range(4):
        a(f'ds_read_b128 {vr(X+4*p,4)}, v{vL} offset:{1024*p}')
    a(f'''
    v_lshrrev_b32 v8, 2, v{lane}
    v_lshlrev_b32 v8, 14, v8
    v_and_b32 v9, 3, v{lane}
    v_lshl_add_u32 v8, v9, 4, v8
    s_lshl_b32 s4, s12, 5
    s_add_u32 s4, s4, s13
    s_lshl_b32 s4, s4, 6
    s_lshl_b32 s5, s3, 20
    s_add_u32 s4, s4, s5
    ''')
    for p in range(4):
        a(f's_waitcnt lgkmcnt({3-p})')
        a(f'buffer_store_dwordx4 {vr(X+4*p,4)}, v8, s[48:51], s4 offen')
        if p < 3: a(f's_add_u32 s4, s4, {16*16384}')
    a('s_add_u32 s14, s14, 65536')
    a('s_waitcnt vmcnt(0)')
    publish(a, C_S2, 4, 14, 10)
    stamp(a, 8)

    a('.b3_start:')
    a('s_setprio 0')
    X = 16
    G8 = 8
    MR, MI, NR, NI, tc, ts = 80, 96, 112 - 8, 120 - 8, 128, 144
    kf, arg, a2, c0, s0, k5 = range(74, 80)
    tab_init(kf, arg, k5)
    for i in range(16):
        a(f'v_cos_f32 v{c0}, v{arg}')
        a(f'v_sin_f32 v{s0}, v{arg}')
        a(f'v_mul_f32 v{a2}, {fhex(1/32)}, v{arg}')
        a(f'v_cos_f32 v{tc+i}, v{a2}')
        a(f'v_sin_f32 v{ts+i}, v{a2}')
        if i != 15:
            a(f'v_add_f32 v{arg}, v{arg}, v{k5 if (i & 3) == 3 else kf}')
        a(f'v_cvt_pk_bf16_f32 v{MR+i}, v{c0}, -v{s0}')
        a(f'v_cvt_pk_bf16_f32 v{MI+i}, v{s0}, v{c0}')
        if i >= 8:
            a(f'v_cvt_pk_bf16_f32 v{NR+i}, v{c0}, v{s0}')
            a(f'v_cvt_pk_bf16_f32 v{NI+i}, v{s0}, -v{c0}')
    gen_dft8_frags(a, lane, G8, 64, False)
    a(f'''
    v_and_b32 v6, 31, v{lane}
    v_lshlrev_b32 v6, 2, v6
    v_lshrrev_b32 v7, 5, v{lane}
    v_lshl_add_u32 v6, v7, 9, v6
    s_lshl_b32 s4, s8, 12
    s_cmp_eq_u32 s8, 4
    s_cselect_b32 s4, 2, s4
    v_add_u32 v6, s4, v6
    ''')
    srd(a, 44, P_D, 4 << 20, WS_Z2)
    srd(a, 48, P_OUT, 8 << 20)
    a(f'''
    s_lshl_b32 s10, s8, 12
    s_cmp_eq_u32 s8, 4
    s_cselect_b32 s10, 2048, s10
    s_add_u32 s10, s10, {ZB}
    s_lshl_b32 s4, s2, 14
    s_lshl_b32 s11, s8, 11
    s_add_u32 s11, s11, s4
    s_lshl_b32 s12, s9, 11
    s_add_u32 s12, s12, s4
    v_lshlrev_b32 v3, 4, v{lane}
    s_lshr_b32 s4, s2, 2
    ''')
    for which, dst in ((0, vlo), (1, vhi)):
        a(f'v_and_b32 v64, 31, v{lane}')
        a(f'v_lshrrev_b32 v65, 5, v{lane}')
        if which:
            a('v_sub_u32 v64, 31, v64')
            a('v_sub_u32 v65, 1, v65')
        a(f'''
        v_bfe_u32 v66, v64, 2, 2
        v_add_u32 v66, s4, v66
        v_and_b32 v66, 3, v66
        v_lshlrev_b32 v66, 4, v66
        v_and_b32 v67, 3, v64
        v_lshl_add_u32 v66, v67, 2, v66
        v_lshrrev_b32 v67, 4, v64
        v_lshl_add_u32 v66, v67, 6, v66
        v_lshl_add_u32 v66, v65, 9, v66
        v_add_u32 v{dst}, s10, v66
        ''')
    a(f'v_add_u32 v{vhi}, 2048, v{vhi}')
    a('s_cmp_eq_u32 s3, 4')
    a('s_cbranch_scc0 .b3_wait')
    a('s_setprio 2')
    poll_release(a, 16384, C_R0, 4)
    stamp(a, 4)
    lds_wait(a, C_S2, 4, 4, slp=4)
    poll_release(a, 24576, C_R1, 4)
    a('.b3_wait:')
    stamp(a, 9)
    lds_wait(a, C_R1, 1, 4, slp=1)
    a('s_setprio 2')
    stamp(a, 10)
    a('s_mov_b32 m0, s10')
    a('buffer_load_dwordx4 v3, s[44:47], s11 offen sc1 lds')
    a('buffer_load_dwordx4 v3, s[44:47], s11 offen offset:1024 sc1 lds')
    a('s_cmp_eq_u32 s15, 0')
    a('s_cbranch_scc1 .b3_real_noload')
    a('s_add_u32 s4, s10, 2048')
    a('s_mov_b32 m0, s4')
    a('buffer_load_dwordx4 v3, s[44:47], s12 offen sc1 lds')
    a('buffer_load_dwordx4 v3, s[44:47], s12 offen offset:1024 sc1 lds')
    a('.b3_real_noload:')
    lds_arrive(a, C_L3L, 4)
    DR, DI, T0 = 32, 48, 64
    a('s_waitcnt vmcnt(0)')
    for i in range(16):
        a(f'ds_read_b32 v{X+i}, v{vlo if i < 8 else vhi} offset:{z_soff(i) >> 8}')
    a('s_waitcnt lgkmcnt(0)')
    stamp(a, 11)
    a('s_cmp_eq_u32 s15, 0')
    a('s_cbranch_scc0 .b3_cplx1')
    for i in range(8, 16): a(f'v_mov_b32 v{X+i}, 0')
    a(f'''
    s_mov_b64 exec, 1
    v_lshrrev_b32 v{X+8}, 16, v{X}
    s_mov_b64 exec, -1
    ''')
    lds_arrive(a, C_RL, 4)
    a('.b3_cplx1:')
    for c in range(4):
        br, bi = (MR + 4 * c, MI + 4 * c) if c < 2 else (NR + 4 * c, NI + 4 * c)
        a(f'v_mfma_f32_32x32x16_bf16 {vr(DR,16)}, {vr(X+4*c,4)}, {vr(br,4)}, ' + ('0' if c == 0 else vr(DR, 16)))
        a(f'v_mfma_f32_32x32x16_bf16 {vr(DI,16)}, {vr(X+4*c,4)}, {vr(bi,4)}, ' + ('0' if c == 0 else vr(DI, 16)))
    for ib in range(4):
        for k in range(2):
            ip = 2 * ib + k; t = T0 + 8 * (ib & 1) + 4 * k
            a(f'v_pk_mul_f32 {vr(t,2)}, {vr(DI+2*ip,2)}, {vr(ts+2*ip,2)}')
            a(f'v_pk_mul_f32 {vr(t+2,2)}, {vr(DR+2*ip,2)}, {vr(ts+2*ip,2)}')
        for k in range(2):
            ip = 2 * ib + k; t = T0 + 8 * (ib & 1) + 4 * k
            a(f'v_pk_fma_f32 {vr(t,2)}, {vr(DR+2*ip,2)}, {vr(tc+2*ip,2)}, {vr(t,2)} neg_lo:[0,0,1] neg_hi:[0,0,1]')
            a(f'v_pk_fma_f32 {vr(t+2,2)}, {vr(DI+2*ip,2)}, {vr(tc+2*ip,2)}, {vr(t+2,2)}')
        for k in range(2):
            ip = 2 * ib + k; t = T0 + 8 * (ib & 1) + 4 * k
            a(f'v_cvt_pk_bf16_f32 v{X+2*ip}, v{t}, v{t+2}')
            a(f'v_cvt_pk_bf16_f32 v{X+2*ip+1}, v{t+1}, v{t+3}')
    for c in range(4):
        a(f'v_mfma_f32_32x32x16_bf16 {vr(DR,16)}, {vr(MR+4*c,4)}, {vr(X+4*c,4)}, ' + ('0' if c == 0 else vr(DR, 16)))
    a('s_cmp_eq_u32 s15, 0')
    a('s_cbranch_scc1 .b3_real2')
    for c in range(4):
        a(f'v_mfma_f32_32x32x16_bf16 {vr(DI,16)}, {vr(MI+4*c,4)}, {vr(X+4*c,4)}, ' + ('0' if c == 0 else vr(DI, 16)))
    for i in range(16):
        a(f'v_cvt_pk_bf16_f32 v{T0+i}, v{DR+i}, v{DI+i}')
        a(f'ds_write_b32 v6, v{T0+i} offset:{ZB+(8*(i>>2)+(i&3))*128}')
    a('s_branch .b3_join')
    a('.b3_real2:')
    lds_wait(a, C_RL, 2, 4)
    for ip in range(8):
        i = 2 * ip
        a(f'v_cvt_pk_bf16_f32 v{T0+ip}, v{DR+i}, v{DR+i+1}')
        a(f'ds_write_b16 v6, v{T0+ip} offset:{ZB+(8*(i>>2)+(i&3))*128}')
        a(f'ds_write_b16_d16_hi v6, v{T0+ip} offset:{ZB+(8*(i>>2)+(i&3)+1)*128}')
    a('.b3_join:')
    lds_arrive(a, C_L3, 4)
    a('s_cmp_eq_u32 s3, 4')
    a(f's_cbranch_scc1 .b3_end')
    lds_wait(a, C_L3, 5, 4)
    a('v_lshlrev_b32 v6, 4, v0')
    DD = 32
    for p in range(4):
        a(f'ds_read_b128 {vr(64+4*p,4)}, v6 offset:{ZB+4096*p}')
    a(f'''
    s_lshl_b32 s4, s2, 12
    s_add_u32 s4, s4, 2048
    v_lshlrev_b32 v7, 3, v0
    v_add_u32 v7, s4, v7
    ''')
    for p in range(4):
        a(f's_waitcnt lgkmcnt({3-p})')
        for e in range(4):
            a(f'v_mov_b32 v{X+4*e+p}, v{64+4*p+e}')
    for e in range(4):
        for hf in range(2):
            a(f'v_mfma_f32_16x16x32_bf16 {vr(DD+8*e+4*hf,4)}, {vr(G8+4*hf,4)}, {vr(X+4*e,4)}, 0')
    a.raw(';OUT_ON')
    for s1 in range(8):
        a(f'v_cvt_pk_bf16_f32 v{64+2*s1}, v{DD+s1}, v{DD+8+s1}')
        a(f'v_cvt_pk_bf16_f32 v{65+2*s1}, v{DD+16+s1}, v{DD+24+s1}')
        a(f's_mov_b32 s5, {s1*256*4096}')
        a(f'buffer_store_dwordx2 {vr(64+2*s1,2)}, v7, s[48:51], s5 offen')
    a.raw(';PLAIN_OFF')
    a('.b3_end:')
    stamp(a, 12)
    stamp_flush(a, 0, 13)
    if DIAG and os.environ.get('ENC'):
        k = int(os.environ['ENC'])
        a(f'''
        s_cmp_lg_u32 s2, {os.environ.get('ENCWG', '37')}
        s_cbranch_scc1 .enc_end
        s_cmp_lg_u32 s3, 1
        s_cbranch_scc1 .enc_end
        s_sub_u32 s4, s{72+2*k}, s72
        s_lshl_b32 s4, s4, 3
        s_and_b32 s4, s4, 0xffff
        s_memrealtime s[6:7]
        s_waitcnt lgkmcnt(0)
        .enc_loop:
        s_memrealtime s[8:9]
        s_waitcnt lgkmcnt(0)
        s_sub_u32 s5, s8, s6
        s_cmp_lt_u32 s5, s4
        s_cbranch_scc1 .enc_loop
        .enc_end:
        ''')
    a('s_endpgm')

def gen_T(a, lane):
    a('.role_t:')
    remap(a)
    a(f'''
    s_setprio 2
    s_sub_u32 s8, s3, 5
    s_and_b32 s9, s2, 15
    s_lshl_b32 s9, s9, 1
    s_add_u32 s9, s9, s8
    s_lshl_b32 s9, s9, 4
    s_lshr_b32 s11, s2, 4
    s_add_u32 s9, s9, s11
    s_mul_i32 s10, s8, {64*144}
    s_add_u32 s10, s10, {TRB}
    s_lshl_b32 s14, s2, 4
    s_add_u32 s14, s14, 8192
    s_lshl_b32 s15, s11, 8
    s_add_u32 s15, s15, 8192
    s_waitcnt lgkmcnt(0)
    ''')
    if not TFIRST: a('s_barrier')
    srd(a, 44, P_U, 4 << 20)
    TP = gen_transposer(a, lane, 9, 44, 48, 10, 2048, UP, 'u')
    if TFIRST: a('s_barrier')
    a('s_mov_b32 s12, s5')
    getws(a, 10)
    a('s_mov_b32 s5, s12')
    srd(a, 48, P_D, 1024 * UP, WS_UT)
    a.raw(';PLAIN_ON')
    gen_transposer_tail(a, lane, 48, 10, UP, 64, TP)
    stamp(a, 1)
    a('s_waitcnt vmcnt(0)')
    publish(a, C_T1, 2, 14, 10)
    a.raw(';PLAIN_OFF')
    stamp(a, 2)
    a('s_cmp_eq_u32 s8, 0')
    a('s_cbranch_scc0 .t_second')
    poll_group(a, lane, 15, C_G0, 10)
    stamp(a, 3)
    lds_wait(a, C_CV, 4, 10, slp=4)
    a('s_add_u32 s15, s15, 4096')
    poll_group(a, lane, 15, C_G1, 10)
    a('s_branch .t_third')
    a('.t_second:')
    a(f's_cmp_eq_u32 s2, {M0}')
    a('s_cbranch_scc0 .t_third')
    lds_wait(a, C_NONCE, 1, 10, slp=1, sreg=5)
    lds_wait(a, C_S1, 6, 10, slp=1)
    master(a, lane, '0', 65536, 16384)
    a('.t_third:')
    lds_wait(a, C_G1, 1, 10, slp=2)
    lds_wait(a, C_O, 4, 10, slp=1)
    if os.environ.get('T3WAIT', '0') == '1':
        lds_wait(a, C_L3L, 5, 10, slp=1)
    stamp(a, 4)
    srd(a, 44, P_D, 4 << 20, WS_YT)
    srd(a, 48, P_OUT, 8 << 20)
    n0 = len(a.items)
    TP = gen_transposer(a, lane, 9, 44, 48, 10, 4096, 4096, 'y')
    from asmlib import Ins
    for k in range(n0, len(a.items)):
        kind, it = a.items[k]
        if kind == 'i' and it.op.startswith('buffer_load'):
            a.items[k] = ('i', Ins(it.text + ' sc1'))
    gen_transposer_tail(a, lane, 48, 10, 4096, 0, TP, ymode=True)
    stamp(a, 5)
    stamp_flush(a, 0, 6)
    a('s_endpgm')

def master(a, lane, tag, flag_off, rel_off):
    srd(a, 60, P_F, 1 << 18, WS_FLG)
    a(f'v_lshlrev_b32 v6, 4, v{lane}')
    a(f'v_lshlrev_b32 v4, 7, v{lane}')
    a(f's_mov_b32 s6, {SPIN_MAX}')
    a(f's_mov_b32 s7, {flag_off}')
    def pl(k):
        for i in range(4):
            a(f'buffer_load_dword v{64+4*k+i}, v6, s[60:63], s7 offen offset:{1024*i} sc1')
    for k in range(PD - 1):
        pl(k)
        a(f"s_sleep {os.environ.get('PGAP', '4')}")
    a(f'.m_loop{tag}:')
    for k in range(PD):
        pl((k + PD - 1) % PD)
        b = 64 + 4 * k
        a(f'''
        s_waitcnt vmcnt({4*(PD-1)})
        v_xor_b32 v8, s5, v{b}
        v_xor_b32 v9, s5, v{b+1}
        v_xor_b32 v10, s5, v{b+2}
        v_xor_b32 v11, s5, v{b+3}
        v_or_b32 v8, v8, v9
        v_or3_b32 v8, v8, v10, v11
        v_cmp_ne_u32 vcc, 0, v8
        s_cmp_eq_u64 vcc, 0
        s_cbranch_scc1 .m_rel{tag}
        ''')
    a(f'''
    s_sub_u32 s6, s6, 1
    s_cmp_lg_u32 s6, 0
    s_cbranch_scc1 .m_loop{tag}
    .m_rel{tag}:
    v_mov_b32 v8, s5
    s_mov_b32 s7, {rel_off}
    s_mov_b64 exec, {(1 << NREP) - 1 if NREP < 64 else -1}
    buffer_store_dword v8, v4, s[60:63], s7 offen
    s_mov_b64 exec, -1
    ''')
    if EPOCH and tag == '0':
        srd(a, 64, P_WS, 256, WS_EP)
        a('''
        s_mov_b64 exec, 1
        buffer_store_dword v8, v4, s[64:67], 0 offen
        s_mov_b64 exec, -1
        ''')
    a('s_waitcnt vmcnt(0)')

M0, M1 = 74, 139

def gen_M(a, lane):
    a('.role_m:')
    if os.environ.get('CODEPF', '1') == '1':
        KN = NAME + '_kernel'
        a(f'''
        s_getpc_b64 s[6:7]
        .m_pc:
        s_sub_u32 s6, s6, .m_pc-{KN}
        s_subb_u32 s7, s7, 0
        v_lshlrev_b32 v24, {os.environ.get('CPSH', '7')}, v{lane}
        v_mov_b32 v25, s7
        v_add_co_u32 v24, vcc, s6, v24
        v_addc_co_u32 v25, vcc, 0, v25, vcc
        ''')
        step = 64 << int(os.environ.get('CPSH', '7'))
        n = (0x5e00 + step - 1) // step
        for k in range(n):
            if k == n - 1:
                rem = (0x5d00 - k * step) // (step // 64)
                if rem < 64: a(f's_lshr_b64 exec, -1, {64 - rem}')
            a(f'global_load_dword v{26+k}, v[24:25], off')
            if k < n - 1:
                a(f'v_add_co_u32 v24, vcc, {step:#x}, v24')
                a('v_addc_co_u32 v25, vcc, 0, v25, vcc')
        a('s_mov_b64 exec, -1')
    a(f'''
    s_setprio 3
    v_lshlrev_b32 v4, 4, v{lane}
    v_add_u32 v4, {CNT}, v4
    v_mov_b32 v8, 0
    v_mov_b32 v9, 0
    v_mov_b32 v10, 0
    v_mov_b32 v11, 0
    s_mov_b64 exec, 0xff
    ds_write_b128 v4, v[8:11]
    s_mov_b64 exec, -1
    s_memrealtime s[8:9]
    s_waitcnt lgkmcnt(0)
    ''')
    if not EPOCH:
        srd(a, 64, P_DBG, 256)
        a(f'''
        v_mov_b32 v4, 0
        s_or_b32 s5, s8, 1
        s_cmp_lg_u32 s2, 0
        s_cbranch_scc1 .m_nostore
        v_mov_b32 v5, s5
        s_mov_b64 exec, 1
        buffer_store_dword v5, v4, s[64:67], 0 offen
        s_mov_b64 exec, -1
        .m_nostore:
        ''')
        if os.environ.get('TLB', '1') == '1':
            srd(a, 44, P_WS, 32 << 20)
            srd(a, 48, P_OUT, 8 << 20)
            a(f'''
            v_lshlrev_b32 v20, 19, v{lane}
            v_lshlrev_b32 v21, 17, v{lane}
            buffer_load_dword v22, v20, s[44:47], 0 offen sc1
            buffer_load_dword v23, v21, s[48:51], 0 offen sc1
            ''')
            if os.environ.get('TLBW', '1') == '1':
                srd(a, 52, P_WR, 2048 * 1026)
                srd(a, 56, P_WI, 2048 * 1026)
                a('''
                s_mov_b64 exec, 0xffff
                buffer_load_dword v18, v21, s[52:55], 0 offen
                buffer_load_dword v19, v21, s[56:59], 0 offen
                s_mov_b64 exec, -1
                ''')
        a(f'''
        s_barrier
        s_cmp_eq_u32 s2, 0
        s_cbranch_scc1 .m_got
        s_mov_b32 s6, {SPIN_MAX}
        .m_poll:
        buffer_load_dword v5, v4, s[64:67], 0 offen sc1
        s_waitcnt vmcnt(0)
        v_readfirstlane_b32 s5, v5
        s_cmp_lg_u32 s5, 0
        s_cbranch_scc1 .m_got
        s_sub_u32 s6, s6, 1
        s_cmp_lg_u32 s6, 0
        s_cbranch_scc1 .m_poll
        s_mov_b32 s5, 1
        .m_got:
        v_mov_b32 v6, {CNT+4*C_NONCE}
        v_mov_b32 v5, s5
        ds_write_b32 v6, v5
        ''')
        stamp(a, 1)
        rotws(a)
        srd(a, 52, P_WR, 2048 * 1026)
        srd(a, 56, P_WI, 2048 * 1026)
        a(f'''
        s_setprio 1
        s_and_b32 s12, s2, 7
        s_lshr_b32 s13, s2, 3
        ''')
        srd(a, 48, P_D, 16384, WS_CW)
        a(f'''
        v_and_b32 v7, 7, v{lane}
        v_mul_u32_u24 v8, 1026, v7
        v_bfe_u32 v9, v{lane}, 3, 1
        v_lshl_add_u32 v8, v9, 10, v8
        s_mul_i32 s4, s2, 8208
        v_and_b32 v9, 15, v{lane}
        v_lshlrev_b32 v9, 10, v9
        s_lshl_b32 s7, s2, 2
        s_lshl_b32 s14, s2, 4
        s_add_u32 s14, s14, 65536
        s_mov_b64 exec, 0xffff
        buffer_load_ushort v20, v8, s[52:55], s4 offen
        buffer_load_ushort v21, v8, s[56:59], s4 offen
        s_waitcnt vmcnt(0)
        v_lshl_or_b32 v20, v21, 16, v20
        buffer_store_dword v20, v9, s[48:51], s7 offen
        s_mov_b64 exec, -1
        s_waitcnt vmcnt(0)
        s_mov_b32 s69, s5
        ''')
    else:
        srd(a, 64, P_WS, 256, WS_EP)
        srd(a, 52, P_WR, 2048 * 1026)
        srd(a, 56, P_WI, 2048 * 1026)
        a(f'''
        v_mov_b32 v4, 0
        buffer_load_dword v5, v4, s[64:67], 0 offen sc1
        v_and_b32 v7, 7, v{lane}
        v_mul_u32_u24 v8, 1026, v7
        v_bfe_u32 v9, v{lane}, 3, 1
        v_lshl_add_u32 v8, v9, 10, v8
        s_mul_i32 s4, s2, 8208
        s_mov_b64 exec, 0xffff
        buffer_load_ushort v20, v8, s[52:55], s4 offen
        buffer_load_ushort v21, v8, s[56:59], s4 offen
        s_mov_b64 exec, -1
        ''')
        TLB = os.environ.get('TLB', '1')
        if TLB != '0':
            srd(a, 48, P_OUT, 8 << 20)
            a(f'''
            v_lshlrev_b32 v25, 17, v{lane}
            buffer_load_dword v23, v25, s[48:51], 0 offen sc1
            ''')
        a(f'''
        s_barrier
        s_and_b32 s12, s2, 7
        s_lshr_b32 s13, s2, 3
        v_and_b32 v9, 15, v{lane}
        v_lshlrev_b32 v9, 10, v9
        s_lshl_b32 s7, s2, 2
        s_lshl_b32 s14, s2, 4
        s_add_u32 s14, s14, 65536
        v_mov_b32 v6, {CNT+4*C_NONCE}
        s_waitcnt vmcnt({2 if TLB == '0' else 3})
        v_readfirstlane_b32 s5, v5
        s_add_u32 s5, s5, 0x9e3779ba
        s_or_b32 s5, s5, 1
        v_mov_b32 v5, s5
        ds_write_b32 v6, v5
        ''')
        stamp(a, 1)
        rotws(a)
        if TLB != '0':
            srd(a, 44, P_D, 32 << 20)
            a(f'''
            v_lshlrev_b32 v24, 19, v{lane}
            buffer_load_dword v22, v24, s[44:47], 0 offen sc1
            ''')
        srd(a, 48, P_D, 16384, WS_CW)
        a(f'''
        s_setprio 1
        s_mov_b64 exec, 0xffff
        s_waitcnt vmcnt({0 if TLB == '0' else 2})
        v_lshl_or_b32 v20, v21, 16, v20
        buffer_store_dword v20, v9, s[48:51], s7 offen
        s_mov_b64 exec, -1
        s_waitcnt vmcnt(0)
        s_mov_b32 s69, s5
        ''')
    publish(a, C_S1, 6, 14, 12)
    a('s_mov_b32 s5, s69')
    if os.environ.get('WPF', '0') == '1':
        a(f'''
        v_lshrrev_b32 v7, 3, v{lane}
        v_mul_u32_u24 v7, 8208, v7
        v_and_b32 v8, 7, v{lane}
        v_lshl_add_u32 v7, v8, 7, v7
        s_mul_i32 s4, s13, {8*8208}
        s_mul_i32 s7, s12, 1026
        s_add_u32 s4, s4, s7
        s_and_b32 s4, s4, 0xfffffffc
        ''')
        lds_wait(a, C_PA, 4, 12, slp=2, sreg=7)
        a(f'''
        buffer_load_dword v20, v7, s[52:55], s4 offen
        buffer_load_dword v21, v7, s[56:59], s4 offen
        buffer_load_dword v22, v7, s[52:55], s4 offen offset:124
        buffer_load_dword v23, v7, s[56:59], s4 offen offset:124
        ''')
    a(f'''
    v_lshrrev_b32 v7, 1, v{lane}
    v_lshlrev_b32 v8, 3, v7
    v_add_u32 v8, s12, v8
    v_mul_u32_u24 v8, 1026, v8
    v_and_b32 v9, 1, v{lane}
    v_lshl_add_u32 v8, v9, 4, v8
    s_lshl_b32 s11, s13, 5
    s_cmp_ge_u32 s12, 5
    s_cselect_b32 s7, 2, 0
    s_add_u32 s11, s11, s7
    v_bfe_u32 v15, v{lane}, 3, 2
    v_lshl_add_u32 v15, v9, 1, v15
    v_and_b32 v14, 3, v15
    v_add_u32 v15, 1, v15
    v_and_b32 v15, 3, v15
    v_lshlrev_b32 v7, 6, v7
    v_add_u32 v7, {WB}, v7
    v_lshl_add_u32 v16, v14, 4, v7
    v_lshl_add_u32 v17, v15, 4, v7
    ''')
    WL = 32
    WBATCH = int(os.environ.get('WBATCH', '2'))
    WEARLY = int(os.environ.get('WEARLY', '0'))
    def wload(q):
        a(f'buffer_load_dwordx4 {vr(WL+8*q,4)}, v8, s[52:55], s11 offen')
        a(f'buffer_load_dwordx4 {vr(WL+8*q+4,4)}, v8, s[56:59], s11 offen')
        if q < 7: a(f's_add_u32 s11, s11, {32*8*1026}')
    def wstage(q):
        for ar in range(2):
            r = WL + 8 * q + 4 * ar
            a(f'ds_write_b64 v16, {vr(r,2)} offset:{q*2048+ar*8}')
            a(f'ds_write_b64 v17, {vr(r+2,2)} offset:{q*2048+ar*8}')
    WEB = int(os.environ.get('WEB', '1'))
    if os.environ.get('WEPA', '0') == '1': lds_wait(a, C_PA, 4, 12, slp=2, sreg=7)
    for q in range(WEARLY):
        wload(q)
        if (q + 1) % WEB == 0 or q == WEARLY - 1: a('s_waitcnt vmcnt(0)')
    lds_wait(a, C_T1, 2, 12, slp=2)
    if WEARLY < 8: lds_wait(a, C_S1, 6, 12, slp=2)
    stamp(a, 2)
    first = True
    if WEARLY == 8:
        for q in range(8): wstage(q)
    for q0 in range(WEARLY, 8, WBATCH):
        qs = list(range(q0, min(8, q0 + WBATCH)))
        for q in qs: wload(q)
        if first:
            for q in range(WEARLY): wstage(q)
            first = False
        for q in qs:
            a(f's_waitcnt vmcnt({2*(qs[-1]-q)})')
            wstage(q)
    lds_arrive(a, C_W, 12)
    stamp(a, 3)
    a(f's_cmp_eq_u32 s2, {M1}')
    a('s_cbranch_scc0 .m_end')
    lds_wait(a, C_S2, 4, 12, slp=2)
    a('s_setprio 3')
    master(a, lane, '1', 131072, 24576)
    a('.m_end:')
    stamp(a, 4)
    stamp_flush(a, 0, 5)
    a('s_endpgm')

def gen_A(a, lane):
    a('.role_a:')
    remap(a)
    KB = 32
    UR = 128
    a(f'''
    s_and_b32 s10, s3, 3
    s_lshl_b32 s9, s2, 2
    s_add_u32 s9, s9, s10           ; channel
    s_mul_i32 s10, s10, {CH_REG}
    s_add_u32 s10, s10, {CH0}
    s_lshl_b32 s68, s9, 8
    s_lshl_b32 s69, s9, 1
    v_lshlrev_b32 v{KB+5}, 3, v{lane}
    v_add_u32 v{KB+5}, s10, v{KB+5}
    v_lshlrev_b32 v{KB+3}, 2, v{lane}
    v_mov_b32 v{KB+4}, 0
    v_lshlrev_b32 v3, 4, v{lane}
    s_mul_i32 s15, s9, {UP}
    s_add_u32 s15, s15, 64
    v_add_u32 v23, s10, v3
    s_lshl_b32 s14, s2, 4
    s_add_u32 s14, s14, 12288
    v_and_b32 v4, 31, v{lane}             ; b
    v_lshrrev_b32 v5, 5, v{lane}          ; h
    v_lshlrev_b32 v6, 4, v4
    s_add_u32 s11, s10, {CV_K}
    v_sub_u32 v6, s11, v6
    v_lshlrev_b32 v7, 3, v5
    v_sub_u32 v20, v6, v7
    v_lshlrev_b32 v7, 9, v5
    v_sub_u32 v21, v6, v7
    v_sub_u32 v22, v21, v7
    v_add_u32 v22, {2*760}, v22
    v_add_u32 v21, {2*1528}, v21
    v_add_u32 v20, {2*1788}, v20
    ''')
    vKA, vKB = 18, 19
    a(f'''
    v_lshlrev_b32 v7, 4, v5
    v_add_u32 v7, s10, v7
    v_add_u32 v6, 28, v4
    v_mul_u32_u24 v6, {KP}, v6
    v_add_u32 v{vKB}, v6, v7
    v_mov_b32 v6, v4
    ''')
    for thr in (11, 15, 19, 23):
        a(f'v_cmp_lt_u32 vcc, {thr}, v4')
        a(f'v_subbrev_co_u32 v6, vcc, 0, v6, vcc')
    vF, vG = 24, 25
    a(f'''
    v_mul_u32_u24 v6, {KP}, v6
    v_add_u32 v{vKA}, v6, v7
    v_and_b32 v7, 1, v4
    v_cmp_eq_u32 s[70:71], 1, v7          ; odd b
    v_and_b32 v26, 15, v{lane}
    v_lshrrev_b32 v27, 4, v{lane}
    v_lshlrev_b32 v28, 4, v27
    v_lshlrev_b32 v29, 3, v26
    v_sub_u32 v{vF}, v28, v29
    s_add_u32 s6, s11, {2*2044-3968}
    v_add_u32 v{vF}, s6, v{vF}
    v_and_b32 v30, 3, v26
    v_mul_u32_u24 v30, {CS}, v30
    v_lshrrev_b32 v31, 2, v26
    v_lshl_add_u32 v30, v31, 7, v30
    v_add3_u32 v{vG}, v30, v28, s10
    s_waitcnt lgkmcnt(0)
    ''')
    srd(a, 44, P_LOGA, 1024 * 256)
    srd(a, 48, P_LOGDT, 2048)
    srd(a, 52, P_AIM, 1024 * 256)
    a(f'buffer_load_dword v{KB+8}, v{KB+3}, s[44:47], s68 offen')
    a(f'buffer_load_ushort v{KB+12}, v{KB+4}, s[48:51], s69 offen')
    a(f'buffer_load_dword v{KB+9}, v{KB+3}, s[52:55], s68 offen')
    srd(a, 44, P_CRE, 1024 * 256)
    srd(a, 48, P_CIM, 1024 * 256)
    srd(a, 52, P_DSKIP, 2048)
    a(f'buffer_load_dword v{KB+10}, v{KB+3}, s[44:47], s68 offen')
    a(f'buffer_load_dword v{KB+11}, v{KB+3}, s[48:51], s68 offen')
    a(f'buffer_load_ushort v17, v{KB+4}, s[52:55], s69 offen')
    a('s_barrier')
    a(f"s_setprio {os.environ.get('APRIO', '1')}")
    stamp(a, 8)
    a('s_waitcnt vmcnt(3)')
    stamp(a, 1)
    gen_kgen(a, 0, KB, KB + 5, 's_nop 0', 's_nop 0')
    stamp(a, 9)
    gen_kgen(a, 1, KB, KB + 5, 's_nop 0', 's_waitcnt vmcnt(0)', skip_setup=True)
    a('s_waitcnt lgkmcnt(0)')
    stamp(a, 2)
    D = 32
    FB = 64
    def rd(kk):
        b = FB + 8 * (kk & 7)
        a(f'ds_read_b128 {vr(b,4)}, v{vKA} offset:{kk*32}')
        a(f'ds_read_b128 {vr(b+4,4)}, v{vKB} offset:{kk*32}')
    for kk in range(6): rd(kk)
    for kk in range(16):
        b = FB + 8 * (kk & 7)
        rem = min(5, 15 - kk)
        a(f's_waitcnt lgkmcnt({2*rem})')
        a(f'v_mfma_f32_32x32x16_bf16 {vr(D,16)}, {vr(b,4)}, {vr(b+4,4)}, ' + ('0' if kk == 0 else vr(D, 16)))
        if kk + 6 < 16: rd(kk + 6)
    a(f'''
    v_mov_b32 v8, 0
    v_mov_b32 v9, 0
    v_mov_b32 v10, 0
    v_mov_b32 v11, 0
    s_mov_b64 exec, 0xffffff
    ''')
    for c in range(4):
        a(f'ds_write_b128 v23, v[8:11] offset:{c*CS}')
    E = 128
    a(f'''
    s_mov_b64 exec, 0xff
    ds_write_b128 v23, v[8:11] offset:{CV_K+4096}
    s_mov_b64 exec, -1
    v_lshlrev_b32 v17, 16, v17
    s_mov_b64 exec, 1
    v_add_f32 v{D}, v{D}, v17
    s_mov_b64 exec, -1
    v_cvt_pk_bf16_f32 v{E}, v{D+3}, v{D+2}
    v_cvt_pk_bf16_f32 v{E+1}, v{D+1}, v{D}
    ds_write_b64 v20, {vr(E,2)} offset:512
    v_cvt_pk_bf16_f32 v{E+2}, v{D+6}, v{D+5}
    v_cvt_pk_bf16_f32 v{E+3}, v{D+4}, v{D+4}
    ds_write_b64 v20, {vr(E+2,2)}
    v_cvt_pk_bf16_f32 v{E+4}, v{D+10}, v{D+10}
    v_cvt_pk_bf16_f32 v{E+5}, v{D+9}, v{D+9}
    v_cvt_pk_bf16_f32 v{E+6}, v{D+9}, v{D+8}
    v_cvt_pk_bf16_f32 v{E+7}, v{D+8}, v{D+8}
    ds_write_b128 v21, {vr(E+4,4)}
    ''')
    for j in range(2):
        x, z, q = D + 12 + 2 * j, D + 13 + 2 * j, E + 8 + 4 * j
        a(f'''
        v_cndmask_b32 v{D+7}, v{x}, v{z}, s[70:71]
        v_cvt_pk_bf16_f32 v{q}, v{z}, v{z}
        v_cvt_pk_bf16_f32 v{q+1}, v{z}, v{D+7}
        v_cvt_pk_bf16_f32 v{q+2}, v{x}, v{x}
        v_cvt_pk_bf16_f32 v{q+3}, v{x}, v{x}
        ds_write_b128 v22, {vr(q,4)} offset:{512*(1-j)}
        ''')
    ACC = 32
    a('s_waitcnt lgkmcnt(0)')
    for k in range(32): a(f'v_mov_b32 v{ACC+k}, 0')
    a(f'v_mov_b32 v{UR}, 0')
    a(f'v_mov_b32 v{UR+1}, 0')
    getws(a, 8)
    srd(a, 44, P_D, 1024 * UP, WS_UT)
    srd(a, 52, P_D, 4 << 20, WS_YT)
    a('s_lshl_b32 s13, s9, 12')
    stamp(a, 3)
    lds_wait(a, C_G0, 1, 8, slp=1)
    a('s_setprio 3')
    stamp(a, 4)
    for p in range(4):
        a(f'buffer_load_dwordx4 {vr(UR+8*p+2,4)}, v3, s[44:47], s15 offen offset:{p*1024} sc1')
    lds_arrive(a, C_UL, 8)
    dpp = 'row_mask:0xf bank_mask:0xf'
    Q = 64
    for p in range(4):
        r = UR + 8 * p
        q = Q + 12 * p
        a(f's_waitcnt vmcnt({3-p})')
        a(f'ds_write_b128 v23, {vr(r+2,4)} offset:{384 + 3*CS + 1024*p}')
        a(f'v_mov_b32_dpp v{r}, v{r+4} wave_shr:1 {dpp}')
        a(f'v_mov_b32_dpp v{r+1}, v{r+5} wave_shr:1 {dpp}')
        if p < 3:
            a(f'v_mov_b32_dpp v{r+8}, v{r+4} wave_ror:1 {dpp}')
            a(f'v_mov_b32_dpp v{r+9}, v{r+5} wave_ror:1 {dpp}')
        for j in range(4):
            a(f'v_mov_b32 v{q+8+j}, v{r+1+j}')
        a(f'ds_write_b128 v23, {vr(q+8,4)} offset:{384 + 1*CS + 1024*p}')
        for j in range(4):
            a(f'v_alignbit_b32 v{q+j}, v{r+j+1}, v{r+j}, 16')
        a(f'ds_write_b128 v23, {vr(q,4)} offset:{384 + 1024*p}')
        for j in range(3):
            a(f'v_mov_b32 v{q+4+j}, v{q+1+j}')
        a(f'v_alignbit_b32 v{q+7}, v{r+5}, v{r+4}, 16')
        a(f'ds_write_b128 v23, {vr(q+4,4)} offset:{384 + 2*CS + 1024*p}')
    G0, F0 = 64, 96
    def ld(kind, idx, off):
        if kind == 'G':
            return [f'ds_read_b128 {vr(G0+4*idx,4)}, v{vG} offset:{512*idx+off}']
        return [f'ds_read_b64 {vr(F0+4*idx,2)}, v{vF} offset:{512*(7-idx)+off}', f'ds_read_b64 {vr(F0+4*idx+2,2)}, v{vF} offset:{512*(7-idx)+off+8}']
    even = [(i, c) for i in range(8) for c in range(7 - i, -1, -1)]
    odd = [(i, c) for c in range(7, -1, -1) for i in range(8 - c)]
    def plan(seq):
        lastG, lastF = {}, {}
        for n, (i, c) in enumerate(seq): lastG[i] = n; lastF[c] = n
        rel = {}
        for i, n in lastG.items(): rel.setdefault(n, []).append(('G', i))
        for c, n in lastF.items(): rel.setdefault(n, []).append(('F', c))
        return rel
    rel_e, rel_o = plan(even), plan(odd)
    order0 = [x for n in range(36) for x in rel_o.get(n, [])]
    a('s_waitcnt lgkmcnt(0)')
    stamp(a, 5)
    queue = []
    for kind, idx in order0:
        for ins in ld(kind, idx, 0):
            a(ins); queue.append((kind, idx))
    a('s_mov_b32 s12, 0')
    a('s_setprio 1')
    a(f'v_mov_b32 v16, {CNT+4*C_Z}')
    a('.cv_loop:')
    q0 = list(queue)
    PAUSE = os.environ.get('PAUSE', '0') == '1'
    PK = [int(x) for x in os.environ.get('PAUSE_AT', '12,30').split(',')]
    for seq, rel, off in ((even, rel_e, 64), (odd, rel_o, 128)):
        for n, (i, c) in enumerate(seq):
            if PAUSE and n in PK:
                a(f'ds_read_b96 v[8:10], v16'); queue.append(('P', 0))
            want = [('G', i), ('F', c)]
            chk = PAUSE and (n - 4) in PK
            if chk: want.append(('P', 0))
            need = [k for k, x in enumerate(queue) if x in want]
            if need:
                left = len(queue) - 1 - max(need)
                a(f's_waitcnt lgkmcnt({min(left, 15)})')
                queue = queue[max(need) + 1:] if left <= 15 else queue[len(queue) - 15:]
            if chk:
                Lg = a.label('go')
                a(f'''
                v_sub_u32 v8, v8, v10
                v_readfirstlane_b32 s4, v8
                s_cmp_lt_i32 s4, {os.environ.get('PAUSE_TH', '1')}
                s_cbranch_scc1 {Lg}
                ''')
                lds_wait(a, C_O, 4, 12, slp=1)
                a(f'{Lg}:')
            A = i + c
            a(f'v_mfma_f32_16x16x32_bf16 {vr(ACC+4*A,4)}, {vr(G0+4*i,4)}, {vr(F0+4*c,4)}, {vr(ACC+4*A,4)}')
            for kind, idx in rel.get(n, []):
                for ins in ld(kind, idx, off):
                    a(ins); queue.append((kind, idx))
    assert q0[len(q0) - len(queue):] == queue, (q0, queue)
    a(f'''
    v_add_u32 v{vG}, 128, v{vG}
    v_add_u32 v{vF}, 128, v{vF}
    s_add_u32 s12, s12, 1
    s_cmp_lt_u32 s12, 4
    s_cbranch_scc1 .cv_loop
    ''')
    stamp(a, 6)
    a.raw(';PLAIN_ON')
    for P in range(4):
        o = 128 + 4 * P
        for e in range(2):
            A = 2 * P + e
            a(f'v_cvt_pk_bf16_f32 v{o+2*e}, v{ACC+4*A}, v{ACC+4*A+1}')
            a(f'v_cvt_pk_bf16_f32 v{o+2*e+1}, v{ACC+4*A+2}, v{ACC+4*A+3}')
        a(f'buffer_store_dwordx4 {vr(o,4)}, v3, s[52:55], s13 offen offset:{1024*P}')
    a('s_waitcnt vmcnt(0) lgkmcnt(0)')
    publish(a, C_CV, 4, 14, 8)
    a.raw(';PLAIN_OFF')
    stamp(a, 7)
    stamp_flush(a, 0, 10)
    a('s_endpgm')

def build():
    hdr = open(f'cdna_kernels/{NAME}.s.ref').read().split('\n')
    head = [l for l in hdr if l.startswith(';') and '@launch' not in l.lower()]
    out = '\n'.join(head) + '\n'
    out += f'; @launch grid=(256,1,1) block=(768,1,1) lds={LDS_SIZE}\n'
    out += '.amdgcn_target "amdgcn-amd-amdhsa--gfx950"\n.text\n'
    a = Asm()
    KN = NAME + '_kernel'
    a.raw(f'.globl {KN}')
    a.raw(f'.type {KN},@function')
    gen_main(a)
    body = a.render()
    res = []
    plain = False
    for l in body.split('\n'):
        if l.startswith(';PLAIN_ON'): plain = XL2
        if l.startswith(';OUT_ON'): plain = os.environ.get('OUTPLAIN', '0') == '1'
        if l.startswith(';PLAIN_OFF'): plain = False
        if l.strip().startswith('buffer_store') and not plain:
            flag = 's[60:63]' in l or 's[64:67]' in l
            l = l + ' ' + (os.environ.get('FSPOL', 'sc1') if flag else os.environ.get('STPOL', 'sc1'))
        if l.strip().startswith('buffer_load_dwordx4') and ' sc1' in l:
            l = l.replace(' sc1', ' ' + os.environ.get('LDPOL', 'sc1'))
        elif l.strip().startswith('buffer_load') and ' sc1' in l and ('s[60:63]' in l or 's[64:67]' in l):
            l = l.replace(' sc1', ' ' + os.environ.get('FLPOL', 'sc1'))
        res.append(l)
    out += '\n'.join(res)
    out += '.section .rodata,"a"\n'
    out += kd(KN, 168, 102)
    return out

if __name__ == '__main__':
    path = sys.argv[1] if len(sys.argv) > 1 else f'cdna_kernels/{NAME}.s'
    open(path, 'w').write(build())
    print('wrote', path)
```
